```python
import torch

def _softmax(x, axis=-1):
    return torch.softmax(x, dim=axis)
def _gelu(x):
    return torch.nn.functional.gelu(x, approximate="tanh")
def _silu(x):
    return torch.nn.functional.silu(x)
def _sigmoid(x):
    return torch.sigmoid(x)
def _layernorm(x, axis=-1, eps=1e-5):
    m = x.mean(dim=axis, keepdim=True)
    v = x.var(dim=axis, keepdim=True, unbiased=False)
    return (x - m) / torch.sqrt(v + eps)
def _scatter_add(tgt, idx, src, axis=0):
    return tgt.clone().index_add_(axis, idx, src)
def _segment_sum(src, seg, n):
    out = torch.zeros((n,) + src.shape[1:], dtype=src.dtype)
    return out.index_add_(0, seg, src)
def _pad(x, pw):
    flat = tuple(v for pair in reversed(pw) for v in pair)
    return torch.nn.functional.pad(x, flat)

kernel_name = 'gated_mix__mha_block_cached__dense_activation_relu__decode'

def setup_inputs():

    _w = (lambda a: (lambda t: t.to(torch.bfloat16) if t.is_floating_point() else t)(torch.as_tensor(a)))
    def _A_setup():
        B, Sq, D = 2, 1, 448
        H, Sk, Dh = 16, 4096, 256
        return {
            "x": _w((lambda *s: torch.randn(*s, dtype=torch.bfloat16) * 0.05)(B, Sq, D)),
            "k_cache": _w((lambda *s: torch.randn(*s, dtype=torch.bfloat16) * 6.4)(B, H, Sk, Dh)),
            "v_cache": _w((lambda *s: torch.randn(*s, dtype=torch.bfloat16) * 0.4)(B, H, Sk, Dh)),
            "wq": _w((lambda *s: torch.randn(*s, dtype=torch.bfloat16) * 6.4)(D, H * Dh) * (D ** -0.5)),
            "wo": _w((lambda *s: torch.randn(*s, dtype=torch.bfloat16) * 0.4)(H * Dh, D) * ((H * Dh) ** -0.5)),
        }
    _A_in = _A_setup()

    def _B_setup():
        B, S, D, Dff = 2, 1, 448, 1792
        return {
            "x": _w((lambda *s: torch.randn(*s, dtype=torch.bfloat16) * 0.05)(B, S, D)),
            "w1": _w((lambda *s: torch.randn(*s, dtype=torch.bfloat16) * 0.05)(D, Dff)),
            "w2": _w((lambda *s: torch.randn(*s, dtype=torch.bfloat16) * 0.05)(Dff, D)),
        }
    _B_in = _B_setup()

    return {
        "A_x": _A_in["x"],
        "A_k_cache": _A_in["k_cache"],
        "A_v_cache": _A_in["v_cache"],
        "A_wq": _A_in["wq"],
        "A_wo": _A_in["wo"],
        "B_x": _B_in["x"],
        "B_w1": _B_in["w1"],
        "B_w2": _B_in["w2"],
        "gate_w": _w((lambda *s: torch.randn(*s, dtype=torch.bfloat16) * 0.05)(448) * 16.0),
    }

def reference(A_x, A_k_cache, A_v_cache, A_wq, A_wo, B_x, B_w1, B_w2, gate_w):
    def _A_ref(x, k_cache, v_cache, wq, wo):
        B, Sq, D = x.shape
        H, Dh = 16, 256
        q = (lambda x, *d: x.permute(*d))((x @ wq).reshape(B, Sq, H, Dh), 0, 2, 1, 3)
        scores = torch.einsum("bhqd,bhkd->bhqk", q, k_cache) * (Dh ** -0.5)
        p = _softmax(scores, axis=-1)
        o = torch.einsum("bhqk,bhkd->bhqd", p, v_cache)
        return (lambda x, *d: x.permute(*d))(o, 0, 2, 1, 3).reshape(B, Sq, H * Dh) @ wo

    def _B_ref(x, w1, w2):
        h = torch.einsum("bsd,df->bsf", x, w1)
        zero = torch.zeros_like(h)
        h = torch.maximum(h, zero)
        return torch.einsum("bsf,fd->bsd", h, w2)

    x = A_x
    g = _sigmoid((x * gate_w).sum(-1, keepdims=True))
    a = _A_ref(x, A_k_cache, A_v_cache, A_wq, A_wo)
    b = _B_ref(x, B_w1, B_w2)
    return g * a + (1 - g) * b
```

```python
import re

TRANS = ("v_exp_f32", "v_log_f32", "v_rcp_f32", "v_rsq_f32", "v_sqrt_f32", "v_sin_f32", "v_cos_f32")

def regs_of(o):
    o = o.strip()
    o = o.lstrip("-")
    m = re.fullmatch(r"abs\((.*)\)", o)
    if m: o = m.group(1)
    m = re.fullmatch(r"([vsa])(\d+)", o)
    if m: return {(m.group(1), int(m.group(2)))}
    m = re.fullmatch(r"([vsa])\[(\d+):(\d+)\]", o)
    if m: return {(m.group(1), k) for k in range(int(m.group(2)), int(m.group(3)) + 1)}
    if o in ("vcc", "vcc_lo", "vcc_hi"): return {("s", "vcc")}
    if o in ("exec", "exec_lo", "exec_hi"): return {("s", "exec")}
    if o == "m0": return {("s", "m0")}
    return set()

class Ins:
    def __init__(self, text):
        self.text = text
        t = text.split(";")[0].strip()
        self.is_label = t.endswith(":")
        self.is_dir = t.startswith(".") or t == ""
        self.op = t.split()[0] if t and not self.is_label else ""
        rest = t[len(self.op):].strip() if self.op else ""
        parts = re.split(r",\s*(?![^\[]*\])", rest) if rest else []
        ops = []
        for k, p in enumerate(parts):
            ops.append(p.split()[0] if p.strip() else "")
        self.mods = rest
        self.ops = ops
        op = self.op
        R = [regs_of(o) for o in ops]
        self.wr = set(); self.rd = set(); self.kind = "other"
        self.dpp = "_dpp" in op
        U = lambda xs: set().union(*xs) if xs else set()
        if op.startswith("v_mfma"):
            self.kind = "mfma"; self.wr = R[0]; self.A = R[1]; self.B = R[2]; self.C = R[3]; self.rd = U(R[1:])
            self.passes = 8 if "32x32" in op else 4
        elif op.startswith("v_permlane") and "swap" in op:
            self.kind = "valu"; self.wr = U(R); self.rd = U(R); self.perm = True
        elif op.startswith("v_"):
            self.kind = "valu"; self.wr = set(R[0]); self.rd = U(R[1:])
            if op.startswith(("v_add_co", "v_sub_co", "v_addc_co")): self.wr |= R[1]
            if op.startswith(("v_fmac", "v_writelane", "v_dot2c")) or self.dpp: self.rd |= R[0]
            if op.startswith("v_cndmask") and len(ops) == 3: self.rd |= {("s", "vcc")}
        elif op.startswith(("buffer_load", "global_load")):
            self.kind = "vmem"
            if re.search(r"\blds\b", rest): self.rd = U(R) | {("s", "m0")}; self.ldsdma = True
            else: self.wr = R[0]; self.rd = U(R[1:])
        elif op.startswith(("buffer_store", "global_store", "buffer_atomic", "global_atomic")):
            self.kind = "vmem"; self.rd = U(R); self.store = True
            self.data = R[0] if op.startswith("buffer") else R[1]
            self.wide = op.endswith(("x3", "x4"))
        elif op.startswith("ds_read"):
            self.kind = "ds"; self.wr = R[0]; self.rd = U(R[1:])
        elif op.startswith("ds_"):
            self.kind = "ds"; self.rd = U(R)
        elif op.startswith("s_"):
            self.kind = "salu"
            if op.startswith(("s_cmp", "s_cbranch", "s_branch", "s_waitcnt", "s_nop", "s_barrier", "s_sleep", "s_setprio", "s_endpgm")):
                self.rd = U(R)
            elif R: self.wr = R[0]; self.rd = U(R[1:])
        self.states = 1
        if op == "s_nop": self.states = int(ops[0], 0) + 1
        if self.is_label or self.is_dir: self.states = 0

def need(prod, cons):
    n = 0
    isv = lambda s: {r for r in s if r[0] in "va"}
    iss = lambda s: {r for r in s if r[0] == "s"}
    if prod.kind == "mfma":
        D = prod.wr; far = {4: 8, 8: 12}[prod.passes]
        if cons.kind == "mfma":
            if D & (cons.A | cons.B): n = max(n, far)
            if D & cons.C and not (cons.C == D and cons.passes == prod.passes): n = max(n, {4: 6, 8: 10}[prod.passes])
            if D & cons.wr and not (cons.C == D): n = max(n, far)
        elif cons.kind in ("valu", "vmem", "ds"):
            if D & (cons.rd | cons.wr): n = max(n, far)
        if cons.kind == "valu" and prod.C & cons.wr: n = max(n, {4: 3, 8: 7}[prod.passes])
    if prod.kind == "valu":
        wv = isv(prod.wr); ws = iss(prod.wr)
        if cons.kind == "mfma" and wv & cons.rd: n = max(n, 2)
        if cons.kind == "valu":
            if cons.dpp and wv & regs_of(cons.ops[1]): n = max(n, 2)
            if getattr(cons, "perm", False) and wv & cons.rd: n = max(n, 2)
            if cons.op.startswith(("v_readfirstlane", "v_readlane")) and wv & cons.rd: n = max(n, 1)
            if prod.op.startswith(TRANS) and not cons.op.startswith(TRANS) and wv & cons.rd: n = max(n, 1)
            if ws & cons.rd: n = max(n, 4 if cons.op.startswith(("v_readlane", "v_writelane")) else 2)
            if ("s", "exec") in ws: n = max(n, 5 if cons.dpp else 4)
        if cons.kind == "vmem" and ws & cons.rd: n = max(n, 5)
        if cons.kind == "salu" and ws & cons.rd: n = max(n, 1)
        if cons.kind == "mfma" and ("s", "exec") in ws: n = max(n, 4)
    if prod.kind == "salu" and ("s", "m0") in prod.wr and getattr(cons, "ldsdma", False): n = max(n, 1)
    if getattr(prod, "store", False) and prod.wide and cons.kind in ("valu", "ds", "vmem", "mfma") and prod.data & cons.wr: n = max(n, 2)
    return n

def pad_hazards(lines):
    out = []; hist = []
    for text in lines:
        ins = Ins(text)
        if ins.is_label or ins.is_dir:
            out.append(text); continue
        dist = 0; pad = 0
        for p in reversed(hist):
            if dist >= 12: break
            r = need(p, ins)
            if r > dist: pad = max(pad, r - dist)
            dist += p.states
        if pad:
            nop = Ins(f"s_nop {pad - 1}"); out.append(f"  s_nop {pad - 1}"); hist.append(nop)
        out.append(text); hist.append(ins)
    return out
```

```python
import sys
sys.path.insert(0, "dev")
from asmlib import pad_hazards

NAME = "gated_mix__mha_block_cached__dense_activation_relu__decode_kernel"
HEADER = open("gated_mix__mha_block_cached__dense_activation_relu__decode.s.ref").read().split("; Override launch")[0]

WS_Q = 0x1000
WS_S = 0x10000
WS_Y = 0x100000
WS_DBG = 0x400000
WS_SIZE = 268435456
L_WQ = 0x0000; L_RED1 = 0x0000; RED1_STRIDE = 1040
L_W1 = 0x3800
L_X = 0x7000
L_Q = 0x7800
L_H = 0x7A00
L_G = 0x7A40
L_FLAG = 0x7A80
L_FIN = 0x7C00
L_P = 0x8000
L_RED2 = 0xA000
LDS_BYTES = 0xA000 + 9 * 2048
TAGC = 0x9E3779B9
SPIN_MAX = 1 << 18

def gen(LIM=2, NQ=26, NP=60, WO_AT=48, CQ=3, CP=4, R=33, dbg=False, kflags="nt", wflags="nt"):
    L = []
    A = lambda s: L.append("  " + s)
    lab = lambda s: L.append(s + ":")
    def srd(d, p, nbytes):
        A(f"s_mov_b32 s{d}, s{p}"); A(f"s_mov_b32 s{d+1}, s{p+1}"); A(f"s_mov_b32 s{d+2}, {nbytes}"); A(f"s_mov_b32 s{d+3}, 0x20000")
    SK, SV, SWO, SWS, SWQ, SW1, SW2, SX, SG, SO = 40, 44, 48, 52, 56, 60, 64, 68, 72, 76
    stampn = [0]
    def stamp(idx):
        if dbg:
            A("s_memrealtime s[90:91]"); A("s_waitcnt lgkmcnt(0)"); A(f"v_writelane_b32 v167, s90, {idx}")
    def dump_stamps():
        if dbg:
            A("s_mul_i32 s92, s2, 9"); A("s_add_u32 s92, s92, s93"); A("s_lshl_b32 s92, s92, 8"); A(f"s_add_u32 s92, s92, {WS_DBG}")
            A("v_lshlrev_b32 v166, 2, v1")
            A(f"buffer_store_dword v167, v166, s[{SWS}:{SWS+3}], s92 offen")
    if dbg: R = min(R, 32)

    A("s_cmp_ge_u32 s2, 256"); A("s_cbranch_scc1 L_end")
    A("s_load_dwordx16 s[16:31], s[0:1], 0")
    A("s_load_dwordx8 s[32:39], s[0:1], 64")
    A("v_lshrrev_b32 v2, 6, v0"); A("v_and_b32 v1, 63, v0")
    A("v_readfirstlane_b32 s3, v2")
    A("s_and_b32 s14, s2, 7"); A("s_lshr_b32 s15, s2, 3")
    A("s_lshr_b32 s4, s15, 4")
    A("s_bfe_u32 s5, s15, 0x10003"); A("s_lshl_b32 s14, s14, 1"); A("s_add_u32 s5, s5, s14")
    A("s_and_b32 s6, s15, 7")
    A("s_lshl_b32 s7, s4, 4"); A("s_add_u32 s7, s7, s5")
    A("s_and_b32 s8, s6, 3"); A("s_lshr_b32 s9, s6, 2")
    A("s_lshl_b32 s10, s5, 3"); A("s_add_u32 s10, s10, s6")
    A("s_lshl_b32 s11, s4, 3"); A("s_add_u32 s11, s11, s6")
    if dbg:
        A("s_mov_b32 s93, s3"); A("v_mov_b32 v167, 0"); A("s_memrealtime s[88:89]")
    A("s_cmp_eq_u32 s3, 0"); A("s_cbranch_scc1 L_service")

    A("s_sub_u32 s3, s3, 1")
    vK, vV, vWo, vP, t0, t1 = 2, 3, 4, 5, 6, 7
    M = [8, 9, 10, 11]; Q = [12, 16]; PR = [12, 16]; DB = [20, 24]; AB = [20, 24]; SG_ = [28, 29, 30, 31]; ACC = 32
    RING = 36
    A(f"v_bfe_u32 v{t0}, v1, 2, 2"); A(f"v_lshlrev_b32 v{vK}, 9, v{t0}")
    A(f"v_lshrrev_b32 v{t0}, 4, v1"); A(f"v_lshl_add_u32 v{vK}, v{t0}, 6, v{vK}")
    A(f"v_and_b32 v{t0}, 3, v1"); A(f"v_lshl_add_u32 v{vK}, v{t0}, 4, v{vK}")
    A("s_lshl_b32 s13, s7, 21"); A("s_lshl_b32 s14, s3, 12"); A("s_add_u32 s13, s13, s14")
    A("s_lshl_b32 s14, s6, 18"); A("s_add_u32 s14, s14, s13")
    A(f"v_add_u32 v{vK}, s14, v{vK}")
    A("s_waitcnt lgkmcnt(0)")
    srd(SK, 18, 0x4000000)

    loads = []
    for beta in range(8):
        for tp in range(2):
            for jh in range(2): loads.append(("K", beta, tp, jh))
    vl = [("V", m) for m in range(32)]
    wl = [("W", r, cb) for r in range(4) for cb in range(2)]
    k = WO_AT - 32
    loads += vl[:k] + wl + vl[k:]
    free = list(range(R)); slot = {}
    issued = []
    landed = [-1]
    cur_soff = [None]
    def soff(val):
        if val == 0: return "0"
        if cur_soff[0] != val:
            A(f"s_mov_b32 s13, {val}"); cur_soff[0] = val
        return "s13"
    def wait_landed(n):
        if n <= landed[0]: return
        younger = sum(1 for x in issued if x[0] == "L" and x[1] > n)
        A(f"s_waitcnt vmcnt({younger})"); landed[0] = n
    def issue(n):
        ld = loads[n]; sl = free.pop(0); slot[n] = sl; r = RING + 4 * sl
        if ld[0] == "K":
            _, beta, tp, jh = ld
            A(f"buffer_load_dwordx4 v[{r}:{r+3}], v{vK}, s[{SK}:{SK+3}], {soff(beta * 32768)} offen offset:{tp * 2048 + jh * 256} {kflags}")
        elif ld[0] == "V":
            A(f"buffer_load_dwordx4 v[{r}:{r+3}], v{vV}, s[{SV}:{SV+3}], {soff(ld[1] * 32768)} offen {kflags}")
        else:
            A(f"buffer_load_dwordx4 v[{r}:{r+3}], v{vWo}, s[{SWO}:{SWO+3}], 0 offen offset:{ld[1] * 896 + ld[2] * 512} {wflags}")
        issued.append(("L", n))
    sreg = lambda n: RING + 4 * slot[n]
    def lds_wait_flag(off, val, tag):
        A(f"v_mov_b32 v{t0}, 0"); A(f"s_mov_b32 s80, {SPIN_MAX}")
        lab(f"L_wait_{tag}")
        A(f"ds_read_b32 v{t1}, v{t0} offset:{off}"); A("s_waitcnt lgkmcnt(0)")
        A(f"v_readfirstlane_b32 s81, v{t1}")
        A(f"s_cmp_eq_u32 s81, {val}"); A(f"s_cbranch_scc1 L_got_{tag}")
        A("s_sleep 1"); A("s_sub_u32 s80, s80, 1"); A("s_cmp_lg_u32 s80, 0"); A(f"s_cbranch_scc1 L_wait_{tag}")
        lab(f"L_got_{tag}")

    qk_next = [0]; qk_post = [None]; pv_next = [0]
    vidx = {ld[1]: n for n, ld in enumerate(loads) if ld[0] == "V"}
    widx = {(ld[1], ld[2]): n for n, ld in enumerate(loads) if ld[0] == "W"}
    def qk_dpp(tau):
        beta, tp = tau >> 1, tau & 1; G = beta >> 1; t = 2 * (beta & 1) + tp; d = DB[tau & 1]
        A(f"v_mov_b32_dpp v{t0}, v{d} quad_perm:[0,0,0,0] row_mask:0xf bank_mask:0xf")
        A(f"v_add_f32_dpp v{t0}, v{d+1}, v{t0} quad_perm:[1,1,1,1] row_mask:0xf bank_mask:0xf")
        A(f"v_add_f32_dpp v{t0}, v{d+2}, v{t0} quad_perm:[2,2,2,2] row_mask:0xf bank_mask:0xf")
        A(f"v_add_f32_dpp v{SG_[G]}, v{d+3}, v{t0} quad_perm:[3,3,3,3] row_mask:0xf bank_mask:{hex(1 << t)}")
    def qk_tile(tau):
        d = DB[tau & 1]; a0 = sreg(2 * tau); a1 = sreg(2 * tau + 1)
        A(f"v_mfma_f32_16x16x32_bf16 v[{d}:{d+3}], v[{a0}:{a0+3}], v[{Q[0]}:{Q[0]+3}], 0")
        A(f"v_mfma_f32_16x16x32_bf16 v[{d}:{d+3}], v[{a1}:{a1+3}], v[{Q[1]}:{Q[1]+3}], v[{d}:{d+3}]")
        free.extend([slot[2 * tau], slot[2 * tau + 1]])
        if qk_post[0] is not None: qk_dpp(qk_post[0])
        qk_post[0] = tau
    def publish_scores():
        qk_dpp(qk_post[0]); qk_post[0] = None
        u_ = DB[0]
        A(f"v_cvt_pk_bf16_f32 v{u_}, v{SG_[0]}, v{SG_[1]}"); A(f"v_mov_b32 v{u_+1}, s12")
        A(f"v_cvt_pk_bf16_f32 v{u_+2}, v{SG_[2]}, v{SG_[3]}"); A(f"v_mov_b32 v{u_+3}, s12")
        A(f"v_lshlrev_b32 v{t0}, 2, v1")
        A("s_lshl_b32 s14, s7, 14"); A("s_lshl_b32 s15, s6, 3"); A("s_add_u32 s15, s15, s3"); A("s_lshl_b32 s15, s15, 8")
        A("s_add_u32 s14, s14, s15"); A(f"s_add_u32 s14, s14, {WS_S}")
        A("s_mov_b32 exec_lo, 0x11111111"); A("s_mov_b32 exec_hi, 0x11111111")
        A(f"buffer_store_dwordx4 v[{u_}:{u_+3}], v{t0}, s[{SWS}:{SWS+3}], s14 offen sc1")
        issued.append(("S",))
        A("s_mov_b64 exec, 1")
        A(f"v_mov_b32 v{t0}, 0"); A(f"v_mov_b32 v{t1}, 1")
        A(f"ds_add_u32 v{t0}, v{t1} offset:{L_FLAG + 8}")
        A("s_mov_b64 exec, -1")
        stamp(3)
    def pv_tile(m):
        s2_, G, th = m >> 3, (m >> 1) & 3, m & 1
        if (m & 7) == 0:
            A(f"ds_read_b128 v[{PR[0]}:{PR[0]+3}], v{vP} offset:{(2 * s2_) * 128}")
            A(f"ds_read_b128 v[{PR[1]}:{PR[1]+3}], v{vP} offset:{(2 * s2_ + 1) * 128}")
            A("s_waitcnt lgkmcnt(0)")
        a = AB[m & 1]; p = PR[th] + G; bv = sreg(vidx[m])
        for r in range(4): A(f"v_and_b32 v{a+r}, v{p}, v{M[r]}")
        c = "0" if m == 0 else f"v[{ACC}:{ACC+3}]"
        A(f"v_mfma_f32_16x16x32_bf16 v[{ACC}:{ACC+3}], v[{a}:{a+3}], v[{bv}:{bv+3}], {c}")
        free.append(slot[vidx[m]])

    N = len(loads)
    published = False
    for n in range(N):
        if n > LIM: wait_landed(n - LIM - 1)
        if n == NQ:
            stamp(1)
            lds_wait_flag(L_FLAG, 1, "q")
            A(f"v_lshrrev_b32 v{t0}, 4, v1"); A(f"v_and_b32 v{t1}, 3, v1"); A(f"v_lshl_add_u32 v{t0}, v{t0}, 2, v{t1}"); A(f"v_lshlrev_b32 v{t0}, 4, v{t0}")
            A(f"ds_read_b128 v[{Q[0]}:{Q[0]+3}], v{t0} offset:{L_Q}")
            A(f"ds_read_b128 v[{Q[1]}:{Q[1]+3}], v{t0} offset:{L_Q + 256}")
            A(f"v_mov_b32 v{t0}, 0")
            A(f"ds_read_b32 v{t1}, v{t0} offset:{L_G + 4}")
            A("s_waitcnt lgkmcnt(0)")
            A(f"v_readfirstlane_b32 s12, v{t1}")
            stamp(2)
        if n == NP:
            stamp(4)
            lds_wait_flag(L_FLAG + 4, 1, "p")
            stamp(5)
        if not free:
            if n >= NP: pv_tile(pv_next[0]); pv_next[0] += 1
            else: raise RuntimeError(f"no free slot at load {n}")
        issue(n)
        if n == LIM:
            srd(SV, 20, 0x4000000); srd(SWO, 24, 3670016); srd(SWS, 38, WS_SIZE)
            A("s_barrier")
            A(f"v_lshrrev_b32 v{t0}, 3, v1"); A(f"v_lshlrev_b32 v{vV}, 9, v{t0}")
            A(f"v_lshlrev_b32 v{vP}, 4, v{t0}")
            A(f"v_and_b32 v{t0}, 7, v1"); A(f"v_lshl_add_u32 v{vV}, v{t0}, 4, v{vV}")
            A("s_lshl_b32 s14, s7, 21"); A("s_lshl_b32 s15, s3, 12"); A("s_add_u32 s14, s14, s15")
            A("s_lshl_b32 s15, s9, 20"); A("s_add_u32 s14, s14, s15"); A("s_lshl_b32 s15, s8, 7"); A("s_add_u32 s14, s14, s15")
            A(f"v_add_u32 v{vV}, s14, v{vV}")
            A("s_lshl_b32 s14, s3, 10"); A(f"s_add_u32 s14, s14, {L_P}"); A(f"v_add_u32 v{vP}, s14, v{vP}")
            A(f"v_lshrrev_b32 v{t0}, 5, v1"); A(f"v_mul_u32_u24 v{vWo}, 3584, v{t0}")
            A(f"v_and_b32 v{t0}, 31, v1"); A(f"v_lshl_add_u32 v{vWo}, v{t0}, 4, v{vWo}")
            A("s_lshl_b32 s14, s5, 8"); A("s_lshl_b32 s15, s8, 6"); A("s_add_u32 s14, s14, s15"); A("s_lshl_b32 s15, s3, 3"); A("s_add_u32 s14, s14, s15")
            A("s_mul_i32 s14, s14, 896"); A(f"v_add_u32 v{vWo}, s14, v{vWo}")
            masks(A, M, t0, t1)
            if dbg: A("s_waitcnt lgkmcnt(0)"); A("v_writelane_b32 v167, s88, 0")
        if n >= NQ:
            c = 0
            while qk_next[0] < 16 and c < CQ and 2 * qk_next[0] + 1 <= landed[0]:
                qk_tile(qk_next[0]); qk_next[0] += 1; c += 1
            if qk_next[0] == 16 and not published:
                publish_scores(); published = True
        if n >= NP:
            c = 0
            while pv_next[0] < 32 and c < CP and vidx[pv_next[0]] <= landed[0]:
                pv_tile(pv_next[0]); pv_next[0] += 1; c += 1
    assert published
    vR1w, vR1r, vR2w = vK, vV, vWo
    A(f"s_mul_i32 s14, s3, {RED1_STRIDE}"); A(f"v_lshlrev_b32 v{vR1w}, 4, v1"); A(f"v_add_u32 v{vR1w}, s14, v{vR1w}")
    A(f"v_and_b32 v{t0}, 7, v1"); A(f"v_mul_u32_u24 v{vR1r}, {RED1_STRIDE}, v{t0}")
    A(f"v_bfe_u32 v{t0}, v1, 3, 1"); A(f"v_mul_u32_u24 v{t0}, 640, v{t0}"); A(f"v_add_u32 v{vR1r}, v{vR1r}, v{t0}")
    A(f"v_lshrrev_b32 v{t0}, 5, v1"); A(f"v_lshl_add_u32 v{vR1r}, v{t0}, 8, v{vR1r}")
    A("s_lshl_b32 s14, s3, 4"); A(f"v_add_u32 v{vR1r}, s14, v{vR1r}")
    red2_lane(A, vR2w, t0)
    A("s_lshl_b32 s14, s3, 11"); A(f"v_add_u32 v{vR2w}, s14, v{vR2w}")
    while pv_next[0] < 32:
        wait_landed(vidx[pv_next[0]]); pv_tile(pv_next[0]); pv_next[0] += 1
    wait_landed(N - 1)
    stamp(6)
    mask_prime(A, M, t0, t1)
    A(f"ds_write_b128 v{vR1w}, v[{ACC}:{ACC+3}] offset:{L_RED1}")
    A("s_waitcnt lgkmcnt(0)"); A("s_barrier")
    O = 28
    A(f"ds_read_b128 v[{O}:{O+3}], v{vR1r} offset:{L_RED1}")
    A("s_waitcnt lgkmcnt(0)")
    for ctl in ("quad_perm:[1,0,3,2]", "quad_perm:[2,3,0,1]", "row_half_mirror", "row_mirror"):
        for r in range(4): A(f"v_add_f32_dpp v{O+r}, v{O+r}, v{O+r} {ctl} row_mask:0xf bank_mask:0xf")
    for r in range(4): A(f"v_cvt_pk_bf16_f32 v{O+r}, v{O+r}, v{O+r}")
    DA, DBb = 12, 16
    for r in range(4):
        a = AB[r & 1]
        for q in range(4): A(f"v_and_b32 v{a+q}, v{O+r}, v{M[q]}")
        for cb, d in ((0, DA), (1, DBb)):
            bw = sreg(widx[(r, cb)]); c = "0" if r == 0 else f"v[{d}:{d+3}]"
            A(f"v_mfma_f32_16x16x32_bf16 v[{d}:{d+3}], v[{a}:{a+3}], v[{bw}:{bw+3}], {c}")
    A("s_lshl_b32 s14, s3, 9"); A(f"v_lshl_add_u32 v{t0}, v1, 3, s14")
    A(f"v_mov_b32 v{t1}, 0")
    A(f"ds_read_b32 v{ACC}, v{t1} offset:{L_G}")
    A(f"ds_write_b128 v{vR2w}, v[{DA}:{DA+3}] offset:{L_RED2}")
    A(f"ds_write_b128 v{vR2w}, v[{DBb}:{DBb+3}] offset:{L_RED2 + 1024}")
    A("s_waitcnt lgkmcnt(0)"); A("s_barrier")
    stamp(7)
    A("s_cmp_ge_u32 s3, 4"); A("s_cbranch_scc1 L_ydone")
    Y = RING
    for k_ in range(9): A(f"ds_read_b64 v[{Y+2*k_}:{Y+2*k_+1}], v{t0} offset:{L_RED2 + 2048 * k_}")
    A("s_lshl_b32 s14, s3, 6"); A(f"v_add_u32 v{t1}, s14, v1")
    A(f"v_cmp_gt_u32 vcc, 224, v{t1}")
    A(f"v_lshrrev_b32 v{vK}, 3, v{t1}"); A(f"v_lshlrev_b32 v{vK}, 14, v{vK}")
    A(f"v_and_b32 v{t1}, 7, v{t1}"); A(f"v_lshl_add_u32 v{vK}, v{t1}, 4, v{vK}")
    A(f"s_mul_i32 s14, s4, {28 * 16384}"); A("s_lshl_b32 s15, s10, 7"); A("s_add_u32 s14, s14, s15"); A(f"s_add_u32 s14, s14, {WS_Y}")
    A("s_waitcnt lgkmcnt(0)")
    for c_ in range(2):
        pass
    for st in (1, 2, 4):
        for k_ in range(0, 8, 2 * st):
            for c_ in range(2): A(f"v_add_f32 v{Y+2*k_+c_}, v{Y+2*k_+c_}, v{Y+2*(k_+st)+c_}")
    U = 20
    A(f"v_fma_f32 v{U}, v{Y}, v{ACC}, v{Y+16}"); A(f"v_mov_b32 v{U+1}, s12")
    A(f"v_fma_f32 v{U+2}, v{Y+1}, v{ACC}, v{Y+17}"); A(f"v_mov_b32 v{U+3}, s12")
    A("s_and_saveexec_b64 s[82:83], vcc")
    A(f"buffer_store_dwordx4 v[{U}:{U+3}], v{vK}, s[{SWS}:{SWS+3}], s14 offen sc1")
    A("s_mov_b64 exec, s[82:83]")
    lab("L_ydone")
    stamp(8)
    A("s_cmp_ge_u32 s2, 56"); A("s_cbranch_scc1 L_fin_skip")
    A("s_lshl_b32 s14, s2, 14"); A("s_lshl_b32 s15, s3, 11"); A("s_add_u32 s14, s14, s15"); A(f"s_add_u32 s14, s14, {WS_Y}")
    A(f"v_lshlrev_b32 v{t0}, 4, v1")
    srd(SO, 34, 1792)
    F = RING + 24
    A(f"s_mov_b32 s80, {SPIN_MAX}")
    lab("L_fin_poll")
    A(f"buffer_load_dwordx4 v[{F}:{F+3}], v{t0}, s[{SWS}:{SWS+3}], s14 offen sc1")
    A(f"buffer_load_dwordx4 v[{F+4}:{F+7}], v{t0}, s[{SWS}:{SWS+3}], s14 offen offset:1024 sc1")
    A("s_waitcnt vmcnt(0)")
    A(f"v_cmp_eq_u32 vcc, s12, v{F+1}"); A(f"v_cmp_eq_u32 s[82:83], s12, v{F+3}")
    A(f"v_cmp_eq_u32 s[84:85], s12, v{F+5}"); A(f"v_cmp_eq_u32 s[86:87], s12, v{F+7}")
    A("s_and_b64 vcc, vcc, s[82:83]"); A("s_and_b64 s[84:85], s[84:85], s[86:87]"); A("s_and_b64 vcc, vcc, s[84:85]")
    A("s_cmp_eq_u64 vcc, -1"); A("s_cbranch_scc1 L_fin_got")
    A("s_sub_u32 s80, s80, 1"); A("s_cmp_lg_u32 s80, 0"); A("s_cbranch_scc1 L_fin_poll")
    lab("L_fin_got")
    stamp(9)
    A(f"v_add_f32 v{F}, v{F}, v{F+4}"); A(f"v_add_f32 v{F+2}, v{F+2}, v{F+6}")
    A(f"v_add_f32_dpp v{F}, v{F}, v{F} row_ror:8 row_mask:0xf bank_mask:0xf")
    A(f"v_add_f32_dpp v{F+2}, v{F+2}, v{F+2} row_ror:8 row_mask:0xf bank_mask:0xf")
    A(f"v_permlane16_swap_b32 v{F}, v{F+2}")
    A(f"v_add_f32 v{F}, v{F}, v{F+2}")
    A(f"v_mov_b32 v{F+2}, v{F}")
    A(f"v_permlane32_swap_b32 v{F}, v{F+2}")
    A(f"v_add_f32 v{F}, v{F}, v{F+2}")
    A(f"v_and_b32 v{t0}, 7, v1"); A(f"v_bfe_u32 v{t1}, v1, 4, 1"); A(f"v_lshl_add_u32 v{t0}, v{t0}, 1, v{t1}")
    A(f"v_lshlrev_b32 v{t0}, 5, v{t0}"); A("s_lshl_b32 s14, s3, 2"); A(f"v_add_u32 v{t0}, s14, v{t0}")
    A("s_mov_b32 exec_lo, 0x00ff00ff"); A("s_mov_b32 exec_hi, 0")
    A(f"ds_write_b32 v{t0}, v{F} offset:{L_FIN}")
    A("s_mov_b64 exec, -1")
    A("s_waitcnt lgkmcnt(0)"); A("s_barrier")
    A("s_cmp_lg_u32 s3, 0"); A("s_cbranch_scc1 L_fin_skip")
    A(f"v_and_b32 v{t0}, 15, v1"); A(f"v_lshlrev_b32 v{t1}, 5, v{t0}")
    A(f"ds_read_b128 v[{F}:{F+3}], v{t1} offset:{L_FIN}"); A(f"ds_read_b128 v[{F+4}:{F+7}], v{t1} offset:{L_FIN + 16}")
    A(f"v_lshlrev_b32 v{t0}, 1, v{t0}"); A("s_lshl_b32 s14, s2, 5")
    A("s_waitcnt lgkmcnt(0)")
    for st in (1, 2, 4):
        for k_ in range(0, 8, 2 * st): A(f"v_add_f32 v{F+k_}, v{F+k_}, v{F+k_+st}")
    A(f"v_cvt_pk_bf16_f32 v{F}, v{F}, v{F}")
    A("s_mov_b64 exec, 0xffff")
    A(f"buffer_store_short v{F}, v{t0}, s[{SO}:{SO+3}], s14 offen")
    A("s_cmp_lg_u32 s2, 0"); A("s_cbranch_scc1 L_fin_noep")
    A("s_mov_b64 exec, 1")
    A(f"v_mov_b32 v{t0}, 0"); A(f"v_mov_b32 v{t1}, s12")
    A(f"buffer_store_dword v{t1}, v{t0}, s[{SWS}:{SWS+3}], 0 offen")
    lab("L_fin_noep")
    A("s_mov_b64 exec, -1")
    lab("L_fin_skip")
    stamp(10)
    dump_stamps()
    A("s_endpgm")

    lab("L_service")
    A("s_setprio 3")
    vW, vXa, vTr, vT0, vT1, vT2 = 2, 3, 4, 5, 6, 7
    SM = [8, 9, 10, 11]
    A("v_mov_b32 v12, 0"); A("v_mov_b32 v13, 0"); A("v_mov_b32 v14, 0"); A("v_mov_b32 v15, 0")
    A(f"ds_write_b128 v12, v[12:15] offset:{L_FLAG}")
    A(f"v_lshlrev_b32 v{vT0}, 4, v1")
    A(f"v_lshrrev_b32 v{vT1}, 1, v1"); A(f"v_and_b32 v{vT2}, 1, v1")
    A(f"v_lshlrev_b32 v{vW}, 13, v{vT1}"); A(f"v_lshl_add_u32 v{vW}, v{vT2}, 4, v{vW}")
    A("s_lshl_b32 s14, s5, 9"); A("s_lshl_b32 s15, s11, 5"); A("s_add_u32 s14, s14, s15")
    A(f"v_add_u32 v{vW}, s14, v{vW}")
    A("s_waitcnt lgkmcnt(0)")
    A("s_load_dword s12, s[38:39], 0")
    srd(SX, 16, 1792); srd(SWQ, 22, 3670016)
    for k_ in range(2):
        A(f"s_mov_b32 m0, {L_X}")
        A(f"buffer_load_dwordx4 v{vT0}, s[{SX}:{SX+3}], 0 offen offset:{1024 * k_} lds")
    for m in range(14):
        A(f"s_mov_b32 m0, {L_WQ + 1024 * m}");
        if m: A(f"s_mov_b32 s13, {m * 262144}")
        A(f"buffer_load_dwordx4 v{vW}, s[{SWQ}:{SWQ+3}], {'s13' if m else '0'} offen {wflags} lds")
    A("s_barrier")
    srd(SWS, 38, WS_SIZE); srd(SW1, 28, 1605632); srd(SW2, 30, 1605632); srd(SG, 32, 896)
    A(f"v_mul_u32_u24 v{vXa}, 896, v{vT2}"); A("v_lshrrev_b32 v12, 4, v1"); A(f"v_lshl_add_u32 v{vXa}, v12, 4, v{vXa}")
    A(f"v_lshlrev_b32 v{vTr}, 8, v12"); A("v_bfe_u32 v12, v1, 2, 2"); A(f"v_lshl_add_u32 v{vTr}, v12, 5, v{vTr}")
    A("v_and_b32 v12, 3, v1"); A(f"v_lshl_add_u32 v{vTr}, v12, 3, v{vTr}")
    vW1 = 16
    A(f"v_mul_u32_u24 v{vW1}, 3584, v{vT1}"); A(f"v_lshl_add_u32 v{vW1}, v{vT2}, 4, v{vW1}")
    A("s_lshl_b32 s14, s10, 5"); A(f"v_add_u32 v{vW1}, s14, v{vW1}")
    vW2 = 17
    A("v_lshrrev_b32 v12, 5, v1"); A(f"v_mul_u32_u24 v{vW2}, {8 * 896}, v12"); A("v_and_b32 v12, 31, v1"); A(f"v_lshl_add_u32 v{vW2}, v12, 4, v{vW2}")
    A(f"s_mul_i32 s14, s10, {16 * 896}"); A(f"v_add_u32 v{vW2}, s14, v{vW2}")
    masks(A, SM, 12, 13); mask_prime(A, SM, 12, 13)
    if dbg: A("s_waitcnt lgkmcnt(0)"); A("v_writelane_b32 v167, s88, 0")
    XA = 24
    TB = 80
    D = 20
    def slice_gemv(img):
        for m in range(14):
            A(f"ds_read_b64_tr_b16 v[{TB+4*m}:{TB+4*m+1}], v{vTr} offset:{img + 1024 * m}")
            A(f"ds_read_b64_tr_b16 v[{TB+4*m+2}:{TB+4*m+3}], v{vTr} offset:{img + 1024 * m + 128}")
            if m >= 7: pass
        for m in range(14):
            A(f"s_waitcnt lgkmcnt({min(15, 2 * (13 - m))})")
            c = "0" if m == 0 else f"v[{D}:{D+3}]"
            A(f"v_mfma_f32_16x16x32_bf16 v[{D}:{D+3}], v[{XA+4*m}:{XA+4*m+3}], v[{TB+4*m}:{TB+4*m+3}], {c}")
    A("s_waitcnt vmcnt(14)")
    for m in range(14): A(f"ds_read_b128 v[{XA+4*m}:{XA+4*m+3}], v{vXa} offset:{L_X + 64 * m}")
    A("s_waitcnt vmcnt(0) lgkmcnt(0)")
    A(f"s_add_u32 s12, s12, {TAGC}")
    stamp(1)
    slice_gemv(L_WQ)
    UQ = 136
    for bb in range(2):
        A(f"v_mov_b32_dpp v12, v{D+bb} quad_perm:[1,1,3,3] row_mask:0xf bank_mask:0xf")
        A(f"v_cvt_pk_bf16_f32 v{UQ+4*bb}, v{D+bb}, v12")
        A(f"v_mov_b32_dpp v{UQ+4*bb+2}, v{UQ+4*bb} quad_perm:[2,2,2,2] row_mask:0xf bank_mask:0xf")
        A(f"v_mov_b32 v{UQ+4*bb+1}, s12"); A(f"v_mov_b32 v{UQ+4*bb+3}, s12")
    A("v_lshlrev_b32 v12, 2, v1")
    A("s_lshl_b32 s14, s5, 10"); A("s_lshl_b32 s15, s11, 6"); A("s_add_u32 s14, s14, s15"); A(f"s_add_u32 s14, s14, {WS_Q}")
    A("s_add_u32 s15, s14, 16384")
    A("s_mov_b64 exec, 0x1111")
    A(f"buffer_store_dwordx4 v[{UQ}:{UQ+3}], v12, s[{SWS}:{SWS+3}], s14 offen sc1")
    A(f"buffer_store_dwordx4 v[{UQ+4}:{UQ+7}], v12, s[{SWS}:{SWS+3}], s15 offen sc1")
    A("s_mov_b64 exec, -1")
    stamp(2)
    W2R = 80
    A("s_cmp_ge_u32 s10, 112"); A("s_cbranch_scc1 L_sv_now1")
    for m in range(14):
        A(f"s_mov_b32 m0, {L_W1 + 1024 * m}")
        if m: A(f"s_mov_b32 s13, {m * 32 * 3584}")
        A(f"buffer_load_dwordx4 v{vW1}, s[{SW1}:{SW1+3}], {'s13' if m else '0'} offen {wflags} lds")
    lab("L_sv_now1")
    GW = 144
    A(f"buffer_load_dwordx4 v[{GW}:{GW+3}], v{vT0}, s[{SG}:{SG+3}], 0 offen")
    QP = 148
    A("s_lshl_b32 s14, s7, 10"); A(f"s_add_u32 s14, s14, {WS_Q}"); A(f"s_mov_b32 s80, {SPIN_MAX}")
    lab("L_sv_qpoll")
    A(f"buffer_load_dwordx4 v[{QP}:{QP+3}], v{vT0}, s[{SWS}:{SWS+3}], s14 offen sc1")
    A("s_waitcnt vmcnt(0)")
    A(f"v_cmp_eq_u32 vcc, s12, v{QP+1}"); A(f"v_cmp_eq_u32 s[82:83], s12, v{QP+3}")
    A("s_and_b64 vcc, vcc, s[82:83]"); A("s_cmp_eq_u64 vcc, -1"); A("s_cbranch_scc1 L_sv_qgot")
    A("s_sleep 2"); A("s_sub_u32 s80, s80, 1"); A("s_cmp_lg_u32 s80, 0"); A("s_cbranch_scc1 L_sv_qpoll")
    lab("L_sv_qgot")
    A(f"v_mov_b32 v{QP+1}, v{QP+2}"); A("v_lshlrev_b32 v12, 3, v1")
    A(f"ds_write_b64 v12, v[{QP}:{QP+1}] offset:{L_Q}")
    A("v_mov_b32 v12, 0"); A("v_mov_b32 v13, s12"); A("v_mov_b32 v14, 1")
    A(f"ds_write_b32 v12, v13 offset:{L_G + 4}")
    A("s_waitcnt lgkmcnt(0)")
    A(f"ds_write_b32 v12, v14 offset:{L_FLAG}")
    stamp(3)
    XG = 148
    A("s_mul_i32 s14, s4, 896"); A(f"v_add_u32 v12, s14, v{vT0}")
    A(f"ds_read_b128 v[{XG}:{XG+3}], v12 offset:{L_X}")
    A("s_waitcnt lgkmcnt(0)")
    A("v_mov_b32 v18, 0")
    for k_ in range(4):
        A(f"v_lshlrev_b32 v12, 16, v{XG+k_}"); A(f"v_and_b32 v13, 0xffff0000, v{XG+k_}")
        A(f"v_lshlrev_b32 v14, 16, v{GW+k_}"); A(f"v_and_b32 v15, 0xffff0000, v{GW+k_}")
        A("v_mul_f32 v12, v12, v14"); A("v_mul_f32 v13, v13, v15")
        A("v_cvt_pk_bf16_f32 v12, v12, v13")
        A("v_lshlrev_b32 v13, 16, v12"); A("v_and_b32 v12, 0xffff0000, v12")
        A("v_add_f32 v18, v18, v13"); A("v_add_f32 v18, v18, v12")
    A("v_cmp_gt_u32 vcc, 56, v1"); A("v_cndmask_b32 v18, 0, v18, vcc")
    wave_reduce(A, "add", 18, 12)
    A("v_cvt_pk_bf16_f32 v18, v18, v18"); A("v_lshlrev_b32 v18, 16, v18")
    A("v_mul_f32 v18, 0xbfb8aa3b, v18"); A("v_exp_f32 v18, v18"); A("v_add_f32 v18, 1.0, v18"); A("v_rcp_f32 v18, v18")
    A("v_cvt_pk_bf16_f32 v18, v18, v18"); A("v_lshlrev_b32 v18, 16, v18")
    A("v_sub_f32 v19, 1.0, v18"); A("v_cvt_pk_bf16_f32 v19, v19, v19"); A("v_lshlrev_b32 v19, 16, v19")
    A("v_mov_b32 v12, 0"); A(f"ds_write_b32 v12, v18 offset:{L_G}")
    YA, YB = 152, 156
    red2_lane(A, 14, 12)
    A("s_cmp_ge_u32 s10, 112"); A("s_cbranch_scc1 L_sv_noffn")
    slice_gemv(L_W1)
    for r in range(8):
        for cb in range(2):
            q_ = r >> 2
            if cb == 0 and r == 4: A("s_movk_i32 s13, 3584")
            rr = W2R + 4 * (2 * r + cb)
            A(f"buffer_load_dwordx4 v[{rr}:{rr+3}], v{vW2}, s[{SW2}:{SW2+3}], {'s13' if q_ else '0'} offen offset:{(r & 3) * 896 + cb * 512} {wflags}")
    A("s_cmp_eq_u32 s4, 0"); A("s_cselect_b64 s[82:83], -1, 0")
    A(f"v_cndmask_b32 v12, v{D+1}, v{D}, s[82:83]")
    A("v_max_f32 v12, 0, v12"); A("v_cvt_pk_bf16_f32 v12, v12, v12")
    A("v_lshlrev_b32 v13, 2, v1")
    A("s_mov_b64 exec, 0xffff"); A(f"ds_write_b32 v13, v12 offset:{L_H}"); A("s_mov_b64 exec, -1")
    A("v_lshrrev_b32 v13, 5, v1"); A("v_lshlrev_b32 v13, 5, v13")
    A("s_waitcnt lgkmcnt(0)")
    HR = 24
    A(f"ds_read_b128 v[{HR}:{HR+3}], v13 offset:{L_H}"); A(f"ds_read_b128 v[{HR+4}:{HR+7}], v13 offset:{L_H + 16}")
    A("s_waitcnt lgkmcnt(0)")
    for r in range(8):
        a = 32 + 4 * (r & 1)
        for q_ in range(4): A(f"v_and_b32 v{a+q_}, v{HR+r}, v{SM[q_]}")
        A(f"s_waitcnt vmcnt({2 * (7 - r)})")
        for cb, d in ((0, YA), (1, YB)):
            rr = W2R + 4 * (2 * r + cb); c = "0" if r == 0 else f"v[{d}:{d+3}]"
            A(f"v_mfma_f32_16x16x32_bf16 v[{d}:{d+3}], v[{a}:{a+3}], v[{rr}:{rr+3}], {c}")
    for k_ in range(8): A(f"v_mul_f32 v{YA+k_}, v19, v{YA+k_}")
    A("s_branch L_sv_ffndone")
    lab("L_sv_noffn")
    for k_ in range(8): A(f"v_mov_b32 v{YA+k_}, 0")
    lab("L_sv_ffndone")
    A(f"ds_write_b128 v14, v[{YA}:{YA+3}] offset:{L_RED2 + 8 * 2048}")
    A(f"ds_write_b128 v14, v[{YB}:{YB+3}] offset:{L_RED2 + 8 * 2048 + 1024}")
    stamp(4)
    A("v_mov_b32 v12, 0"); A(f"s_mov_b32 s80, {SPIN_MAX}")
    lab("L_sv_cnt")
    A(f"ds_read_b32 v13, v12 offset:{L_FLAG + 8}"); A("s_waitcnt lgkmcnt(0)"); A("v_readfirstlane_b32 s81, v13")
    A("s_cmp_eq_u32 s81, 8"); A("s_cbranch_scc1 L_sv_cntok")
    A("s_sleep 4"); A("s_sub_u32 s80, s80, 1"); A("s_cmp_lg_u32 s80, 0"); A("s_cbranch_scc1 L_sv_cnt")
    lab("L_sv_cntok")
    stamp(5)
    A("s_lshl_b32 s14, s7, 14"); A(f"s_add_u32 s14, s14, {WS_S}")
    A("v_lshlrev_b32 v12, 8, v1"); A(f"s_mov_b32 s80, {SPIN_MAX}")
    lab("L_sv_hint")
    A(f"buffer_load_dwordx4 v[{QP}:{QP+3}], v12, s[{SWS}:{SWS+3}], s14 offen sc1")
    A("s_waitcnt vmcnt(0)")
    A(f"v_cmp_eq_u32 vcc, s12, v{QP+1}"); A("s_cmp_eq_u64 vcc, -1"); A("s_cbranch_scc1 L_sv_hintok")
    A("s_sleep 2"); A("s_sub_u32 s80, s80, 1"); A("s_cmp_lg_u32 s80, 0"); A("s_cbranch_scc1 L_sv_hint")
    lab("L_sv_hintok")
    stamp(6)
    SR = 24
    A("s_lshl_b32 s15, s9, 13"); A("s_add_u32 s84, s14, s15"); A("s_add_u32 s85, s84, 4096")
    A("s_xor_b32 s15, s15, 8192"); A("s_add_u32 s86, s14, s15"); A("s_add_u32 s87, s86, 4096")
    A(f"s_mov_b32 s80, {SPIN_MAX}")
    lab("L_sv_sweep")
    for m in range(16):
        A(f"buffer_load_dwordx4 v[{SR+4*m}:{SR+4*m+3}], v{vT0}, s[{SWS}:{SWS+3}], s{84 + (m >> 2)} offen offset:{(m & 3) * 1024} sc1")
    for m in range(16):
        A(f"s_waitcnt vmcnt({15 - m})")
        if m == 0: A(f"v_xor_b32 v12, s12, v{SR+1}")
        else: A(f"v_xor_b32 v13, s12, v{SR+4*m+1}"); A("v_or_b32 v12, v12, v13")
        A(f"v_xor_b32 v13, s12, v{SR+4*m+3}"); A("v_or_b32 v12, v12, v13")
    A("v_cmp_eq_u32 vcc, 0, v12"); A("s_cmp_eq_u64 vcc, -1"); A("s_cbranch_scc1 L_sv_sweepok")
    A("s_sleep 2"); A("s_sub_u32 s80, s80, 1"); A("s_cmp_lg_u32 s80, 0"); A("s_cbranch_scc1 L_sv_sweep")
    lab("L_sv_sweepok")
    stamp(7)
    for m in range(16):
        r = SR + 4 * m
        A(f"v_and_b32 v{r+1}, 0xffff0000, v{r}"); A(f"v_lshlrev_b32 v{r}, 16, v{r}")
        A(f"v_and_b32 v{r+3}, 0xffff0000, v{r+2}"); A(f"v_lshlrev_b32 v{r+2}, 16, v{r+2}")
    A(f"v_max_f32 v12, v{SR}, v{SR+1}")
    for k_ in range(2, 64, 2): A(f"v_max3_f32 v12, v12, v{SR+k_}, v{SR+k_+1}")
    wave_reduce(A, "max", 12, 13)
    A("s_mov_b32 s81, 0x3db8aa3b")
    A("v_mul_f32 v12, s81, v12"); A("v_sub_f32 v12, 0, v12")
    for k_ in range(64): A(f"v_fma_f32 v{SR+k_}, v{SR+k_}, s81, v12")
    for k_ in range(64): A(f"v_exp_f32 v{SR+k_}, v{SR+k_}")
    A(f"v_add_f32 v13, v{SR}, v{SR+1}"); A(f"v_add_f32 v15, v{SR+2}, v{SR+3}")
    for k_ in range(4, 64, 2):
        A(f"v_add_f32 v13, v13, v{SR+k_}"); A(f"v_add_f32 v15, v15, v{SR+k_+1}")
    A("v_add_f32 v13, v13, v15")
    wave_reduce(A, "add", 13, 12)
    A("v_rcp_f32 v13, v13")
    A("v_lshrrev_b32 v12, 4, v1"); A("v_lshlrev_b32 v15, 10, v12")
    A("v_bfe_u32 v12, v1, 1, 1"); A("v_lshl_add_u32 v15, v12, 7, v15")
    A("v_and_b32 v12, 1, v1"); A("v_lshl_add_u32 v15, v12, 6, v15")
    A("v_bfe_u32 v12, v1, 2, 2"); A("v_lshl_add_u32 v15, v12, 4, v15")
    for m in range(8):
        r = SR + 4 * m
        for k_ in range(4): A(f"v_mul_f32 v{r+k_}, v{r+k_}, v13")
        for k_ in range(4): A(f"v_cvt_pk_bf16_f32 v{r+k_}, v{r+k_}, v{r+k_}")
        A(f"ds_write_b128 v15, v[{r}:{r+3}] offset:{L_P + (m & 1) * 4096 + (m >> 1) * 256}")
    A("v_mov_b32 v12, 0"); A("v_mov_b32 v13, 1")
    A("s_waitcnt lgkmcnt(0)")
    A(f"ds_write_b32 v12, v13 offset:{L_FLAG + 4}")
    A("s_waitcnt lgkmcnt(0)")
    stamp(8)
    dump_stamps()
    lab("L_end")
    A("s_endpgm")

    body = pad_hazards(L)
    out = [HEADER.rstrip("\n"),
           "; Single fused launch: 256 workgroups (one per CU) x 9 waves (wave 0 = service, waves 1-8 stream K/V).",
           f"; @launch grid=(256,1,1) block=(576,1,1) lds={LDS_BYTES}",
           '.amdgcn_target "amdgcn-amd-amdhsa--gfx950"', ".text", f".globl {NAME}", ".p2align 8", f".type {NAME},@function", f"{NAME}:"]
    out += body
    out += ['.section .rodata,"a"', ".p2align 6", f".amdhsa_kernel {NAME}",
            "  .amdhsa_next_free_vgpr 168", "  .amdhsa_next_free_sgpr 96", "  .amdhsa_accum_offset 168",
            "  .amdhsa_group_segment_fixed_size 0", "  .amdhsa_kernarg_size 96", "  .amdhsa_user_sgpr_count 2",
            "  .amdhsa_user_sgpr_kernarg_segment_ptr 1", "  .amdhsa_system_sgpr_workgroup_id_x 1", ".end_amdhsa_kernel"]
    return "\n".join(out) + "\n"

def masks(A, M, t0, t1):
    A(f"v_and_b32 v{t0}, 1, v1"); A(f"v_lshlrev_b32 v{t0}, 4, v{t0}"); A(f"v_mov_b32 v{t1}, 0xffff"); A(f"v_lshlrev_b32 v{t1}, v{t0}, v{t1}")
    A(f"v_bfe_u32 v{t0}, v1, 1, 2")
    for r in range(4): A(f"v_cmp_eq_u32 s[{80+2*r}:{81+2*r}], {r}, v{t0}")
    for r in range(4): A(f"v_cndmask_b32 v{M[r]}, 0, v{t1}, s[{80+2*r}:{81+2*r}]")

def mask_prime(A, M, t0, t1):
    A(f"v_lshrrev_b32 v{t0}, 1, v1"); A(f"v_xor_b32 v{t0}, v{t0}, v1"); A(f"v_bfe_u32 v{t0}, v{t0}, 3, 1")
    A(f"v_add_u32 v{t0}, -1, v{t0}")
    for r in range(4): A(f"v_and_b32 v{M[r]}, v{M[r]}, v{t0}")

def red2_lane(A, d, t0):
    A(f"v_and_b32 v{t0}, 15, v1"); A(f"v_lshlrev_b32 v{d}, 5, v{t0}")
    A(f"v_lshrrev_b32 v{t0}, 5, v1"); A(f"v_lshl_add_u32 v{d}, v{t0}, 9, v{d}")
    A(f"v_bfe_u32 v{t0}, v1, 4, 1"); A(f"v_lshl_add_u32 v{d}, v{t0}, 4, v{d}")

def wave_reduce(A, op, v, t):
    for ctl in ("quad_perm:[1,0,3,2]", "quad_perm:[2,3,0,1]", "row_half_mirror", "row_mirror"):
        A(f"v_{op}_f32_dpp v{v}, v{v}, v{v} {ctl} row_mask:0xf bank_mask:0xf")
    for sw in ("v_permlane16_swap_b32", "v_permlane32_swap_b32"):
        A(f"v_mov_b32 v{t}, v{v}"); A(f"{sw} v{v}, v{t}"); A(f"v_{op}_f32 v{v}, v{v}, v{t}")

if __name__ == "__main__":
    kw = eval("dict(%s)" % (sys.argv[2] if len(sys.argv) > 2 else ""))
    open(sys.argv[1], "w").write(gen(**kw))
```

```python
import sys
sys.path.insert(0, "dev")
from asmlib import pad_hazards

NAME = "gated_mix__mha_block_cached__dense_activation_relu__decode_kernel"
HEADER = open("gated_mix__mha_block_cached__dense_activation_relu__decode.s.ref").read().split("; Override launch")[0]

WS_Q = 0x1000
WS_S = 0x10000
WS_Y = 0x100000
WS_DBG = 0x400000
WS_SIZE = 268435456
L_WQ = 0x0000; L_RED1 = 0x0000; RED1_STRIDE = 1040
L_W1 = 0x3800
L_X = 0x7000
L_Q = 0x7800
L_H = 0x7A00
L_G = 0x7A40
L_FLAG = 0x7A80
L_FIN = 0x7C00
L_P = 0x8000
L_RED2 = 0xA000
LDS_BYTES = 0xA000 + 9 * 2048
TAGC = 0x9E3779B9
SPIN_MAX = 1 << 18

def gen(LIM=2, NQ=26, NP=60, WO_AT=48, CQ=3, CP=4, R=33, dbg=False, hdbg=False, kflags="nt", wflags="nt"):
    L = []
    A = lambda s: L.append("  " + s)
    lab = lambda s: L.append(s + ":")
    def srd(d, p, nbytes):
        A(f"s_mov_b32 s{d}, s{p}"); A(f"s_mov_b32 s{d+1}, s{p+1}"); A(f"s_mov_b32 s{d+2}, {nbytes}"); A(f"s_mov_b32 s{d+3}, 0x20000")
    SK, SV, SWO, SWS, SWQ, SW1, SW2, SX, SG, SO = 40, 44, 48, 52, 56, 60, 64, 68, 72, 76
    stampn = [0]
    def stamp(idx):
        if dbg:
            A("s_memrealtime s[90:91]"); A("s_waitcnt lgkmcnt(0)"); A(f"v_writelane_b32 v167, s90, {idx}")
    if hdbg: dbg = True
    def dump_stamps(service=False):
        if hdbg:
            A("s_mov_b32 s92, s36"); A("s_mov_b32 s93, s37"); A("s_mov_b32 s94, 256"); A("s_mov_b32 s95, 0x20000")
            A("v_not_b32 v165, v167"); A("v_cmp_eq_u32 vcc, 0, v1"); A("v_cndmask_b32 v167, v167, v165, vcc")
            A("v_lshlrev_b32 v166, 2, v1")
            if service:
                A("v_lshrrev_b32 v166, 1, v1"); A("v_lshlrev_b32 v166, 2, v166"); A("v_add_u32 v166, 40, v166")
                A("s_mov_b64 exec, 0x1a8")
            else:
                A("s_mov_b64 exec, 0x7ff")
            A("buffer_atomic_umax v167, v166, s[92:95], 0 offen")
            A("s_mov_b64 exec, -1")
        elif dbg:
            A("s_mul_i32 s92, s2, 9"); A("s_add_u32 s92, s92, s93"); A("s_lshl_b32 s92, s92, 8"); A(f"s_add_u32 s92, s92, {WS_DBG}")
            A("v_lshlrev_b32 v166, 2, v1")
            A(f"buffer_store_dword v167, v166, s[{SWS}:{SWS+3}], s92 offen")
    if dbg: R = min(R, 32)

    A("s_cmp_ge_u32 s2, 256"); A("s_cbranch_scc1 L_end")
    A("s_load_dwordx16 s[16:31], s[0:1], 0")
    A("s_load_dwordx8 s[32:39], s[0:1], 64")
    A("v_lshrrev_b32 v2, 6, v0"); A("v_and_b32 v1, 63, v0")
    A("v_readfirstlane_b32 s3, v2")
    A("s_and_b32 s14, s2, 7"); A("s_lshr_b32 s15, s2, 3")
    A("s_lshr_b32 s4, s15, 4")
    A("s_bfe_u32 s5, s15, 0x10003"); A("s_lshl_b32 s14, s14, 1"); A("s_add_u32 s5, s5, s14")
    A("s_and_b32 s6, s15, 7")
    A("s_lshl_b32 s7, s4, 4"); A("s_add_u32 s7, s7, s5")
    A("s_and_b32 s8, s6, 3"); A("s_lshr_b32 s9, s6, 2")
    A("s_lshl_b32 s10, s5, 3"); A("s_add_u32 s10, s10, s6")
    A("s_lshl_b32 s11, s4, 3"); A("s_add_u32 s11, s11, s6")
    if dbg:
        A("s_mov_b32 s93, s3"); A("v_mov_b32 v167, 0"); A("s_memrealtime s[88:89]")
    A("s_cmp_eq_u32 s3, 0"); A("s_cbranch_scc1 L_service")

    A("s_sub_u32 s3, s3, 1")
    vK, vV, vWo, vP, t0, t1 = 2, 3, 4, 5, 6, 7
    M = [8, 9, 10, 11]; Q = [12, 16]; PR = [12, 16]; DB = [20, 24]; AB = [20, 24]; SG_ = [28, 29, 30, 31]; ACC = 32
    RING = 36
    A(f"v_bfe_u32 v{t0}, v1, 2, 2"); A(f"v_lshlrev_b32 v{vK}, 9, v{t0}")
    A(f"v_lshrrev_b32 v{t0}, 4, v1"); A(f"v_lshl_add_u32 v{vK}, v{t0}, 6, v{vK}")
    A(f"v_and_b32 v{t0}, 3, v1"); A(f"v_lshl_add_u32 v{vK}, v{t0}, 4, v{vK}")
    A("s_lshl_b32 s13, s7, 21"); A("s_lshl_b32 s14, s3, 12"); A("s_add_u32 s13, s13, s14")
    A("s_lshl_b32 s14, s6, 18"); A("s_add_u32 s14, s14, s13")
    A(f"v_add_u32 v{vK}, s14, v{vK}")
    A("s_waitcnt lgkmcnt(0)")
    srd(SK, 18, 0x4000000)

    loads = []
    for beta in range(8):
        for tp in range(2):
            for jh in range(2): loads.append(("K", beta, tp, jh))
    vl = [("V", m) for m in range(32)]
    wl = [("W", r, cb) for r in range(4) for cb in range(2)]
    k = WO_AT - 32
    loads += vl[:k] + wl + vl[k:]
    free = list(range(R)); slot = {}
    issued = []
    landed = [-1]
    cur_soff = [None]
    def soff(val):
        if val == 0: return "0"
        if cur_soff[0] != val:
            A(f"s_mov_b32 s13, {val}"); cur_soff[0] = val
        return "s13"
    def wait_landed(n):
        if n <= landed[0]: return
        younger = sum(1 for x in issued if x[0] == "L" and x[1] > n)
        A(f"s_waitcnt vmcnt({younger})"); landed[0] = n
    def issue(n):
        ld = loads[n]; sl = free.pop(0); slot[n] = sl; r = RING + 4 * sl
        if ld[0] == "K":
            _, beta, tp, jh = ld
            A(f"buffer_load_dwordx4 v[{r}:{r+3}], v{vK}, s[{SK}:{SK+3}], {soff(beta * 32768)} offen offset:{tp * 2048 + jh * 256} {kflags}")
        elif ld[0] == "V":
            A(f"buffer_load_dwordx4 v[{r}:{r+3}], v{vV}, s[{SV}:{SV+3}], {soff(ld[1] * 32768)} offen {kflags}")
        else:
            A(f"buffer_load_dwordx4 v[{r}:{r+3}], v{vWo}, s[{SWO}:{SWO+3}], 0 offen offset:{ld[1] * 896 + ld[2] * 512} {wflags}")
        issued.append(("L", n))
    sreg = lambda n: RING + 4 * slot[n]
    def lds_wait_flag(off, val, tag):
        A(f"v_mov_b32 v{t0}, 0"); A(f"s_mov_b32 s80, {SPIN_MAX}")
        lab(f"L_wait_{tag}")
        A(f"ds_read_b32 v{t1}, v{t0} offset:{off}"); A("s_waitcnt lgkmcnt(0)")
        A(f"v_readfirstlane_b32 s81, v{t1}")
        A(f"s_cmp_eq_u32 s81, {val}"); A(f"s_cbranch_scc1 L_got_{tag}")
        A("s_sleep 1"); A("s_sub_u32 s80, s80, 1"); A("s_cmp_lg_u32 s80, 0"); A(f"s_cbranch_scc1 L_wait_{tag}")
        lab(f"L_got_{tag}")

    qk_next = [0]; qk_post = [None]; pv_next = [0]
    vidx = {ld[1]: n for n, ld in enumerate(loads) if ld[0] == "V"}
    widx = {(ld[1], ld[2]): n for n, ld in enumerate(loads) if ld[0] == "W"}
    def qk_dpp(tau):
        beta, tp = tau >> 1, tau & 1; G = beta >> 1; t = 2 * (beta & 1) + tp; d = DB[tau & 1]
        A(f"v_mov_b32_dpp v{t0}, v{d} quad_perm:[0,0,0,0] row_mask:0xf bank_mask:0xf")
        A(f"v_add_f32_dpp v{t0}, v{d+1}, v{t0} quad_perm:[1,1,1,1] row_mask:0xf bank_mask:0xf")
        A(f"v_add_f32_dpp v{t0}, v{d+2}, v{t0} quad_perm:[2,2,2,2] row_mask:0xf bank_mask:0xf")
        A(f"v_add_f32_dpp v{SG_[G]}, v{d+3}, v{t0} quad_perm:[3,3,3,3] row_mask:0xf bank_mask:{hex(1 << t)}")
    def qk_tile(tau):
        d = DB[tau & 1]; a0 = sreg(2 * tau); a1 = sreg(2 * tau + 1)
        A(f"v_mfma_f32_16x16x32_bf16 v[{d}:{d+3}], v[{a0}:{a0+3}], v[{Q[0]}:{Q[0]+3}], 0")
        A(f"v_mfma_f32_16x16x32_bf16 v[{d}:{d+3}], v[{a1}:{a1+3}], v[{Q[1]}:{Q[1]+3}], v[{d}:{d+3}]")
        free.extend([slot[2 * tau], slot[2 * tau + 1]])
        if qk_post[0] is not None: qk_dpp(qk_post[0])
        qk_post[0] = tau
    def publish_scores():
        qk_dpp(qk_post[0]); qk_post[0] = None
        u_ = DB[0]
        A(f"v_cvt_pk_bf16_f32 v{u_}, v{SG_[0]}, v{SG_[1]}"); A(f"v_mov_b32 v{u_+1}, s12")
        A(f"v_cvt_pk_bf16_f32 v{u_+2}, v{SG_[2]}, v{SG_[3]}"); A(f"v_mov_b32 v{u_+3}, s12")
        A(f"v_lshlrev_b32 v{t0}, 2, v1")
        A("s_lshl_b32 s14, s7, 14"); A("s_lshl_b32 s15, s6, 3"); A("s_add_u32 s15, s15, s3"); A("s_lshl_b32 s15, s15, 8")
        A("s_add_u32 s14, s14, s15"); A(f"s_add_u32 s14, s14, {WS_S}")
        A("s_mov_b32 exec_lo, 0x11111111"); A("s_mov_b32 exec_hi, 0x11111111")
        A(f"buffer_store_dwordx4 v[{u_}:{u_+3}], v{t0}, s[{SWS}:{SWS+3}], s14 offen sc1")
        issued.append(("S",))
        A("s_mov_b64 exec, 1")
        A(f"v_mov_b32 v{t0}, 0"); A(f"v_mov_b32 v{t1}, 1")
        A(f"ds_add_u32 v{t0}, v{t1} offset:{L_FLAG + 8}")
        A("s_mov_b64 exec, -1")
        stamp(3)
    def pv_tile(m):
        s2_, G, th = m >> 3, (m >> 1) & 3, m & 1
        if (m & 7) == 0:
            A(f"ds_read_b128 v[{PR[0]}:{PR[0]+3}], v{vP} offset:{(2 * s2_) * 128}")
            A(f"ds_read_b128 v[{PR[1]}:{PR[1]+3}], v{vP} offset:{(2 * s2_ + 1) * 128}")
            A("s_waitcnt lgkmcnt(0)")
        a = AB[m & 1]; p = PR[th] + G; bv = sreg(vidx[m])
        for r in range(4): A(f"v_and_b32 v{a+r}, v{p}, v{M[r]}")
        c = "0" if m == 0 else f"v[{ACC}:{ACC+3}]"
        A(f"v_mfma_f32_16x16x32_bf16 v[{ACC}:{ACC+3}], v[{a}:{a+3}], v[{bv}:{bv+3}], {c}")
        free.append(slot[vidx[m]])

    N = len(loads)
    published = False
    for n in range(N):
        if n > LIM: wait_landed(n - LIM - 1)
        if n == NQ:
            stamp(1)
            lds_wait_flag(L_FLAG, 1, "q")
            A(f"v_lshrrev_b32 v{t0}, 4, v1"); A(f"v_and_b32 v{t1}, 3, v1"); A(f"v_lshl_add_u32 v{t0}, v{t0}, 2, v{t1}"); A(f"v_lshlrev_b32 v{t0}, 4, v{t0}")
            A(f"ds_read_b128 v[{Q[0]}:{Q[0]+3}], v{t0} offset:{L_Q}")
            A(f"ds_read_b128 v[{Q[1]}:{Q[1]+3}], v{t0} offset:{L_Q + 256}")
            A(f"v_mov_b32 v{t0}, 0")
            A(f"ds_read_b32 v{t1}, v{t0} offset:{L_G + 4}")
            A("s_waitcnt lgkmcnt(0)")
            A(f"v_readfirstlane_b32 s12, v{t1}")
            stamp(2)
        if n == NP:
            stamp(4)
            lds_wait_flag(L_FLAG + 4, 1, "p")
            stamp(5)
        if not free:
            if n >= NP: pv_tile(pv_next[0]); pv_next[0] += 1
            else: raise RuntimeError(f"no free slot at load {n}")
        issue(n)
        if n == LIM:
            srd(SV, 20, 0x4000000); srd(SWO, 24, 3670016); srd(SWS, 38, WS_SIZE)
            A("s_barrier")
            A(f"v_lshrrev_b32 v{t0}, 3, v1"); A(f"v_lshlrev_b32 v{vV}, 9, v{t0}")
            A(f"v_lshlrev_b32 v{vP}, 4, v{t0}")
            A(f"v_and_b32 v{t0}, 7, v1"); A(f"v_lshl_add_u32 v{vV}, v{t0}, 4, v{vV}")
            A("s_lshl_b32 s14, s7, 21"); A("s_lshl_b32 s15, s3, 12"); A("s_add_u32 s14, s14, s15")
            A("s_lshl_b32 s15, s9, 20"); A("s_add_u32 s14, s14, s15"); A("s_lshl_b32 s15, s8, 7"); A("s_add_u32 s14, s14, s15")
            A(f"v_add_u32 v{vV}, s14, v{vV}")
            A("s_lshl_b32 s14, s3, 10"); A(f"s_add_u32 s14, s14, {L_P}"); A(f"v_add_u32 v{vP}, s14, v{vP}")
            A(f"v_lshrrev_b32 v{t0}, 5, v1"); A(f"v_mul_u32_u24 v{vWo}, 3584, v{t0}")
            A(f"v_and_b32 v{t0}, 31, v1"); A(f"v_lshl_add_u32 v{vWo}, v{t0}, 4, v{vWo}")
            A("s_lshl_b32 s14, s5, 8"); A("s_lshl_b32 s15, s8, 6"); A("s_add_u32 s14, s14, s15"); A("s_lshl_b32 s15, s3, 3"); A("s_add_u32 s14, s14, s15")
            A("s_mul_i32 s14, s14, 896"); A(f"v_add_u32 v{vWo}, s14, v{vWo}")
            masks(A, M, t0, t1)
            if dbg: A("s_waitcnt lgkmcnt(0)"); A("v_writelane_b32 v167, s88, 0")
        if n >= NQ:
            c = 0
            while qk_next[0] < 16 and c < CQ and 2 * qk_next[0] + 1 <= landed[0]:
                qk_tile(qk_next[0]); qk_next[0] += 1; c += 1
            if qk_next[0] == 16 and not published:
                publish_scores(); published = True
        if n >= NP:
            c = 0
            while pv_next[0] < 32 and c < CP and vidx[pv_next[0]] <= landed[0]:
                pv_tile(pv_next[0]); pv_next[0] += 1; c += 1
    assert published
    vR1w, vR1r, vR2w = vK, vV, vWo
    A(f"s_mul_i32 s14, s3, {RED1_STRIDE}"); A(f"v_lshlrev_b32 v{vR1w}, 4, v1"); A(f"v_add_u32 v{vR1w}, s14, v{vR1w}")
    A(f"v_and_b32 v{t0}, 7, v1"); A(f"v_mul_u32_u24 v{vR1r}, {RED1_STRIDE}, v{t0}")
    A(f"v_bfe_u32 v{t0}, v1, 3, 1"); A(f"v_mul_u32_u24 v{t0}, 640, v{t0}"); A(f"v_add_u32 v{vR1r}, v{vR1r}, v{t0}")
    A(f"v_lshrrev_b32 v{t0}, 5, v1"); A(f"v_lshl_add_u32 v{vR1r}, v{t0}, 8, v{vR1r}")
    A("s_lshl_b32 s14, s3, 4"); A(f"v_add_u32 v{vR1r}, s14, v{vR1r}")
    red2_lane(A, vR2w, t0)
    A("s_lshl_b32 s14, s3, 11"); A(f"v_add_u32 v{vR2w}, s14, v{vR2w}")
    while pv_next[0] < 32:
        wait_landed(vidx[pv_next[0]]); pv_tile(pv_next[0]); pv_next[0] += 1
    wait_landed(N - 1)
    stamp(6)
    mask_prime(A, M, t0, t1)
    A(f"ds_write_b128 v{vR1w}, v[{ACC}:{ACC+3}] offset:{L_RED1}")
    A("s_waitcnt lgkmcnt(0)"); A("s_barrier")
    O = 28
    A(f"ds_read_b128 v[{O}:{O+3}], v{vR1r} offset:{L_RED1}")
    A("s_waitcnt lgkmcnt(0)")
    for ctl in ("quad_perm:[1,0,3,2]", "quad_perm:[2,3,0,1]", "row_half_mirror", "row_mirror"):
        for r in range(4): A(f"v_add_f32_dpp v{O+r}, v{O+r}, v{O+r} {ctl} row_mask:0xf bank_mask:0xf")
    for r in range(4): A(f"v_cvt_pk_bf16_f32 v{O+r}, v{O+r}, v{O+r}")
    DA, DBb = 12, 16
    for r in range(4):
        a = AB[r & 1]
        for q in range(4): A(f"v_and_b32 v{a+q}, v{O+r}, v{M[q]}")
        for cb, d in ((0, DA), (1, DBb)):
            bw = sreg(widx[(r, cb)]); c = "0" if r == 0 else f"v[{d}:{d+3}]"
            A(f"v_mfma_f32_16x16x32_bf16 v[{d}:{d+3}], v[{a}:{a+3}], v[{bw}:{bw+3}], {c}")
    A("s_lshl_b32 s14, s3, 9"); A(f"v_lshl_add_u32 v{t0}, v1, 3, s14")
    A(f"v_mov_b32 v{t1}, 0")
    A(f"ds_read_b32 v{ACC}, v{t1} offset:{L_G}")
    A(f"ds_write_b128 v{vR2w}, v[{DA}:{DA+3}] offset:{L_RED2}")
    A(f"ds_write_b128 v{vR2w}, v[{DBb}:{DBb+3}] offset:{L_RED2 + 1024}")
    A("s_waitcnt lgkmcnt(0)"); A("s_barrier")
    stamp(7)
    A("s_cmp_ge_u32 s3, 4"); A("s_cbranch_scc1 L_ydone")
    Y = RING
    for k_ in range(9): A(f"ds_read_b64 v[{Y+2*k_}:{Y+2*k_+1}], v{t0} offset:{L_RED2 + 2048 * k_}")
    A("s_lshl_b32 s14, s3, 6"); A(f"v_add_u32 v{t1}, s14, v1")
    A(f"v_cmp_gt_u32 vcc, 224, v{t1}")
    A(f"v_lshrrev_b32 v{vK}, 3, v{t1}"); A(f"v_lshlrev_b32 v{vK}, 14, v{vK}")
    A(f"v_and_b32 v{t1}, 7, v{t1}"); A(f"v_lshl_add_u32 v{vK}, v{t1}, 4, v{vK}")
    A(f"s_mul_i32 s14, s4, {28 * 16384}"); A("s_lshl_b32 s15, s10, 7"); A("s_add_u32 s14, s14, s15"); A(f"s_add_u32 s14, s14, {WS_Y}")
    A("s_waitcnt lgkmcnt(0)")
    for c_ in range(2):
        pass
    for st in (1, 2, 4):
        for k_ in range(0, 8, 2 * st):
            for c_ in range(2): A(f"v_add_f32 v{Y+2*k_+c_}, v{Y+2*k_+c_}, v{Y+2*(k_+st)+c_}")
    U = 20
    A(f"v_fma_f32 v{U}, v{Y}, v{ACC}, v{Y+16}"); A(f"v_mov_b32 v{U+1}, s12")
    A(f"v_fma_f32 v{U+2}, v{Y+1}, v{ACC}, v{Y+17}"); A(f"v_mov_b32 v{U+3}, s12")
    A("s_and_saveexec_b64 s[82:83], vcc")
    A(f"buffer_store_dwordx4 v[{U}:{U+3}], v{vK}, s[{SWS}:{SWS+3}], s14 offen sc1")
    A("s_mov_b64 exec, s[82:83]")
    lab("L_ydone")
    stamp(8)
    A("s_cmp_ge_u32 s2, 56"); A("s_cbranch_scc1 L_fin_skip")
    A("s_lshl_b32 s14, s2, 14"); A("s_lshl_b32 s15, s3, 11"); A("s_add_u32 s14, s14, s15"); A(f"s_add_u32 s14, s14, {WS_Y}")
    A(f"v_lshlrev_b32 v{t0}, 4, v1")
    srd(SO, 34, 1792)
    F = RING + 24
    A(f"s_mov_b32 s80, {SPIN_MAX}")
    lab("L_fin_poll")
    A(f"buffer_load_dwordx4 v[{F}:{F+3}], v{t0}, s[{SWS}:{SWS+3}], s14 offen sc1")
    A(f"buffer_load_dwordx4 v[{F+4}:{F+7}], v{t0}, s[{SWS}:{SWS+3}], s14 offen offset:1024 sc1")
    A("s_waitcnt vmcnt(0)")
    A(f"v_cmp_eq_u32 vcc, s12, v{F+1}"); A(f"v_cmp_eq_u32 s[82:83], s12, v{F+3}")
    A(f"v_cmp_eq_u32 s[84:85], s12, v{F+5}"); A(f"v_cmp_eq_u32 s[86:87], s12, v{F+7}")
    A("s_and_b64 vcc, vcc, s[82:83]"); A("s_and_b64 s[84:85], s[84:85], s[86:87]"); A("s_and_b64 vcc, vcc, s[84:85]")
    A("s_cmp_eq_u64 vcc, -1"); A("s_cbranch_scc1 L_fin_got")
    A("s_sub_u32 s80, s80, 1"); A("s_cmp_lg_u32 s80, 0"); A("s_cbranch_scc1 L_fin_poll")
    lab("L_fin_got")
    stamp(9)
    A(f"v_add_f32 v{F}, v{F}, v{F+4}"); A(f"v_add_f32 v{F+2}, v{F+2}, v{F+6}")
    A(f"v_add_f32_dpp v{F}, v{F}, v{F} row_ror:8 row_mask:0xf bank_mask:0xf")
    A(f"v_add_f32_dpp v{F+2}, v{F+2}, v{F+2} row_ror:8 row_mask:0xf bank_mask:0xf")
    A(f"v_permlane16_swap_b32 v{F}, v{F+2}")
    A(f"v_add_f32 v{F}, v{F}, v{F+2}")
    A(f"v_mov_b32 v{F+2}, v{F}")
    A(f"v_permlane32_swap_b32 v{F}, v{F+2}")
    A(f"v_add_f32 v{F}, v{F}, v{F+2}")
    A(f"v_and_b32 v{t0}, 7, v1"); A(f"v_bfe_u32 v{t1}, v1, 4, 1"); A(f"v_lshl_add_u32 v{t0}, v{t0}, 1, v{t1}")
    A(f"v_lshlrev_b32 v{t0}, 5, v{t0}"); A("s_lshl_b32 s14, s3, 2"); A(f"v_add_u32 v{t0}, s14, v{t0}")
    A("s_mov_b32 exec_lo, 0x00ff00ff"); A("s_mov_b32 exec_hi, 0")
    A(f"ds_write_b32 v{t0}, v{F} offset:{L_FIN}")
    A("s_mov_b64 exec, -1")
    A("s_waitcnt lgkmcnt(0)"); A("s_barrier")
    A("s_cmp_lg_u32 s3, 0"); A("s_cbranch_scc1 L_fin_skip")
    A(f"v_and_b32 v{t0}, 15, v1"); A(f"v_lshlrev_b32 v{t1}, 5, v{t0}")
    A(f"ds_read_b128 v[{F}:{F+3}], v{t1} offset:{L_FIN}"); A(f"ds_read_b128 v[{F+4}:{F+7}], v{t1} offset:{L_FIN + 16}")
    A(f"v_lshlrev_b32 v{t0}, 1, v{t0}"); A("s_lshl_b32 s14, s2, 5")
    A("s_waitcnt lgkmcnt(0)")
    for st in (1, 2, 4):
        for k_ in range(0, 8, 2 * st): A(f"v_add_f32 v{F+k_}, v{F+k_}, v{F+k_+st}")
    A(f"v_cvt_pk_bf16_f32 v{F}, v{F}, v{F}")
    A("s_mov_b64 exec, 0xffff")
    A(f"buffer_store_short v{F}, v{t0}, s[{SO}:{SO+3}], s14 offen")
    A("s_cmp_lg_u32 s2, 0"); A("s_cbranch_scc1 L_fin_noep")
    A("s_mov_b64 exec, 1")
    A(f"v_mov_b32 v{t0}, 0"); A(f"v_mov_b32 v{t1}, s12")
    A(f"buffer_store_dword v{t1}, v{t0}, s[{SWS}:{SWS+3}], 0 offen")
    lab("L_fin_noep")
    A("s_mov_b64 exec, -1")
    lab("L_fin_skip")
    stamp(10)
    dump_stamps()
    A("s_endpgm")

    lab("L_service")
    A("s_setprio 3")
    vW, vXa, vTr, vT0, vT1, vT2 = 2, 3, 4, 5, 6, 7
    SM = [8, 9, 10, 11]
    A("v_mov_b32 v12, 0"); A("v_mov_b32 v13, 0"); A("v_mov_b32 v14, 0"); A("v_mov_b32 v15, 0")
    A(f"ds_write_b128 v12, v[12:15] offset:{L_FLAG}")
    A(f"v_lshlrev_b32 v{vT0}, 4, v1")
    A(f"v_lshrrev_b32 v{vT1}, 1, v1"); A(f"v_and_b32 v{vT2}, 1, v1")
    A(f"v_lshlrev_b32 v{vW}, 13, v{vT1}"); A(f"v_lshl_add_u32 v{vW}, v{vT2}, 4, v{vW}")
    A("s_lshl_b32 s14, s5, 9"); A("s_lshl_b32 s15, s11, 5"); A("s_add_u32 s14, s14, s15")
    A(f"v_add_u32 v{vW}, s14, v{vW}")
    A("s_waitcnt lgkmcnt(0)")
    A("s_load_dword s12, s[38:39], 0")
    srd(SX, 16, 1792); srd(SWQ, 22, 3670016)
    for k_ in range(2):
        A(f"s_mov_b32 m0, {L_X}")
        A(f"buffer_load_dwordx4 v{vT0}, s[{SX}:{SX+3}], 0 offen offset:{1024 * k_} lds")
    for m in range(14):
        A(f"s_mov_b32 m0, {L_WQ + 1024 * m}");
        if m: A(f"s_mov_b32 s13, {m * 262144}")
        A(f"buffer_load_dwordx4 v{vW}, s[{SWQ}:{SWQ+3}], {'s13' if m else '0'} offen {wflags} lds")
    A("s_barrier")
    srd(SWS, 38, WS_SIZE); srd(SW1, 28, 1605632); srd(SW2, 30, 1605632); srd(SG, 32, 896)
    A(f"v_mul_u32_u24 v{vXa}, 896, v{vT2}"); A("v_lshrrev_b32 v12, 4, v1"); A(f"v_lshl_add_u32 v{vXa}, v12, 4, v{vXa}")
    A(f"v_lshlrev_b32 v{vTr}, 8, v12"); A("v_bfe_u32 v12, v1, 2, 2"); A(f"v_lshl_add_u32 v{vTr}, v12, 5, v{vTr}")
    A("v_and_b32 v12, 3, v1"); A(f"v_lshl_add_u32 v{vTr}, v12, 3, v{vTr}")
    vW1 = 16
    A(f"v_mul_u32_u24 v{vW1}, 3584, v{vT1}"); A(f"v_lshl_add_u32 v{vW1}, v{vT2}, 4, v{vW1}")
    A("s_lshl_b32 s14, s10, 5"); A(f"v_add_u32 v{vW1}, s14, v{vW1}")
    vW2 = 17
    A("v_lshrrev_b32 v12, 5, v1"); A(f"v_mul_u32_u24 v{vW2}, {8 * 896}, v12"); A("v_and_b32 v12, 31, v1"); A(f"v_lshl_add_u32 v{vW2}, v12, 4, v{vW2}")
    A(f"s_mul_i32 s14, s10, {16 * 896}"); A(f"v_add_u32 v{vW2}, s14, v{vW2}")
    masks(A, SM, 12, 13); mask_prime(A, SM, 12, 13)
    if dbg: A("s_waitcnt lgkmcnt(0)"); A("v_writelane_b32 v167, s88, 0")
    XA = 24
    TB = 80
    D = 20
    def slice_gemv(img):
        for m in range(14):
            A(f"ds_read_b64_tr_b16 v[{TB+4*m}:{TB+4*m+1}], v{vTr} offset:{img + 1024 * m}")
            A(f"ds_read_b64_tr_b16 v[{TB+4*m+2}:{TB+4*m+3}], v{vTr} offset:{img + 1024 * m + 128}")
            if m >= 7: pass
        for m in range(14):
            A(f"s_waitcnt lgkmcnt({min(15, 2 * (13 - m))})")
            c = "0" if m == 0 else f"v[{D}:{D+3}]"
            A(f"v_mfma_f32_16x16x32_bf16 v[{D}:{D+3}], v[{XA+4*m}:{XA+4*m+3}], v[{TB+4*m}:{TB+4*m+3}], {c}")
    A("s_waitcnt vmcnt(14)")
    for m in range(14): A(f"ds_read_b128 v[{XA+4*m}:{XA+4*m+3}], v{vXa} offset:{L_X + 64 * m}")
    A("s_waitcnt vmcnt(0) lgkmcnt(0)")
    A(f"s_add_u32 s12, s12, {TAGC}")
    stamp(1)
    slice_gemv(L_WQ)
    UQ = 136
    for bb in range(2):
        A(f"v_mov_b32_dpp v12, v{D+bb} quad_perm:[1,1,3,3] row_mask:0xf bank_mask:0xf")
        A(f"v_cvt_pk_bf16_f32 v{UQ+4*bb}, v{D+bb}, v12")
        A(f"v_mov_b32_dpp v{UQ+4*bb+2}, v{UQ+4*bb} quad_perm:[2,2,2,2] row_mask:0xf bank_mask:0xf")
        A(f"v_mov_b32 v{UQ+4*bb+1}, s12"); A(f"v_mov_b32 v{UQ+4*bb+3}, s12")
    A("v_lshlrev_b32 v12, 2, v1")
    A("s_lshl_b32 s14, s5, 10"); A("s_lshl_b32 s15, s11, 6"); A("s_add_u32 s14, s14, s15"); A(f"s_add_u32 s14, s14, {WS_Q}")
    A("s_add_u32 s15, s14, 16384")
    A("s_mov_b64 exec, 0x1111")
    A(f"buffer_store_dwordx4 v[{UQ}:{UQ+3}], v12, s[{SWS}:{SWS+3}], s14 offen sc1")
    A(f"buffer_store_dwordx4 v[{UQ+4}:{UQ+7}], v12, s[{SWS}:{SWS+3}], s15 offen sc1")
    A("s_mov_b64 exec, -1")
    stamp(2)
    W2R = 80
    A("s_cmp_ge_u32 s10, 112"); A("s_cbranch_scc1 L_sv_now1")
    for m in range(14):
        A(f"s_mov_b32 m0, {L_W1 + 1024 * m}")
        if m: A(f"s_mov_b32 s13, {m * 32 * 3584}")
        A(f"buffer_load_dwordx4 v{vW1}, s[{SW1}:{SW1+3}], {'s13' if m else '0'} offen {wflags} lds")
    lab("L_sv_now1")
    GW = 144
    A(f"buffer_load_dwordx4 v[{GW}:{GW+3}], v{vT0}, s[{SG}:{SG+3}], 0 offen")
    QP = 148
    A("s_lshl_b32 s14, s7, 10"); A(f"s_add_u32 s14, s14, {WS_Q}"); A(f"s_mov_b32 s80, {SPIN_MAX}")
    lab("L_sv_qpoll")
    A(f"buffer_load_dwordx4 v[{QP}:{QP+3}], v{vT0}, s[{SWS}:{SWS+3}], s14 offen sc1")
    A("s_waitcnt vmcnt(0)")
    A(f"v_cmp_eq_u32 vcc, s12, v{QP+1}"); A(f"v_cmp_eq_u32 s[82:83], s12, v{QP+3}")
    A("s_and_b64 vcc, vcc, s[82:83]"); A("s_cmp_eq_u64 vcc, -1"); A("s_cbranch_scc1 L_sv_qgot")
    A("s_sleep 2"); A("s_sub_u32 s80, s80, 1"); A("s_cmp_lg_u32 s80, 0"); A("s_cbranch_scc1 L_sv_qpoll")
    lab("L_sv_qgot")
    A(f"v_mov_b32 v{QP+1}, v{QP+2}"); A("v_lshlrev_b32 v12, 3, v1")
    A(f"ds_write_b64 v12, v[{QP}:{QP+1}] offset:{L_Q}")
    A("v_mov_b32 v12, 0"); A("v_mov_b32 v13, s12"); A("v_mov_b32 v14, 1")
    A(f"ds_write_b32 v12, v13 offset:{L_G + 4}")
    A("s_waitcnt lgkmcnt(0)")
    A(f"ds_write_b32 v12, v14 offset:{L_FLAG}")
    stamp(3)
    XG = 148
    A("s_mul_i32 s14, s4, 896"); A(f"v_add_u32 v12, s14, v{vT0}")
    A(f"ds_read_b128 v[{XG}:{XG+3}], v12 offset:{L_X}")
    A("s_waitcnt lgkmcnt(0)")
    A("v_mov_b32 v18, 0")
    for k_ in range(4):
        A(f"v_lshlrev_b32 v12, 16, v{XG+k_}"); A(f"v_and_b32 v13, 0xffff0000, v{XG+k_}")
        A(f"v_lshlrev_b32 v14, 16, v{GW+k_}"); A(f"v_and_b32 v15, 0xffff0000, v{GW+k_}")
        A("v_mul_f32 v12, v12, v14"); A("v_mul_f32 v13, v13, v15")
        A("v_cvt_pk_bf16_f32 v12, v12, v13")
        A("v_lshlrev_b32 v13, 16, v12"); A("v_and_b32 v12, 0xffff0000, v12")
        A("v_add_f32 v18, v18, v13"); A("v_add_f32 v18, v18, v12")
    A("v_cmp_gt_u32 vcc, 56, v1"); A("v_cndmask_b32 v18, 0, v18, vcc")
    wave_reduce(A, "add", 18, 12)
    A("v_cvt_pk_bf16_f32 v18, v18, v18"); A("v_lshlrev_b32 v18, 16, v18")
    A("v_mul_f32 v18, 0xbfb8aa3b, v18"); A("v_exp_f32 v18, v18"); A("v_add_f32 v18, 1.0, v18"); A("v_rcp_f32 v18, v18")
    A("v_cvt_pk_bf16_f32 v18, v18, v18"); A("v_lshlrev_b32 v18, 16, v18")
    A("v_sub_f32 v19, 1.0, v18"); A("v_cvt_pk_bf16_f32 v19, v19, v19"); A("v_lshlrev_b32 v19, 16, v19")
    A("v_mov_b32 v12, 0"); A(f"ds_write_b32 v12, v18 offset:{L_G}")
    YA, YB = 152, 156
    red2_lane(A, 14, 12)
    A("s_cmp_ge_u32 s10, 112"); A("s_cbranch_scc1 L_sv_noffn")
    slice_gemv(L_W1)
    for r in range(8):
        for cb in range(2):
            q_ = r >> 2
            if cb == 0 and r == 4: A("s_movk_i32 s13, 3584")
            rr = W2R + 4 * (2 * r + cb)
            A(f"buffer_load_dwordx4 v[{rr}:{rr+3}], v{vW2}, s[{SW2}:{SW2+3}], {'s13' if q_ else '0'} offen offset:{(r & 3) * 896 + cb * 512} {wflags}")
    A("s_cmp_eq_u32 s4, 0"); A("s_cselect_b64 s[82:83], -1, 0")
    A(f"v_cndmask_b32 v12, v{D+1}, v{D}, s[82:83]")
    A("v_max_f32 v12, 0, v12"); A("v_cvt_pk_bf16_f32 v12, v12, v12")
    A("v_lshlrev_b32 v13, 2, v1")
    A("s_mov_b64 exec, 0xffff"); A(f"ds_write_b32 v13, v12 offset:{L_H}"); A("s_mov_b64 exec, -1")
    A("v_lshrrev_b32 v13, 5, v1"); A("v_lshlrev_b32 v13, 5, v13")
    A("s_waitcnt lgkmcnt(0)")
    HR = 24
    A(f"ds_read_b128 v[{HR}:{HR+3}], v13 offset:{L_H}"); A(f"ds_read_b128 v[{HR+4}:{HR+7}], v13 offset:{L_H + 16}")
    A("s_waitcnt lgkmcnt(0)")
    for r in range(8):
        a = 32 + 4 * (r & 1)
        for q_ in range(4): A(f"v_and_b32 v{a+q_}, v{HR+r}, v{SM[q_]}")
        A(f"s_waitcnt vmcnt({2 * (7 - r)})")
        for cb, d in ((0, YA), (1, YB)):
            rr = W2R + 4 * (2 * r + cb); c = "0" if r == 0 else f"v[{d}:{d+3}]"
            A(f"v_mfma_f32_16x16x32_bf16 v[{d}:{d+3}], v[{a}:{a+3}], v[{rr}:{rr+3}], {c}")
    for k_ in range(8): A(f"v_mul_f32 v{YA+k_}, v19, v{YA+k_}")
    A("s_branch L_sv_ffndone")
    lab("L_sv_noffn")
    for k_ in range(8): A(f"v_mov_b32 v{YA+k_}, 0")
    lab("L_sv_ffndone")
    A(f"ds_write_b128 v14, v[{YA}:{YA+3}] offset:{L_RED2 + 8 * 2048}")
    A(f"ds_write_b128 v14, v[{YB}:{YB+3}] offset:{L_RED2 + 8 * 2048 + 1024}")
    stamp(4)
    A("v_mov_b32 v12, 0"); A(f"s_mov_b32 s80, {SPIN_MAX}")
    lab("L_sv_cnt")
    A(f"ds_read_b32 v13, v12 offset:{L_FLAG + 8}"); A("s_waitcnt lgkmcnt(0)"); A("v_readfirstlane_b32 s81, v13")
    A("s_cmp_eq_u32 s81, 8"); A("s_cbranch_scc1 L_sv_cntok")
    A("s_sleep 4"); A("s_sub_u32 s80, s80, 1"); A("s_cmp_lg_u32 s80, 0"); A("s_cbranch_scc1 L_sv_cnt")
    lab("L_sv_cntok")
    stamp(5)
    A("s_lshl_b32 s14, s7, 14"); A(f"s_add_u32 s14, s14, {WS_S}")
    A("v_lshlrev_b32 v12, 8, v1"); A(f"s_mov_b32 s80, {SPIN_MAX}")
    lab("L_sv_hint")
    A(f"buffer_load_dwordx4 v[{QP}:{QP+3}], v12, s[{SWS}:{SWS+3}], s14 offen sc1")
    A("s_waitcnt vmcnt(0)")
    A(f"v_cmp_eq_u32 vcc, s12, v{QP+1}"); A("s_cmp_eq_u64 vcc, -1"); A("s_cbranch_scc1 L_sv_hintok")
    A("s_sleep 2"); A("s_sub_u32 s80, s80, 1"); A("s_cmp_lg_u32 s80, 0"); A("s_cbranch_scc1 L_sv_hint")
    lab("L_sv_hintok")
    stamp(6)
    SR = 24
    A("s_lshl_b32 s15, s9, 13"); A("s_add_u32 s84, s14, s15"); A("s_add_u32 s85, s84, 4096")
    A("s_xor_b32 s15, s15, 8192"); A("s_add_u32 s86, s14, s15"); A("s_add_u32 s87, s86, 4096")
    A(f"s_mov_b32 s80, {SPIN_MAX}")
    lab("L_sv_sweep")
    for m in range(16):
        A(f"buffer_load_dwordx4 v[{SR+4*m}:{SR+4*m+3}], v{vT0}, s[{SWS}:{SWS+3}], s{84 + (m >> 2)} offen offset:{(m & 3) * 1024} sc1")
    for m in range(16):
        A(f"s_waitcnt vmcnt({15 - m})")
        if m == 0: A(f"v_xor_b32 v12, s12, v{SR+1}")
        else: A(f"v_xor_b32 v13, s12, v{SR+4*m+1}"); A("v_or_b32 v12, v12, v13")
        A(f"v_xor_b32 v13, s12, v{SR+4*m+3}"); A("v_or_b32 v12, v12, v13")
    A("v_cmp_eq_u32 vcc, 0, v12"); A("s_cmp_eq_u64 vcc, -1"); A("s_cbranch_scc1 L_sv_sweepok")
    A("s_sleep 2"); A("s_sub_u32 s80, s80, 1"); A("s_cmp_lg_u32 s80, 0"); A("s_cbranch_scc1 L_sv_sweep")
    lab("L_sv_sweepok")
    stamp(7)
    for m in range(16):
        r = SR + 4 * m
        A(f"v_and_b32 v{r+1}, 0xffff0000, v{r}"); A(f"v_lshlrev_b32 v{r}, 16, v{r}")
        A(f"v_and_b32 v{r+3}, 0xffff0000, v{r+2}"); A(f"v_lshlrev_b32 v{r+2}, 16, v{r+2}")
    A(f"v_max_f32 v12, v{SR}, v{SR+1}")
    for k_ in range(2, 64, 2): A(f"v_max3_f32 v12, v12, v{SR+k_}, v{SR+k_+1}")
    wave_reduce(A, "max", 12, 13)
    A("s_mov_b32 s81, 0x3db8aa3b")
    A("v_mul_f32 v12, s81, v12"); A("v_sub_f32 v12, 0, v12")
    for k_ in range(64): A(f"v_fma_f32 v{SR+k_}, v{SR+k_}, s81, v12")
    for k_ in range(64): A(f"v_exp_f32 v{SR+k_}, v{SR+k_}")
    A(f"v_add_f32 v13, v{SR}, v{SR+1}"); A(f"v_add_f32 v15, v{SR+2}, v{SR+3}")
    for k_ in range(4, 64, 2):
        A(f"v_add_f32 v13, v13, v{SR+k_}"); A(f"v_add_f32 v15, v15, v{SR+k_+1}")
    A("v_add_f32 v13, v13, v15")
    wave_reduce(A, "add", 13, 12)
    A("v_rcp_f32 v13, v13")
    A("v_lshrrev_b32 v12, 4, v1"); A("v_lshlrev_b32 v15, 10, v12")
    A("v_bfe_u32 v12, v1, 1, 1"); A("v_lshl_add_u32 v15, v12, 7, v15")
    A("v_and_b32 v12, 1, v1"); A("v_lshl_add_u32 v15, v12, 6, v15")
    A("v_bfe_u32 v12, v1, 2, 2"); A("v_lshl_add_u32 v15, v12, 4, v15")
    for m in range(8):
        r = SR + 4 * m
        for k_ in range(4): A(f"v_mul_f32 v{r+k_}, v{r+k_}, v13")
        for k_ in range(4): A(f"v_cvt_pk_bf16_f32 v{r+k_}, v{r+k_}, v{r+k_}")
        A(f"ds_write_b128 v15, v[{r}:{r+3}] offset:{L_P + (m & 1) * 4096 + (m >> 1) * 256}")
    A("v_mov_b32 v12, 0"); A("v_mov_b32 v13, 1")
    A("s_waitcnt lgkmcnt(0)")
    A(f"ds_write_b32 v12, v13 offset:{L_FLAG + 4}")
    A("s_waitcnt lgkmcnt(0)")
    stamp(8)
    dump_stamps(True)
    lab("L_end")
    A("s_endpgm")

    body = pad_hazards(L)
    out = [HEADER.rstrip("\n"),
           "; Single fused launch: 256 workgroups (one per CU) x 9 waves (wave 0 = service, waves 1-8 stream K/V).",
           f"; @launch grid=(256,1,1) block=(576,1,1) lds={LDS_BYTES}",
           '.amdgcn_target "amdgcn-amd-amdhsa--gfx950"', ".text", f".globl {NAME}", ".p2align 8", f".type {NAME},@function", f"{NAME}:"]
    out += body
    out += ['.section .rodata,"a"', ".p2align 6", f".amdhsa_kernel {NAME}",
            "  .amdhsa_next_free_vgpr 168", "  .amdhsa_next_free_sgpr 96", "  .amdhsa_accum_offset 168",
            "  .amdhsa_group_segment_fixed_size 0", "  .amdhsa_kernarg_size 96", "  .amdhsa_user_sgpr_count 2",
            "  .amdhsa_user_sgpr_kernarg_segment_ptr 1", "  .amdhsa_system_sgpr_workgroup_id_x 1", ".end_amdhsa_kernel"]
    return "\n".join(out) + "\n"

def masks(A, M, t0, t1):
    A(f"v_and_b32 v{t0}, 1, v1"); A(f"v_lshlrev_b32 v{t0}, 4, v{t0}"); A(f"v_mov_b32 v{t1}, 0xffff"); A(f"v_lshlrev_b32 v{t1}, v{t0}, v{t1}")
    A(f"v_bfe_u32 v{t0}, v1, 1, 2")
    for r in range(4): A(f"v_cmp_eq_u32 s[{80+2*r}:{81+2*r}], {r}, v{t0}")
    for r in range(4): A(f"v_cndmask_b32 v{M[r]}, 0, v{t1}, s[{80+2*r}:{81+2*r}]")

def mask_prime(A, M, t0, t1):
    A(f"v_lshrrev_b32 v{t0}, 1, v1"); A(f"v_xor_b32 v{t0}, v{t0}, v1"); A(f"v_bfe_u32 v{t0}, v{t0}, 3, 1")
    A(f"v_add_u32 v{t0}, -1, v{t0}")
    for r in range(4): A(f"v_and_b32 v{M[r]}, v{M[r]}, v{t0}")

def red2_lane(A, d, t0):
    A(f"v_and_b32 v{t0}, 15, v1"); A(f"v_lshlrev_b32 v{d}, 5, v{t0}")
    A(f"v_lshrrev_b32 v{t0}, 5, v1"); A(f"v_lshl_add_u32 v{d}, v{t0}, 9, v{d}")
    A(f"v_bfe_u32 v{t0}, v1, 4, 1"); A(f"v_lshl_add_u32 v{d}, v{t0}, 4, v{d}")

def wave_reduce(A, op, v, t):
    for ctl in ("quad_perm:[1,0,3,2]", "quad_perm:[2,3,0,1]", "row_half_mirror", "row_mirror"):
        A(f"v_{op}_f32_dpp v{v}, v{v}, v{v} {ctl} row_mask:0xf bank_mask:0xf")
    for sw in ("v_permlane16_swap_b32", "v_permlane32_swap_b32"):
        A(f"v_mov_b32 v{t}, v{v}"); A(f"{sw} v{v}, v{t}"); A(f"v_{op}_f32 v{v}, v{v}, v{t}")

if __name__ == "__main__":
    kw = eval("dict(%s)" % (sys.argv[2] if len(sys.argv) > 2 else ""))
    open(sys.argv[1], "w").write(gen(**kw))
```

```python
import sys
sys.path.insert(0, "dev")
from asmlib import pad_hazards

NAME = "gated_mix__mha_block_cached__dense_activation_relu__decode_kernel"
HEADER = open("gated_mix__mha_block_cached__dense_activation_relu__decode.s.ref").read().split("; Override launch")[0]

WS_Q = 0x1000
WS_S = 0x10000
WS_Y = 0x100000
WS_DBG = 0x400000
WS_SIZE = 268435456
L_WQ = 0x0000; L_RED1 = 0x0000; RED1_STRIDE = 1040
L_W1 = 0x3800
L_X = 0x7000
L_Q = 0x7800
L_H = 0x7A00
L_G = 0x7A40
L_FLAG = 0x7A80
L_FIN = 0x7C00
L_P = 0x8000
L_RED2 = 0xA000
LDS_BYTES = 0xA000 + 9 * 2048
TAGC = 0x9E3779B9
SPIN_MAX = 1 << 18

def gen(LIM=2, NQ=26, NP=60, WO_AT=48, CQ=3, CP=4, R=33, dbg=False, hdbg=False, diag=None, kflags="nt", wflags="nt"):
    L = []
    A = lambda s: L.append("  " + s)
    lab = lambda s: L.append(s + ":")
    def srd(d, p, nbytes):
        A(f"s_mov_b32 s{d}, s{p}"); A(f"s_mov_b32 s{d+1}, s{p+1}"); A(f"s_mov_b32 s{d+2}, {nbytes}"); A(f"s_mov_b32 s{d+3}, 0x20000")
    SK, SV, SWO, SWS, SWQ, SW1, SW2, SX, SG, SO = 40, 44, 48, 52, 56, 60, 64, 68, 72, 76
    stampn = [0]
    def stamp(idx):
        if dbg:
            A("s_memrealtime s[90:91]"); A("s_waitcnt lgkmcnt(0)"); A(f"v_writelane_b32 v167, s90, {idx}")
    if diag is not None: hdbg = True
    if hdbg: dbg = True
    def dump_stamps(service=False):
        if hdbg:
            A("s_mov_b32 s92, s36"); A("s_mov_b32 s93, s37"); A("s_mov_b32 s94, 256"); A("s_mov_b32 s95, 0x20000")
            A("v_not_b32 v165, v167"); A("v_cmp_eq_u32 vcc, 0, v1"); A("v_cndmask_b32 v167, v167, v165, vcc")
            A("v_lshlrev_b32 v166, 2, v1")
            if service:
                A("v_lshrrev_b32 v166, 1, v1"); A("v_lshlrev_b32 v166, 2, v166"); A("v_add_u32 v166, 40, v166")
                A("s_mov_b64 exec, 0x1a8")
            else:
                A("s_mov_b64 exec, 0x7ff")
            A("buffer_atomic_umax v167, v166, s[92:95], 0 offen")
            A("s_mov_b64 exec, -1")
        elif dbg:
            A("s_mul_i32 s92, s2, 9"); A("s_add_u32 s92, s92, s93"); A("s_lshl_b32 s92, s92, 8"); A(f"s_add_u32 s92, s92, {WS_DBG}")
            A("v_lshlrev_b32 v166, 2, v1")
            A(f"buffer_store_dword v167, v166, s[{SWS}:{SWS+3}], s92 offen")
    if dbg: R = min(R, 32)

    A("s_cmp_ge_u32 s2, 256"); A("s_cbranch_scc1 L_end")
    A("s_load_dwordx16 s[16:31], s[0:1], 0")
    A("s_load_dwordx8 s[32:39], s[0:1], 64")
    A("v_lshrrev_b32 v2, 6, v0"); A("v_and_b32 v1, 63, v0")
    A("v_readfirstlane_b32 s3, v2")
    A("s_and_b32 s14, s2, 7"); A("s_lshr_b32 s15, s2, 3")
    A("s_lshr_b32 s4, s15, 4")
    A("s_bfe_u32 s5, s15, 0x10003"); A("s_lshl_b32 s14, s14, 1"); A("s_add_u32 s5, s5, s14")
    A("s_and_b32 s6, s15, 7")
    A("s_lshl_b32 s7, s4, 4"); A("s_add_u32 s7, s7, s5")
    A("s_and_b32 s8, s6, 3"); A("s_lshr_b32 s9, s6, 2")
    A("s_lshl_b32 s10, s5, 3"); A("s_add_u32 s10, s10, s6")
    A("s_lshl_b32 s11, s4, 3"); A("s_add_u32 s11, s11, s6")
    if dbg:
        A("s_mov_b32 s93, s3"); A("v_mov_b32 v167, 0"); A("s_memrealtime s[88:89]")
    A("s_cmp_eq_u32 s3, 0"); A("s_cbranch_scc1 L_service")

    A("s_sub_u32 s3, s3, 1")
    vK, vV, vWo, vP, t0, t1 = 2, 3, 4, 5, 6, 7
    M = [8, 9, 10, 11]; Q = [12, 16]; PR = [12, 16]; DB = [20, 24]; AB = [20, 24]; SG_ = [28, 29, 30, 31]; ACC = 32
    RING = 36
    A(f"v_bfe_u32 v{t0}, v1, 2, 2"); A(f"v_lshlrev_b32 v{vK}, 9, v{t0}")
    A(f"v_lshrrev_b32 v{t0}, 4, v1"); A(f"v_lshl_add_u32 v{vK}, v{t0}, 6, v{vK}")
    A(f"v_and_b32 v{t0}, 3, v1"); A(f"v_lshl_add_u32 v{vK}, v{t0}, 4, v{vK}")
    A("s_lshl_b32 s13, s7, 21"); A("s_lshl_b32 s14, s3, 12"); A("s_add_u32 s13, s13, s14")
    A("s_lshl_b32 s14, s6, 18"); A("s_add_u32 s14, s14, s13")
    A(f"v_add_u32 v{vK}, s14, v{vK}")
    A("s_waitcnt lgkmcnt(0)")
    srd(SK, 18, 0x4000000)

    loads = []
    for beta in range(8):
        for tp in range(2):
            for jh in range(2): loads.append(("K", beta, tp, jh))
    vl = [("V", m) for m in range(32)]
    wl = [("W", r, cb) for r in range(4) for cb in range(2)]
    k = WO_AT - 32
    loads += vl[:k] + wl + vl[k:]
    free = list(range(R)); slot = {}
    issued = []
    landed = [-1]
    cur_soff = [None]
    def soff(val):
        if val == 0: return "0"
        if cur_soff[0] != val:
            A(f"s_mov_b32 s13, {val}"); cur_soff[0] = val
        return "s13"
    def wait_landed(n):
        if n <= landed[0]: return
        younger = sum(1 for x in issued if x[0] == "L" and x[1] > n)
        A(f"s_waitcnt vmcnt({younger})"); landed[0] = n
    def issue(n):
        ld = loads[n]; sl = free.pop(0); slot[n] = sl; r = RING + 4 * sl
        if ld[0] == "K":
            _, beta, tp, jh = ld
            A(f"buffer_load_dwordx4 v[{r}:{r+3}], v{vK}, s[{SK}:{SK+3}], {soff(beta * 32768)} offen offset:{tp * 2048 + jh * 256} {kflags}")
        elif ld[0] == "V":
            A(f"buffer_load_dwordx4 v[{r}:{r+3}], v{vV}, s[{SV}:{SV+3}], {soff(ld[1] * 32768)} offen {kflags}")
        else:
            A(f"buffer_load_dwordx4 v[{r}:{r+3}], v{vWo}, s[{SWO}:{SWO+3}], 0 offen offset:{ld[1] * 896 + ld[2] * 512} {wflags}")
        issued.append(("L", n))
    sreg = lambda n: RING + 4 * slot[n]
    def lds_wait_flag(off, val, tag):
        A(f"v_mov_b32 v{t0}, 0"); A(f"s_mov_b32 s80, {SPIN_MAX}")
        lab(f"L_wait_{tag}")
        A(f"ds_read_b32 v{t1}, v{t0} offset:{off}"); A("s_waitcnt lgkmcnt(0)")
        A(f"v_readfirstlane_b32 s81, v{t1}")
        A(f"s_cmp_eq_u32 s81, {val}"); A(f"s_cbranch_scc1 L_got_{tag}")
        A("s_sleep 1"); A("s_sub_u32 s80, s80, 1"); A("s_cmp_lg_u32 s80, 0"); A(f"s_cbranch_scc1 L_wait_{tag}")
        lab(f"L_got_{tag}")

    qk_next = [0]; qk_post = [None]; pv_next = [0]
    vidx = {ld[1]: n for n, ld in enumerate(loads) if ld[0] == "V"}
    widx = {(ld[1], ld[2]): n for n, ld in enumerate(loads) if ld[0] == "W"}
    def qk_dpp(tau):
        beta, tp = tau >> 1, tau & 1; G = beta >> 1; t = 2 * (beta & 1) + tp; d = DB[tau & 1]
        A(f"v_mov_b32_dpp v{t0}, v{d} quad_perm:[0,0,0,0] row_mask:0xf bank_mask:0xf")
        A(f"v_add_f32_dpp v{t0}, v{d+1}, v{t0} quad_perm:[1,1,1,1] row_mask:0xf bank_mask:0xf")
        A(f"v_add_f32_dpp v{t0}, v{d+2}, v{t0} quad_perm:[2,2,2,2] row_mask:0xf bank_mask:0xf")
        A(f"v_add_f32_dpp v{SG_[G]}, v{d+3}, v{t0} quad_perm:[3,3,3,3] row_mask:0xf bank_mask:{hex(1 << t)}")
    def qk_tile(tau):
        d = DB[tau & 1]; a0 = sreg(2 * tau); a1 = sreg(2 * tau + 1)
        A(f"v_mfma_f32_16x16x32_bf16 v[{d}:{d+3}], v[{a0}:{a0+3}], v[{Q[0]}:{Q[0]+3}], 0")
        A(f"v_mfma_f32_16x16x32_bf16 v[{d}:{d+3}], v[{a1}:{a1+3}], v[{Q[1]}:{Q[1]+3}], v[{d}:{d+3}]")
        free.extend([slot[2 * tau], slot[2 * tau + 1]])
        if qk_post[0] is not None: qk_dpp(qk_post[0])
        qk_post[0] = tau
    def publish_scores():
        qk_dpp(qk_post[0]); qk_post[0] = None
        u_ = DB[0]
        A(f"v_cvt_pk_bf16_f32 v{u_}, v{SG_[0]}, v{SG_[1]}"); A(f"v_mov_b32 v{u_+1}, s12")
        A(f"v_cvt_pk_bf16_f32 v{u_+2}, v{SG_[2]}, v{SG_[3]}"); A(f"v_mov_b32 v{u_+3}, s12")
        A(f"v_lshlrev_b32 v{t0}, 2, v1")
        A("s_lshl_b32 s14, s7, 14"); A("s_lshl_b32 s15, s6, 3"); A("s_add_u32 s15, s15, s3"); A("s_lshl_b32 s15, s15, 8")
        A("s_add_u32 s14, s14, s15"); A(f"s_add_u32 s14, s14, {WS_S}")
        A("s_mov_b32 exec_lo, 0x11111111"); A("s_mov_b32 exec_hi, 0x11111111")
        A(f"buffer_store_dwordx4 v[{u_}:{u_+3}], v{t0}, s[{SWS}:{SWS+3}], s14 offen sc1")
        issued.append(("S",))
        A("s_mov_b64 exec, 1")
        A(f"v_mov_b32 v{t0}, 0"); A(f"v_mov_b32 v{t1}, 1")
        A(f"ds_add_u32 v{t0}, v{t1} offset:{L_FLAG + 8}")
        A("s_mov_b64 exec, -1")
        stamp(3)
    def pv_tile(m):
        s2_, G, th = m >> 3, (m >> 1) & 3, m & 1
        if (m & 7) == 0:
            A(f"ds_read_b128 v[{PR[0]}:{PR[0]+3}], v{vP} offset:{(2 * s2_) * 128}")
            A(f"ds_read_b128 v[{PR[1]}:{PR[1]+3}], v{vP} offset:{(2 * s2_ + 1) * 128}")
            A("s_waitcnt lgkmcnt(0)")
        a = AB[m & 1]; p = PR[th] + G; bv = sreg(vidx[m])
        for r in range(4): A(f"v_and_b32 v{a+r}, v{p}, v{M[r]}")
        c = "0" if m == 0 else f"v[{ACC}:{ACC+3}]"
        A(f"v_mfma_f32_16x16x32_bf16 v[{ACC}:{ACC+3}], v[{a}:{a+3}], v[{bv}:{bv+3}], {c}")
        free.append(slot[vidx[m]])

    N = len(loads)
    published = False
    for n in range(N):
        if n > LIM: wait_landed(n - LIM - 1)
        if n == NQ:
            stamp(1)
            lds_wait_flag(L_FLAG, 1, "q")
            A(f"v_lshrrev_b32 v{t0}, 4, v1"); A(f"v_and_b32 v{t1}, 3, v1"); A(f"v_lshl_add_u32 v{t0}, v{t0}, 2, v{t1}"); A(f"v_lshlrev_b32 v{t0}, 4, v{t0}")
            A(f"ds_read_b128 v[{Q[0]}:{Q[0]+3}], v{t0} offset:{L_Q}")
            A(f"ds_read_b128 v[{Q[1]}:{Q[1]+3}], v{t0} offset:{L_Q + 256}")
            A(f"v_mov_b32 v{t0}, 0")
            A(f"ds_read_b32 v{t1}, v{t0} offset:{L_G + 4}")
            A("s_waitcnt lgkmcnt(0)")
            A(f"v_readfirstlane_b32 s12, v{t1}")
            stamp(2)
        if n == NP:
            stamp(4)
            lds_wait_flag(L_FLAG + 4, 1, "p")
            stamp(5)
        if not free:
            if n >= NP: pv_tile(pv_next[0]); pv_next[0] += 1
            else: raise RuntimeError(f"no free slot at load {n}")
        issue(n)
        if n == LIM:
            srd(SV, 20, 0x4000000); srd(SWO, 24, 3670016); srd(SWS, 38, WS_SIZE)
            A("s_barrier")
            A(f"v_lshrrev_b32 v{t0}, 3, v1"); A(f"v_lshlrev_b32 v{vV}, 9, v{t0}")
            A(f"v_lshlrev_b32 v{vP}, 4, v{t0}")
            A(f"v_and_b32 v{t0}, 7, v1"); A(f"v_lshl_add_u32 v{vV}, v{t0}, 4, v{vV}")
            A("s_lshl_b32 s14, s7, 21"); A("s_lshl_b32 s15, s3, 12"); A("s_add_u32 s14, s14, s15")
            A("s_lshl_b32 s15, s9, 20"); A("s_add_u32 s14, s14, s15"); A("s_lshl_b32 s15, s8, 7"); A("s_add_u32 s14, s14, s15")
            A(f"v_add_u32 v{vV}, s14, v{vV}")
            A("s_lshl_b32 s14, s3, 10"); A(f"s_add_u32 s14, s14, {L_P}"); A(f"v_add_u32 v{vP}, s14, v{vP}")
            A(f"v_lshrrev_b32 v{t0}, 5, v1"); A(f"v_mul_u32_u24 v{vWo}, 3584, v{t0}")
            A(f"v_and_b32 v{t0}, 31, v1"); A(f"v_lshl_add_u32 v{vWo}, v{t0}, 4, v{vWo}")
            A("s_lshl_b32 s14, s5, 8"); A("s_lshl_b32 s15, s8, 6"); A("s_add_u32 s14, s14, s15"); A("s_lshl_b32 s15, s3, 3"); A("s_add_u32 s14, s14, s15")
            A("s_mul_i32 s14, s14, 896"); A(f"v_add_u32 v{vWo}, s14, v{vWo}")
            masks(A, M, t0, t1)
            if dbg: A("s_waitcnt lgkmcnt(0)"); A("v_writelane_b32 v167, s88, 0")
        if n >= NQ:
            c = 0
            while qk_next[0] < 16 and c < CQ and 2 * qk_next[0] + 1 <= landed[0]:
                qk_tile(qk_next[0]); qk_next[0] += 1; c += 1
            if qk_next[0] == 16 and not published:
                publish_scores(); published = True
        if n >= NP:
            c = 0
            while pv_next[0] < 32 and c < CP and vidx[pv_next[0]] <= landed[0]:
                pv_tile(pv_next[0]); pv_next[0] += 1; c += 1
    assert published
    vR1w, vR1r, vR2w = vK, vV, vWo
    A(f"s_mul_i32 s14, s3, {RED1_STRIDE}"); A(f"v_lshlrev_b32 v{vR1w}, 4, v1"); A(f"v_add_u32 v{vR1w}, s14, v{vR1w}")
    A(f"v_and_b32 v{t0}, 7, v1"); A(f"v_mul_u32_u24 v{vR1r}, {RED1_STRIDE}, v{t0}")
    A(f"v_bfe_u32 v{t0}, v1, 3, 1"); A(f"v_mul_u32_u24 v{t0}, 640, v{t0}"); A(f"v_add_u32 v{vR1r}, v{vR1r}, v{t0}")
    A(f"v_lshrrev_b32 v{t0}, 5, v1"); A(f"v_lshl_add_u32 v{vR1r}, v{t0}, 8, v{vR1r}")
    A("s_lshl_b32 s14, s3, 4"); A(f"v_add_u32 v{vR1r}, s14, v{vR1r}")
    red2_lane(A, vR2w, t0)
    A("s_lshl_b32 s14, s3, 11"); A(f"v_add_u32 v{vR2w}, s14, v{vR2w}")
    while pv_next[0] < 32:
        wait_landed(vidx[pv_next[0]]); pv_tile(pv_next[0]); pv_next[0] += 1
    wait_landed(N - 1)
    stamp(6)
    mask_prime(A, M, t0, t1)
    A(f"ds_write_b128 v{vR1w}, v[{ACC}:{ACC+3}] offset:{L_RED1}")
    A("s_waitcnt lgkmcnt(0)"); A("s_barrier")
    O = 28
    A(f"ds_read_b128 v[{O}:{O+3}], v{vR1r} offset:{L_RED1}")
    A("s_waitcnt lgkmcnt(0)")
    for ctl in ("quad_perm:[1,0,3,2]", "quad_perm:[2,3,0,1]", "row_half_mirror", "row_mirror"):
        for r in range(4): A(f"v_add_f32_dpp v{O+r}, v{O+r}, v{O+r} {ctl} row_mask:0xf bank_mask:0xf")
    for r in range(4): A(f"v_cvt_pk_bf16_f32 v{O+r}, v{O+r}, v{O+r}")
    DA, DBb = 12, 16
    for r in range(4):
        a = AB[r & 1]
        for q in range(4): A(f"v_and_b32 v{a+q}, v{O+r}, v{M[q]}")
        for cb, d in ((0, DA), (1, DBb)):
            bw = sreg(widx[(r, cb)]); c = "0" if r == 0 else f"v[{d}:{d+3}]"
            A(f"v_mfma_f32_16x16x32_bf16 v[{d}:{d+3}], v[{a}:{a+3}], v[{bw}:{bw+3}], {c}")
    A("s_lshl_b32 s14, s3, 9"); A(f"v_lshl_add_u32 v{t0}, v1, 3, s14")
    A(f"v_mov_b32 v{t1}, 0")
    A(f"ds_read_b32 v{ACC}, v{t1} offset:{L_G}")
    A(f"ds_write_b128 v{vR2w}, v[{DA}:{DA+3}] offset:{L_RED2}")
    A(f"ds_write_b128 v{vR2w}, v[{DBb}:{DBb+3}] offset:{L_RED2 + 1024}")
    A("s_waitcnt lgkmcnt(0)"); A("s_barrier")
    stamp(7)
    A("s_cmp_ge_u32 s3, 4"); A("s_cbranch_scc1 L_ydone")
    Y = RING
    for k_ in range(9): A(f"ds_read_b64 v[{Y+2*k_}:{Y+2*k_+1}], v{t0} offset:{L_RED2 + 2048 * k_}")
    A("s_lshl_b32 s14, s3, 6"); A(f"v_add_u32 v{t1}, s14, v1")
    A(f"v_cmp_gt_u32 vcc, 224, v{t1}")
    A(f"v_lshrrev_b32 v{vK}, 3, v{t1}"); A(f"v_lshlrev_b32 v{vK}, 14, v{vK}")
    A(f"v_and_b32 v{t1}, 7, v{t1}"); A(f"v_lshl_add_u32 v{vK}, v{t1}, 4, v{vK}")
    A(f"s_mul_i32 s14, s4, {28 * 16384}"); A("s_lshl_b32 s15, s10, 7"); A("s_add_u32 s14, s14, s15"); A(f"s_add_u32 s14, s14, {WS_Y}")
    A("s_waitcnt lgkmcnt(0)")
    for c_ in range(2):
        pass
    for st in (1, 2, 4):
        for k_ in range(0, 8, 2 * st):
            for c_ in range(2): A(f"v_add_f32 v{Y+2*k_+c_}, v{Y+2*k_+c_}, v{Y+2*(k_+st)+c_}")
    U = 20
    A(f"v_fma_f32 v{U}, v{Y}, v{ACC}, v{Y+16}"); A(f"v_mov_b32 v{U+1}, s12")
    A(f"v_fma_f32 v{U+2}, v{Y+1}, v{ACC}, v{Y+17}"); A(f"v_mov_b32 v{U+3}, s12")
    A("s_and_saveexec_b64 s[82:83], vcc")
    A(f"buffer_store_dwordx4 v[{U}:{U+3}], v{vK}, s[{SWS}:{SWS+3}], s14 offen sc1")
    A("s_mov_b64 exec, s[82:83]")
    lab("L_ydone")
    stamp(8)
    A("s_cmp_ge_u32 s2, 56"); A("s_cbranch_scc1 L_fin_skip")
    A("s_lshl_b32 s14, s2, 14"); A("s_lshl_b32 s15, s3, 11"); A("s_add_u32 s14, s14, s15"); A(f"s_add_u32 s14, s14, {WS_Y}")
    A(f"v_lshlrev_b32 v{t0}, 4, v1")
    srd(SO, 34, 1792)
    F = RING + 24
    A(f"s_mov_b32 s80, {SPIN_MAX}")
    lab("L_fin_poll")
    A(f"buffer_load_dwordx4 v[{F}:{F+3}], v{t0}, s[{SWS}:{SWS+3}], s14 offen sc1")
    A(f"buffer_load_dwordx4 v[{F+4}:{F+7}], v{t0}, s[{SWS}:{SWS+3}], s14 offen offset:1024 sc1")
    A("s_waitcnt vmcnt(0)")
    A(f"v_cmp_eq_u32 vcc, s12, v{F+1}"); A(f"v_cmp_eq_u32 s[82:83], s12, v{F+3}")
    A(f"v_cmp_eq_u32 s[84:85], s12, v{F+5}"); A(f"v_cmp_eq_u32 s[86:87], s12, v{F+7}")
    A("s_and_b64 vcc, vcc, s[82:83]"); A("s_and_b64 s[84:85], s[84:85], s[86:87]"); A("s_and_b64 vcc, vcc, s[84:85]")
    A("s_cmp_eq_u64 vcc, -1"); A("s_cbranch_scc1 L_fin_got")
    A("s_sub_u32 s80, s80, 1"); A("s_cmp_lg_u32 s80, 0"); A("s_cbranch_scc1 L_fin_poll")
    lab("L_fin_got")
    stamp(9)
    A(f"v_add_f32 v{F}, v{F}, v{F+4}"); A(f"v_add_f32 v{F+2}, v{F+2}, v{F+6}")
    A(f"v_add_f32_dpp v{F}, v{F}, v{F} row_ror:8 row_mask:0xf bank_mask:0xf")
    A(f"v_add_f32_dpp v{F+2}, v{F+2}, v{F+2} row_ror:8 row_mask:0xf bank_mask:0xf")
    A(f"v_permlane16_swap_b32 v{F}, v{F+2}")
    A(f"v_add_f32 v{F}, v{F}, v{F+2}")
    A(f"v_mov_b32 v{F+2}, v{F}")
    A(f"v_permlane32_swap_b32 v{F}, v{F+2}")
    A(f"v_add_f32 v{F}, v{F}, v{F+2}")
    A(f"v_and_b32 v{t0}, 7, v1"); A(f"v_bfe_u32 v{t1}, v1, 4, 1"); A(f"v_lshl_add_u32 v{t0}, v{t0}, 1, v{t1}")
    A(f"v_lshlrev_b32 v{t0}, 5, v{t0}"); A("s_lshl_b32 s14, s3, 2"); A(f"v_add_u32 v{t0}, s14, v{t0}")
    A("s_mov_b32 exec_lo, 0x00ff00ff"); A("s_mov_b32 exec_hi, 0")
    A(f"ds_write_b32 v{t0}, v{F} offset:{L_FIN}")
    A("s_mov_b64 exec, -1")
    A("s_waitcnt lgkmcnt(0)"); A("s_barrier")
    A("s_cmp_lg_u32 s3, 0"); A("s_cbranch_scc1 L_fin_skip")
    A(f"v_and_b32 v{t0}, 15, v1"); A(f"v_lshlrev_b32 v{t1}, 5, v{t0}")
    A(f"ds_read_b128 v[{F}:{F+3}], v{t1} offset:{L_FIN}"); A(f"ds_read_b128 v[{F+4}:{F+7}], v{t1} offset:{L_FIN + 16}")
    A(f"v_lshlrev_b32 v{t0}, 1, v{t0}"); A("s_lshl_b32 s14, s2, 5")
    A("s_waitcnt lgkmcnt(0)")
    for st in (1, 2, 4):
        for k_ in range(0, 8, 2 * st): A(f"v_add_f32 v{F+k_}, v{F+k_}, v{F+k_+st}")
    A(f"v_cvt_pk_bf16_f32 v{F}, v{F}, v{F}")
    A("s_mov_b64 exec, 0xffff")
    A(f"buffer_store_short v{F}, v{t0}, s[{SO}:{SO+3}], s14 offen")
    A("s_cmp_lg_u32 s2, 0"); A("s_cbranch_scc1 L_fin_noep")
    A("s_mov_b64 exec, 1")
    A(f"v_mov_b32 v{t0}, 0"); A(f"v_mov_b32 v{t1}, s12")
    A(f"buffer_store_dword v{t1}, v{t0}, s[{SWS}:{SWS+3}], 0 offen")
    lab("L_fin_noep")
    A("s_mov_b64 exec, -1")
    lab("L_fin_skip")
    stamp(10)
    dump_stamps()
    if diag is not None:
        A("s_cmp_lg_u32 s2, 0"); A("s_cbranch_scc1 L_diag_end"); A("s_cmp_lg_u32 s3, 0"); A("s_cbranch_scc1 L_diag_end")
        A("s_add_u32 s84, s88, 7000")
        lab("L_diag1")
        A("s_memrealtime s[90:91]"); A("s_waitcnt lgkmcnt(0)"); A("s_sub_u32 s85, s90, s84"); A("s_cmp_lt_i32 s85, 0"); A("s_cbranch_scc1 L_diag1")
        A("v_lshlrev_b32 v166, 2, v1")
        A("buffer_load_dword v165, v166, s[92:95], 0 offen sc1"); A("s_waitcnt vmcnt(0)")
        A("v_readlane_b32 s84, v165, 0"); A(f"v_readlane_b32 s85, v165, {max(diag, 0)}")
        A("s_not_b32 s84, s84"); A("s_sub_u32 s85, s85, s84"); A("s_lshl_b32 s85, s85, 2")
        if diag <= 0: A("s_mov_b32 s85, 0")
        A("s_min_u32 s85, s85, 40000")
        A("s_add_u32 s84, s88, 10000"); A("s_add_u32 s84, s84, s85")
        lab("L_diag2")
        A("s_memrealtime s[90:91]"); A("s_waitcnt lgkmcnt(0)"); A("s_sub_u32 s85, s90, s84"); A("s_cmp_lt_i32 s85, 0"); A("s_cbranch_scc1 L_diag2")
        lab("L_diag_end")
    A("s_endpgm")

    lab("L_service")
    A("s_setprio 3")
    vW, vXa, vTr, vT0, vT1, vT2 = 2, 3, 4, 5, 6, 7
    SM = [8, 9, 10, 11]
    A("v_mov_b32 v12, 0"); A("v_mov_b32 v13, 0"); A("v_mov_b32 v14, 0"); A("v_mov_b32 v15, 0")
    A(f"ds_write_b128 v12, v[12:15] offset:{L_FLAG}")
    A(f"v_lshlrev_b32 v{vT0}, 4, v1")
    A(f"v_lshrrev_b32 v{vT1}, 1, v1"); A(f"v_and_b32 v{vT2}, 1, v1")
    A(f"v_lshlrev_b32 v{vW}, 13, v{vT1}"); A(f"v_lshl_add_u32 v{vW}, v{vT2}, 4, v{vW}")
    A("s_lshl_b32 s14, s5, 9"); A("s_lshl_b32 s15, s11, 5"); A("s_add_u32 s14, s14, s15")
    A(f"v_add_u32 v{vW}, s14, v{vW}")
    A("s_waitcnt lgkmcnt(0)")
    A("s_load_dword s12, s[38:39], 0")
    srd(SX, 16, 1792); srd(SWQ, 22, 3670016)
    for k_ in range(2):
        A(f"s_mov_b32 m0, {L_X}")
        A(f"buffer_load_dwordx4 v{vT0}, s[{SX}:{SX+3}], 0 offen offset:{1024 * k_} lds")
    for m in range(14):
        A(f"s_mov_b32 m0, {L_WQ + 1024 * m}");
        if m: A(f"s_mov_b32 s13, {m * 262144}")
        A(f"buffer_load_dwordx4 v{vW}, s[{SWQ}:{SWQ+3}], {'s13' if m else '0'} offen {wflags} lds")
    A("s_barrier")
    srd(SWS, 38, WS_SIZE); srd(SW1, 28, 1605632); srd(SW2, 30, 1605632); srd(SG, 32, 896)
    A(f"v_mul_u32_u24 v{vXa}, 896, v{vT2}"); A("v_lshrrev_b32 v12, 4, v1"); A(f"v_lshl_add_u32 v{vXa}, v12, 4, v{vXa}")
    A(f"v_lshlrev_b32 v{vTr}, 8, v12"); A("v_bfe_u32 v12, v1, 2, 2"); A(f"v_lshl_add_u32 v{vTr}, v12, 5, v{vTr}")
    A("v_and_b32 v12, 3, v1"); A(f"v_lshl_add_u32 v{vTr}, v12, 3, v{vTr}")
    vW1 = 16
    A(f"v_mul_u32_u24 v{vW1}, 3584, v{vT1}"); A(f"v_lshl_add_u32 v{vW1}, v{vT2}, 4, v{vW1}")
    A("s_lshl_b32 s14, s10, 5"); A(f"v_add_u32 v{vW1}, s14, v{vW1}")
    vW2 = 17
    A("v_lshrrev_b32 v12, 5, v1"); A(f"v_mul_u32_u24 v{vW2}, {8 * 896}, v12"); A("v_and_b32 v12, 31, v1"); A(f"v_lshl_add_u32 v{vW2}, v12, 4, v{vW2}")
    A(f"s_mul_i32 s14, s10, {16 * 896}"); A(f"v_add_u32 v{vW2}, s14, v{vW2}")
    masks(A, SM, 12, 13); mask_prime(A, SM, 12, 13)
    if dbg: A("s_waitcnt lgkmcnt(0)"); A("v_writelane_b32 v167, s88, 0")
    XA = 24
    TB = 80
    D = 20
    def slice_gemv(img):
        for m in range(14):
            A(f"ds_read_b64_tr_b16 v[{TB+4*m}:{TB+4*m+1}], v{vTr} offset:{img + 1024 * m}")
            A(f"ds_read_b64_tr_b16 v[{TB+4*m+2}:{TB+4*m+3}], v{vTr} offset:{img + 1024 * m + 128}")
            if m >= 7: pass
        for m in range(14):
            A(f"s_waitcnt lgkmcnt({min(15, 2 * (13 - m))})")
            c = "0" if m == 0 else f"v[{D}:{D+3}]"
            A(f"v_mfma_f32_16x16x32_bf16 v[{D}:{D+3}], v[{XA+4*m}:{XA+4*m+3}], v[{TB+4*m}:{TB+4*m+3}], {c}")
    A("s_waitcnt vmcnt(14)")
    for m in range(14): A(f"ds_read_b128 v[{XA+4*m}:{XA+4*m+3}], v{vXa} offset:{L_X + 64 * m}")
    A("s_waitcnt vmcnt(0) lgkmcnt(0)")
    A(f"s_add_u32 s12, s12, {TAGC}")
    stamp(1)
    slice_gemv(L_WQ)
    UQ = 136
    for bb in range(2):
        A(f"v_mov_b32_dpp v12, v{D+bb} quad_perm:[1,1,3,3] row_mask:0xf bank_mask:0xf")
        A(f"v_cvt_pk_bf16_f32 v{UQ+4*bb}, v{D+bb}, v12")
        A(f"v_mov_b32_dpp v{UQ+4*bb+2}, v{UQ+4*bb} quad_perm:[2,2,2,2] row_mask:0xf bank_mask:0xf")
        A(f"v_mov_b32 v{UQ+4*bb+1}, s12"); A(f"v_mov_b32 v{UQ+4*bb+3}, s12")
    A("v_lshlrev_b32 v12, 2, v1")
    A("s_lshl_b32 s14, s5, 10"); A("s_lshl_b32 s15, s11, 6"); A("s_add_u32 s14, s14, s15"); A(f"s_add_u32 s14, s14, {WS_Q}")
    A("s_add_u32 s15, s14, 16384")
    A("s_mov_b64 exec, 0x1111")
    A(f"buffer_store_dwordx4 v[{UQ}:{UQ+3}], v12, s[{SWS}:{SWS+3}], s14 offen sc1")
    A(f"buffer_store_dwordx4 v[{UQ+4}:{UQ+7}], v12, s[{SWS}:{SWS+3}], s15 offen sc1")
    A("s_mov_b64 exec, -1")
    stamp(2)
    W2R = 80
    A("s_cmp_ge_u32 s10, 112"); A("s_cbranch_scc1 L_sv_now1")
    for m in range(14):
        A(f"s_mov_b32 m0, {L_W1 + 1024 * m}")
        if m: A(f"s_mov_b32 s13, {m * 32 * 3584}")
        A(f"buffer_load_dwordx4 v{vW1}, s[{SW1}:{SW1+3}], {'s13' if m else '0'} offen {wflags} lds")
    lab("L_sv_now1")
    GW = 144
    A(f"buffer_load_dwordx4 v[{GW}:{GW+3}], v{vT0}, s[{SG}:{SG+3}], 0 offen")
    QP = 148
    A("s_lshl_b32 s14, s7, 10"); A(f"s_add_u32 s14, s14, {WS_Q}"); A(f"s_mov_b32 s80, {SPIN_MAX}")
    lab("L_sv_qpoll")
    A(f"buffer_load_dwordx4 v[{QP}:{QP+3}], v{vT0}, s[{SWS}:{SWS+3}], s14 offen sc1")
    A("s_waitcnt vmcnt(0)")
    A(f"v_cmp_eq_u32 vcc, s12, v{QP+1}"); A(f"v_cmp_eq_u32 s[82:83], s12, v{QP+3}")
    A("s_and_b64 vcc, vcc, s[82:83]"); A("s_cmp_eq_u64 vcc, -1"); A("s_cbranch_scc1 L_sv_qgot")
    A("s_sleep 2"); A("s_sub_u32 s80, s80, 1"); A("s_cmp_lg_u32 s80, 0"); A("s_cbranch_scc1 L_sv_qpoll")
    lab("L_sv_qgot")
    A(f"v_mov_b32 v{QP+1}, v{QP+2}"); A("v_lshlrev_b32 v12, 3, v1")
    A(f"ds_write_b64 v12, v[{QP}:{QP+1}] offset:{L_Q}")
    A("v_mov_b32 v12, 0"); A("v_mov_b32 v13, s12"); A("v_mov_b32 v14, 1")
    A(f"ds_write_b32 v12, v13 offset:{L_G + 4}")
    A("s_waitcnt lgkmcnt(0)")
    A(f"ds_write_b32 v12, v14 offset:{L_FLAG}")
    stamp(3)
    XG = 148
    A("s_mul_i32 s14, s4, 896"); A(f"v_add_u32 v12, s14, v{vT0}")
    A(f"ds_read_b128 v[{XG}:{XG+3}], v12 offset:{L_X}")
    A("s_waitcnt lgkmcnt(0)")
    A("v_mov_b32 v18, 0")
    for k_ in range(4):
        A(f"v_lshlrev_b32 v12, 16, v{XG+k_}"); A(f"v_and_b32 v13, 0xffff0000, v{XG+k_}")
        A(f"v_lshlrev_b32 v14, 16, v{GW+k_}"); A(f"v_and_b32 v15, 0xffff0000, v{GW+k_}")
        A("v_mul_f32 v12, v12, v14"); A("v_mul_f32 v13, v13, v15")
        A("v_cvt_pk_bf16_f32 v12, v12, v13")
        A("v_lshlrev_b32 v13, 16, v12"); A("v_and_b32 v12, 0xffff0000, v12")
        A("v_add_f32 v18, v18, v13"); A("v_add_f32 v18, v18, v12")
    A("v_cmp_gt_u32 vcc, 56, v1"); A("v_cndmask_b32 v18, 0, v18, vcc")
    wave_reduce(A, "add", 18, 12)
    A("v_cvt_pk_bf16_f32 v18, v18, v18"); A("v_lshlrev_b32 v18, 16, v18")
    A("v_mul_f32 v18, 0xbfb8aa3b, v18"); A("v_exp_f32 v18, v18"); A("v_add_f32 v18, 1.0, v18"); A("v_rcp_f32 v18, v18")
    A("v_cvt_pk_bf16_f32 v18, v18, v18"); A("v_lshlrev_b32 v18, 16, v18")
    A("v_sub_f32 v19, 1.0, v18"); A("v_cvt_pk_bf16_f32 v19, v19, v19"); A("v_lshlrev_b32 v19, 16, v19")
    A("v_mov_b32 v12, 0"); A(f"ds_write_b32 v12, v18 offset:{L_G}")
    YA, YB = 152, 156
    red2_lane(A, 14, 12)
    A("s_cmp_ge_u32 s10, 112"); A("s_cbranch_scc1 L_sv_noffn")
    slice_gemv(L_W1)
    for r in range(8):
        for cb in range(2):
            q_ = r >> 2
            if cb == 0 and r == 4: A("s_movk_i32 s13, 3584")
            rr = W2R + 4 * (2 * r + cb)
            A(f"buffer_load_dwordx4 v[{rr}:{rr+3}], v{vW2}, s[{SW2}:{SW2+3}], {'s13' if q_ else '0'} offen offset:{(r & 3) * 896 + cb * 512} {wflags}")
    A("s_cmp_eq_u32 s4, 0"); A("s_cselect_b64 s[82:83], -1, 0")
    A(f"v_cndmask_b32 v12, v{D+1}, v{D}, s[82:83]")
    A("v_max_f32 v12, 0, v12"); A("v_cvt_pk_bf16_f32 v12, v12, v12")
    A("v_lshlrev_b32 v13, 2, v1")
    A("s_mov_b64 exec, 0xffff"); A(f"ds_write_b32 v13, v12 offset:{L_H}"); A("s_mov_b64 exec, -1")
    A("v_lshrrev_b32 v13, 5, v1"); A("v_lshlrev_b32 v13, 5, v13")
    A("s_waitcnt lgkmcnt(0)")
    HR = 24
    A(f"ds_read_b128 v[{HR}:{HR+3}], v13 offset:{L_H}"); A(f"ds_read_b128 v[{HR+4}:{HR+7}], v13 offset:{L_H + 16}")
    A("s_waitcnt lgkmcnt(0)")
    for r in range(8):
        a = 32 + 4 * (r & 1)
        for q_ in range(4): A(f"v_and_b32 v{a+q_}, v{HR+r}, v{SM[q_]}")
        A(f"s_waitcnt vmcnt({2 * (7 - r)})")
        for cb, d in ((0, YA), (1, YB)):
            rr = W2R + 4 * (2 * r + cb); c = "0" if r == 0 else f"v[{d}:{d+3}]"
            A(f"v_mfma_f32_16x16x32_bf16 v[{d}:{d+3}], v[{a}:{a+3}], v[{rr}:{rr+3}], {c}")
    for k_ in range(8): A(f"v_mul_f32 v{YA+k_}, v19, v{YA+k_}")
    A("s_branch L_sv_ffndone")
    lab("L_sv_noffn")
    for k_ in range(8): A(f"v_mov_b32 v{YA+k_}, 0")
    lab("L_sv_ffndone")
    A(f"ds_write_b128 v14, v[{YA}:{YA+3}] offset:{L_RED2 + 8 * 2048}")
    A(f"ds_write_b128 v14, v[{YB}:{YB+3}] offset:{L_RED2 + 8 * 2048 + 1024}")
    stamp(4)
    A("v_mov_b32 v12, 0"); A(f"s_mov_b32 s80, {SPIN_MAX}")
    lab("L_sv_cnt")
    A(f"ds_read_b32 v13, v12 offset:{L_FLAG + 8}"); A("s_waitcnt lgkmcnt(0)"); A("v_readfirstlane_b32 s81, v13")
    A("s_cmp_eq_u32 s81, 8"); A("s_cbranch_scc1 L_sv_cntok")
    A("s_sleep 4"); A("s_sub_u32 s80, s80, 1"); A("s_cmp_lg_u32 s80, 0"); A("s_cbranch_scc1 L_sv_cnt")
    lab("L_sv_cntok")
    stamp(5)
    A("s_lshl_b32 s14, s7, 14"); A(f"s_add_u32 s14, s14, {WS_S}")
    A("v_lshlrev_b32 v12, 8, v1"); A(f"s_mov_b32 s80, {SPIN_MAX}")
    lab("L_sv_hint")
    A(f"buffer_load_dwordx4 v[{QP}:{QP+3}], v12, s[{SWS}:{SWS+3}], s14 offen sc1")
    A("s_waitcnt vmcnt(0)")
    A(f"v_cmp_eq_u32 vcc, s12, v{QP+1}"); A("s_cmp_eq_u64 vcc, -1"); A("s_cbranch_scc1 L_sv_hintok")
    A("s_sleep 2"); A("s_sub_u32 s80, s80, 1"); A("s_cmp_lg_u32 s80, 0"); A("s_cbranch_scc1 L_sv_hint")
    lab("L_sv_hintok")
    stamp(6)
    SR = 24
    A("s_lshl_b32 s15, s9, 13"); A("s_add_u32 s84, s14, s15"); A("s_add_u32 s85, s84, 4096")
    A("s_xor_b32 s15, s15, 8192"); A("s_add_u32 s86, s14, s15"); A("s_add_u32 s87, s86, 4096")
    A(f"s_mov_b32 s80, {SPIN_MAX}")
    lab("L_sv_sweep")
    for m in range(16):
        A(f"buffer_load_dwordx4 v[{SR+4*m}:{SR+4*m+3}], v{vT0}, s[{SWS}:{SWS+3}], s{84 + (m >> 2)} offen offset:{(m & 3) * 1024} sc1")
    for m in range(16):
        A(f"s_waitcnt vmcnt({15 - m})")
        if m == 0: A(f"v_xor_b32 v12, s12, v{SR+1}")
        else: A(f"v_xor_b32 v13, s12, v{SR+4*m+1}"); A("v_or_b32 v12, v12, v13")
        A(f"v_xor_b32 v13, s12, v{SR+4*m+3}"); A("v_or_b32 v12, v12, v13")
    A("v_cmp_eq_u32 vcc, 0, v12"); A("s_cmp_eq_u64 vcc, -1"); A("s_cbranch_scc1 L_sv_sweepok")
    A("s_sleep 2"); A("s_sub_u32 s80, s80, 1"); A("s_cmp_lg_u32 s80, 0"); A("s_cbranch_scc1 L_sv_sweep")
    lab("L_sv_sweepok")
    stamp(7)
    for m in range(16):
        r = SR + 4 * m
        A(f"v_and_b32 v{r+1}, 0xffff0000, v{r}"); A(f"v_lshlrev_b32 v{r}, 16, v{r}")
        A(f"v_and_b32 v{r+3}, 0xffff0000, v{r+2}"); A(f"v_lshlrev_b32 v{r+2}, 16, v{r+2}")
    A(f"v_max_f32 v12, v{SR}, v{SR+1}")
    for k_ in range(2, 64, 2): A(f"v_max3_f32 v12, v12, v{SR+k_}, v{SR+k_+1}")
    wave_reduce(A, "max", 12, 13)
    A("s_mov_b32 s81, 0x3db8aa3b")
    A("v_mul_f32 v12, s81, v12"); A("v_sub_f32 v12, 0, v12")
    for k_ in range(64): A(f"v_fma_f32 v{SR+k_}, v{SR+k_}, s81, v12")
    for k_ in range(64): A(f"v_exp_f32 v{SR+k_}, v{SR+k_}")
    A(f"v_add_f32 v13, v{SR}, v{SR+1}"); A(f"v_add_f32 v15, v{SR+2}, v{SR+3}")
    for k_ in range(4, 64, 2):
        A(f"v_add_f32 v13, v13, v{SR+k_}"); A(f"v_add_f32 v15, v15, v{SR+k_+1}")
    A("v_add_f32 v13, v13, v15")
    wave_reduce(A, "add", 13, 12)
    A("v_rcp_f32 v13, v13")
    A("v_lshrrev_b32 v12, 4, v1"); A("v_lshlrev_b32 v15, 10, v12")
    A("v_bfe_u32 v12, v1, 1, 1"); A("v_lshl_add_u32 v15, v12, 7, v15")
    A("v_and_b32 v12, 1, v1"); A("v_lshl_add_u32 v15, v12, 6, v15")
    A("v_bfe_u32 v12, v1, 2, 2"); A("v_lshl_add_u32 v15, v12, 4, v15")
    for m in range(8):
        r = SR + 4 * m
        for k_ in range(4): A(f"v_mul_f32 v{r+k_}, v{r+k_}, v13")
        for k_ in range(4): A(f"v_cvt_pk_bf16_f32 v{r+k_}, v{r+k_}, v{r+k_}")
        A(f"ds_write_b128 v15, v[{r}:{r+3}] offset:{L_P + (m & 1) * 4096 + (m >> 1) * 256}")
    A("v_mov_b32 v12, 0"); A("v_mov_b32 v13, 1")
    A("s_waitcnt lgkmcnt(0)")
    A(f"ds_write_b32 v12, v13 offset:{L_FLAG + 4}")
    A("s_waitcnt lgkmcnt(0)")
    stamp(8)
    dump_stamps(True)
    lab("L_end")
    A("s_endpgm")

    body = pad_hazards(L)
    out = [HEADER.rstrip("\n"),
           "; Single fused launch: 256 workgroups (one per CU) x 9 waves (wave 0 = service, waves 1-8 stream K/V).",
           f"; @launch grid=(256,1,1) block=(576,1,1) lds={LDS_BYTES}",
           '.amdgcn_target "amdgcn-amd-amdhsa--gfx950"', ".text", f".globl {NAME}", ".p2align 8", f".type {NAME},@function", f"{NAME}:"]
    out += body
    out += ['.section .rodata,"a"', ".p2align 6", f".amdhsa_kernel {NAME}",
            "  .amdhsa_next_free_vgpr 168", "  .amdhsa_next_free_sgpr 96", "  .amdhsa_accum_offset 168",
            "  .amdhsa_group_segment_fixed_size 0", "  .amdhsa_kernarg_size 96", "  .amdhsa_user_sgpr_count 2",
            "  .amdhsa_user_sgpr_kernarg_segment_ptr 1", "  .amdhsa_system_sgpr_workgroup_id_x 1", ".end_amdhsa_kernel"]
    return "\n".join(out) + "\n"

def masks(A, M, t0, t1):
    A(f"v_and_b32 v{t0}, 1, v1"); A(f"v_lshlrev_b32 v{t0}, 4, v{t0}"); A(f"v_mov_b32 v{t1}, 0xffff"); A(f"v_lshlrev_b32 v{t1}, v{t0}, v{t1}")
    A(f"v_bfe_u32 v{t0}, v1, 1, 2")
    for r in range(4): A(f"v_cmp_eq_u32 s[{80+2*r}:{81+2*r}], {r}, v{t0}")
    for r in range(4): A(f"v_cndmask_b32 v{M[r]}, 0, v{t1}, s[{80+2*r}:{81+2*r}]")

def mask_prime(A, M, t0, t1):
    A(f"v_lshrrev_b32 v{t0}, 1, v1"); A(f"v_xor_b32 v{t0}, v{t0}, v1"); A(f"v_bfe_u32 v{t0}, v{t0}, 3, 1")
    A(f"v_add_u32 v{t0}, -1, v{t0}")
    for r in range(4): A(f"v_and_b32 v{M[r]}, v{M[r]}, v{t0}")

def red2_lane(A, d, t0):
    A(f"v_and_b32 v{t0}, 15, v1"); A(f"v_lshlrev_b32 v{d}, 5, v{t0}")
    A(f"v_lshrrev_b32 v{t0}, 5, v1"); A(f"v_lshl_add_u32 v{d}, v{t0}, 9, v{d}")
    A(f"v_bfe_u32 v{t0}, v1, 4, 1"); A(f"v_lshl_add_u32 v{d}, v{t0}, 4, v{d}")

def wave_reduce(A, op, v, t):
    for ctl in ("quad_perm:[1,0,3,2]", "quad_perm:[2,3,0,1]", "row_half_mirror", "row_mirror"):
        A(f"v_{op}_f32_dpp v{v}, v{v}, v{v} {ctl} row_mask:0xf bank_mask:0xf")
    for sw in ("v_permlane16_swap_b32", "v_permlane32_swap_b32"):
        A(f"v_mov_b32 v{t}, v{v}"); A(f"{sw} v{v}, v{t}"); A(f"v_{op}_f32 v{v}, v{v}, v{t}")

if __name__ == "__main__":
    kw = eval("dict(%s)" % (sys.argv[2] if len(sys.argv) > 2 else ""))
    open(sys.argv[1], "w").write(gen(**kw))
```

```python
import sys
sys.path.insert(0, "dev")
from asmlib import pad_hazards

NAME = "gated_mix__mha_block_cached__dense_activation_relu__decode_kernel"
HEADER = open("gated_mix__mha_block_cached__dense_activation_relu__decode.s.ref").read().split("; Override launch")[0]

WS_ST = 0x1F0000
WS_H = 0x8000
WS_Q = 0x40000
WS_O = 0x80000
WS_Y = 0x100000
WS_DBG = 0x400000
WS_SIZE = 268435456
L_W = 0x0000
L_W1 = 0x4000
L_RED1 = 0x0000
L_X = 0x6000
L_Q = 0x6800
L_H = 0x6A00
L_G = 0x6A40
L_FLAG = 0x6A80
L_WST = 0x6AC0
L_FIN = 0x6C00
L_PW = 0x7000
L_RED2 = 0x8000
LDS_MIN = L_RED2 + 8 * 2048
TAGC = 0x9E3779B9
SPIN_MAX = 1 << 18
DPPF = "row_mask:0xf bank_mask:0xf"
CEXP = "0x3db8aa3b"

def gen(LIM=2, LIMV=None, NQ=24, CQ=3, CP=3, R=33, NF=62, dbg=False, hdbg=False, diag=None,
        psleep=2, osleep=0, fsleep=0, svc=9, kflags="nt", wflags="nt", lds=None, LE=None, NG=12, NS=46, rot=None):
    if LIMV is None: LIMV = LIM
    L = []
    A = lambda s: L.append("  " + s)
    lab = lambda s: L.append(s + ":")
    def srd(d, p, nbytes):
        A(f"s_mov_b32 s{d}, s{p}"); A(f"s_mov_b32 s{d+1}, s{p+1}"); A(f"s_mov_b32 s{d+2}, {nbytes}"); A(f"s_mov_b32 s{d+3}, 0x20000")
    SK, SV, SWO, SWS, SWQ, SW1, SW2, SX, SG, SO = 40, 44, 48, 52, 56, 60, 64, 68, 72, 76
    WSR = f"s[{SWS}:{SWS+3}]"
    if diag is not None: hdbg = True
    if hdbg: dbg = True
    def stamp(idx):
        if dbg:
            A("s_memrealtime s[90:91]"); A("s_waitcnt lgkmcnt(0)"); A(f"v_writelane_b32 v167, s90, {idx}")
    def dump_stamps(service=False):
        if hdbg:
            A("s_mov_b32 s92, s36"); A("s_mov_b32 s93, s37"); A("s_mov_b32 s94, 256"); A("s_mov_b32 s95, 0x20000")
            A("v_not_b32 v165, v167"); A("v_cmp_eq_u32 vcc, 0, v1"); A("v_cndmask_b32 v167, v167, v165, vcc")
            A("v_lshlrev_b32 v166, 2, v1")
            if service: A("v_add_u32 v166, 40, v166"); A("s_mov_b64 exec, 0x38")
            else: A("s_mov_b64 exec, 0xfff")
            A("buffer_atomic_umax v167, v166, s[92:95], 0 offen"); A("s_mov_b64 exec, -1")
        elif dbg:
            A("s_mul_i32 s92, s2, 9"); A("s_add_u32 s92, s92, s93"); A("s_lshl_b32 s92, s92, 8"); A(f"s_add_u32 s92, s92, {WS_DBG}")
            A("v_lshlrev_b32 v166, 2, v1"); A(f"buffer_store_dword v167, v166, {WSR}, s92 offen")
    if dbg: R = min(R, 32)
    def spin_tail(label, sleep):
        if sleep: A(f"s_sleep {sleep}")
        A("s_sub_u32 s80, s80, 1"); A("s_cmp_lg_u32 s80, 0"); A(f"s_cbranch_scc1 {label}")
    def lds_wait(off, val, tag, ta, tb, sleep=1, cmp="eq"):
        A(f"v_mov_b32 v{ta}, 0"); A(f"s_mov_b32 s80, {SPIN_MAX}")
        lab(f"L_wait_{tag}")
        A(f"ds_read_b32 v{tb}, v{ta} offset:{off}"); A("s_waitcnt lgkmcnt(0)"); A(f"v_readfirstlane_b32 s81, v{tb}")
        A(f"s_cmp_{cmp}_u32 s81, {val}"); A(f"s_cbranch_scc1 L_got_{tag}")
        spin_tail(f"L_wait_{tag}", sleep)
        lab(f"L_got_{tag}")
    def gather(tag, items, sleep, pool):
        if svc < {"q": 3, "h": 4, "st": 5}.get(tag, 0):
            A("s_waitcnt vmcnt(0)"); return
        assert len(pool) >= len(items)
        for (reg, va, so, imm, lo, hi), ms in zip(items, pool): A(f"s_mov_b32 s{ms}, {lo}"); A(f"s_mov_b32 s{ms+1}, {hi}")
        A(f"s_mov_b32 s80, {SPIN_MAX}")
        lab(f"L_g_{tag}")
        for k, ((reg, va, so, imm, lo, hi), ms) in enumerate(zip(items, pool)):
            A(f"s_mov_b64 exec, s[{ms}:{ms+1}]")
            if len(items) > 1: A(f"s_cbranch_execz L_g_{tag}_s{k}")
            A(f"buffer_load_dwordx4 v[{reg}:{reg+3}], v{va}, {WSR}, {so} offen offset:{imm} sc1")
            if len(items) > 1: lab(f"L_g_{tag}_s{k}")
        A("s_waitcnt vmcnt(0)")
        for k, ((reg, va, so, imm, lo, hi), ms) in enumerate(zip(items, pool)):
            if len(items) > 1: A(f"s_mov_b64 exec, s[{ms}:{ms+1}]")
            A(f"v_cmp_ne_u32 vcc, s12, v{reg+1}"); A(f"v_cmp_ne_u32 s[{ms}:{ms+1}], s12, v{reg+3}")
            A(f"s_or_b64 s[{ms}:{ms+1}], s[{ms}:{ms+1}], vcc")
            if k == 0: A(f"s_mov_b64 s[14:15], s[{ms}:{ms+1}]")
            else: A(f"s_or_b64 s[14:15], s[14:15], s[{ms}:{ms+1}]")
        A("s_cmp_eq_u64 s[14:15], 0"); A(f"s_cbranch_scc1 L_g_{tag}_ok")
        spin_tail(f"L_g_{tag}", sleep)
        lab(f"L_g_{tag}_ok")
        A("s_mov_b64 exec, -1")

    A("s_cmp_ge_u32 s2, 256"); A("s_cbranch_scc1 L_end")
    A("s_load_dwordx16 s[16:31], s[0:1], 0")
    A("s_load_dwordx8 s[32:39], s[0:1], 64")
    A("v_lshrrev_b32 v2, 6, v0"); A("v_and_b32 v1, 63, v0")
    A("v_readfirstlane_b32 s3, v2")
    A("s_and_b32 s14, s2, 7"); A("s_lshr_b32 s15, s2, 3")
    A("s_lshr_b32 s4, s15, 4")
    A("s_bfe_u32 s5, s15, 0x10003"); A("s_lshl_b32 s14, s14, 1"); A("s_add_u32 s5, s5, s14")
    A("s_and_b32 s6, s15, 7")
    A("s_lshl_b32 s7, s4, 4"); A("s_add_u32 s7, s7, s5")
    A("s_lshl_b32 s10, s5, 3"); A("s_add_u32 s10, s10, s6")
    if dbg:
        A("s_mov_b32 s93, s3"); A("v_mov_b32 v167, 0"); A("s_memrealtime s[88:89]")
    A("s_cmp_eq_u32 s3, 0"); A("s_cbranch_scc1 L_service")

    A("s_sub_u32 s3, s3, 1")
    vK, vV, vWo, vW2, t0, t1 = 2, 3, 4, 5, 6, 7
    M = [8, 9, 10, 11]; Q = [12, 16]; DB = [20, 24]; AB = [20, 24]; SG_ = [28, 29, 30, 31]; ACC = 32
    vMW = 12; vE = [13, 14, 15, 16]; vLW = 17
    RING = 36
    A(f"v_bfe_u32 v{t0}, v1, 2, 2"); A(f"v_lshlrev_b32 v{vK}, 9, v{t0}")
    A(f"v_lshrrev_b32 v{t0}, 4, v1"); A(f"v_lshl_add_u32 v{vK}, v{t0}, 6, v{vK}")
    A(f"v_and_b32 v{t0}, 3, v1"); A(f"v_lshl_add_u32 v{vK}, v{t0}, 4, v{vK}")
    A("s_lshl_b32 s8, s7, 21"); A("s_lshl_b32 s14, s3, 12"); A("s_add_u32 s8, s8, s14")
    A("s_lshl_b32 s14, s6, 18"); A("s_add_u32 s8, s8, s14")
    A(f"v_add_u32 v{vK}, s8, v{vK}")
    A("s_waitcnt lgkmcnt(0)")
    srd(SK, 18, 0x4000000)

    loads = [("K", beta, tp, jh) for beta in range(8) for tp in range(2) for jh in range(2)]
    loads += [("V", beta, tp, kp) for beta in range(8) for tp in range(2) for kp in range(2)]
    loads += [("W", r, cb) for r in range(2) for cb in range(2)] + [("F", cb) for cb in range(2)]
    free = list(range(R)); slot = {}
    nissued = [0]; landed = [-1]; cur_soff = [None]
    if rot:
        A(f"s_mul_i32 s11, s2, {rot}"); A("s_lshr_b32 s14, s2, 3"); A("s_add_u32 s11, s11, s14"); A("s_and_b32 s11, s11, 7"); A("s_lshl_b32 s11, s11, 15")
    def soff(val):
        if val == 0 and not rot: return "0"
        if cur_soff[0] != val:
            if rot: A(f"s_add_u32 s13, s11, {val}"); A("s_and_b32 s13, s13, 0x3ffff")
            else: A(f"s_mov_b32 s13, {val}")
            cur_soff[0] = val
        return "s13"
    def wait_landed(n):
        if n <= landed[0]: return
        A(f"s_waitcnt vmcnt({nissued[0] - 1 - n})"); landed[0] = n
    def issue(n):
        ld = loads[n]; sl = free.pop(0); slot[n] = sl; r = RING + 4 * sl
        if ld[0] == "K":
            A(f"buffer_load_dwordx4 v[{r}:{r+3}], v{vK}, s[{SK}:{SK+3}], {soff(ld[1] * 32768)} offen offset:{ld[2] * 2048 + ld[3] * 256} {kflags}")
        elif ld[0] == "V":
            A(f"buffer_load_dwordx4 v[{r}:{r+3}], v{vV}, s[{SV}:{SV+3}], {soff(ld[1] * 32768)} offen offset:{ld[2] * 2048 + ld[3] * 1024} {kflags}")
        elif ld[0] == "W":
            A(f"buffer_load_dwordx4 v[{r}:{r+3}], v{vWo}, s[{SWO}:{SWO+3}], 0 offen offset:{ld[1] * 896 + ld[2] * 512} {wflags}")
        else:
            A(f"buffer_load_dwordx4 v[{r}:{r+3}], v{vW2}, s[{SW2}:{SW2+3}], 0 offen offset:{ld[1] * 512} {wflags}")
        nissued[0] += 1
    sreg = lambda n: RING + 4 * slot[n]
    qk_next = [0]; qk_post = [None]; pv_next = [0]; pslot = {}
    def qk_dpp(tau):
        beta, tp = tau >> 1, tau & 1; G = beta >> 1; t = 2 * (beta & 1) + tp; d = DB[tau & 1]
        A(f"v_mov_b32_dpp v{t0}, v{d} quad_perm:[0,0,0,0] {DPPF}")
        A(f"v_add_f32_dpp v{t0}, v{d+1}, v{t0} quad_perm:[1,1,1,1] {DPPF}")
        A(f"v_add_f32_dpp v{t0}, v{d+2}, v{t0} quad_perm:[2,2,2,2] {DPPF}")
        A(f"v_add_f32_dpp v{SG_[G]}, v{d+3}, v{t0} quad_perm:[3,3,3,3] row_mask:0xf bank_mask:{hex(1 << t)}")
    def qk_tile(tau):
        d = DB[tau & 1]; a0 = sreg(2 * tau); a1 = sreg(2 * tau + 1)
        A(f"v_mfma_f32_16x16x32_bf16 v[{d}:{d+3}], v[{a0}:{a0+3}], v[{Q[0]}:{Q[0]+3}], 0")
        A(f"v_mfma_f32_16x16x32_bf16 v[{d}:{d+3}], v[{a1}:{a1+3}], v[{Q[1]}:{Q[1]+3}], v[{d}:{d+3}]")
        free.extend([slot[2 * tau], slot[2 * tau + 1]])
        if qk_post[0] is not None: qk_dpp(qk_post[0])
        qk_post[0] = tau
    def red_hi(op, v, t):
        for ctl in ("row_ror:4", "row_ror:8"): A(f"v_{op}_f32_dpp v{v}, v{v}, v{v} {ctl} {DPPF}")
        for sw in ("v_permlane16_swap_b32", "v_permlane32_swap_b32"):
            A(f"v_mov_b32 v{t}, v{v}"); A(f"{sw} v{v}, v{t}"); A(f"v_{op}_f32 v{v}, v{v}, v{t}")
    def sm_a():
        qk_dpp(qk_post[0]); qk_post[0] = None
        S = SG_
        A(f"v_cvt_pk_bf16_f32 v{t0}, v{S[0]}, v{S[1]}"); A(f"v_cvt_pk_bf16_f32 v{t1}, v{S[2]}, v{S[3]}")
        A(f"v_lshlrev_b32 v{S[0]}, 16, v{t0}"); A(f"v_and_b32 v{S[1]}, 0xffff0000, v{t0}")
        A(f"v_lshlrev_b32 v{S[2]}, 16, v{t1}"); A(f"v_and_b32 v{S[3]}, 0xffff0000, v{t1}")
        A(f"v_max3_f32 v{vMW}, v{S[0]}, v{S[1]}, v{S[2]}"); A(f"v_max_f32 v{vMW}, v{vMW}, v{S[3]}")
        red_hi("max", vMW, t0)
    def sm_b():
        S = SG_
        A(f"s_mov_b32 s81, {CEXP}"); A(f"v_mul_f32 v{vMW}, s81, v{vMW}")
        for k in range(4): A(f"v_fma_f32 v{vE[k]}, v{S[k]}, s81, -v{vMW}")
        for k in range(4): A(f"v_exp_f32 v{vE[k]}, v{vE[k]}")
        A("s_lshl_b32 s14, s3, 8"); A(f"v_lshl_add_u32 v{t1}, v1, 2, s14")
        for k in range(4): A(f"v_cvt_pk_bf16_f32 v{S[k]}, v{vE[k]}, v{vE[k]}")
        A("s_mov_b32 exec_lo, 0x11111111"); A("s_mov_b32 exec_hi, 0x11111111")
        A(f"ds_write_b128 v{t1}, v[{S[0]}:{S[3]}] offset:{L_PW}")
        A("s_mov_b64 exec, -1")
        A(f"v_lshrrev_b32 v{t1}, 5, v1"); A(f"v_lshl_add_u32 v{t1}, v{t1}, 6, s14")
        for t in range(4):
            for kp in range(2):
                sl = free.pop(0); pslot[(t, kp)] = sl; r = RING + 4 * sl
                A(f"ds_read_b128 v[{r}:{r+3}], v{t1} offset:{L_PW + (8 * kp + t) * 16}")
        A(f"v_add_f32 v{vLW}, v{vE[0]}, v{vE[1]}"); A(f"v_add_f32 v{t0}, v{vE[2]}, v{vE[3]}"); A(f"v_add_f32 v{vLW}, v{vLW}, v{t0}")
    def sm_c():
        red_hi("add", vLW, t0)
        A(f"v_mov_b32 v{vMW+1}, v{vLW}")
        A("s_lshl_b32 s14, s3, 3"); A(f"v_mov_b32 v{t0}, s14"); A(f"v_mov_b32 v{t1}, 1"); A(f"v_mov_b32 v{vE[2]}, 0")
        A("s_mov_b64 exec, 1")
        A(f"ds_write_b64 v{t0}, v[{vMW}:{vMW+1}] offset:{L_WST}")
        A(f"ds_add_u32 v{vE[2]}, v{t1} offset:{L_FLAG + 8}")
        A("s_mov_b64 exec, -1")
        A("s_waitcnt lgkmcnt(0)")
        stamp(3)
    def pv_tile(m):
        beta, tp, kp = m >> 2, (m >> 1) & 1, m & 1; G = beta >> 1; t = 2 * (beta & 1) + tp
        a = AB[m & 1]; p = RING + 4 * pslot[(t, kp)] + G; bv = sreg(32 + m)
        for r in range(4): A(f"v_and_b32 v{a+r}, v{p}, v{M[r]}")
        c = "0" if m == 0 else f"v[{ACC}:{ACC+3}]"
        A(f"v_mfma_f32_16x16x32_bf16 v[{ACC}:{ACC+3}], v[{a}:{a+3}], v[{bv}:{bv+3}], {c}")
        free.append(slot[32 + m])
    vFS = 18; vHP = 19
    GG = 14
    def fetch_stats():
        stamp(4); lds_wait(L_FLAG + 4, 1, "st", t0, t1); stamp(5)
        A(f"ds_read_b128 v[14:17], v{t0} offset:{L_G}")
        A(f"v_lshrrev_b32 v{t1}, 5, v1"); A("s_lshl_b32 s14, s3, 3"); A(f"v_lshl_add_u32 v{t1}, v{t1}, 2, s14")
        A(f"ds_read_b32 v{vHP}, v{t1} offset:{L_H}")
        A("s_waitcnt lgkmcnt(0)")
        A(f"v_add_f32 v{vFS}, v{vMW}, v16"); A(f"v_exp_f32 v{vFS}, v{vFS}"); A(f"v_mul_f32 v{vFS}, v{vFS}, v17")

    N = len(loads); chunks = [sm_a, sm_b, sm_c]; sm_done = False
    for n in range(N):
        if n < 64:
            lim = LIM if n < 32 else LIMV
            if LE and n >= LE[0]: lim = LE[1]
            if n > lim: wait_landed(n - lim - 1)
        if n in (LIM + 1, 8, 16, 48): stamp({LIM + 1: 12, 8: 13, 16: 14, 48: 15}[n])
        if n == NQ:
            stamp(1)
            lds_wait(L_FLAG, 1, "q", t0, t1)
            A(f"v_lshrrev_b32 v{t0}, 4, v1"); A(f"v_and_b32 v{t1}, 3, v1"); A(f"v_lshl_add_u32 v{t0}, v{t0}, 2, v{t1}"); A(f"v_lshlrev_b32 v{t0}, 4, v{t0}")
            A(f"ds_read_b128 v[{Q[0]}:{Q[0]+3}], v{t0} offset:{L_Q}")
            A(f"ds_read_b128 v[{Q[1]}:{Q[1]+3}], v{t0} offset:{L_Q + 256}")
            A(f"v_mov_b32 v{t0}, 0"); A(f"ds_read_b32 v{t1}, v{t0} offset:{L_G + 16}")
            A("s_waitcnt lgkmcnt(0)"); A(f"v_readfirstlane_b32 s12, v{t1}")
            stamp(2)
        assert free, f"no free slot at load {n}"
        issue(n)
        if n == LIM:
            srd(SV, 20, 0x4000000); srd(SWO, 24, 3670016); srd(SW2, 30, 1605632); srd(SWS, 38, WS_SIZE)
            A("s_barrier")
            A(f"v_lshl_add_u32 v{vV}, v1, 4, s8")
            A(f"v_and_b32 v{t0}, 31, v1"); A(f"v_lshlrev_b32 v{t0}, 4, v{t0}"); A(f"v_lshrrev_b32 v{t1}, 5, v1")
            A(f"v_mul_u32_u24 v{vWo}, 1792, v{t1}"); A(f"v_add_u32 v{vWo}, v{vWo}, v{t0}")
            A(f"v_mul_u32_u24 v{vW2}, 896, v{t1}"); A(f"v_add_u32 v{vW2}, v{vW2}, v{t0}")
            A("s_lshl_b32 s14, s10, 5"); A("s_lshl_b32 s15, s3, 2"); A("s_add_u32 s14, s14, s15"); A("s_mul_i32 s14, s14, 896")
            A(f"v_add_u32 v{vWo}, s14, v{vWo}")
            A("s_lshl_b32 s14, s10, 4"); A("s_lshl_b32 s15, s3, 1"); A("s_add_u32 s14, s14, s15"); A("s_mul_i32 s14, s14, 896")
            A(f"v_add_u32 v{vW2}, s14, v{vW2}")
            masks(A, M, t0, t1); mask_prime(A, M, t0, t1)
            if dbg: A("s_waitcnt lgkmcnt(0)"); A("v_writelane_b32 v167, s88, 0")
        if n >= NQ and not sm_done:
            c = 0
            while qk_next[0] < 16 and c < CQ and 2 * qk_next[0] + 1 <= landed[0]:
                qk_tile(qk_next[0]); qk_next[0] += 1; c += 1
            if qk_next[0] == 16:
                chunks.pop(0)()
                sm_done = not chunks
        elif sm_done:
            c = 0
            while pv_next[0] < 32 and c < CP and 32 + pv_next[0] <= landed[0]:
                pv_tile(pv_next[0]); pv_next[0] += 1; c += 1
        if n == NF: fetch_stats()
        if n in (NG, NS):
            A(f"v_mov_b32 v{t0}, 0"); A(f"v_mov_b32 v{t1}, {1 if n == NG else 2}")
            A("s_mov_b64 exec, 1"); A(f"ds_max_u32 v{t0}, v{t1} offset:{L_FLAG + 12}"); A("s_mov_b64 exec, -1")
    assert sm_done
    vRw, vO, vY = vK, vV, vWo
    red2_lane(A, vRw, t0)
    A("s_lshl_b32 s14, s3, 10"); A(f"v_add_u32 v{vW2}, s14, v{vRw}")
    A("s_lshl_b32 s14, s3, 11"); A(f"s_add_u32 s14, s14, {L_RED2}"); A(f"v_add_u32 v{vRw}, s14, v{vRw}")
    A("s_lshl_b32 s14, s3, 6"); A(f"v_add_u32 v{vY}, s14, v1")
    A(f"v_lshrrev_b32 v{t0}, 4, v{vY}"); A(f"v_lshlrev_b32 v{vO}, 11, v{t0}"); A(f"v_and_b32 v{t0}, 15, v1"); A(f"v_lshl_add_u32 v{vO}, v{t0}, 4, v{vO}")
    A("s_lshl_b32 s9, s7, 14"); A(f"s_add_u32 s9, s9, {WS_O}"); A("s_lshl_b32 s14, s6, 8"); A("s_add_u32 s11, s9, s14")
    A("s_lshl_b32 s14, s6, 11"); A("s_add_u32 s9, s9, s14"); A("s_lshl_b32 s14, s3, 5"); A("s_add_u32 s9, s9, s14")
    while pv_next[0] < 32:
        wait_landed(32 + pv_next[0]); pv_tile(pv_next[0]); pv_next[0] += 1
    stamp(6)
    A(f"v_lshlrev_b32 v{t0}, 3, v{vY}")
    for k in range(4): A(f"v_mul_f32 v{ACC+k}, v{vFS}, v{ACC+k}")
    A(f"ds_write_b128 v{vW2}, v[{ACC}:{ACC+3}] offset:{L_RED1}")
    A("s_waitcnt lgkmcnt(0)"); A("s_barrier")
    fr = [RING + 4 * s_ for s_ in sorted(free + list(pslot.values()))]
    run = [r for r in fr if all(r + 4 * k in fr for k in range(5))][0]
    Y = run; U = 20
    A("s_cmp_ge_u32 s3, 2"); A("s_cbranch_scc1 L_odone")
    for k in range(8): A(f"ds_read_b64 v[{Y+2*k}:{Y+2*k+1}], v{t0} offset:{L_RED1 + 1024 * k}")
    A(f"v_mov_b32 v{U+1}, s12"); A(f"v_mov_b32 v{U+3}, s12")
    A("s_waitcnt lgkmcnt(0)")
    for st in (1, 2):
        for k in range(0, 8, 2 * st):
            for c_ in range(2): A(f"v_add_f32 v{Y+2*k+c_}, v{Y+2*k+c_}, v{Y+2*(k+st)+c_}")
    A(f"v_add_f32 v{U}, v{Y}, v{Y+8}"); A(f"v_add_f32 v{U+2}, v{Y+1}, v{Y+9}")
    A(f"buffer_store_dwordx4 v[{U}:{U+3}], v{vO}, {WSR}, s11 offen sc1")
    lab("L_odone")
    stamp(7)
    A(f"v_and_b32 v{t1}, 7, v1"); A(f"v_lshlrev_b32 v{vO}, 8, v{t1}"); A(f"v_lshrrev_b32 v{t1}, 5, v1"); A(f"v_lshl_add_u32 v{vO}, v{t1}, 4, v{vO}")
    OG = 28; EA, EB, DA, DBb = Y, Y + 4, Y + 8, Y + 12
    for q in range(4): A(f"v_and_b32 v{ACC+q}, v{vHP}, v{M[q]}")
    gather("o", [(OG, vO, "s9", 0, -1, -1)], osleep, [82])
    stamp(8)
    for cb, d in ((0, EA), (1, EB)):
        bw = sreg(68 + cb); A(f"v_mfma_f32_16x16x32_bf16 v[{d}:{d+3}], v[{ACC}:{ACC+3}], v[{bw}:{bw+3}], 0")
    for ctl in ("quad_perm:[1,0,3,2]", "quad_perm:[2,3,0,1]", "row_half_mirror"):
        for k in (0, 2): A(f"v_add_f32_dpp v{OG+k}, v{OG+k}, v{OG+k} {ctl} {DPPF}")
    for k in (0, 2): A(f"v_cvt_pk_bf16_f32 v{OG+k}, v{OG+k}, v{OG+k}")
    for r in range(2):
        a = AB[r]
        for q in range(4): A(f"v_and_b32 v{a+q}, v{OG+2*r}, v{M[q]}")
        for cb, d in ((0, DA), (1, DBb)):
            bw = sreg(64 + 2 * r + cb); c = "0" if r == 0 else f"v[{d}:{d+3}]"
            A(f"v_mfma_f32_16x16x32_bf16 v[{d}:{d+3}], v[{a}:{a+3}], v[{bw}:{bw+3}], {c}")
    for k in range(8): A(f"v_mul_f32 v{EA+k}, v15, v{EA+k}")
    A(f"v_add_u32 v{t0}, {L_RED2}, v{t0}")
    for k in range(8): A(f"v_fma_f32 v{DA+k}, v{DA+k}, v14, v{EA+k}")
    A(f"ds_write_b128 v{vRw}, v[{DA}:{DA+3}]"); A(f"ds_write_b128 v{vRw}, v[{DBb}:{DBb+3}] offset:1024")
    A("s_waitcnt lgkmcnt(0)"); A("s_barrier")
    A("s_cmp_ge_u32 s3, 4"); A("s_cbranch_scc1 L_ydone")
    for k in range(8): A(f"ds_read_b64 v[{Y+2*k}:{Y+2*k+1}], v{t0} offset:{2048 * k}")
    A(f"v_cmp_gt_u32 vcc, 224, v{vY}")
    A(f"v_lshrrev_b32 v{t1}, 3, v{vY}"); A(f"v_lshlrev_b32 v{vO}, 14, v{t1}")
    A(f"v_and_b32 v{t1}, 7, v1"); A(f"v_lshl_add_u32 v{vO}, v{t1}, 4, v{vO}")
    A(f"s_mul_i32 s14, s4, {28 * 16384}"); A("s_lshl_b32 s15, s10, 7"); A("s_add_u32 s14, s14, s15"); A(f"s_add_u32 s14, s14, {WS_Y}")
    A(f"v_mov_b32 v{U+1}, s12"); A(f"v_mov_b32 v{U+3}, s12")
    A("s_waitcnt lgkmcnt(0)")
    for st in (1, 2):
        for k in range(0, 8, 2 * st):
            for c_ in range(2): A(f"v_add_f32 v{Y+2*k+c_}, v{Y+2*k+c_}, v{Y+2*(k+st)+c_}")
    A(f"v_add_f32 v{U}, v{Y}, v{Y+8}"); A(f"v_add_f32 v{U+2}, v{Y+1}, v{Y+9}")
    A("s_and_saveexec_b64 s[82:83], vcc")
    A(f"buffer_store_dwordx4 v[{U}:{U+3}], v{vO}, {WSR}, s14 offen sc1")
    A("s_mov_b64 exec, s[82:83]")
    lab("L_ydone")
    stamp(9)
    A("s_cmp_ge_u32 s2, 56"); A("s_cbranch_scc1 L_fin_skip")
    A("s_lshl_b32 s13, s2, 14"); A("s_lshl_b32 s15, s3, 11"); A("s_add_u32 s13, s13, s15"); A(f"s_add_u32 s13, s13, {WS_Y}")
    A(f"v_lshlrev_b32 v{t0}, 4, v1")
    F = 24
    gather("fin", [(F, t0, "s13", 0, -1, -1), (F + 4, t0, "s13", 1024, -1, -1)], fsleep, [82, 84])
    stamp(10)
    srd(SO, 34, 1792)
    A(f"v_add_f32 v{F}, v{F}, v{F+4}"); A(f"v_add_f32 v{F+2}, v{F+2}, v{F+6}")
    A(f"v_add_f32_dpp v{F}, v{F}, v{F} row_ror:8 {DPPF}"); A(f"v_add_f32_dpp v{F+2}, v{F+2}, v{F+2} row_ror:8 {DPPF}")
    A(f"v_permlane16_swap_b32 v{F}, v{F+2}"); A(f"v_add_f32 v{F}, v{F}, v{F+2}")
    A(f"v_mov_b32 v{F+2}, v{F}"); A(f"v_permlane32_swap_b32 v{F}, v{F+2}"); A(f"v_add_f32 v{F}, v{F}, v{F+2}")
    A(f"v_and_b32 v{t0}, 7, v1"); A(f"v_bfe_u32 v{t1}, v1, 4, 1"); A(f"v_lshl_add_u32 v{t0}, v{t0}, 1, v{t1}")
    A(f"v_lshlrev_b32 v{t0}, 5, v{t0}"); A("s_lshl_b32 s14, s3, 2"); A(f"v_add_u32 v{t0}, s14, v{t0}")
    A("s_mov_b32 exec_lo, 0x00ff00ff"); A("s_mov_b32 exec_hi, 0")
    A(f"ds_write_b32 v{t0}, v{F} offset:{L_FIN}")
    A("s_mov_b64 exec, -1")
    A("s_waitcnt lgkmcnt(0)"); A("s_barrier")
    A("s_cmp_lg_u32 s3, 0"); A("s_cbranch_scc1 L_fin_skip")
    A(f"v_and_b32 v{t0}, 15, v1"); A(f"v_lshlrev_b32 v{t1}, 5, v{t0}")
    A(f"ds_read_b128 v[{F}:{F+3}], v{t1} offset:{L_FIN}"); A(f"ds_read_b128 v[{F+4}:{F+7}], v{t1} offset:{L_FIN + 16}")
    A(f"v_lshlrev_b32 v{t0}, 1, v{t0}"); A("s_lshl_b32 s14, s2, 5")
    A("s_waitcnt lgkmcnt(0)")
    for st in (1, 2, 4):
        for k in range(0, 8, 2 * st): A(f"v_add_f32 v{F+k}, v{F+k}, v{F+k+st}")
    A(f"v_cvt_pk_bf16_f32 v{F}, v{F}, v{F}")
    A("s_mov_b64 exec, 0xffff")
    A(f"buffer_store_short v{F}, v{t0}, s[{SO}:{SO+3}], s14 offen")
    A("s_cmp_lg_u32 s2, 0"); A("s_cbranch_scc1 L_fin_noep")
    A("s_mov_b64 exec, 1"); A(f"v_mov_b32 v{t0}, 0"); A(f"v_mov_b32 v{t1}, s12")
    A(f"buffer_store_dword v{t1}, v{t0}, {WSR}, 0 offen")
    lab("L_fin_noep")
    A("s_mov_b64 exec, -1")
    lab("L_fin_skip")
    stamp(11)
    dump_stamps()
    if diag is not None:
        A("s_cmp_lg_u32 s2, 0"); A("s_cbranch_scc1 L_diag_end"); A("s_cmp_lg_u32 s3, 0"); A("s_cbranch_scc1 L_diag_end")
        A("s_add_u32 s84, s88, 7000")
        lab("L_diag1")
        A("s_memrealtime s[90:91]"); A("s_waitcnt lgkmcnt(0)"); A("s_sub_u32 s85, s90, s84"); A("s_cmp_lt_i32 s85, 0"); A("s_cbranch_scc1 L_diag1")
        A("v_lshlrev_b32 v166, 2, v1"); A("buffer_load_dword v165, v166, s[92:95], 0 offen sc1"); A("s_waitcnt vmcnt(0)")
        A("v_readlane_b32 s84, v165, 0"); A(f"v_readlane_b32 s85, v165, {max(diag, 0)}")
        A("s_not_b32 s84, s84"); A("s_sub_u32 s85, s85, s84"); A("s_lshl_b32 s85, s85, 2")
        if diag <= 0: A("s_mov_b32 s85, 0")
        A("s_min_u32 s85, s85, 40000"); A("s_add_u32 s84, s88, 10000"); A("s_add_u32 s84, s84, s85")
        lab("L_diag2")
        A("s_memrealtime s[90:91]"); A("s_waitcnt lgkmcnt(0)"); A("s_sub_u32 s85, s90, s84"); A("s_cmp_lt_i32 s85, 0"); A("s_cbranch_scc1 L_diag2")
        lab("L_diag_end")
    A("s_endpgm")

    lab("L_service")
    A("s_setprio 3")
    vL16, vQe, vQo, vFe, vFo, vXq, vXf = 2, 3, 4, 5, 6, 7, 8
    vTr = [9, 10, 11, 12]; a_, b_, c_, d_ = 14, 15, 16, 17; vG, vOG = 20, 21
    A(f"v_mov_b32 v{a_}, 0"); A(f"v_mov_b32 v{b_}, 0"); A(f"v_mov_b32 v{c_}, 0"); A(f"v_mov_b32 v{d_}, 0")
    A(f"ds_write_b128 v{a_}, v[{a_}:{d_}] offset:{L_FLAG}")
    A(f"v_lshlrev_b32 v{vL16}, 4, v1")
    A("s_and_b32 s8, s6, 3"); A("s_lshr_b32 s9, s6, 2"); A("s_lshl_b32 s14, s4, 1"); A("s_add_u32 s9, s9, s14")
    A("s_mul_i32 s11, s2, 9363"); A("s_lshr_b32 s11, s11, 16"); A("s_mul_i32 s14, s11, 7"); A("s_sub_u32 s81, s2, s14")
    A(f"v_bfe_u32 v{a_}, v1, 4, 1"); A(f"v_lshlrev_b32 v{a_}, 1, v{a_}"); A(f"v_and_b32 v{b_}, 7, v1"); A(f"v_xor_b32 v{a_}, v{a_}, v{b_}")
    A(f"v_xor_b32 v{b_}, 4, v{a_}"); A(f"v_lshrrev_b32 v{c_}, 3, v1")
    A(f"s_mul_i32 s14, s9, {112 * 8192}"); A("s_lshl_b32 s15, s5, 9"); A("s_add_u32 s14, s14, s15"); A("s_lshl_b32 s15, s8, 7"); A("s_add_u32 s14, s14, s15")
    A(f"v_lshl_add_u32 v{d_}, v{c_}, 13, s14")
    A(f"v_lshl_add_u32 v{vQe}, v{a_}, 4, v{d_}"); A(f"v_lshl_add_u32 v{vQo}, v{b_}, 4, v{d_}")
    A(f"s_mul_i32 s14, s81, {64 * 3584}"); A("s_lshl_b32 s15, s11, 7"); A("s_add_u32 s14, s14, s15")
    A(f"v_mul_u32_u24 v{d_}, 3584, v{c_}"); A(f"v_add_u32 v{d_}, s14, v{d_}")
    A(f"v_lshl_add_u32 v{vFe}, v{a_}, 4, v{d_}"); A(f"v_lshl_add_u32 v{vFo}, v{b_}, 4, v{d_}")
    A("s_waitcnt lgkmcnt(0)")
    A("s_load_dword s12, s[38:39], 0")
    srd(SX, 16, 1792); srd(SWQ, 22, 3670016); srd(SG, 32, 896); srd(SW1, 28, 1605632)
    A("s_cmp_lt_u32 s2, 196"); A(f"s_cselect_b32 s{SW1+2}, s{SW1+2}, 0")
    if svc == 0:
        for d in (SX, SWQ, SG, SW1): A(f"s_mov_b32 s{d+2}, 0")
    if svc == 0.5:
        for d in (SW1,): A(f"s_mov_b32 s{d+2}, 0")
    A(f"s_mov_b32 m0, {L_X}")
    for k in range(2): A(f"buffer_load_dwordx4 v{vL16}, s[{SX}:{SX+3}], 0 offen offset:{1024 * k} lds")
    for m in range(16):
        A(f"s_mov_b32 m0, {L_W + 1024 * m}")
        A(f"s_mov_b32 s13, {m * 65536 if m < 14 else 0x7f000000}")
        A(f"buffer_load_dwordx4 v{vQo if m & 1 else vQe}, s[{SWQ}:{SWQ+3}], s13 offen {wflags} lds")
    for m in range(8):
        A(f"s_mov_b32 m0, {L_W1 + 1024 * m}"); A(f"s_mov_b32 s13, {m * 8 * 3584}")
        A(f"buffer_load_dwordx4 v{vFo if m & 1 else vFe}, s[{SW1}:{SW1+3}], s13 offen {wflags} lds")
    GW = 24
    A(f"buffer_load_dwordx4 v[{GW}:{GW+3}], v{vL16}, s[{SG}:{SG+3}], 0 offen")
    A("s_barrier")
    srd(SWS, 38, WS_SIZE)
    A(f"v_and_b32 v{a_}, 1, v1"); A(f"v_mul_u32_u24 v{b_}, 896, v{a_}"); A(f"v_lshrrev_b32 v{a_}, 4, v1"); A(f"v_lshl_add_u32 v{b_}, v{a_}, 4, v{b_}")
    A("s_mul_i32 s14, s9, 224"); A(f"v_add_u32 v{vXq}, s14, v{b_}"); A("s_lshl_b32 s14, s81, 7"); A(f"v_add_u32 v{vXf}, s14, v{b_}")
    A(f"v_lshlrev_b32 v{b_}, 10, v{a_}"); A(f"v_bfe_u32 v{c_}, v1, 2, 2"); A(f"v_lshl_add_u32 v{b_}, v{c_}, 7, v{b_}")
    A(f"v_bfe_u32 v{c_}, v1, 1, 1"); A(f"v_lshl_add_u32 v{b_}, v{c_}, 4, v{b_}"); A(f"v_and_b32 v{c_}, 1, v1"); A(f"v_lshl_add_u32 v{b_}, v{c_}, 3, v{b_}")
    A(f"v_bfe_u32 v{c_}, v1, 3, 2")
    for cg in range(4):
        A(f"v_xor_b32 v{d_}, {cg}, v{c_}"); A(f"v_lshl_add_u32 v{vTr[cg]}, v{d_}, 5, v{b_}")
    A("s_lshl_b32 s8, s8, 9"); A("s_lshl_b32 s9, s9, 11"); A("s_add_u32 s8, s8, s9"); A("s_lshl_b32 s9, s5, 13"); A("s_add_u32 s8, s8, s9")
    A(f"s_add_u32 s8, s8, {WS_Q}"); A(f"s_add_u32 s9, s8, {16 * 8192}")
    A("s_lshl_b32 s11, s11, 12"); A("s_lshl_b32 s81, s81, 9"); A("s_add_u32 s11, s11, s81"); A(f"s_add_u32 s11, s11, {WS_H}")
    A("s_mov_b32 s82, 0xffff0000"); A("s_mov_b32 s83, 0"); A("s_mov_b32 s84, 0"); A("s_mov_b32 s85, 0xffff"); A("s_mov_b32 s86, 0"); A("s_mov_b32 s87, 0xffff0000")
    if dbg: A("s_waitcnt lgkmcnt(0)"); A("v_writelane_b32 v167, s88, 0")
    A("s_waitcnt lgkmcnt(0)"); A(f"s_add_u32 s12, s12, {TAGC}")
    XA = 28; TB = 56; D = 120; UQ = 136
    A("s_waitcnt vmcnt(25)")
    for m in range(4): A(f"ds_read_b128 v[{XA+4*m}:{XA+4*m+3}], v{vXq} offset:{L_X + 64 * m}")
    for m in range(2): A(f"ds_read_b128 v[{XA+16+4*m}:{XA+16+4*m+3}], v{vXf} offset:{L_X + 64 * m}")
    def gemv(img, steps, xa, vm_after):
        for m in range(steps):
            A(f"s_waitcnt vmcnt({vm_after + 4 * (steps - 1 - m)})")
            for cg in range(4):
                r = TB + 16 * m + 4 * cg
                A(f"ds_read_b64_tr_b16 v[{r}:{r+1}], v{vTr[cg]} offset:{img + 4096 * m}")
                A(f"ds_read_b64_tr_b16 v[{r+2}:{r+3}], v{vTr[cg]} offset:{img + 4096 * m + 512}")
            if m: mf(m - 1, xa, 8)
        mf(steps - 1, xa, 0)
        for bb in range(2):
            for cg in range(1, 4): A(f"v_cndmask_b32 v{D+bb}, v{D+bb}, v{D+4*cg+bb}, s[{80+2*cg}:{81+2*cg}]")
        for bb in range(2):
            A(f"v_mov_b32 v{UQ+4*bb}, v{D+bb}"); A(f"v_mov_b32_dpp v{UQ+4*bb+2}, v{D+bb} quad_perm:[1,1,3,3] {DPPF}")
            A(f"v_mov_b32 v{UQ+4*bb+1}, s12"); A(f"v_mov_b32 v{UQ+4*bb+3}, s12")
    def mf(m, xa, lg):
        A(f"s_waitcnt lgkmcnt({lg})")
        for cg in range(4):
            r = TB + 16 * m + 4 * cg; d = D + 4 * cg; c = "0" if m == 0 else f"v[{d}:{d+3}]"
            A(f"v_mfma_f32_16x16x32_bf16 v[{d}:{d+3}], v[{xa+4*m}:{xa+4*m+3}], v[{r}:{r+3}], {c}")
    def publish(s0, s1):
        if svc < 2: return
        A("s_mov_b32 exec_lo, 0x55555555"); A("s_mov_b32 exec_hi, 0x55555555")
        A(f"buffer_store_dwordx4 v[{UQ}:{UQ+3}], v{d_}, {WSR}, {s0} offen sc1")
        A(f"buffer_store_dwordx4 v[{UQ+4}:{UQ+7}], v{d_}, {WSR}, {s1} offen sc1")
        A("s_mov_b64 exec, -1")
    A(f"v_lshlrev_b32 v{d_}, 3, v1")
    gemv(L_W, 4, XA, 9)
    publish("s8", "s9")
    stamp(1)
    gemv(L_W1, 2, XA + 16, 3)
    A("s_cmp_ge_u32 s2, 196"); A("s_cbranch_scc1 L_sv_noh")
    A(f"s_add_u32 s9, s11, {28 * 4096}")
    publish("s11", "s9")
    lab("L_sv_noh")
    stamp(2)
    QP = 56
    if NG is not None: lds_wait(L_FLAG + 12, 1, "pg1", a_, b_, sleep=4, cmp="ge")
    A("s_lshl_b32 s8, s7, 13"); A(f"s_add_u32 s8, s8, {WS_Q}"); A("s_add_u32 s9, s8, 4096")
    gather("q", [(QP + 4 * k, vL16, "s9" if k >= 4 else "s8", 1024 * (k & 3), -1, -1) for k in range(8)], psleep,
           [40, 42, 44, 46, 48, 50, 82, 84])
    for hf in range(2):
        r = QP + 4 * hf
        for e in (0, 2):
            A(f"v_add_f32 v{r+e}, v{r+e}, v{r+8+e}"); A(f"v_add_f32 v{r+16+e}, v{r+16+e}, v{r+24+e}")
        for e in (0, 2): A(f"v_add_f32 v{r+e}, v{r+e}, v{r+16+e}")
        A(f"v_cvt_pk_bf16_f32 v{r}, v{r}, v{r+2}")
    A(f"v_lshlrev_b32 v{a_}, 2, v1")
    A(f"ds_write_b32 v{a_}, v{QP} offset:{L_Q}"); A(f"ds_write_b32 v{a_}, v{QP+4} offset:{L_Q + 256}")
    A(f"v_mov_b32 v{a_}, 0"); A(f"v_mov_b32 v{b_}, s12"); A(f"v_mov_b32 v{c_}, 1")
    A(f"ds_write_b32 v{a_}, v{b_} offset:{L_G + 16}")
    A(f"ds_write_b32 v{a_}, v{c_} offset:{L_FLAG}")
    stamp(3)
    XG = 28
    A("s_mul_i32 s14, s4, 896"); A(f"v_add_u32 v{a_}, s14, v{vL16}")
    A(f"ds_read_b128 v[{XG}:{XG+3}], v{a_} offset:{L_X}")
    A("s_waitcnt lgkmcnt(0)")
    A(f"v_mov_b32 v{vG}, 0")
    for k in range(4):
        A(f"v_lshlrev_b32 v{a_}, 16, v{XG+k}"); A(f"v_and_b32 v{b_}, 0xffff0000, v{XG+k}")
        A(f"v_lshlrev_b32 v{c_}, 16, v{GW+k}"); A(f"v_and_b32 v{d_}, 0xffff0000, v{GW+k}")
        A(f"v_mul_f32 v{a_}, v{a_}, v{c_}"); A(f"v_mul_f32 v{b_}, v{b_}, v{d_}")
        A(f"v_cvt_pk_bf16_f32 v{a_}, v{a_}, v{b_}")
        A(f"v_lshlrev_b32 v{b_}, 16, v{a_}"); A(f"v_and_b32 v{a_}, 0xffff0000, v{a_}")
        A(f"v_add_f32 v{vG}, v{vG}, v{b_}"); A(f"v_add_f32 v{vG}, v{vG}, v{a_}")
    A("v_cmp_gt_u32 vcc, 56, v1"); A(f"v_cndmask_b32 v{vG}, 0, v{vG}, vcc")
    wave_reduce(A, "add", vG, a_)
    A(f"v_cvt_pk_bf16_f32 v{vG}, v{vG}, v{vG}"); A(f"v_lshlrev_b32 v{vG}, 16, v{vG}")
    A(f"v_mul_f32 v{vG}, 0xbfb8aa3b, v{vG}"); A(f"v_exp_f32 v{vG}, v{vG}"); A(f"v_add_f32 v{vG}, 1.0, v{vG}"); A(f"v_rcp_f32 v{vG}, v{vG}")
    A(f"v_cvt_pk_bf16_f32 v{vG}, v{vG}, v{vG}"); A(f"v_lshlrev_b32 v{vG}, 16, v{vG}")
    A(f"v_sub_f32 v{vOG}, 1.0, v{vG}"); A(f"v_cvt_pk_bf16_f32 v{vOG}, v{vOG}, v{vOG}"); A(f"v_lshlrev_b32 v{vOG}, 16, v{vOG}")
    lds_wait(L_FLAG + 8, 8, "cnt", a_, b_, sleep=2)
    ST = 32
    def combine(m, l):
        A(f"v_mov_b32 v{a_}, v{m}")
        for ctl in ("quad_perm:[1,0,3,2]", "quad_perm:[2,3,0,1]", "row_half_mirror"): A(f"v_max_f32_dpp v{a_}, v{a_}, v{a_} {ctl} {DPPF}")
        A(f"v_sub_f32 v{b_}, v{m}, v{a_}"); A(f"v_exp_f32 v{b_}, v{b_}"); A(f"v_mul_f32 v{b_}, v{b_}, v{l}")
        for ctl in ("quad_perm:[1,0,3,2]", "quad_perm:[2,3,0,1]", "row_half_mirror"): A(f"v_add_f32_dpp v{b_}, v{b_}, v{b_} {ctl} {DPPF}")
    A(f"v_and_b32 v{c_}, 7, v1"); A(f"v_lshlrev_b32 v{c_}, 3, v{c_}")
    A(f"ds_read_b64 v[{ST+4}:{ST+5}], v{c_} offset:{L_WST}"); A("s_waitcnt lgkmcnt(0)")
    combine(ST + 4, ST + 5)
    A(f"v_mov_b32 v{ST}, v{a_}"); A(f"v_mov_b32 v{ST+1}, s12"); A(f"v_mov_b32 v{ST+2}, v{b_}"); A(f"v_mov_b32 v{ST+3}, s12")
    A("s_lshl_b32 s11, s7, 10"); A(f"s_add_u32 s11, s11, {WS_ST}"); A("s_lshl_b32 s9, s6, 7"); A("s_add_u32 s9, s9, s11")
    A("s_mov_b64 exec, 0xff"); A(f"buffer_store_dwordx4 v[{ST}:{ST+3}], v{vL16}, {WSR}, s9 offen sc1"); A("s_mov_b64 exec, -1")
    if NS is not None: lds_wait(L_FLAG + 12, 2, "pg2", a_, b_, sleep=8, cmp="ge")
    HP = 28
    A(f"v_mov_b32 v{HP}, 0"); A(f"v_mov_b32 v{HP+2}, 0")
    A("s_cmp_ge_u32 s10, 112"); A("s_cbranch_scc1 L_sv_hz")
    A(f"v_lshrrev_b32 v{a_}, 3, v1"); A(f"v_lshlrev_b32 v{a_}, 9, v{a_}"); A(f"v_and_b32 v{b_}, 7, v1"); A(f"v_lshl_add_u32 v{a_}, v{b_}, 4, v{a_}")
    A("s_lshr_b32 s8, s10, 2"); A("s_mul_i32 s9, s4, 28"); A("s_add_u32 s8, s8, s9"); A("s_lshl_b32 s8, s8, 12")
    A("s_and_b32 s9, s10, 3"); A("s_lshl_b32 s9, s9, 7"); A("s_add_u32 s8, s8, s9"); A(f"s_add_u32 s8, s8, {WS_H}")
    gather("h", [(HP, a_, "s8", 0, -1, "0x00ffffff")], psleep, [82])
    lab("L_sv_hz")
    for k in (0, 2): A(f"v_add_f32_dpp v{HP+k}, v{HP+k}, v{HP+k} row_ror:8 {DPPF}")
    for sw in ("v_permlane16_swap_b32", "v_permlane32_swap_b32"):
        for k in (0, 2): A(f"v_mov_b32 v{HP+k+1}, v{HP+k}")
        for k in (0, 2): A(f"{sw} v{HP+k}, v{HP+k+1}")
        for k in (0, 2): A(f"v_add_f32 v{HP+k}, v{HP+k}, v{HP+k+1}")
    for k in (0, 2): A(f"v_max_f32 v{HP+k}, 0, v{HP+k}")
    A(f"v_cvt_pk_bf16_f32 v{HP}, v{HP}, v{HP}"); A(f"v_cvt_pk_bf16_f32 v{HP+1}, v{HP+2}, v{HP+2}")
    A(f"v_lshlrev_b32 v{a_}, 3, v1")
    A("s_mov_b64 exec, 0xff"); A(f"ds_write_b64 v{a_}, v[{HP}:{HP+1}] offset:{L_H}"); A("s_mov_b64 exec, -1")
    stamp(4)
    A(f"v_lshlrev_b32 v{c_}, 7, v1")
    gather("st", [(ST + 4, c_, "s11", 0, "0xff", 0)], 8, [82])
    combine(ST + 4, ST + 6)
    A(f"v_sub_f32 v{vG+2}, 0, v{a_}"); A(f"v_rcp_f32 v{vG+3}, v{b_}")
    A(f"v_mov_b32 v{a_}, 0"); A(f"v_mov_b32 v{b_}, 1")
    A("s_mov_b64 exec, 1")
    A(f"ds_write_b128 v{a_}, v[{vG}:{vG+3}] offset:{L_G}")
    A(f"ds_write_b32 v{a_}, v{b_} offset:{L_FLAG + 4}")
    A("s_mov_b64 exec, -1")
    A("s_waitcnt lgkmcnt(0)")
    stamp(5)
    dump_stamps(True)
    lab("L_end")
    A("s_endpgm")

    body = pad_hazards(L)
    out = [HEADER.rstrip("\n"),
           "; Single fused launch: 256 workgroups (one per CU) x 9 waves (wave 0 = service, waves 1-8 stream K/V).",
           f"; @launch grid=(256,1,1) block=(576,1,1) lds={lds or LDS_MIN}",
           '.amdgcn_target "amdgcn-amd-amdhsa--gfx950"', ".text", f".globl {NAME}", ".p2align 8", f".type {NAME},@function", f"{NAME}:"]
    out += body
    out += ['.section .rodata,"a"', ".p2align 6", f".amdhsa_kernel {NAME}",
            "  .amdhsa_next_free_vgpr 168", "  .amdhsa_next_free_sgpr 96", "  .amdhsa_accum_offset 168",
            "  .amdhsa_group_segment_fixed_size 0", "  .amdhsa_kernarg_size 96", "  .amdhsa_user_sgpr_count 2",
            "  .amdhsa_user_sgpr_kernarg_segment_ptr 1", "  .amdhsa_system_sgpr_workgroup_id_x 1", ".end_amdhsa_kernel"]
    return "\n".join(out) + "\n"

def masks(A, M, t0, t1):
    A(f"v_and_b32 v{t0}, 1, v1"); A(f"v_lshlrev_b32 v{t0}, 4, v{t0}"); A(f"v_mov_b32 v{t1}, 0xffff"); A(f"v_lshlrev_b32 v{t1}, v{t0}, v{t1}")
    A(f"v_bfe_u32 v{t0}, v1, 1, 2")
    for r in range(4): A(f"v_cmp_eq_u32 s[{80+2*r}:{81+2*r}], {r}, v{t0}")
    for r in range(4): A(f"v_cndmask_b32 v{M[r]}, 0, v{t1}, s[{80+2*r}:{81+2*r}]")

def mask_prime(A, M, t0, t1):
    A(f"v_lshrrev_b32 v{t0}, 1, v1"); A(f"v_xor_b32 v{t0}, v{t0}, v1"); A(f"v_bfe_u32 v{t0}, v{t0}, 3, 1")
    A(f"v_add_u32 v{t0}, -1, v{t0}")
    for r in range(4): A(f"v_and_b32 v{M[r]}, v{M[r]}, v{t0}")

def red2_lane(A, d, t0):
    A(f"v_and_b32 v{t0}, 15, v1"); A(f"v_lshlrev_b32 v{d}, 5, v{t0}")
    A(f"v_lshrrev_b32 v{t0}, 5, v1"); A(f"v_lshl_add_u32 v{d}, v{t0}, 9, v{d}")
    A(f"v_bfe_u32 v{t0}, v1, 4, 1"); A(f"v_lshl_add_u32 v{d}, v{t0}, 4, v{d}")

def wave_reduce(A, op, v, t):
    for ctl in ("quad_perm:[1,0,3,2]", "quad_perm:[2,3,0,1]", "row_half_mirror", "row_mirror"):
        A(f"v_{op}_f32_dpp v{v}, v{v}, v{v} {ctl} {DPPF}")
    for sw in ("v_permlane16_swap_b32", "v_permlane32_swap_b32"):
        A(f"v_mov_b32 v{t}, v{v}"); A(f"{sw} v{v}, v{t}"); A(f"v_{op}_f32 v{v}, v{v}, v{t}")

if __name__ == "__main__":
    kw = eval("dict(%s)" % (sys.argv[2] if len(sys.argv) > 2 else ""))
    open(sys.argv[1], "w").write(gen(**kw))
```

```python
import sys
sys.path.insert(0, "dev")
from asmlib import pad_hazards

NAME = "gated_mix__mha_block_cached__dense_activation_relu__decode_kernel"
HEADER = open("gated_mix__mha_block_cached__dense_activation_relu__decode.s.ref").read().split("; Override launch")[0]

WS_ST = 0x1F0000
WS_H = 0x8000
WS_Q = 0x40000
WS_O = 0x80000
WS_Y = 0x100000
WS_DBG = 0x400000
WS_SIZE = 268435456
L_W = 0x0000
L_W1 = 0x4000
L_RED1 = 0x0000
L_X = 0x6000
L_Q = 0x6800
L_H = 0x6A00
L_G = 0x6A40
L_FLAG = 0x6A80
L_WST = 0x6AC0
L_FIN = 0x6C00
L_PW = 0x7000
L_RED2 = 0x8000
LDS_MIN = L_RED2 + 8 * 2048
TAGC = 0x9E3779B9
SPIN_MAX = 1 << 18
DPPF = "row_mask:0xf bank_mask:0xf"
CEXP = "0x3db8aa3b"

def gen(LIM=2, LIMV=None, NQ=24, CQ=3, CP=3, R=33, NF=62, dbg=False, hdbg=False, diag=None,
        psleep=2, osleep=0, fsleep=0, svc=9, kflags="nt", wflags="nt", lds=None, LE=None, NG=12, NS=46, rot=None, early=False, dbase=10000):
    if LIMV is None: LIMV = LIM
    L = []
    A = lambda s: L.append("  " + s)
    lab = lambda s: L.append(s + ":")
    def srd(d, p, nbytes):
        A(f"s_mov_b32 s{d}, s{p}"); A(f"s_mov_b32 s{d+1}, s{p+1}"); A(f"s_mov_b32 s{d+2}, {nbytes}"); A(f"s_mov_b32 s{d+3}, 0x20000")
    SK, SV, SWO, SWS, SWQ, SW1, SW2, SX, SG, SO = 40, 44, 48, 52, 56, 60, 64, 68, 72, 76
    WSR = f"s[{SWS}:{SWS+3}]"
    if diag is not None: hdbg = True
    if hdbg: dbg = True
    def stamp(idx):
        if dbg:
            A("s_memrealtime s[90:91]"); A("s_waitcnt lgkmcnt(0)"); A(f"v_writelane_b32 v167, s90, {idx}")
    def dump_stamps(service=False):
        if hdbg:
            A("s_mov_b32 s92, s36"); A("s_mov_b32 s93, s37"); A("s_mov_b32 s94, 256"); A("s_mov_b32 s95, 0x20000")
            A("v_not_b32 v165, v167"); A("v_cmp_eq_u32 vcc, 0, v1"); A("v_cndmask_b32 v167, v167, v165, vcc")
            A("v_lshlrev_b32 v166, 2, v1")
            if service: A("v_add_u32 v166, 64, v166"); A("s_mov_b64 exec, 0x3e")
            else: A("s_mov_b64 exec, 0xffff")
            A("buffer_atomic_umax v167, v166, s[92:95], 0 offen"); A("s_mov_b64 exec, -1")
        elif dbg:
            A("s_mul_i32 s92, s2, 9"); A("s_add_u32 s92, s92, s93"); A("s_lshl_b32 s92, s92, 8"); A(f"s_add_u32 s92, s92, {WS_DBG}")
            A("v_lshlrev_b32 v166, 2, v1"); A(f"buffer_store_dword v167, v166, {WSR}, s92 offen")
    if dbg: R = min(R, 32)
    def spin_tail(label, sleep):
        if sleep: A(f"s_sleep {sleep}")
        A("s_sub_u32 s80, s80, 1"); A("s_cmp_lg_u32 s80, 0"); A(f"s_cbranch_scc1 {label}")
    def lds_wait(off, val, tag, ta, tb, sleep=1, cmp="eq"):
        A(f"v_mov_b32 v{ta}, 0"); A(f"s_mov_b32 s80, {SPIN_MAX}")
        lab(f"L_wait_{tag}")
        A(f"ds_read_b32 v{tb}, v{ta} offset:{off}"); A("s_waitcnt lgkmcnt(0)"); A(f"v_readfirstlane_b32 s81, v{tb}")
        A(f"s_cmp_{cmp}_u32 s81, {val}"); A(f"s_cbranch_scc1 L_got_{tag}")
        spin_tail(f"L_wait_{tag}", sleep)
        lab(f"L_got_{tag}")
    def gather(tag, items, sleep, pool):
        if svc < {"q": 3, "h": 4, "st": 5}.get(tag, 0):
            A("s_waitcnt vmcnt(0)"); return
        assert len(pool) >= len(items)
        for (reg, va, so, imm, lo, hi), ms in zip(items, pool): A(f"s_mov_b32 s{ms}, {lo}"); A(f"s_mov_b32 s{ms+1}, {hi}")
        A(f"s_mov_b32 s80, {SPIN_MAX}")
        lab(f"L_g_{tag}")
        for k, ((reg, va, so, imm, lo, hi), ms) in enumerate(zip(items, pool)):
            A(f"s_mov_b64 exec, s[{ms}:{ms+1}]")
            if len(items) > 1: A(f"s_cbranch_execz L_g_{tag}_s{k}")
            A(f"buffer_load_dwordx4 v[{reg}:{reg+3}], v{va}, {WSR}, {so} offen offset:{imm} sc1")
            if len(items) > 1: lab(f"L_g_{tag}_s{k}")
        A("s_waitcnt vmcnt(0)")
        for k, ((reg, va, so, imm, lo, hi), ms) in enumerate(zip(items, pool)):
            if len(items) > 1: A(f"s_mov_b64 exec, s[{ms}:{ms+1}]")
            A(f"v_cmp_ne_u32 vcc, s12, v{reg+1}"); A(f"v_cmp_ne_u32 s[{ms}:{ms+1}], s12, v{reg+3}")
            A(f"s_or_b64 s[{ms}:{ms+1}], s[{ms}:{ms+1}], vcc")
            if k == 0: A(f"s_mov_b64 s[14:15], s[{ms}:{ms+1}]")
            else: A(f"s_or_b64 s[14:15], s[14:15], s[{ms}:{ms+1}]")
        A("s_cmp_eq_u64 s[14:15], 0"); A(f"s_cbranch_scc1 L_g_{tag}_ok")
        spin_tail(f"L_g_{tag}", sleep)
        lab(f"L_g_{tag}_ok")
        A("s_mov_b64 exec, -1")

    if dbg and early: A("s_memrealtime s[88:89]")
    A("s_cmp_ge_u32 s2, 256"); A("s_cbranch_scc1 L_end")
    A("s_load_dwordx16 s[16:31], s[0:1], 0")
    A("s_load_dwordx8 s[32:39], s[0:1], 64")
    A("v_lshrrev_b32 v2, 6, v0"); A("v_and_b32 v1, 63, v0")
    A("v_readfirstlane_b32 s3, v2")
    A("s_and_b32 s14, s2, 7"); A("s_lshr_b32 s15, s2, 3")
    A("s_lshr_b32 s4, s15, 4")
    A("s_bfe_u32 s5, s15, 0x10003"); A("s_lshl_b32 s14, s14, 1"); A("s_add_u32 s5, s5, s14")
    A("s_and_b32 s6, s15, 7")
    A("s_lshl_b32 s7, s4, 4"); A("s_add_u32 s7, s7, s5")
    A("s_lshl_b32 s10, s5, 3"); A("s_add_u32 s10, s10, s6")
    if dbg:
        A("s_mov_b32 s93, s3"); A("v_mov_b32 v167, 0")
        if not early: A("s_memrealtime s[88:89]")
    A("s_cmp_eq_u32 s3, 0"); A("s_cbranch_scc1 L_service")

    A("s_sub_u32 s3, s3, 1")
    vK, vV, vWo, vW2, t0, t1 = 2, 3, 4, 5, 6, 7
    M = [8, 9, 10, 11]; Q = [12, 16]; DB = [20, 24]; AB = [20, 24]; SG_ = [28, 29, 30, 31]; ACC = 32
    vMW = 12; vE = [13, 14, 15, 16]; vLW = 17
    RING = 36
    A(f"v_bfe_u32 v{t0}, v1, 2, 2"); A(f"v_lshlrev_b32 v{vK}, 9, v{t0}")
    A(f"v_lshrrev_b32 v{t0}, 4, v1"); A(f"v_lshl_add_u32 v{vK}, v{t0}, 6, v{vK}")
    A(f"v_and_b32 v{t0}, 3, v1"); A(f"v_lshl_add_u32 v{vK}, v{t0}, 4, v{vK}")
    A("s_lshl_b32 s8, s7, 21"); A("s_lshl_b32 s14, s3, 12"); A("s_add_u32 s8, s8, s14")
    A("s_lshl_b32 s14, s6, 18"); A("s_add_u32 s8, s8, s14")
    A(f"v_add_u32 v{vK}, s8, v{vK}")
    A("s_waitcnt lgkmcnt(0)")
    srd(SK, 18, 0x4000000)

    loads = [("K", beta, tp, jh) for beta in range(8) for tp in range(2) for jh in range(2)]
    loads += [("V", beta, tp, kp) for beta in range(8) for tp in range(2) for kp in range(2)]
    loads += [("W", r, cb) for r in range(2) for cb in range(2)] + [("F", cb) for cb in range(2)]
    free = list(range(R)); slot = {}
    nissued = [0]; landed = [-1]; cur_soff = [None]
    if rot:
        A(f"s_mul_i32 s11, s2, {rot}"); A("s_lshr_b32 s14, s2, 3"); A("s_add_u32 s11, s11, s14"); A("s_and_b32 s11, s11, 7"); A("s_lshl_b32 s11, s11, 15")
    def soff(val):
        if val == 0 and not rot: return "0"
        if cur_soff[0] != val:
            if rot: A(f"s_add_u32 s13, s11, {val}"); A("s_and_b32 s13, s13, 0x3ffff")
            else: A(f"s_mov_b32 s13, {val}")
            cur_soff[0] = val
        return "s13"
    def wait_landed(n):
        if n <= landed[0]: return
        A(f"s_waitcnt vmcnt({nissued[0] - 1 - n})"); landed[0] = n
    def issue(n):
        ld = loads[n]; sl = free.pop(0); slot[n] = sl; r = RING + 4 * sl
        if ld[0] == "K":
            A(f"buffer_load_dwordx4 v[{r}:{r+3}], v{vK}, s[{SK}:{SK+3}], {soff(ld[1] * 32768)} offen offset:{ld[2] * 2048 + ld[3] * 256} {kflags}")
        elif ld[0] == "V":
            A(f"buffer_load_dwordx4 v[{r}:{r+3}], v{vV}, s[{SV}:{SV+3}], {soff(ld[1] * 32768)} offen offset:{ld[2] * 2048 + ld[3] * 1024} {kflags}")
        elif ld[0] == "W":
            A(f"buffer_load_dwordx4 v[{r}:{r+3}], v{vWo}, s[{SWO}:{SWO+3}], 0 offen offset:{ld[1] * 896 + ld[2] * 512} {wflags}")
        else:
            A(f"buffer_load_dwordx4 v[{r}:{r+3}], v{vW2}, s[{SW2}:{SW2+3}], 0 offen offset:{ld[1] * 512} {wflags}")
        nissued[0] += 1
    sreg = lambda n: RING + 4 * slot[n]
    qk_next = [0]; qk_post = [None]; pv_next = [0]; pslot = {}
    def qk_dpp(tau):
        beta, tp = tau >> 1, tau & 1; G = beta >> 1; t = 2 * (beta & 1) + tp; d = DB[tau & 1]
        A(f"v_mov_b32_dpp v{t0}, v{d} quad_perm:[0,0,0,0] {DPPF}")
        A(f"v_add_f32_dpp v{t0}, v{d+1}, v{t0} quad_perm:[1,1,1,1] {DPPF}")
        A(f"v_add_f32_dpp v{t0}, v{d+2}, v{t0} quad_perm:[2,2,2,2] {DPPF}")
        A(f"v_add_f32_dpp v{SG_[G]}, v{d+3}, v{t0} quad_perm:[3,3,3,3] row_mask:0xf bank_mask:{hex(1 << t)}")
    def qk_tile(tau):
        d = DB[tau & 1]; a0 = sreg(2 * tau); a1 = sreg(2 * tau + 1)
        A(f"v_mfma_f32_16x16x32_bf16 v[{d}:{d+3}], v[{a0}:{a0+3}], v[{Q[0]}:{Q[0]+3}], 0")
        A(f"v_mfma_f32_16x16x32_bf16 v[{d}:{d+3}], v[{a1}:{a1+3}], v[{Q[1]}:{Q[1]+3}], v[{d}:{d+3}]")
        free.extend([slot[2 * tau], slot[2 * tau + 1]])
        if qk_post[0] is not None: qk_dpp(qk_post[0])
        qk_post[0] = tau
    def red_hi(op, v, t):
        for ctl in ("row_ror:4", "row_ror:8"): A(f"v_{op}_f32_dpp v{v}, v{v}, v{v} {ctl} {DPPF}")
        for sw in ("v_permlane16_swap_b32", "v_permlane32_swap_b32"):
            A(f"v_mov_b32 v{t}, v{v}"); A(f"{sw} v{v}, v{t}"); A(f"v_{op}_f32 v{v}, v{v}, v{t}")
    def sm_a():
        qk_dpp(qk_post[0]); qk_post[0] = None
        S = SG_
        A(f"v_cvt_pk_bf16_f32 v{t0}, v{S[0]}, v{S[1]}"); A(f"v_cvt_pk_bf16_f32 v{t1}, v{S[2]}, v{S[3]}")
        A(f"v_lshlrev_b32 v{S[0]}, 16, v{t0}"); A(f"v_and_b32 v{S[1]}, 0xffff0000, v{t0}")
        A(f"v_lshlrev_b32 v{S[2]}, 16, v{t1}"); A(f"v_and_b32 v{S[3]}, 0xffff0000, v{t1}")
        A(f"v_max3_f32 v{vMW}, v{S[0]}, v{S[1]}, v{S[2]}"); A(f"v_max_f32 v{vMW}, v{vMW}, v{S[3]}")
        red_hi("max", vMW, t0)
    def sm_b():
        S = SG_
        A(f"s_mov_b32 s81, {CEXP}"); A(f"v_mul_f32 v{vMW}, s81, v{vMW}")
        for k in range(4): A(f"v_fma_f32 v{vE[k]}, v{S[k]}, s81, -v{vMW}")
        for k in range(4): A(f"v_exp_f32 v{vE[k]}, v{vE[k]}")
        A("s_lshl_b32 s14, s3, 8"); A(f"v_lshl_add_u32 v{t1}, v1, 2, s14")
        for k in range(4): A(f"v_cvt_pk_bf16_f32 v{S[k]}, v{vE[k]}, v{vE[k]}")
        A("s_mov_b32 exec_lo, 0x11111111"); A("s_mov_b32 exec_hi, 0x11111111")
        A(f"ds_write_b128 v{t1}, v[{S[0]}:{S[3]}] offset:{L_PW}")
        A("s_mov_b64 exec, -1")
        A(f"v_lshrrev_b32 v{t1}, 5, v1"); A(f"v_lshl_add_u32 v{t1}, v{t1}, 6, s14")
        for t in range(4):
            for kp in range(2):
                sl = free.pop(0); pslot[(t, kp)] = sl; r = RING + 4 * sl
                A(f"ds_read_b128 v[{r}:{r+3}], v{t1} offset:{L_PW + (8 * kp + t) * 16}")
        A(f"v_add_f32 v{vLW}, v{vE[0]}, v{vE[1]}"); A(f"v_add_f32 v{t0}, v{vE[2]}, v{vE[3]}"); A(f"v_add_f32 v{vLW}, v{vLW}, v{t0}")
    def sm_c():
        red_hi("add", vLW, t0)
        A(f"v_mov_b32 v{vMW+1}, v{vLW}")
        A("s_lshl_b32 s14, s3, 3"); A(f"v_mov_b32 v{t0}, s14"); A(f"v_mov_b32 v{t1}, 1"); A(f"v_mov_b32 v{vE[2]}, 0")
        A("s_mov_b64 exec, 1")
        A(f"ds_write_b64 v{t0}, v[{vMW}:{vMW+1}] offset:{L_WST}")
        A(f"ds_add_u32 v{vE[2]}, v{t1} offset:{L_FLAG + 8}")
        A("s_mov_b64 exec, -1")
        A("s_waitcnt lgkmcnt(0)")
        stamp(3)
    def pv_tile(m):
        beta, tp, kp = m >> 2, (m >> 1) & 1, m & 1; G = beta >> 1; t = 2 * (beta & 1) + tp
        a = AB[m & 1]; p = RING + 4 * pslot[(t, kp)] + G; bv = sreg(32 + m)
        for r in range(4): A(f"v_and_b32 v{a+r}, v{p}, v{M[r]}")
        c = "0" if m == 0 else f"v[{ACC}:{ACC+3}]"
        A(f"v_mfma_f32_16x16x32_bf16 v[{ACC}:{ACC+3}], v[{a}:{a+3}], v[{bv}:{bv+3}], {c}")
        free.append(slot[32 + m])
    vFS = 18; vHP = 19
    GG = 14
    def fetch_stats():
        stamp(4); lds_wait(L_FLAG + 4, 1, "st", t0, t1); stamp(5)
        A(f"ds_read_b128 v[14:17], v{t0} offset:{L_G}")
        A(f"v_lshrrev_b32 v{t1}, 5, v1"); A("s_lshl_b32 s14, s3, 3"); A(f"v_lshl_add_u32 v{t1}, v{t1}, 2, s14")
        A(f"ds_read_b32 v{vHP}, v{t1} offset:{L_H}")
        A("s_waitcnt lgkmcnt(0)")
        A(f"v_add_f32 v{vFS}, v{vMW}, v16"); A(f"v_exp_f32 v{vFS}, v{vFS}"); A(f"v_mul_f32 v{vFS}, v{vFS}, v17")

    N = len(loads); chunks = [sm_a, sm_b, sm_c]; sm_done = False
    for n in range(N):
        if n < 64:
            lim = LIM if n < 32 else LIMV
            if LE and n >= LE[0]: lim = LE[1]
            if n > lim: wait_landed(n - lim - 1)
        if n in (LIM + 1, 8, 16, 48): stamp({LIM + 1: 12, 8: 13, 16: 14, 48: 15}[n])
        if n == NQ:
            stamp(1)
            lds_wait(L_FLAG, 1, "q", t0, t1)
            A(f"v_lshrrev_b32 v{t0}, 4, v1"); A(f"v_and_b32 v{t1}, 3, v1"); A(f"v_lshl_add_u32 v{t0}, v{t0}, 2, v{t1}"); A(f"v_lshlrev_b32 v{t0}, 4, v{t0}")
            A(f"ds_read_b128 v[{Q[0]}:{Q[0]+3}], v{t0} offset:{L_Q}")
            A(f"ds_read_b128 v[{Q[1]}:{Q[1]+3}], v{t0} offset:{L_Q + 256}")
            A(f"v_mov_b32 v{t0}, 0"); A(f"ds_read_b32 v{t1}, v{t0} offset:{L_G + 16}")
            A("s_waitcnt lgkmcnt(0)"); A(f"v_readfirstlane_b32 s12, v{t1}")
            stamp(2)
        assert free, f"no free slot at load {n}"
        issue(n)
        if n == LIM:
            srd(SV, 20, 0x4000000); srd(SWO, 24, 3670016); srd(SW2, 30, 1605632); srd(SWS, 38, WS_SIZE)
            A("s_barrier")
            A(f"v_lshl_add_u32 v{vV}, v1, 4, s8")
            A(f"v_and_b32 v{t0}, 31, v1"); A(f"v_lshlrev_b32 v{t0}, 4, v{t0}"); A(f"v_lshrrev_b32 v{t1}, 5, v1")
            A(f"v_mul_u32_u24 v{vWo}, 1792, v{t1}"); A(f"v_add_u32 v{vWo}, v{vWo}, v{t0}")
            A(f"v_mul_u32_u24 v{vW2}, 896, v{t1}"); A(f"v_add_u32 v{vW2}, v{vW2}, v{t0}")
            A("s_lshl_b32 s14, s10, 5"); A("s_lshl_b32 s15, s3, 2"); A("s_add_u32 s14, s14, s15"); A("s_mul_i32 s14, s14, 896")
            A(f"v_add_u32 v{vWo}, s14, v{vWo}")
            A("s_lshl_b32 s14, s10, 4"); A("s_lshl_b32 s15, s3, 1"); A("s_add_u32 s14, s14, s15"); A("s_mul_i32 s14, s14, 896")
            A(f"v_add_u32 v{vW2}, s14, v{vW2}")
            masks(A, M, t0, t1); mask_prime(A, M, t0, t1)
            if dbg: A("s_waitcnt lgkmcnt(0)"); A("v_writelane_b32 v167, s88, 0")
        if n >= NQ and not sm_done:
            c = 0
            while qk_next[0] < 16 and c < CQ and 2 * qk_next[0] + 1 <= landed[0]:
                qk_tile(qk_next[0]); qk_next[0] += 1; c += 1
            if qk_next[0] == 16:
                chunks.pop(0)()
                sm_done = not chunks
        elif sm_done:
            c = 0
            while pv_next[0] < 32 and c < CP and 32 + pv_next[0] <= landed[0]:
                pv_tile(pv_next[0]); pv_next[0] += 1; c += 1
        if n == NF: fetch_stats()
        if n in (NG, NS):
            A(f"v_mov_b32 v{t0}, 0"); A(f"v_mov_b32 v{t1}, {1 if n == NG else 2}")
            A("s_mov_b64 exec, 1"); A(f"ds_max_u32 v{t0}, v{t1} offset:{L_FLAG + 12}"); A("s_mov_b64 exec, -1")
    assert sm_done
    vRw, vO, vY = vK, vV, vWo
    red2_lane(A, vRw, t0)
    A("s_lshl_b32 s14, s3, 10"); A(f"v_add_u32 v{vW2}, s14, v{vRw}")
    A("s_lshl_b32 s14, s3, 11"); A(f"s_add_u32 s14, s14, {L_RED2}"); A(f"v_add_u32 v{vRw}, s14, v{vRw}")
    A("s_lshl_b32 s14, s3, 6"); A(f"v_add_u32 v{vY}, s14, v1")
    A(f"v_lshrrev_b32 v{t0}, 4, v{vY}"); A(f"v_lshlrev_b32 v{vO}, 11, v{t0}"); A(f"v_and_b32 v{t0}, 15, v1"); A(f"v_lshl_add_u32 v{vO}, v{t0}, 4, v{vO}")
    A("s_lshl_b32 s9, s7, 14"); A(f"s_add_u32 s9, s9, {WS_O}"); A("s_lshl_b32 s14, s6, 8"); A("s_add_u32 s11, s9, s14")
    A("s_lshl_b32 s14, s6, 11"); A("s_add_u32 s9, s9, s14"); A("s_lshl_b32 s14, s3, 5"); A("s_add_u32 s9, s9, s14")
    while pv_next[0] < 32:
        wait_landed(32 + pv_next[0]); pv_tile(pv_next[0]); pv_next[0] += 1
    stamp(6)
    A(f"v_lshlrev_b32 v{t0}, 3, v{vY}")
    for k in range(4): A(f"v_mul_f32 v{ACC+k}, v{vFS}, v{ACC+k}")
    A(f"ds_write_b128 v{vW2}, v[{ACC}:{ACC+3}] offset:{L_RED1}")
    A("s_waitcnt lgkmcnt(0)"); A("s_barrier")
    fr = [RING + 4 * s_ for s_ in sorted(free + list(pslot.values()))]
    run = [r for r in fr if all(r + 4 * k in fr for k in range(5))][0]
    Y = run; U = 20
    A("s_cmp_ge_u32 s3, 2"); A("s_cbranch_scc1 L_odone")
    for k in range(8): A(f"ds_read_b64 v[{Y+2*k}:{Y+2*k+1}], v{t0} offset:{L_RED1 + 1024 * k}")
    A(f"v_mov_b32 v{U+1}, s12"); A(f"v_mov_b32 v{U+3}, s12")
    A("s_waitcnt lgkmcnt(0)")
    for st in (1, 2):
        for k in range(0, 8, 2 * st):
            for c_ in range(2): A(f"v_add_f32 v{Y+2*k+c_}, v{Y+2*k+c_}, v{Y+2*(k+st)+c_}")
    A(f"v_add_f32 v{U}, v{Y}, v{Y+8}"); A(f"v_add_f32 v{U+2}, v{Y+1}, v{Y+9}")
    A(f"buffer_store_dwordx4 v[{U}:{U+3}], v{vO}, {WSR}, s11 offen sc1")
    lab("L_odone")
    stamp(7)
    A(f"v_and_b32 v{t1}, 7, v1"); A(f"v_lshlrev_b32 v{vO}, 8, v{t1}"); A(f"v_lshrrev_b32 v{t1}, 5, v1"); A(f"v_lshl_add_u32 v{vO}, v{t1}, 4, v{vO}")
    OG = 28; EA, EB, DA, DBb = Y, Y + 4, Y + 8, Y + 12
    for q in range(4): A(f"v_and_b32 v{ACC+q}, v{vHP}, v{M[q]}")
    gather("o", [(OG, vO, "s9", 0, -1, -1)], osleep, [82])
    stamp(8)
    for cb, d in ((0, EA), (1, EB)):
        bw = sreg(68 + cb); A(f"v_mfma_f32_16x16x32_bf16 v[{d}:{d+3}], v[{ACC}:{ACC+3}], v[{bw}:{bw+3}], 0")
    for ctl in ("quad_perm:[1,0,3,2]", "quad_perm:[2,3,0,1]", "row_half_mirror"):
        for k in (0, 2): A(f"v_add_f32_dpp v{OG+k}, v{OG+k}, v{OG+k} {ctl} {DPPF}")
    for k in (0, 2): A(f"v_cvt_pk_bf16_f32 v{OG+k}, v{OG+k}, v{OG+k}")
    for r in range(2):
        a = AB[r]
        for q in range(4): A(f"v_and_b32 v{a+q}, v{OG+2*r}, v{M[q]}")
        for cb, d in ((0, DA), (1, DBb)):
            bw = sreg(64 + 2 * r + cb); c = "0" if r == 0 else f"v[{d}:{d+3}]"
            A(f"v_mfma_f32_16x16x32_bf16 v[{d}:{d+3}], v[{a}:{a+3}], v[{bw}:{bw+3}], {c}")
    for k in range(8): A(f"v_mul_f32 v{EA+k}, v15, v{EA+k}")
    A(f"v_add_u32 v{t0}, {L_RED2}, v{t0}")
    for k in range(8): A(f"v_fma_f32 v{DA+k}, v{DA+k}, v14, v{EA+k}")
    A(f"ds_write_b128 v{vRw}, v[{DA}:{DA+3}]"); A(f"ds_write_b128 v{vRw}, v[{DBb}:{DBb+3}] offset:1024")
    A("s_waitcnt lgkmcnt(0)"); A("s_barrier")
    A("s_cmp_ge_u32 s3, 4"); A("s_cbranch_scc1 L_ydone")
    for k in range(8): A(f"ds_read_b64 v[{Y+2*k}:{Y+2*k+1}], v{t0} offset:{2048 * k}")
    A(f"v_cmp_gt_u32 vcc, 224, v{vY}")
    A(f"v_lshrrev_b32 v{t1}, 3, v{vY}"); A(f"v_lshlrev_b32 v{vO}, 14, v{t1}")
    A(f"v_and_b32 v{t1}, 7, v1"); A(f"v_lshl_add_u32 v{vO}, v{t1}, 4, v{vO}")
    A(f"s_mul_i32 s14, s4, {28 * 16384}"); A("s_lshl_b32 s15, s10, 7"); A("s_add_u32 s14, s14, s15"); A(f"s_add_u32 s14, s14, {WS_Y}")
    A(f"v_mov_b32 v{U+1}, s12"); A(f"v_mov_b32 v{U+3}, s12")
    A("s_waitcnt lgkmcnt(0)")
    for st in (1, 2):
        for k in range(0, 8, 2 * st):
            for c_ in range(2): A(f"v_add_f32 v{Y+2*k+c_}, v{Y+2*k+c_}, v{Y+2*(k+st)+c_}")
    A(f"v_add_f32 v{U}, v{Y}, v{Y+8}"); A(f"v_add_f32 v{U+2}, v{Y+1}, v{Y+9}")
    A("s_and_saveexec_b64 s[82:83], vcc")
    A(f"buffer_store_dwordx4 v[{U}:{U+3}], v{vO}, {WSR}, s14 offen sc1")
    A("s_mov_b64 exec, s[82:83]")
    lab("L_ydone")
    stamp(9)
    A("s_cmp_ge_u32 s2, 56"); A("s_cbranch_scc1 L_fin_skip")
    A("s_lshl_b32 s13, s2, 14"); A("s_lshl_b32 s15, s3, 11"); A("s_add_u32 s13, s13, s15"); A(f"s_add_u32 s13, s13, {WS_Y}")
    A(f"v_lshlrev_b32 v{t0}, 4, v1")
    F = 24
    gather("fin", [(F, t0, "s13", 0, -1, -1), (F + 4, t0, "s13", 1024, -1, -1)], fsleep, [82, 84])
    stamp(10)
    srd(SO, 34, 1792)
    A(f"v_add_f32 v{F}, v{F}, v{F+4}"); A(f"v_add_f32 v{F+2}, v{F+2}, v{F+6}")
    A(f"v_add_f32_dpp v{F}, v{F}, v{F} row_ror:8 {DPPF}"); A(f"v_add_f32_dpp v{F+2}, v{F+2}, v{F+2} row_ror:8 {DPPF}")
    A(f"v_permlane16_swap_b32 v{F}, v{F+2}"); A(f"v_add_f32 v{F}, v{F}, v{F+2}")
    A(f"v_mov_b32 v{F+2}, v{F}"); A(f"v_permlane32_swap_b32 v{F}, v{F+2}"); A(f"v_add_f32 v{F}, v{F}, v{F+2}")
    A(f"v_and_b32 v{t0}, 7, v1"); A(f"v_bfe_u32 v{t1}, v1, 4, 1"); A(f"v_lshl_add_u32 v{t0}, v{t0}, 1, v{t1}")
    A(f"v_lshlrev_b32 v{t0}, 5, v{t0}"); A("s_lshl_b32 s14, s3, 2"); A(f"v_add_u32 v{t0}, s14, v{t0}")
    A("s_mov_b32 exec_lo, 0x00ff00ff"); A("s_mov_b32 exec_hi, 0")
    A(f"ds_write_b32 v{t0}, v{F} offset:{L_FIN}")
    A("s_mov_b64 exec, -1")
    A("s_waitcnt lgkmcnt(0)"); A("s_barrier")
    A("s_cmp_lg_u32 s3, 0"); A("s_cbranch_scc1 L_fin_skip")
    A(f"v_and_b32 v{t0}, 15, v1"); A(f"v_lshlrev_b32 v{t1}, 5, v{t0}")
    A(f"ds_read_b128 v[{F}:{F+3}], v{t1} offset:{L_FIN}"); A(f"ds_read_b128 v[{F+4}:{F+7}], v{t1} offset:{L_FIN + 16}")
    A(f"v_lshlrev_b32 v{t0}, 1, v{t0}"); A("s_lshl_b32 s14, s2, 5")
    A("s_waitcnt lgkmcnt(0)")
    for st in (1, 2, 4):
        for k in range(0, 8, 2 * st): A(f"v_add_f32 v{F+k}, v{F+k}, v{F+k+st}")
    A(f"v_cvt_pk_bf16_f32 v{F}, v{F}, v{F}")
    A("s_mov_b64 exec, 0xffff")
    A(f"buffer_store_short v{F}, v{t0}, s[{SO}:{SO+3}], s14 offen")
    A("s_cmp_lg_u32 s2, 0"); A("s_cbranch_scc1 L_fin_noep")
    A("s_mov_b64 exec, 1"); A(f"v_mov_b32 v{t0}, 0"); A(f"v_mov_b32 v{t1}, s12")
    A(f"buffer_store_dword v{t1}, v{t0}, {WSR}, 0 offen")
    lab("L_fin_noep")
    A("s_mov_b64 exec, -1")
    lab("L_fin_skip")
    stamp(11)
    dump_stamps()
    if diag is not None:
        A("s_cmp_lg_u32 s2, 0"); A("s_cbranch_scc1 L_diag_end"); A("s_cmp_lg_u32 s3, 0"); A("s_cbranch_scc1 L_diag_end")
        A("s_add_u32 s84, s88, 7000")
        lab("L_diag1")
        A("s_memrealtime s[90:91]"); A("s_waitcnt lgkmcnt(0)"); A("s_sub_u32 s85, s90, s84"); A("s_cmp_lt_i32 s85, 0"); A("s_cbranch_scc1 L_diag1")
        A("v_lshlrev_b32 v166, 2, v1"); A("buffer_load_dword v165, v166, s[92:95], 0 offen sc1"); A("s_waitcnt vmcnt(0)")
        A("v_readlane_b32 s84, v165, 0"); A(f"v_readlane_b32 s85, v165, {max(diag, 0)}")
        A("s_not_b32 s84, s84"); A("s_sub_u32 s85, s85, s84"); A("s_lshl_b32 s85, s85, 2")
        if diag <= 0: A("s_mov_b32 s85, 0")
        A("s_min_u32 s85, s85, 40000"); A(f"s_add_u32 s84, s88, {dbase}"); A("s_add_u32 s84, s84, s85")
        lab("L_diag2")
        A("s_memrealtime s[90:91]"); A("s_waitcnt lgkmcnt(0)"); A("s_sub_u32 s85, s90, s84"); A("s_cmp_lt_i32 s85, 0"); A("s_cbranch_scc1 L_diag2")
        lab("L_diag_end")
    A("s_endpgm")

    lab("L_service")
    A("s_setprio 3")
    vL16, vQe, vQo, vFe, vFo, vXq, vXf = 2, 3, 4, 5, 6, 7, 8
    vTr = [9, 10, 11, 12]; a_, b_, c_, d_ = 14, 15, 16, 17; vG, vOG = 20, 21
    A(f"v_mov_b32 v{a_}, 0"); A(f"v_mov_b32 v{b_}, 0"); A(f"v_mov_b32 v{c_}, 0"); A(f"v_mov_b32 v{d_}, 0")
    A(f"ds_write_b128 v{a_}, v[{a_}:{d_}] offset:{L_FLAG}")
    A(f"v_lshlrev_b32 v{vL16}, 4, v1")
    A("s_and_b32 s8, s6, 3"); A("s_lshr_b32 s9, s6, 2"); A("s_lshl_b32 s14, s4, 1"); A("s_add_u32 s9, s9, s14")
    A("s_mul_i32 s11, s2, 9363"); A("s_lshr_b32 s11, s11, 16"); A("s_mul_i32 s14, s11, 7"); A("s_sub_u32 s81, s2, s14")
    A(f"v_bfe_u32 v{a_}, v1, 4, 1"); A(f"v_lshlrev_b32 v{a_}, 1, v{a_}"); A(f"v_and_b32 v{b_}, 7, v1"); A(f"v_xor_b32 v{a_}, v{a_}, v{b_}")
    A(f"v_xor_b32 v{b_}, 4, v{a_}"); A(f"v_lshrrev_b32 v{c_}, 3, v1")
    A(f"s_mul_i32 s14, s9, {112 * 8192}"); A("s_lshl_b32 s15, s5, 9"); A("s_add_u32 s14, s14, s15"); A("s_lshl_b32 s15, s8, 7"); A("s_add_u32 s14, s14, s15")
    A(f"v_lshl_add_u32 v{d_}, v{c_}, 13, s14")
    A(f"v_lshl_add_u32 v{vQe}, v{a_}, 4, v{d_}"); A(f"v_lshl_add_u32 v{vQo}, v{b_}, 4, v{d_}")
    A(f"s_mul_i32 s14, s81, {64 * 3584}"); A("s_lshl_b32 s15, s11, 7"); A("s_add_u32 s14, s14, s15")
    A(f"v_mul_u32_u24 v{d_}, 3584, v{c_}"); A(f"v_add_u32 v{d_}, s14, v{d_}")
    A(f"v_lshl_add_u32 v{vFe}, v{a_}, 4, v{d_}"); A(f"v_lshl_add_u32 v{vFo}, v{b_}, 4, v{d_}")
    A("s_waitcnt lgkmcnt(0)")
    A("s_load_dword s12, s[38:39], 0")
    srd(SX, 16, 1792); srd(SWQ, 22, 3670016); srd(SG, 32, 896); srd(SW1, 28, 1605632)
    A("s_cmp_lt_u32 s2, 196"); A(f"s_cselect_b32 s{SW1+2}, s{SW1+2}, 0")
    if svc == 0:
        for d in (SX, SWQ, SG, SW1): A(f"s_mov_b32 s{d+2}, 0")
    if svc == 0.5:
        for d in (SW1,): A(f"s_mov_b32 s{d+2}, 0")
    A(f"s_mov_b32 m0, {L_X}")
    for k in range(2): A(f"buffer_load_dwordx4 v{vL16}, s[{SX}:{SX+3}], 0 offen offset:{1024 * k} lds")
    for m in range(16):
        A(f"s_mov_b32 m0, {L_W + 1024 * m}")
        A(f"s_mov_b32 s13, {m * 65536 if m < 14 else 0x7f000000}")
        A(f"buffer_load_dwordx4 v{vQo if m & 1 else vQe}, s[{SWQ}:{SWQ+3}], s13 offen {wflags} lds")
    for m in range(8):
        A(f"s_mov_b32 m0, {L_W1 + 1024 * m}"); A(f"s_mov_b32 s13, {m * 8 * 3584}")
        A(f"buffer_load_dwordx4 v{vFo if m & 1 else vFe}, s[{SW1}:{SW1+3}], s13 offen {wflags} lds")
    GW = 24
    A(f"buffer_load_dwordx4 v[{GW}:{GW+3}], v{vL16}, s[{SG}:{SG+3}], 0 offen")
    A("s_barrier")
    srd(SWS, 38, WS_SIZE)
    A(f"v_and_b32 v{a_}, 1, v1"); A(f"v_mul_u32_u24 v{b_}, 896, v{a_}"); A(f"v_lshrrev_b32 v{a_}, 4, v1"); A(f"v_lshl_add_u32 v{b_}, v{a_}, 4, v{b_}")
    A("s_mul_i32 s14, s9, 224"); A(f"v_add_u32 v{vXq}, s14, v{b_}"); A("s_lshl_b32 s14, s81, 7"); A(f"v_add_u32 v{vXf}, s14, v{b_}")
    A(f"v_lshlrev_b32 v{b_}, 10, v{a_}"); A(f"v_bfe_u32 v{c_}, v1, 2, 2"); A(f"v_lshl_add_u32 v{b_}, v{c_}, 7, v{b_}")
    A(f"v_bfe_u32 v{c_}, v1, 1, 1"); A(f"v_lshl_add_u32 v{b_}, v{c_}, 4, v{b_}"); A(f"v_and_b32 v{c_}, 1, v1"); A(f"v_lshl_add_u32 v{b_}, v{c_}, 3, v{b_}")
    A(f"v_bfe_u32 v{c_}, v1, 3, 2")
    for cg in range(4):
        A(f"v_xor_b32 v{d_}, {cg}, v{c_}"); A(f"v_lshl_add_u32 v{vTr[cg]}, v{d_}, 5, v{b_}")
    A("s_lshl_b32 s8, s8, 9"); A("s_lshl_b32 s9, s9, 11"); A("s_add_u32 s8, s8, s9"); A("s_lshl_b32 s9, s5, 13"); A("s_add_u32 s8, s8, s9")
    A(f"s_add_u32 s8, s8, {WS_Q}"); A(f"s_add_u32 s9, s8, {16 * 8192}")
    A("s_lshl_b32 s11, s11, 12"); A("s_lshl_b32 s81, s81, 9"); A("s_add_u32 s11, s11, s81"); A(f"s_add_u32 s11, s11, {WS_H}")
    A("s_mov_b32 s82, 0xffff0000"); A("s_mov_b32 s83, 0"); A("s_mov_b32 s84, 0"); A("s_mov_b32 s85, 0xffff"); A("s_mov_b32 s86, 0"); A("s_mov_b32 s87, 0xffff0000")
    if dbg: A("s_waitcnt lgkmcnt(0)"); A("v_writelane_b32 v167, s88, 0")
    A("s_waitcnt lgkmcnt(0)"); A(f"s_add_u32 s12, s12, {TAGC}")
    XA = 28; TB = 56; D = 120; UQ = 136
    A("s_waitcnt vmcnt(25)")
    for m in range(4): A(f"ds_read_b128 v[{XA+4*m}:{XA+4*m+3}], v{vXq} offset:{L_X + 64 * m}")
    for m in range(2): A(f"ds_read_b128 v[{XA+16+4*m}:{XA+16+4*m+3}], v{vXf} offset:{L_X + 64 * m}")
    def gemv(img, steps, xa, vm_after):
        for m in range(steps):
            A(f"s_waitcnt vmcnt({vm_after + 4 * (steps - 1 - m)})")
            for cg in range(4):
                r = TB + 16 * m + 4 * cg
                A(f"ds_read_b64_tr_b16 v[{r}:{r+1}], v{vTr[cg]} offset:{img + 4096 * m}")
                A(f"ds_read_b64_tr_b16 v[{r+2}:{r+3}], v{vTr[cg]} offset:{img + 4096 * m + 512}")
            if m: mf(m - 1, xa, 8)
        mf(steps - 1, xa, 0)
        for bb in range(2):
            for cg in range(1, 4): A(f"v_cndmask_b32 v{D+bb}, v{D+bb}, v{D+4*cg+bb}, s[{80+2*cg}:{81+2*cg}]")
        for bb in range(2):
            A(f"v_mov_b32 v{UQ+4*bb}, v{D+bb}"); A(f"v_mov_b32_dpp v{UQ+4*bb+2}, v{D+bb} quad_perm:[1,1,3,3] {DPPF}")
            A(f"v_mov_b32 v{UQ+4*bb+1}, s12"); A(f"v_mov_b32 v{UQ+4*bb+3}, s12")
    def mf(m, xa, lg):
        A(f"s_waitcnt lgkmcnt({lg})")
        for cg in range(4):
            r = TB + 16 * m + 4 * cg; d = D + 4 * cg; c = "0" if m == 0 else f"v[{d}:{d+3}]"
            A(f"v_mfma_f32_16x16x32_bf16 v[{d}:{d+3}], v[{xa+4*m}:{xa+4*m+3}], v[{r}:{r+3}], {c}")
    def publish(s0, s1):
        if svc < 2: return
        A("s_mov_b32 exec_lo, 0x55555555"); A("s_mov_b32 exec_hi, 0x55555555")
        A(f"buffer_store_dwordx4 v[{UQ}:{UQ+3}], v{d_}, {WSR}, {s0} offen sc1")
        A(f"buffer_store_dwordx4 v[{UQ+4}:{UQ+7}], v{d_}, {WSR}, {s1} offen sc1")
        A("s_mov_b64 exec, -1")
    A(f"v_lshlrev_b32 v{d_}, 3, v1")
    gemv(L_W, 4, XA, 9)
    publish("s8", "s9")
    stamp(1)
    gemv(L_W1, 2, XA + 16, 3)
    A("s_cmp_ge_u32 s2, 196"); A("s_cbranch_scc1 L_sv_noh")
    A(f"s_add_u32 s9, s11, {28 * 4096}")
    publish("s11", "s9")
    lab("L_sv_noh")
    stamp(2)
    QP = 56
    if NG is not None: lds_wait(L_FLAG + 12, 1, "pg1", a_, b_, sleep=4, cmp="ge")
    A("s_lshl_b32 s8, s7, 13"); A(f"s_add_u32 s8, s8, {WS_Q}"); A("s_add_u32 s9, s8, 4096")
    gather("q", [(QP + 4 * k, vL16, "s9" if k >= 4 else "s8", 1024 * (k & 3), -1, -1) for k in range(8)], psleep,
           [40, 42, 44, 46, 48, 50, 82, 84])
    for hf in range(2):
        r = QP + 4 * hf
        for e in (0, 2):
            A(f"v_add_f32 v{r+e}, v{r+e}, v{r+8+e}"); A(f"v_add_f32 v{r+16+e}, v{r+16+e}, v{r+24+e}")
        for e in (0, 2): A(f"v_add_f32 v{r+e}, v{r+e}, v{r+16+e}")
        A(f"v_cvt_pk_bf16_f32 v{r}, v{r}, v{r+2}")
    A(f"v_lshlrev_b32 v{a_}, 2, v1")
    A(f"ds_write_b32 v{a_}, v{QP} offset:{L_Q}"); A(f"ds_write_b32 v{a_}, v{QP+4} offset:{L_Q + 256}")
    A(f"v_mov_b32 v{a_}, 0"); A(f"v_mov_b32 v{b_}, s12"); A(f"v_mov_b32 v{c_}, 1")
    A(f"ds_write_b32 v{a_}, v{b_} offset:{L_G + 16}")
    A(f"ds_write_b32 v{a_}, v{c_} offset:{L_FLAG}")
    stamp(3)
    XG = 28
    A("s_mul_i32 s14, s4, 896"); A(f"v_add_u32 v{a_}, s14, v{vL16}")
    A(f"ds_read_b128 v[{XG}:{XG+3}], v{a_} offset:{L_X}")
    A("s_waitcnt lgkmcnt(0)")
    A(f"v_mov_b32 v{vG}, 0")
    for k in range(4):
        A(f"v_lshlrev_b32 v{a_}, 16, v{XG+k}"); A(f"v_and_b32 v{b_}, 0xffff0000, v{XG+k}")
        A(f"v_lshlrev_b32 v{c_}, 16, v{GW+k}"); A(f"v_and_b32 v{d_}, 0xffff0000, v{GW+k}")
        A(f"v_mul_f32 v{a_}, v{a_}, v{c_}"); A(f"v_mul_f32 v{b_}, v{b_}, v{d_}")
        A(f"v_cvt_pk_bf16_f32 v{a_}, v{a_}, v{b_}")
        A(f"v_lshlrev_b32 v{b_}, 16, v{a_}"); A(f"v_and_b32 v{a_}, 0xffff0000, v{a_}")
        A(f"v_add_f32 v{vG}, v{vG}, v{b_}"); A(f"v_add_f32 v{vG}, v{vG}, v{a_}")
    A("v_cmp_gt_u32 vcc, 56, v1"); A(f"v_cndmask_b32 v{vG}, 0, v{vG}, vcc")
    wave_reduce(A, "add", vG, a_)
    A(f"v_cvt_pk_bf16_f32 v{vG}, v{vG}, v{vG}"); A(f"v_lshlrev_b32 v{vG}, 16, v{vG}")
    A(f"v_mul_f32 v{vG}, 0xbfb8aa3b, v{vG}"); A(f"v_exp_f32 v{vG}, v{vG}"); A(f"v_add_f32 v{vG}, 1.0, v{vG}"); A(f"v_rcp_f32 v{vG}, v{vG}")
    A(f"v_cvt_pk_bf16_f32 v{vG}, v{vG}, v{vG}"); A(f"v_lshlrev_b32 v{vG}, 16, v{vG}")
    A(f"v_sub_f32 v{vOG}, 1.0, v{vG}"); A(f"v_cvt_pk_bf16_f32 v{vOG}, v{vOG}, v{vOG}"); A(f"v_lshlrev_b32 v{vOG}, 16, v{vOG}")
    lds_wait(L_FLAG + 8, 8, "cnt", a_, b_, sleep=2)
    ST = 32
    def combine(m, l):
        A(f"v_mov_b32 v{a_}, v{m}")
        for ctl in ("quad_perm:[1,0,3,2]", "quad_perm:[2,3,0,1]", "row_half_mirror"): A(f"v_max_f32_dpp v{a_}, v{a_}, v{a_} {ctl} {DPPF}")
        A(f"v_sub_f32 v{b_}, v{m}, v{a_}"); A(f"v_exp_f32 v{b_}, v{b_}"); A(f"v_mul_f32 v{b_}, v{b_}, v{l}")
        for ctl in ("quad_perm:[1,0,3,2]", "quad_perm:[2,3,0,1]", "row_half_mirror"): A(f"v_add_f32_dpp v{b_}, v{b_}, v{b_} {ctl} {DPPF}")
    A(f"v_and_b32 v{c_}, 7, v1"); A(f"v_lshlrev_b32 v{c_}, 3, v{c_}")
    A(f"ds_read_b64 v[{ST+4}:{ST+5}], v{c_} offset:{L_WST}"); A("s_waitcnt lgkmcnt(0)")
    combine(ST + 4, ST + 5)
    A(f"v_mov_b32 v{ST}, v{a_}"); A(f"v_mov_b32 v{ST+1}, s12"); A(f"v_mov_b32 v{ST+2}, v{b_}"); A(f"v_mov_b32 v{ST+3}, s12")
    A("s_lshl_b32 s11, s7, 10"); A(f"s_add_u32 s11, s11, {WS_ST}"); A("s_lshl_b32 s9, s6, 7"); A("s_add_u32 s9, s9, s11")
    A("s_mov_b64 exec, 0xff"); A(f"buffer_store_dwordx4 v[{ST}:{ST+3}], v{vL16}, {WSR}, s9 offen sc1"); A("s_mov_b64 exec, -1")
    if NS is not None: lds_wait(L_FLAG + 12, 2, "pg2", a_, b_, sleep=8, cmp="ge")
    HP = 28
    A(f"v_mov_b32 v{HP}, 0"); A(f"v_mov_b32 v{HP+2}, 0")
    A("s_cmp_ge_u32 s10, 112"); A("s_cbranch_scc1 L_sv_hz")
    A(f"v_lshrrev_b32 v{a_}, 3, v1"); A(f"v_lshlrev_b32 v{a_}, 9, v{a_}"); A(f"v_and_b32 v{b_}, 7, v1"); A(f"v_lshl_add_u32 v{a_}, v{b_}, 4, v{a_}")
    A("s_lshr_b32 s8, s10, 2"); A("s_mul_i32 s9, s4, 28"); A("s_add_u32 s8, s8, s9"); A("s_lshl_b32 s8, s8, 12")
    A("s_and_b32 s9, s10, 3"); A("s_lshl_b32 s9, s9, 7"); A("s_add_u32 s8, s8, s9"); A(f"s_add_u32 s8, s8, {WS_H}")
    gather("h", [(HP, a_, "s8", 0, -1, "0x00ffffff")], psleep, [82])
    lab("L_sv_hz")
    for k in (0, 2): A(f"v_add_f32_dpp v{HP+k}, v{HP+k}, v{HP+k} row_ror:8 {DPPF}")
    for sw in ("v_permlane16_swap_b32", "v_permlane32_swap_b32"):
        for k in (0, 2): A(f"v_mov_b32 v{HP+k+1}, v{HP+k}")
        for k in (0, 2): A(f"{sw} v{HP+k}, v{HP+k+1}")
        for k in (0, 2): A(f"v_add_f32 v{HP+k}, v{HP+k}, v{HP+k+1}")
    for k in (0, 2): A(f"v_max_f32 v{HP+k}, 0, v{HP+k}")
    A(f"v_cvt_pk_bf16_f32 v{HP}, v{HP}, v{HP}"); A(f"v_cvt_pk_bf16_f32 v{HP+1}, v{HP+2}, v{HP+2}")
    A(f"v_lshlrev_b32 v{a_}, 3, v1")
    A("s_mov_b64 exec, 0xff"); A(f"ds_write_b64 v{a_}, v[{HP}:{HP+1}] offset:{L_H}"); A("s_mov_b64 exec, -1")
    stamp(4)
    A(f"v_lshlrev_b32 v{c_}, 7, v1")
    gather("st", [(ST + 4, c_, "s11", 0, "0xff", 0)], 8, [82])
    combine(ST + 4, ST + 6)
    A(f"v_sub_f32 v{vG+2}, 0, v{a_}"); A(f"v_rcp_f32 v{vG+3}, v{b_}")
    A(f"v_mov_b32 v{a_}, 0"); A(f"v_mov_b32 v{b_}, 1")
    A("s_mov_b64 exec, 1")
    A(f"ds_write_b128 v{a_}, v[{vG}:{vG+3}] offset:{L_G}")
    A(f"ds_write_b32 v{a_}, v{b_} offset:{L_FLAG + 4}")
    A("s_mov_b64 exec, -1")
    A("s_waitcnt lgkmcnt(0)")
    stamp(5)
    dump_stamps(True)
    lab("L_end")
    A("s_endpgm")

    body = pad_hazards(L)
    out = [HEADER.rstrip("\n"),
           "; Single fused launch: 256 workgroups (one per CU) x 9 waves (wave 0 = service, waves 1-8 stream K/V).",
           f"; @launch grid=(256,1,1) block=(576,1,1) lds={lds or LDS_MIN}",
           '.amdgcn_target "amdgcn-amd-amdhsa--gfx950"', ".text", f".globl {NAME}", ".p2align 8", f".type {NAME},@function", f"{NAME}:"]
    out += body
    out += ['.section .rodata,"a"', ".p2align 6", f".amdhsa_kernel {NAME}",
            "  .amdhsa_next_free_vgpr 168", "  .amdhsa_next_free_sgpr 96", "  .amdhsa_accum_offset 168",
            "  .amdhsa_group_segment_fixed_size 0", "  .amdhsa_kernarg_size 96", "  .amdhsa_user_sgpr_count 2",
            "  .amdhsa_user_sgpr_kernarg_segment_ptr 1", "  .amdhsa_system_sgpr_workgroup_id_x 1", ".end_amdhsa_kernel"]
    return "\n".join(out) + "\n"

def masks(A, M, t0, t1):
    A(f"v_and_b32 v{t0}, 1, v1"); A(f"v_lshlrev_b32 v{t0}, 4, v{t0}"); A(f"v_mov_b32 v{t1}, 0xffff"); A(f"v_lshlrev_b32 v{t1}, v{t0}, v{t1}")
    A(f"v_bfe_u32 v{t0}, v1, 1, 2")
    for r in range(4): A(f"v_cmp_eq_u32 s[{80+2*r}:{81+2*r}], {r}, v{t0}")
    for r in range(4): A(f"v_cndmask_b32 v{M[r]}, 0, v{t1}, s[{80+2*r}:{81+2*r}]")

def mask_prime(A, M, t0, t1):
    A(f"v_lshrrev_b32 v{t0}, 1, v1"); A(f"v_xor_b32 v{t0}, v{t0}, v1"); A(f"v_bfe_u32 v{t0}, v{t0}, 3, 1")
    A(f"v_add_u32 v{t0}, -1, v{t0}")
    for r in range(4): A(f"v_and_b32 v{M[r]}, v{M[r]}, v{t0}")

def red2_lane(A, d, t0):
    A(f"v_and_b32 v{t0}, 15, v1"); A(f"v_lshlrev_b32 v{d}, 5, v{t0}")
    A(f"v_lshrrev_b32 v{t0}, 5, v1"); A(f"v_lshl_add_u32 v{d}, v{t0}, 9, v{d}")
    A(f"v_bfe_u32 v{t0}, v1, 4, 1"); A(f"v_lshl_add_u32 v{d}, v{t0}, 4, v{d}")

def wave_reduce(A, op, v, t):
    for ctl in ("quad_perm:[1,0,3,2]", "quad_perm:[2,3,0,1]", "row_half_mirror", "row_mirror"):
        A(f"v_{op}_f32_dpp v{v}, v{v}, v{v} {ctl} {DPPF}")
    for sw in ("v_permlane16_swap_b32", "v_permlane32_swap_b32"):
        A(f"v_mov_b32 v{t}, v{v}"); A(f"{sw} v{v}, v{t}"); A(f"v_{op}_f32 v{v}, v{v}, v{t}")

if __name__ == "__main__":
    kw = eval("dict(%s)" % (sys.argv[2] if len(sys.argv) > 2 else ""))
    open(sys.argv[1], "w").write(gen(**kw))
```

```python
import sys
sys.path.insert(0, "dev")
from asmlib import pad_hazards

NAME = "gated_mix__mha_block_cached__dense_activation_relu__decode_kernel"
HEADER = open("gated_mix__mha_block_cached__dense_activation_relu__decode.s.ref").read().split("; Override launch")[0]

WS_ST = 0x1F0000
WS_H = 0x8000
WS_Q = 0x40000
WS_O = 0x80000
WS_Y = 0x100000
WS_DBG = 0x400000
WS_SIZE = 268435456
L_W = 0x0000
L_W1 = 0x4000
L_RED1 = 0x0000
L_X = 0x6000
L_Q = 0x6800
L_H = 0x6A00
L_G = 0x6A40
L_FLAG = 0x6A80
L_WST = 0x6AC0
L_FIN = 0x6C00
L_OL = 0x6B00
L_PW = 0x7000
L_RED2 = 0x8000
LDS_MIN = L_RED2 + 8 * 2048
TAGC = 0x9E3779B9
SPIN_MAX = 1 << 18
DPPF = "row_mask:0xf bank_mask:0xf"
CEXP = "0x3db8aa3b"

def gen(LIM=2, LIMV=None, NQ=24, CQ=3, CP=3, R=33, NF=62, dbg=False, hdbg=False, diag=None,
        psleep=2, osleep=0, fsleep=0, svc=9, kflags="nt", wflags="nt", lds=None, LE=None, NG=12, NS=46, rot=None, early=False, dbase=10000, pp=1, pgap=8, wsb=0):
    if LIMV is None: LIMV = LIM
    WS_ST, WS_H, WS_Q, WS_O, WS_Y = (x + wsb for x in (0x1F0000, 0x8000, 0x40000, 0x80000, 0x100000))
    L = []
    A = lambda s: L.append("  " + s)
    lab = lambda s: L.append(s + ":")
    def srd(d, p, nbytes):
        A(f"s_mov_b32 s{d}, s{p}"); A(f"s_mov_b32 s{d+1}, s{p+1}"); A(f"s_mov_b32 s{d+2}, {nbytes}"); A(f"s_mov_b32 s{d+3}, 0x20000")
    SK, SV, SWO, SWS, SWQ, SW1, SW2, SX, SG, SO = 40, 44, 48, 52, 56, 60, 64, 68, 72, 76
    WSR = f"s[{SWS}:{SWS+3}]"
    if diag is not None: hdbg = True
    if hdbg: dbg = True
    def stamp(idx):
        if dbg:
            A("s_memrealtime s[90:91]"); A("s_waitcnt lgkmcnt(0)"); A(f"v_writelane_b32 v167, s90, {idx}")
    def dump_stamps(service=False):
        if hdbg:
            A("s_mov_b32 s92, s36"); A("s_mov_b32 s93, s37"); A("s_mov_b32 s94, 256"); A("s_mov_b32 s95, 0x20000")
            A("v_not_b32 v165, v167"); A("v_cmp_eq_u32 vcc, 0, v1"); A("v_cndmask_b32 v167, v167, v165, vcc")
            A("v_lshlrev_b32 v166, 2, v1")
            if service: A("v_add_u32 v166, 64, v166"); A("s_mov_b64 exec, 0x3e")
            else: A("s_mov_b64 exec, 0xffff")
            A("buffer_atomic_umax v167, v166, s[92:95], 0 offen"); A("s_mov_b64 exec, -1")
        elif dbg:
            A("s_mul_i32 s92, s2, 9"); A("s_add_u32 s92, s92, s93"); A("s_lshl_b32 s92, s92, 8"); A(f"s_add_u32 s92, s92, {WS_DBG}")
            A("v_lshlrev_b32 v166, 2, v1"); A(f"buffer_store_dword v167, v166, {WSR}, s92 offen")
    if dbg: R = min(R, 32)
    def spin_tail(label, sleep):
        if sleep: A(f"s_sleep {sleep}")
        A("s_sub_u32 s80, s80, 1"); A("s_cmp_lg_u32 s80, 0"); A(f"s_cbranch_scc1 {label}")
    def lds_wait(off, val, tag, ta, tb, sleep=1, cmp="eq"):
        A(f"v_mov_b32 v{ta}, 0"); A(f"s_mov_b32 s80, {SPIN_MAX}")
        lab(f"L_wait_{tag}")
        A(f"ds_read_b32 v{tb}, v{ta} offset:{off}"); A("s_waitcnt lgkmcnt(0)"); A(f"v_readfirstlane_b32 s81, v{tb}")
        A(f"s_cmp_{cmp}_u32 s81, {val}"); A(f"s_cbranch_scc1 L_got_{tag}")
        spin_tail(f"L_wait_{tag}", sleep)
        lab(f"L_got_{tag}")
    def gather(tag, items, sleep, pool):
        if svc < {"q": 3, "h": 4, "st": 5}.get(tag, 0):
            A("s_waitcnt vmcnt(0)"); return
        assert len(pool) >= len(items)
        for (reg, va, so, imm, lo, hi), ms in zip(items, pool): A(f"s_mov_b32 s{ms}, {lo}"); A(f"s_mov_b32 s{ms+1}, {hi}")
        A(f"s_mov_b32 s80, {SPIN_MAX}")
        lab(f"L_g_{tag}")
        for k, ((reg, va, so, imm, lo, hi), ms) in enumerate(zip(items, pool)):
            A(f"s_mov_b64 exec, s[{ms}:{ms+1}]")
            if len(items) > 1: A(f"s_cbranch_execz L_g_{tag}_s{k}")
            A(f"buffer_load_dwordx4 v[{reg}:{reg+3}], v{va}, {WSR}, {so} offen offset:{imm} sc1")
            if len(items) > 1: lab(f"L_g_{tag}_s{k}")
        A("s_waitcnt vmcnt(0)")
        for k, ((reg, va, so, imm, lo, hi), ms) in enumerate(zip(items, pool)):
            if len(items) > 1: A(f"s_mov_b64 exec, s[{ms}:{ms+1}]")
            A(f"v_cmp_ne_u32 vcc, s12, v{reg+1}"); A(f"v_cmp_ne_u32 s[{ms}:{ms+1}], s12, v{reg+3}")
            A(f"s_or_b64 s[{ms}:{ms+1}], s[{ms}:{ms+1}], vcc")
            if k == 0: A(f"s_mov_b64 s[14:15], s[{ms}:{ms+1}]")
            else: A(f"s_or_b64 s[14:15], s[14:15], s[{ms}:{ms+1}]")
        A("s_cmp_eq_u64 s[14:15], 0"); A(f"s_cbranch_scc1 L_g_{tag}_ok")
        spin_tail(f"L_g_{tag}", sleep)
        lab(f"L_g_{tag}_ok")
        A("s_mov_b64 exec, -1")

    def poll_issue(sets, k, items):
        for j, (va, so, imm) in enumerate(items):
            r = sets[k] + 4 * j
            A(f"buffer_load_dwordx4 v[{r}:{r+3}], v{va}, {WSR}, {so} offen offset:{imm} sc1")
    def poll_loop(tag, sets, items, first):
        n = len(sets); ni = len(items)
        for k in range(1, n):
            if pgap: A(f"s_sleep {pgap}")
            poll_issue(sets, k, items)
        A(f"s_mov_b32 s80, {SPIN_MAX}")
        lab(f"L_p_{tag}")
        for k in range(n):
            A(f"s_waitcnt vmcnt({(n - 1) * ni})")
            for j in range(ni):
                r = sets[k] + 4 * j
                A(f"v_cmp_ne_u32 {'vcc' if j == 0 else 's[84:85]'}, s12, v{r+1}"); A(f"v_cmp_ne_u32 s[{82 + 4 * j}:{83 + 4 * j}], s12, v{r+3}")
            if ni == 2: A("s_or_b64 vcc, vcc, s[84:85]"); A("s_or_b64 vcc, vcc, s[86:87]")
            A("s_or_b64 vcc, vcc, s[82:83]")
            A(f"s_cbranch_scc0 L_p_{tag}_ok{k}")
            poll_issue(sets, k, items)
        A("s_sub_u32 s80, s80, 1"); A("s_cmp_lg_u32 s80, 0"); A(f"s_cbranch_scc1 L_p_{tag}")
        A("s_waitcnt vmcnt(0)")
        for k in range(n):
            lab(f"L_p_{tag}_ok{k}")
            first(sets[k])
            if k < n - 1: A(f"s_branch L_p_{tag}_done")
        lab(f"L_p_{tag}_done")
        A("s_nop 1")

    if dbg and early: A("s_memrealtime s[88:89]")
    A("s_cmp_ge_u32 s2, 256"); A("s_cbranch_scc1 L_end")
    A("s_load_dwordx16 s[16:31], s[0:1], 0")
    A("s_load_dwordx8 s[32:39], s[0:1], 64")
    A("v_lshrrev_b32 v2, 6, v0"); A("v_and_b32 v1, 63, v0")
    A("v_readfirstlane_b32 s3, v2")
    A("s_and_b32 s14, s2, 7"); A("s_lshr_b32 s15, s2, 3")
    A("s_lshr_b32 s4, s15, 4")
    A("s_bfe_u32 s5, s15, 0x10003"); A("s_lshl_b32 s14, s14, 1"); A("s_add_u32 s5, s5, s14")
    A("s_and_b32 s6, s15, 7")
    A("s_lshl_b32 s7, s4, 4"); A("s_add_u32 s7, s7, s5")
    A("s_lshl_b32 s10, s5, 3"); A("s_add_u32 s10, s10, s6")
    if dbg:
        A("s_mov_b32 s93, s3"); A("v_mov_b32 v167, 0")
        if not early: A("s_memrealtime s[88:89]")
    A("s_cmp_eq_u32 s3, 0"); A("s_cbranch_scc1 L_service")

    A("s_sub_u32 s3, s3, 1")
    vK, vV, vWo, vW2, t0, t1 = 2, 3, 4, 5, 6, 7
    M = [8, 9, 10, 11]; Q = [12, 16]; DB = [20, 24]; AB = [20, 24]; SG_ = [28, 29, 30, 31]; ACC = 32
    vMW = 12; vE = [13, 14, 15, 16]; vLW = 17
    RING = 36
    A(f"v_bfe_u32 v{t0}, v1, 2, 2"); A(f"v_lshlrev_b32 v{vK}, 9, v{t0}")
    A(f"v_lshrrev_b32 v{t0}, 4, v1"); A(f"v_lshl_add_u32 v{vK}, v{t0}, 6, v{vK}")
    A(f"v_and_b32 v{t0}, 3, v1"); A(f"v_lshl_add_u32 v{vK}, v{t0}, 4, v{vK}")
    A("s_lshl_b32 s8, s7, 21"); A("s_lshl_b32 s14, s3, 12"); A("s_add_u32 s8, s8, s14")
    A("s_lshl_b32 s14, s6, 18"); A("s_add_u32 s8, s8, s14")
    A(f"v_add_u32 v{vK}, s8, v{vK}")
    A("s_waitcnt lgkmcnt(0)")
    srd(SK, 18, 0x4000000)

    loads = [("K", beta, tp, jh) for beta in range(8) for tp in range(2) for jh in range(2)]
    loads += [("V", beta, tp, kp) for beta in range(8) for tp in range(2) for kp in range(2)]
    loads += [("F", cb) for cb in range(2)] + [("W", r, cb) for r in range(2) for cb in range(2)]
    free = list(range(R)); slot = {}
    nissued = [0]; landed = [-1]; cur_soff = [None]
    if rot:
        A(f"s_mul_i32 s11, s2, {rot}"); A("s_lshr_b32 s14, s2, 3"); A("s_add_u32 s11, s11, s14"); A("s_and_b32 s11, s11, 7"); A("s_lshl_b32 s11, s11, 15")
    def soff(val):
        if val == 0 and not rot: return "0"
        if cur_soff[0] != val:
            if rot: A(f"s_add_u32 s13, s11, {val}"); A("s_and_b32 s13, s13, 0x3ffff")
            else: A(f"s_mov_b32 s13, {val}")
            cur_soff[0] = val
        return "s13"
    def wait_landed(n):
        if n <= landed[0]: return
        A(f"s_waitcnt vmcnt({nissued[0] - 1 - n})"); landed[0] = n
    def issue(n):
        ld = loads[n]; sl = free.pop(0); slot[n] = sl; r = RING + 4 * sl
        if ld[0] == "K":
            A(f"buffer_load_dwordx4 v[{r}:{r+3}], v{vK}, s[{SK}:{SK+3}], {soff(ld[1] * 32768)} offen offset:{ld[2] * 2048 + ld[3] * 256} {kflags}")
        elif ld[0] == "V":
            A(f"buffer_load_dwordx4 v[{r}:{r+3}], v{vV}, s[{SV}:{SV+3}], {soff(ld[1] * 32768)} offen offset:{ld[2] * 2048 + ld[3] * 1024} {kflags}")
        elif ld[0] == "W":
            A(f"buffer_load_dwordx4 v[{r}:{r+3}], v{vWo}, s[{SWO}:{SWO+3}], 0 offen offset:{ld[1] * 896 + ld[2] * 512} {wflags}")
        else:
            A(f"buffer_load_dwordx4 v[{r}:{r+3}], v{vW2}, s[{SW2}:{SW2+3}], 0 offen offset:{ld[1] * 512} {wflags}")
        nissued[0] += 1
    sreg = lambda n: RING + 4 * slot[n]
    qk_next = [0]; qk_post = [None]; pv_next = [0]; pslot = {}
    def qk_dpp(tau):
        beta, tp = tau >> 1, tau & 1; G = beta >> 1; t = 2 * (beta & 1) + tp; d = DB[tau & 1]
        A(f"v_mov_b32_dpp v{t0}, v{d} quad_perm:[0,0,0,0] {DPPF}")
        A(f"v_add_f32_dpp v{t0}, v{d+1}, v{t0} quad_perm:[1,1,1,1] {DPPF}")
        A(f"v_add_f32_dpp v{t0}, v{d+2}, v{t0} quad_perm:[2,2,2,2] {DPPF}")
        A(f"v_add_f32_dpp v{SG_[G]}, v{d+3}, v{t0} quad_perm:[3,3,3,3] row_mask:0xf bank_mask:{hex(1 << t)}")
    def qk_tile(tau):
        d = DB[tau & 1]; a0 = sreg(2 * tau); a1 = sreg(2 * tau + 1)
        A(f"v_mfma_f32_16x16x32_bf16 v[{d}:{d+3}], v[{a0}:{a0+3}], v[{Q[0]}:{Q[0]+3}], 0")
        A(f"v_mfma_f32_16x16x32_bf16 v[{d}:{d+3}], v[{a1}:{a1+3}], v[{Q[1]}:{Q[1]+3}], v[{d}:{d+3}]")
        free.extend([slot[2 * tau], slot[2 * tau + 1]])
        if qk_post[0] is not None: qk_dpp(qk_post[0])
        qk_post[0] = tau
    def red_hi(op, v, t):
        for ctl in ("row_ror:4", "row_ror:8"): A(f"v_{op}_f32_dpp v{v}, v{v}, v{v} {ctl} {DPPF}")
        for sw in ("v_permlane16_swap_b32", "v_permlane32_swap_b32"):
            A(f"v_mov_b32 v{t}, v{v}"); A(f"{sw} v{v}, v{t}"); A(f"v_{op}_f32 v{v}, v{v}, v{t}")
    def sm_a():
        qk_dpp(qk_post[0]); qk_post[0] = None
        S = SG_
        A(f"v_cvt_pk_bf16_f32 v{t0}, v{S[0]}, v{S[1]}"); A(f"v_cvt_pk_bf16_f32 v{t1}, v{S[2]}, v{S[3]}")
        A(f"v_lshlrev_b32 v{S[0]}, 16, v{t0}"); A(f"v_and_b32 v{S[1]}, 0xffff0000, v{t0}")
        A(f"v_lshlrev_b32 v{S[2]}, 16, v{t1}"); A(f"v_and_b32 v{S[3]}, 0xffff0000, v{t1}")
        A(f"v_max3_f32 v{vMW}, v{S[0]}, v{S[1]}, v{S[2]}"); A(f"v_max_f32 v{vMW}, v{vMW}, v{S[3]}")
        red_hi("max", vMW, t0)
    def sm_b():
        S = SG_
        A(f"s_mov_b32 s81, {CEXP}"); A(f"v_mul_f32 v{vMW}, s81, v{vMW}")
        for k in range(4): A(f"v_fma_f32 v{vE[k]}, v{S[k]}, s81, -v{vMW}")
        for k in range(4): A(f"v_exp_f32 v{vE[k]}, v{vE[k]}")
        A("s_lshl_b32 s14, s3, 8"); A(f"v_lshl_add_u32 v{t1}, v1, 2, s14")
        for k in range(4): A(f"v_cvt_pk_bf16_f32 v{S[k]}, v{vE[k]}, v{vE[k]}")
        A("s_mov_b32 exec_lo, 0x11111111"); A("s_mov_b32 exec_hi, 0x11111111")
        A(f"ds_write_b128 v{t1}, v[{S[0]}:{S[3]}] offset:{L_PW}")
        A("s_mov_b64 exec, -1")
        A(f"v_lshrrev_b32 v{t1}, 5, v1"); A(f"v_lshl_add_u32 v{t1}, v{t1}, 6, s14")
        for t in range(4):
            for kp in range(2):
                sl = free.pop(0); pslot[(t, kp)] = sl; r = RING + 4 * sl
                A(f"ds_read_b128 v[{r}:{r+3}], v{t1} offset:{L_PW + (8 * kp + t) * 16}")
        A(f"v_add_f32 v{vLW}, v{vE[0]}, v{vE[1]}"); A(f"v_add_f32 v{t0}, v{vE[2]}, v{vE[3]}"); A(f"v_add_f32 v{vLW}, v{vLW}, v{t0}")
    def sm_c():
        red_hi("add", vLW, t0)
        A(f"v_mov_b32 v{vMW+1}, v{vLW}")
        A("s_lshl_b32 s14, s3, 3"); A(f"v_mov_b32 v{t0}, s14"); A(f"v_mov_b32 v{t1}, 1"); A(f"v_mov_b32 v{vE[2]}, 0")
        A("s_mov_b64 exec, 1")
        A(f"ds_write_b64 v{t0}, v[{vMW}:{vMW+1}] offset:{L_WST}")
        A(f"ds_add_u32 v{vE[2]}, v{t1} offset:{L_FLAG + 8}")
        A("s_mov_b64 exec, -1")
        A("s_waitcnt lgkmcnt(0)")
        stamp(3)
    def pv_tile(m):
        beta, tp, kp = m >> 2, (m >> 1) & 1, m & 1; G = beta >> 1; t = 2 * (beta & 1) + tp
        a = AB[m & 1]; p = RING + 4 * pslot[(t, kp)] + G; bv = sreg(32 + m)
        for r in range(4): A(f"v_and_b32 v{a+r}, v{p}, v{M[r]}")
        c = "0" if m == 0 else f"v[{ACC}:{ACC+3}]"
        A(f"v_mfma_f32_16x16x32_bf16 v[{ACC}:{ACC+3}], v[{a}:{a+3}], v[{bv}:{bv+3}], {c}")
        free.append(slot[32 + m])
    vFS = 18; vHP = 19
    GG = 14
    def fetch_stats():
        stamp(4); lds_wait(L_FLAG + 4, 1, "st", t0, t1); stamp(5)
        A(f"ds_read_b128 v[14:17], v{t0} offset:{L_G}")
        A(f"v_lshrrev_b32 v{t1}, 5, v1"); A("s_lshl_b32 s14, s3, 3"); A(f"v_lshl_add_u32 v{t1}, v{t1}, 2, s14")
        A(f"ds_read_b32 v{vHP}, v{t1} offset:{L_H}")
        A("s_waitcnt lgkmcnt(0)")
        A(f"v_add_f32 v{vFS}, v{vMW}, v16"); A(f"v_exp_f32 v{vFS}, v{vFS}"); A(f"v_mul_f32 v{vFS}, v{vFS}, v17")

    N = len(loads); chunks = [sm_a, sm_b, sm_c]; sm_done = False
    for n in range(N):
        if n < 64:
            lim = LIM if n < 32 else LIMV
            if LE and n >= LE[0]: lim = LE[1]
            if n > lim: wait_landed(n - lim - 1)
        if n in (LIM + 1, 8, 16, 48): stamp({LIM + 1: 12, 8: 13, 16: 14, 48: 15}[n])
        if n == NQ:
            stamp(1)
            lds_wait(L_FLAG, 1, "q", t0, t1)
            A(f"v_lshrrev_b32 v{t0}, 4, v1"); A(f"v_and_b32 v{t1}, 3, v1"); A(f"v_lshl_add_u32 v{t0}, v{t0}, 2, v{t1}"); A(f"v_lshlrev_b32 v{t0}, 4, v{t0}")
            A(f"ds_read_b128 v[{Q[0]}:{Q[0]+3}], v{t0} offset:{L_Q}")
            A(f"ds_read_b128 v[{Q[1]}:{Q[1]+3}], v{t0} offset:{L_Q + 256}")
            A(f"v_mov_b32 v{t0}, 0"); A(f"ds_read_b32 v{t1}, v{t0} offset:{L_G + 16}")
            A("s_waitcnt lgkmcnt(0)"); A(f"v_readfirstlane_b32 s12, v{t1}")
            stamp(2)
        assert free, f"no free slot at load {n}"
        issue(n)
        if n == LIM:
            srd(SV, 20, 0x4000000); srd(SWO, 24, 3670016); srd(SW2, 30, 1605632); srd(SWS, 38, WS_SIZE)
            A("s_barrier")
            A(f"v_lshl_add_u32 v{vV}, v1, 4, s8")
            A(f"v_and_b32 v{t0}, 31, v1"); A(f"v_lshlrev_b32 v{t0}, 4, v{t0}"); A(f"v_lshrrev_b32 v{t1}, 5, v1")
            A(f"v_mul_u32_u24 v{vWo}, 1792, v{t1}"); A(f"v_add_u32 v{vWo}, v{vWo}, v{t0}")
            A(f"v_mul_u32_u24 v{vW2}, 896, v{t1}"); A(f"v_add_u32 v{vW2}, v{vW2}, v{t0}")
            A("s_lshl_b32 s14, s10, 5"); A("s_lshl_b32 s15, s3, 2"); A("s_add_u32 s14, s14, s15"); A("s_mul_i32 s14, s14, 896")
            A(f"v_add_u32 v{vWo}, s14, v{vWo}")
            A("s_lshl_b32 s14, s10, 4"); A("s_lshl_b32 s15, s3, 1"); A("s_add_u32 s14, s14, s15"); A("s_mul_i32 s14, s14, 896")
            A(f"v_add_u32 v{vW2}, s14, v{vW2}")
            masks(A, M, t0, t1); mask_prime(A, M, t0, t1)
            if dbg: A("s_waitcnt lgkmcnt(0)"); A("v_writelane_b32 v167, s88, 0")
        if n >= NQ and not sm_done:
            c = 0
            while qk_next[0] < 16 and c < CQ and 2 * qk_next[0] + 1 <= landed[0]:
                qk_tile(qk_next[0]); qk_next[0] += 1; c += 1
            if qk_next[0] == 16:
                chunks.pop(0)()
                sm_done = not chunks
        elif sm_done:
            c = 0
            while pv_next[0] < 32 and c < CP and 32 + pv_next[0] <= landed[0]:
                pv_tile(pv_next[0]); pv_next[0] += 1; c += 1
        if n == NF: fetch_stats()
        if n in (NG, NS):
            A(f"v_mov_b32 v{t0}, 0"); A(f"v_mov_b32 v{t1}, {1 if n == NG else 2}")
            A("s_mov_b64 exec, 1"); A(f"ds_max_u32 v{t0}, v{t1} offset:{L_FLAG + 12}"); A("s_mov_b64 exec, -1")
    assert sm_done
    vRw, vO, vY = vK, vV, vWo
    red2_lane(A, vRw, t0)
    A("s_lshl_b32 s14, s3, 10"); A(f"v_add_u32 v{vW2}, s14, v{vRw}")
    A("s_lshl_b32 s14, s3, 11"); A(f"s_add_u32 s14, s14, {L_RED2}"); A(f"v_add_u32 v{vRw}, s14, v{vRw}")
    A("s_lshl_b32 s14, s3, 6"); A(f"v_add_u32 v{vY}, s14, v1")
    A(f"v_lshrrev_b32 v{t0}, 4, v{vY}"); A(f"v_lshlrev_b32 v{vO}, 11, v{t0}"); A(f"v_and_b32 v{t0}, 15, v1"); A(f"v_lshl_add_u32 v{vO}, v{t0}, 4, v{vO}")
    A("s_lshl_b32 s9, s7, 14"); A(f"s_add_u32 s9, s9, {WS_O}"); A("s_lshl_b32 s14, s6, 8"); A("s_add_u32 s11, s9, s14")
    A("s_lshl_b32 s14, s6, 11"); A("s_add_u32 s9, s9, s14")
    while pv_next[0] < 32:
        wait_landed(32 + pv_next[0]); pv_tile(pv_next[0]); pv_next[0] += 1
    stamp(6)
    A(f"v_lshlrev_b32 v{t0}, 3, v{vY}")
    for k in range(4): A(f"v_mul_f32 v{ACC+k}, v{vFS}, v{ACC+k}")
    A(f"ds_write_b128 v{vW2}, v[{ACC}:{ACC+3}] offset:{L_RED1}")
    A("s_waitcnt lgkmcnt(0)"); A("s_barrier")
    fr = [RING + 4 * s_ for s_ in sorted(free + list(pslot.values()))]
    run = [r for r in fr if all(r + 4 * k in fr for k in range(4))][0]
    rest = [r for r in fr if not run <= r < run + 16]
    FS = []
    for _ in range(pp):
        r = [r for r in rest if r + 4 in rest][0]; FS.append(r); rest.remove(r); rest.remove(r + 4)
    PS = rest[:pp]; assert len(PS) == pp
    Y = run; U = 20
    A("s_cmp_ge_u32 s3, 2"); A("s_cbranch_scc1 L_odone")
    for k in range(8): A(f"ds_read_b64 v[{Y+2*k}:{Y+2*k+1}], v{t0} offset:{L_RED1 + 1024 * k}")
    A(f"v_mov_b32 v{U+1}, s12"); A(f"v_mov_b32 v{U+3}, s12")
    A("s_waitcnt lgkmcnt(0)")
    for st in (1, 2):
        for k in range(0, 8, 2 * st):
            for c_ in range(2): A(f"v_add_f32 v{Y+2*k+c_}, v{Y+2*k+c_}, v{Y+2*(k+st)+c_}")
    A(f"v_add_f32 v{U}, v{Y}, v{Y+8}"); A(f"v_add_f32 v{U+2}, v{Y+1}, v{Y+9}")
    A(f"buffer_store_dwordx4 v[{U}:{U+3}], v{vO}, {WSR}, s11 offen sc1")
    lab("L_odone")
    stamp(7)
    OG = 28; DA, DBb = Y, Y + 4
    for q in range(4): A(f"v_and_b32 v{ACC+q}, v{vHP}, v{M[q]}")
    A(f"v_add_u32 v{t0}, {L_RED2}, v{t0}")
    A(f"v_lshrrev_b32 v{t1}, 5, v1"); A("s_lshl_b32 s14, s3, 4"); A(f"v_lshl_add_u32 v{t1}, v{t1}, 3, s14")
    A("s_waitcnt vmcnt(4)")
    for cb, d in ((0, DA), (1, DBb)):
        bw = sreg(64 + cb); A(f"v_mfma_f32_16x16x32_bf16 v[{d}:{d+3}], v[{ACC}:{ACC+3}], v[{bw}:{bw+3}], 0")
    for k in range(8): A(f"v_mul_f32 v{DA+k}, v15, v{DA+k}")
    A("s_cmp_lg_u32 s3, 2"); A("s_cbranch_scc1 L_onopoll")
    P0, P1 = FS[0], FS[0] + 4
    A(f"v_and_b32 v{ACC}, 15, v1"); A(f"v_bfe_u32 v{vO}, v1, 4, 1"); A(f"v_lshl_add_u32 v{ACC}, v{ACC}, 1, v{vO}"); A(f"v_lshlrev_b32 v{ACC}, 2, v{ACC}")
    A(f"v_lshlrev_b32 v{vO}, 4, v1")
    gather("o", [(P0, vO, "s9", 0, -1, -1), (P1, vO, "s9", 1024, -1, -1)], osleep, [82, 84])
    A(f"v_add_f32 v{P0}, v{P0}, v{P1}"); A(f"v_add_f32 v{P0+2}, v{P0+2}, v{P1+2}")
    A(f"v_permlane16_swap_b32 v{P0}, v{P0+2}"); A(f"v_add_f32 v{P0}, v{P0}, v{P0+2}")
    A(f"v_mov_b32 v{P0+2}, v{P0}"); A(f"v_permlane32_swap_b32 v{P0}, v{P0+2}"); A(f"v_add_f32 v{P0}, v{P0}, v{P0+2}")
    A(f"v_cvt_pk_bf16_f32 v{P0}, v{P0}, v{P0}")
    A(f"ds_write_b32 v{ACC}, v{P0} offset:{L_OL}")
    lab("L_onopoll")
    A("s_cmp_lt_u32 s3, 2"); A("s_cbranch_scc1 L_ow1"); A("s_waitcnt vmcnt(0)"); lab("L_ow1"); A("s_waitcnt vmcnt(1) lgkmcnt(0)")
    A("s_barrier")
    A(f"ds_read_b64 v[{OG}:{OG+1}], v{t1} offset:{L_OL}")
    stamp(8)
    A("s_waitcnt lgkmcnt(0)")
    for r in range(2):
        for q in range(4): A(f"v_and_b32 v{AB[r]+q}, v{OG+r}, v{M[q]}")
    for r in range(2):
        for cb, d in ((0, DA), (1, DBb)):
            bw = sreg(66 + 2 * r + cb)
            A(f"v_mfma_f32_16x16x32_bf16 v[{d}:{d+3}], v[{AB[r]}:{AB[r]+3}], v[{bw}:{bw+3}], v[{d}:{d+3}]")
    A(f"ds_write_b128 v{vRw}, v[{DA}:{DA+3}]"); A(f"ds_write_b128 v{vRw}, v[{DBb}:{DBb+3}] offset:1024")
    A("s_waitcnt lgkmcnt(0)"); A("s_barrier")
    A("s_cmp_ge_u32 s3, 4"); A("s_cbranch_scc1 L_ydone")
    for k in range(8): A(f"ds_read_b64 v[{Y+2*k}:{Y+2*k+1}], v{t0} offset:{2048 * k}")
    A(f"v_cmp_gt_u32 vcc, 224, v{vY}")
    A(f"v_lshrrev_b32 v{t1}, 3, v{vY}"); A(f"v_lshlrev_b32 v{vO}, 14, v{t1}")
    A(f"v_and_b32 v{t1}, 7, v1"); A(f"v_lshl_add_u32 v{vO}, v{t1}, 4, v{vO}")
    A(f"s_mul_i32 s14, s4, {28 * 16384}"); A("s_lshl_b32 s15, s10, 7"); A("s_add_u32 s14, s14, s15"); A(f"s_add_u32 s14, s14, {WS_Y}")
    A(f"v_mov_b32 v{U+1}, s12"); A(f"v_mov_b32 v{U+3}, s12")
    A("s_waitcnt lgkmcnt(0)")
    for st in (1, 2):
        for k in range(0, 8, 2 * st):
            for c_ in range(2): A(f"v_add_f32 v{Y+2*k+c_}, v{Y+2*k+c_}, v{Y+2*(k+st)+c_}")
    A(f"v_add_f32 v{U}, v{Y}, v{Y+8}"); A(f"v_add_f32 v{U+2}, v{Y+1}, v{Y+9}")
    A("s_and_saveexec_b64 s[82:83], vcc")
    A(f"buffer_store_dwordx4 v[{U}:{U+3}], v{vO}, {WSR}, s14 offen sc1")
    A("s_mov_b64 exec, s[82:83]")
    lab("L_ydone")
    stamp(9)
    A("s_cmp_ge_u32 s2, 56"); A("s_cbranch_scc1 L_fin_skip")
    A("s_lshl_b32 s13, s2, 14"); A("s_lshl_b32 s15, s3, 11"); A("s_add_u32 s13, s13, s15"); A(f"s_add_u32 s13, s13, {WS_Y}")
    A(f"v_lshlrev_b32 v{t0}, 4, v1")
    F = 24
    gather("fin", [(F, t0, "s13", 0, -1, -1), (F + 4, t0, "s13", 1024, -1, -1)], fsleep, [82, 84])
    srd(SO, 34, 1792)
    A(f"v_add_f32 v{F}, v{F}, v{F+4}"); A(f"v_add_f32 v{F+2}, v{F+2}, v{F+6}")
    stamp(10)
    A(f"v_add_f32_dpp v{F}, v{F}, v{F} row_ror:8 {DPPF}"); A(f"v_add_f32_dpp v{F+2}, v{F+2}, v{F+2} row_ror:8 {DPPF}")
    A(f"v_permlane16_swap_b32 v{F}, v{F+2}"); A(f"v_add_f32 v{F}, v{F}, v{F+2}")
    A(f"v_mov_b32 v{F+2}, v{F}"); A(f"v_permlane32_swap_b32 v{F}, v{F+2}"); A(f"v_add_f32 v{F}, v{F}, v{F+2}")
    A(f"v_and_b32 v{t0}, 7, v1"); A(f"v_bfe_u32 v{t1}, v1, 4, 1"); A(f"v_lshl_add_u32 v{t0}, v{t0}, 1, v{t1}")
    A(f"v_lshlrev_b32 v{t0}, 5, v{t0}"); A("s_lshl_b32 s14, s3, 2"); A(f"v_add_u32 v{t0}, s14, v{t0}")
    A("s_mov_b32 exec_lo, 0x00ff00ff"); A("s_mov_b32 exec_hi, 0")
    A(f"ds_write_b32 v{t0}, v{F} offset:{L_FIN}")
    A("s_mov_b64 exec, -1")
    A("s_waitcnt lgkmcnt(0)"); A("s_barrier")
    A("s_cmp_lg_u32 s3, 0"); A("s_cbranch_scc1 L_fin_skip")
    A(f"v_and_b32 v{t0}, 15, v1"); A(f"v_lshlrev_b32 v{t1}, 5, v{t0}")
    A(f"ds_read_b128 v[{F}:{F+3}], v{t1} offset:{L_FIN}"); A(f"ds_read_b128 v[{F+4}:{F+7}], v{t1} offset:{L_FIN + 16}")
    A(f"v_lshlrev_b32 v{t0}, 1, v{t0}"); A("s_lshl_b32 s14, s2, 5")
    A("s_waitcnt lgkmcnt(0)")
    for st in (1, 2, 4):
        for k in range(0, 8, 2 * st): A(f"v_add_f32 v{F+k}, v{F+k}, v{F+k+st}")
    A(f"v_cvt_pk_bf16_f32 v{F}, v{F}, v{F}")
    A("s_mov_b64 exec, 0xffff")
    A(f"buffer_store_short v{F}, v{t0}, s[{SO}:{SO+3}], s14 offen")
    A("s_cmp_lg_u32 s2, 0"); A("s_cbranch_scc1 L_fin_noep")
    A("s_mov_b64 exec, 1"); A(f"v_mov_b32 v{t0}, 0"); A(f"v_mov_b32 v{t1}, s12")
    A(f"s_mov_b32 s13, {wsb}"); A(f"buffer_store_dword v{t1}, v{t0}, {WSR}, s13 offen")
    lab("L_fin_noep")
    A("s_mov_b64 exec, -1")
    lab("L_fin_skip")
    stamp(11)
    dump_stamps()
    if diag is not None:
        A("s_cmp_lg_u32 s2, 0"); A("s_cbranch_scc1 L_diag_end"); A("s_cmp_lg_u32 s3, 0"); A("s_cbranch_scc1 L_diag_end")
        A("s_add_u32 s84, s88, 7000")
        lab("L_diag1")
        A("s_memrealtime s[90:91]"); A("s_waitcnt lgkmcnt(0)"); A("s_sub_u32 s85, s90, s84"); A("s_cmp_lt_i32 s85, 0"); A("s_cbranch_scc1 L_diag1")
        A("v_lshlrev_b32 v166, 2, v1"); A("buffer_load_dword v165, v166, s[92:95], 0 offen sc1"); A("s_waitcnt vmcnt(0)")
        A("v_readlane_b32 s84, v165, 0"); A(f"v_readlane_b32 s85, v165, {max(diag, 0)}")
        A("s_not_b32 s84, s84"); A("s_sub_u32 s85, s85, s84"); A("s_lshl_b32 s85, s85, 2")
        if diag <= 0: A("s_mov_b32 s85, 0")
        A("s_min_u32 s85, s85, 40000"); A(f"s_add_u32 s84, s88, {dbase}"); A("s_add_u32 s84, s84, s85")
        lab("L_diag2")
        A("s_memrealtime s[90:91]"); A("s_waitcnt lgkmcnt(0)"); A("s_sub_u32 s85, s90, s84"); A("s_cmp_lt_i32 s85, 0"); A("s_cbranch_scc1 L_diag2")
        lab("L_diag_end")
    A("s_endpgm")

    lab("L_service")
    A("s_setprio 3")
    vL16, vQe, vQo, vFe, vFo, vXq, vXf = 2, 3, 4, 5, 6, 7, 8
    vTr = [9, 10, 11, 12]; a_, b_, c_, d_ = 14, 15, 16, 17; vG, vOG = 20, 21
    A(f"v_mov_b32 v{a_}, 0"); A(f"v_mov_b32 v{b_}, 0"); A(f"v_mov_b32 v{c_}, 0"); A(f"v_mov_b32 v{d_}, 0")
    A(f"ds_write_b128 v{a_}, v[{a_}:{d_}] offset:{L_FLAG}")
    A(f"v_lshlrev_b32 v{vL16}, 4, v1")
    A("s_and_b32 s8, s6, 3"); A("s_lshr_b32 s9, s6, 2"); A("s_lshl_b32 s14, s4, 1"); A("s_add_u32 s9, s9, s14")
    A("s_mul_i32 s11, s2, 9363"); A("s_lshr_b32 s11, s11, 16"); A("s_mul_i32 s14, s11, 7"); A("s_sub_u32 s81, s2, s14")
    A(f"v_bfe_u32 v{a_}, v1, 4, 1"); A(f"v_lshlrev_b32 v{a_}, 1, v{a_}"); A(f"v_and_b32 v{b_}, 7, v1"); A(f"v_xor_b32 v{a_}, v{a_}, v{b_}")
    A(f"v_xor_b32 v{b_}, 4, v{a_}"); A(f"v_lshrrev_b32 v{c_}, 3, v1")
    A(f"s_mul_i32 s14, s9, {112 * 8192}"); A("s_lshl_b32 s15, s5, 9"); A("s_add_u32 s14, s14, s15"); A("s_lshl_b32 s15, s8, 7"); A("s_add_u32 s14, s14, s15")
    A(f"v_lshl_add_u32 v{d_}, v{c_}, 13, s14")
    A(f"v_lshl_add_u32 v{vQe}, v{a_}, 4, v{d_}"); A(f"v_lshl_add_u32 v{vQo}, v{b_}, 4, v{d_}")
    A(f"s_mul_i32 s14, s81, {64 * 3584}"); A("s_lshl_b32 s15, s11, 7"); A("s_add_u32 s14, s14, s15")
    A(f"v_mul_u32_u24 v{d_}, 3584, v{c_}"); A(f"v_add_u32 v{d_}, s14, v{d_}")
    A(f"v_lshl_add_u32 v{vFe}, v{a_}, 4, v{d_}"); A(f"v_lshl_add_u32 v{vFo}, v{b_}, 4, v{d_}")
    A("s_waitcnt lgkmcnt(0)")
    A(f"s_mov_b32 s13, {wsb}"); A("s_load_dword s12, s[38:39], s13")
    srd(SX, 16, 1792); srd(SWQ, 22, 3670016); srd(SG, 32, 896); srd(SW1, 28, 1605632)
    A("s_cmp_lt_u32 s2, 196"); A(f"s_cselect_b32 s{SW1+2}, s{SW1+2}, 0")
    if svc == 0:
        for d in (SX, SWQ, SG, SW1): A(f"s_mov_b32 s{d+2}, 0")
    if svc == 0.5:
        for d in (SW1,): A(f"s_mov_b32 s{d+2}, 0")
    A(f"s_mov_b32 m0, {L_X}")
    for k in range(2): A(f"buffer_load_dwordx4 v{vL16}, s[{SX}:{SX+3}], 0 offen offset:{1024 * k} lds")
    for m in range(16):
        A(f"s_mov_b32 m0, {L_W + 1024 * m}")
        A(f"s_mov_b32 s13, {m * 65536 if m < 14 else 0x7f000000}")
        A(f"buffer_load_dwordx4 v{vQo if m & 1 else vQe}, s[{SWQ}:{SWQ+3}], s13 offen {wflags} lds")
    for m in range(8):
        A(f"s_mov_b32 m0, {L_W1 + 1024 * m}"); A(f"s_mov_b32 s13, {m * 8 * 3584}")
        A(f"buffer_load_dwordx4 v{vFo if m & 1 else vFe}, s[{SW1}:{SW1+3}], s13 offen {wflags} lds")
    GW = 24
    A(f"buffer_load_dwordx4 v[{GW}:{GW+3}], v{vL16}, s[{SG}:{SG+3}], 0 offen")
    A("s_barrier")
    srd(SWS, 38, WS_SIZE)
    A(f"v_and_b32 v{a_}, 1, v1"); A(f"v_mul_u32_u24 v{b_}, 896, v{a_}"); A(f"v_lshrrev_b32 v{a_}, 4, v1"); A(f"v_lshl_add_u32 v{b_}, v{a_}, 4, v{b_}")
    A("s_mul_i32 s14, s9, 224"); A(f"v_add_u32 v{vXq}, s14, v{b_}"); A("s_lshl_b32 s14, s81, 7"); A(f"v_add_u32 v{vXf}, s14, v{b_}")
    A(f"v_lshlrev_b32 v{b_}, 10, v{a_}"); A(f"v_bfe_u32 v{c_}, v1, 2, 2"); A(f"v_lshl_add_u32 v{b_}, v{c_}, 7, v{b_}")
    A(f"v_bfe_u32 v{c_}, v1, 1, 1"); A(f"v_lshl_add_u32 v{b_}, v{c_}, 4, v{b_}"); A(f"v_and_b32 v{c_}, 1, v1"); A(f"v_lshl_add_u32 v{b_}, v{c_}, 3, v{b_}")
    A(f"v_bfe_u32 v{c_}, v1, 3, 2")
    for cg in range(4):
        A(f"v_xor_b32 v{d_}, {cg}, v{c_}"); A(f"v_lshl_add_u32 v{vTr[cg]}, v{d_}, 5, v{b_}")
    A("s_lshl_b32 s8, s8, 9"); A("s_lshl_b32 s9, s9, 11"); A("s_add_u32 s8, s8, s9"); A("s_lshl_b32 s9, s5, 13"); A("s_add_u32 s8, s8, s9")
    A(f"s_add_u32 s8, s8, {WS_Q}"); A(f"s_add_u32 s9, s8, {16 * 8192}")
    A("s_lshl_b32 s11, s11, 12"); A("s_lshl_b32 s81, s81, 9"); A("s_add_u32 s11, s11, s81"); A(f"s_add_u32 s11, s11, {WS_H}")
    A("s_mov_b32 s82, 0xffff0000"); A("s_mov_b32 s83, 0"); A("s_mov_b32 s84, 0"); A("s_mov_b32 s85, 0xffff"); A("s_mov_b32 s86, 0"); A("s_mov_b32 s87, 0xffff0000")
    if dbg: A("s_waitcnt lgkmcnt(0)"); A("v_writelane_b32 v167, s88, 0")
    A("s_waitcnt lgkmcnt(0)"); A(f"s_add_u32 s12, s12, {TAGC}")
    XA = 28; TB = 56; D = 120; UQ = 136
    A("s_waitcnt vmcnt(25)")
    for m in range(4): A(f"ds_read_b128 v[{XA+4*m}:{XA+4*m+3}], v{vXq} offset:{L_X + 64 * m}")
    for m in range(2): A(f"ds_read_b128 v[{XA+16+4*m}:{XA+16+4*m+3}], v{vXf} offset:{L_X + 64 * m}")
    def gemv(img, steps, xa, vm_after):
        for m in range(steps):
            A(f"s_waitcnt vmcnt({vm_after + 4 * (steps - 1 - m)})")
            for cg in range(4):
                r = TB + 16 * m + 4 * cg
                A(f"ds_read_b64_tr_b16 v[{r}:{r+1}], v{vTr[cg]} offset:{img + 4096 * m}")
                A(f"ds_read_b64_tr_b16 v[{r+2}:{r+3}], v{vTr[cg]} offset:{img + 4096 * m + 512}")
            if m: mf(m - 1, xa, 8)
        mf(steps - 1, xa, 0)
        for bb in range(2):
            for cg in range(1, 4): A(f"v_cndmask_b32 v{D+bb}, v{D+bb}, v{D+4*cg+bb}, s[{80+2*cg}:{81+2*cg}]")
        for bb in range(2):
            A(f"v_mov_b32 v{UQ+4*bb}, v{D+bb}"); A(f"v_mov_b32_dpp v{UQ+4*bb+2}, v{D+bb} quad_perm:[1,1,3,3] {DPPF}")
            A(f"v_mov_b32 v{UQ+4*bb+1}, s12"); A(f"v_mov_b32 v{UQ+4*bb+3}, s12")
    def mf(m, xa, lg):
        A(f"s_waitcnt lgkmcnt({lg})")
        for cg in range(4):
            r = TB + 16 * m + 4 * cg; d = D + 4 * cg; c = "0" if m == 0 else f"v[{d}:{d+3}]"
            A(f"v_mfma_f32_16x16x32_bf16 v[{d}:{d+3}], v[{xa+4*m}:{xa+4*m+3}], v[{r}:{r+3}], {c}")
    def publish(s0, s1):
        if svc < 2: return
        A("s_mov_b32 exec_lo, 0x55555555"); A("s_mov_b32 exec_hi, 0x55555555")
        A(f"buffer_store_dwordx4 v[{UQ}:{UQ+3}], v{d_}, {WSR}, {s0} offen sc1")
        A(f"buffer_store_dwordx4 v[{UQ+4}:{UQ+7}], v{d_}, {WSR}, {s1} offen sc1")
        A("s_mov_b64 exec, -1")
    A(f"v_lshlrev_b32 v{d_}, 3, v1")
    gemv(L_W, 4, XA, 9)
    publish("s8", "s9")
    stamp(1)
    gemv(L_W1, 2, XA + 16, 3)
    A("s_cmp_ge_u32 s2, 196"); A("s_cbranch_scc1 L_sv_noh")
    A(f"s_add_u32 s9, s11, {28 * 4096}")
    publish("s11", "s9")
    lab("L_sv_noh")
    stamp(2)
    QP = 56
    if NG is not None: lds_wait(L_FLAG + 12, 1, "pg1", a_, b_, sleep=4, cmp="ge")
    A("s_lshl_b32 s8, s7, 13"); A(f"s_add_u32 s8, s8, {WS_Q}"); A("s_add_u32 s9, s8, 4096")
    gather("q", [(QP + 4 * k, vL16, "s9" if k >= 4 else "s8", 1024 * (k & 3), -1, -1) for k in range(8)], psleep,
           [40, 42, 44, 46, 48, 50, 82, 84])
    for hf in range(2):
        r = QP + 4 * hf
        for e in (0, 2):
            A(f"v_add_f32 v{r+e}, v{r+e}, v{r+8+e}"); A(f"v_add_f32 v{r+16+e}, v{r+16+e}, v{r+24+e}")
        for e in (0, 2): A(f"v_add_f32 v{r+e}, v{r+e}, v{r+16+e}")
        A(f"v_cvt_pk_bf16_f32 v{r}, v{r}, v{r+2}")
    A(f"v_lshlrev_b32 v{a_}, 2, v1")
    A(f"ds_write_b32 v{a_}, v{QP} offset:{L_Q}"); A(f"ds_write_b32 v{a_}, v{QP+4} offset:{L_Q + 256}")
    A(f"v_mov_b32 v{a_}, 0"); A(f"v_mov_b32 v{b_}, s12"); A(f"v_mov_b32 v{c_}, 1")
    A(f"ds_write_b32 v{a_}, v{b_} offset:{L_G + 16}")
    A(f"ds_write_b32 v{a_}, v{c_} offset:{L_FLAG}")
    stamp(3)
    XG = 28
    A("s_mul_i32 s14, s4, 896"); A(f"v_add_u32 v{a_}, s14, v{vL16}")
    A(f"ds_read_b128 v[{XG}:{XG+3}], v{a_} offset:{L_X}")
    A("s_waitcnt lgkmcnt(0)")
    A(f"v_mov_b32 v{vG}, 0")
    for k in range(4):
        A(f"v_lshlrev_b32 v{a_}, 16, v{XG+k}"); A(f"v_and_b32 v{b_}, 0xffff0000, v{XG+k}")
        A(f"v_lshlrev_b32 v{c_}, 16, v{GW+k}"); A(f"v_and_b32 v{d_}, 0xffff0000, v{GW+k}")
        A(f"v_mul_f32 v{a_}, v{a_}, v{c_}"); A(f"v_mul_f32 v{b_}, v{b_}, v{d_}")
        A(f"v_cvt_pk_bf16_f32 v{a_}, v{a_}, v{b_}")
        A(f"v_lshlrev_b32 v{b_}, 16, v{a_}"); A(f"v_and_b32 v{a_}, 0xffff0000, v{a_}")
        A(f"v_add_f32 v{vG}, v{vG}, v{b_}"); A(f"v_add_f32 v{vG}, v{vG}, v{a_}")
    A("v_cmp_gt_u32 vcc, 56, v1"); A(f"v_cndmask_b32 v{vG}, 0, v{vG}, vcc")
    wave_reduce(A, "add", vG, a_)
    A(f"v_cvt_pk_bf16_f32 v{vG}, v{vG}, v{vG}"); A(f"v_lshlrev_b32 v{vG}, 16, v{vG}")
    A(f"v_mul_f32 v{vG}, 0xbfb8aa3b, v{vG}"); A(f"v_exp_f32 v{vG}, v{vG}"); A(f"v_add_f32 v{vG}, 1.0, v{vG}"); A(f"v_rcp_f32 v{vG}, v{vG}")
    A(f"v_cvt_pk_bf16_f32 v{vG}, v{vG}, v{vG}"); A(f"v_lshlrev_b32 v{vG}, 16, v{vG}")
    A(f"v_sub_f32 v{vOG}, 1.0, v{vG}"); A(f"v_cvt_pk_bf16_f32 v{vOG}, v{vOG}, v{vOG}"); A(f"v_lshlrev_b32 v{vOG}, 16, v{vOG}")
    lds_wait(L_FLAG + 8, 8, "cnt", a_, b_, sleep=2)
    ST = 32
    def combine(m, l):
        A(f"v_mov_b32 v{a_}, v{m}")
        for ctl in ("quad_perm:[1,0,3,2]", "quad_perm:[2,3,0,1]", "row_half_mirror"): A(f"v_max_f32_dpp v{a_}, v{a_}, v{a_} {ctl} {DPPF}")
        A(f"v_sub_f32 v{b_}, v{m}, v{a_}"); A(f"v_exp_f32 v{b_}, v{b_}"); A(f"v_mul_f32 v{b_}, v{b_}, v{l}")
        for ctl in ("quad_perm:[1,0,3,2]", "quad_perm:[2,3,0,1]", "row_half_mirror"): A(f"v_add_f32_dpp v{b_}, v{b_}, v{b_} {ctl} {DPPF}")
    A(f"v_and_b32 v{c_}, 7, v1"); A(f"v_lshlrev_b32 v{c_}, 3, v{c_}")
    A(f"ds_read_b64 v[{ST+4}:{ST+5}], v{c_} offset:{L_WST}"); A("s_waitcnt lgkmcnt(0)")
    combine(ST + 4, ST + 5)
    A(f"v_mov_b32 v{ST}, v{a_}"); A(f"v_mov_b32 v{ST+1}, s12"); A(f"v_mov_b32 v{ST+2}, v{b_}"); A(f"v_mov_b32 v{ST+3}, s12")
    A("s_lshl_b32 s11, s7, 10"); A(f"s_add_u32 s11, s11, {WS_ST}"); A("s_lshl_b32 s9, s6, 7"); A("s_add_u32 s9, s9, s11")
    A("s_mov_b64 exec, 0xff"); A(f"buffer_store_dwordx4 v[{ST}:{ST+3}], v{vL16}, {WSR}, s9 offen sc1"); A("s_mov_b64 exec, -1")
    if NS is not None: lds_wait(L_FLAG + 12, 2, "pg2", a_, b_, sleep=8, cmp="ge")
    HP = 28
    A(f"v_mov_b32 v{HP}, 0"); A(f"v_mov_b32 v{HP+2}, 0")
    A("s_cmp_ge_u32 s10, 112"); A("s_cbranch_scc1 L_sv_hz")
    A(f"v_lshrrev_b32 v{a_}, 3, v1"); A(f"v_lshlrev_b32 v{a_}, 9, v{a_}"); A(f"v_and_b32 v{b_}, 7, v1"); A(f"v_lshl_add_u32 v{a_}, v{b_}, 4, v{a_}")
    A("s_lshr_b32 s8, s10, 2"); A("s_mul_i32 s9, s4, 28"); A("s_add_u32 s8, s8, s9"); A("s_lshl_b32 s8, s8, 12")
    A("s_and_b32 s9, s10, 3"); A("s_lshl_b32 s9, s9, 7"); A("s_add_u32 s8, s8, s9"); A(f"s_add_u32 s8, s8, {WS_H}")
    gather("h", [(HP, a_, "s8", 0, -1, "0x00ffffff")], psleep, [82])
    lab("L_sv_hz")
    for k in (0, 2): A(f"v_add_f32_dpp v{HP+k}, v{HP+k}, v{HP+k} row_ror:8 {DPPF}")
    for sw in ("v_permlane16_swap_b32", "v_permlane32_swap_b32"):
        for k in (0, 2): A(f"v_mov_b32 v{HP+k+1}, v{HP+k}")
        for k in (0, 2): A(f"{sw} v{HP+k}, v{HP+k+1}")
        for k in (0, 2): A(f"v_add_f32 v{HP+k}, v{HP+k}, v{HP+k+1}")
    for k in (0, 2): A(f"v_max_f32 v{HP+k}, 0, v{HP+k}")
    A(f"v_cvt_pk_bf16_f32 v{HP}, v{HP}, v{HP}"); A(f"v_cvt_pk_bf16_f32 v{HP+1}, v{HP+2}, v{HP+2}")
    A(f"v_lshlrev_b32 v{a_}, 3, v1")
    A("s_mov_b64 exec, 0xff"); A(f"ds_write_b64 v{a_}, v[{HP}:{HP+1}] offset:{L_H}"); A("s_mov_b64 exec, -1")
    stamp(4)
    A(f"v_lshlrev_b32 v{c_}, 7, v1")
    gather("st", [(ST + 4, c_, "s11", 0, "0xff", 0)], 8, [82])
    combine(ST + 4, ST + 6)
    A(f"v_sub_f32 v{vG+2}, 0, v{a_}"); A(f"v_rcp_f32 v{vG+3}, v{b_}"); A(f"v_mul_f32 v{vG+3}, v{vG+3}, v{vG}")
    A(f"v_mov_b32 v{a_}, 0"); A(f"v_mov_b32 v{b_}, 1")
    A("s_mov_b64 exec, 1")
    A(f"ds_write_b128 v{a_}, v[{vG}:{vG+3}] offset:{L_G}")
    A(f"ds_write_b32 v{a_}, v{b_} offset:{L_FLAG + 4}")
    A("s_mov_b64 exec, -1")
    A("s_waitcnt lgkmcnt(0)")
    stamp(5)
    dump_stamps(True)
    lab("L_end")
    A("s_endpgm")

    body = pad_hazards(L)
    out = [HEADER.rstrip("\n"),
           "; Single fused launch: 256 workgroups (one per CU) x 9 waves (wave 0 = service, waves 1-8 stream K/V).",
           f"; @launch grid=(256,1,1) block=(576,1,1) lds={lds or LDS_MIN}",
           '.amdgcn_target "amdgcn-amd-amdhsa--gfx950"', ".text", f".globl {NAME}", ".p2align 8", f".type {NAME},@function", f"{NAME}:"]
    out += body
    out += ['.section .rodata,"a"', ".p2align 6", f".amdhsa_kernel {NAME}",
            "  .amdhsa_next_free_vgpr 168", "  .amdhsa_next_free_sgpr 96", "  .amdhsa_accum_offset 168",
            "  .amdhsa_group_segment_fixed_size 0", "  .amdhsa_kernarg_size 96", "  .amdhsa_user_sgpr_count 2",
            "  .amdhsa_user_sgpr_kernarg_segment_ptr 1", "  .amdhsa_system_sgpr_workgroup_id_x 1", ".end_amdhsa_kernel"]
    return "\n".join(out) + "\n"

def masks(A, M, t0, t1):
    A(f"v_and_b32 v{t0}, 1, v1"); A(f"v_lshlrev_b32 v{t0}, 4, v{t0}"); A(f"v_mov_b32 v{t1}, 0xffff"); A(f"v_lshlrev_b32 v{t1}, v{t0}, v{t1}")
    A(f"v_bfe_u32 v{t0}, v1, 1, 2")
    for r in range(4): A(f"v_cmp_eq_u32 s[{80+2*r}:{81+2*r}], {r}, v{t0}")
    for r in range(4): A(f"v_cndmask_b32 v{M[r]}, 0, v{t1}, s[{80+2*r}:{81+2*r}]")

def mask_prime(A, M, t0, t1):
    A(f"v_lshrrev_b32 v{t0}, 1, v1"); A(f"v_xor_b32 v{t0}, v{t0}, v1"); A(f"v_bfe_u32 v{t0}, v{t0}, 3, 1")
    A(f"v_add_u32 v{t0}, -1, v{t0}")
    for r in range(4): A(f"v_and_b32 v{M[r]}, v{M[r]}, v{t0}")

def red2_lane(A, d, t0):
    A(f"v_and_b32 v{t0}, 15, v1"); A(f"v_lshlrev_b32 v{d}, 5, v{t0}")
    A(f"v_lshrrev_b32 v{t0}, 5, v1"); A(f"v_lshl_add_u32 v{d}, v{t0}, 9, v{d}")
    A(f"v_bfe_u32 v{t0}, v1, 4, 1"); A(f"v_lshl_add_u32 v{d}, v{t0}, 4, v{d}")

def wave_reduce(A, op, v, t):
    for ctl in ("quad_perm:[1,0,3,2]", "quad_perm:[2,3,0,1]", "row_half_mirror", "row_mirror"):
        A(f"v_{op}_f32_dpp v{v}, v{v}, v{v} {ctl} {DPPF}")
    for sw in ("v_permlane16_swap_b32", "v_permlane32_swap_b32"):
        A(f"v_mov_b32 v{t}, v{v}"); A(f"{sw} v{v}, v{t}"); A(f"v_{op}_f32 v{v}, v{v}, v{t}")

if __name__ == "__main__":
    kw = eval("dict(%s)" % (sys.argv[2] if len(sys.argv) > 2 else ""))
    open(sys.argv[1], "w").write(gen(**kw))
```

```python
import sys
sys.path.insert(0, "dev")
from asmlib import pad_hazards

NAME = "gated_mix__mha_block_cached__dense_activation_relu__decode_kernel"
HEADER = open("gated_mix__mha_block_cached__dense_activation_relu__decode.s.ref").read().split("; Override launch")[0]

WS_ST = 0x1F0000
WS_H = 0x8000
WS_Q = 0x40000
WS_O = 0x80000
WS_Y = 0x100000
WS_DBG = 0x400000
WS_SIZE = 268435456
L_W = 0x0000
L_W1 = 0x4000
L_RED1 = 0x0000
L_X = 0x6000
L_Q = 0x6800
L_H = 0x6A00
L_G = 0x6A40
L_FLAG = 0x6A80
L_WST = 0x6AC0
L_FIN = 0x6C00
L_OL = 0x6B00
L_PW = 0x7000
L_RED2 = 0x8000
LDS_MIN = L_RED2 + 8 * 2048
TAGC = 0x9E3779B9
SPIN_MAX = 1 << 18
DPPF = "row_mask:0xf bank_mask:0xf"
CEXP = "0x3db8aa3b"

def gen(LIM=2, LIMV=None, NQ=24, CQ=3, CP=3, R=33, NF=62, dbg=False, hdbg=False, diag=None,
        psleep=2, osleep=0, fsleep=0, svc=9, kflags="nt", wflags="nt", lds=None, LE=None, NG=12, NS=46, rot=None, early=False, dbase=10000, pp=1, pgap=8, wsb=0, diag2=None):
    if LIMV is None: LIMV = LIM
    WS_ST, WS_H, WS_Q, WS_O, WS_Y = (x + wsb for x in (0x1F0000, 0x8000, 0x40000, 0x80000, 0x100000))
    L = []
    A = lambda s: L.append("  " + s)
    lab = lambda s: L.append(s + ":")
    def srd(d, p, nbytes):
        A(f"s_mov_b32 s{d}, s{p}"); A(f"s_mov_b32 s{d+1}, s{p+1}"); A(f"s_mov_b32 s{d+2}, {nbytes}"); A(f"s_mov_b32 s{d+3}, 0x20000")
    SK, SV, SWO, SWS, SWQ, SW1, SW2, SX, SG, SO = 40, 44, 48, 52, 56, 60, 64, 68, 72, 76
    WSR = f"s[{SWS}:{SWS+3}]"
    if diag is not None: hdbg = True
    if diag2 is not None: dbg = True
    if hdbg: dbg = True
    def stamp(idx):
        if dbg:
            A("s_memrealtime s[90:91]"); A("s_waitcnt lgkmcnt(0)"); A(f"v_writelane_b32 v167, s90, {idx}")
    def dump_stamps(service=False):
        if hdbg:
            A("s_mov_b32 s92, s36"); A("s_mov_b32 s93, s37"); A("s_mov_b32 s94, 256"); A("s_mov_b32 s95, 0x20000")
            A("v_not_b32 v165, v167"); A("v_cmp_eq_u32 vcc, 0, v1"); A("v_cndmask_b32 v167, v167, v165, vcc")
            A("v_lshlrev_b32 v166, 2, v1")
            if service: A("v_add_u32 v166, 64, v166"); A("s_mov_b64 exec, 0x3e")
            else: A("s_mov_b64 exec, 0xffff")
            A("buffer_atomic_umax v167, v166, s[92:95], 0 offen"); A("s_mov_b64 exec, -1")
        elif dbg:
            if diag2 is not None:
                tg = "s" if service else "m"
                A("s_add_u32 s84, s88, 4500"); lab(f"L_dd_{tg}"); A("s_sleep 8")
                A("s_memrealtime s[90:91]"); A("s_waitcnt lgkmcnt(0)"); A("s_sub_u32 s85, s90, s84"); A("s_cmp_lt_i32 s85, 0"); A(f"s_cbranch_scc1 L_dd_{tg}")
            A("s_mul_i32 s92, s2, 9"); A("s_add_u32 s92, s92, s93"); A("s_lshl_b32 s92, s92, 8"); A(f"s_add_u32 s92, s92, {WS_DBG}")
            A("v_lshlrev_b32 v166, 2, v1"); A(f"buffer_store_dword v167, v166, {WSR}, s92 offen sc1")
    if dbg: R = min(R, 32)
    def spin_tail(label, sleep):
        if sleep: A(f"s_sleep {sleep}")
        A("s_sub_u32 s80, s80, 1"); A("s_cmp_lg_u32 s80, 0"); A(f"s_cbranch_scc1 {label}")
    def lds_wait(off, val, tag, ta, tb, sleep=1, cmp="eq"):
        A(f"v_mov_b32 v{ta}, 0"); A(f"s_mov_b32 s80, {SPIN_MAX}")
        lab(f"L_wait_{tag}")
        A(f"ds_read_b32 v{tb}, v{ta} offset:{off}"); A("s_waitcnt lgkmcnt(0)"); A(f"v_readfirstlane_b32 s81, v{tb}")
        A(f"s_cmp_{cmp}_u32 s81, {val}"); A(f"s_cbranch_scc1 L_got_{tag}")
        spin_tail(f"L_wait_{tag}", sleep)
        lab(f"L_got_{tag}")
    def gather(tag, items, sleep, pool):
        if svc < {"q": 3, "h": 4, "st": 5}.get(tag, 0):
            A("s_waitcnt vmcnt(0)"); return
        assert len(pool) >= len(items)
        for (reg, va, so, imm, lo, hi), ms in zip(items, pool): A(f"s_mov_b32 s{ms}, {lo}"); A(f"s_mov_b32 s{ms+1}, {hi}")
        A(f"s_mov_b32 s80, {SPIN_MAX}")
        lab(f"L_g_{tag}")
        for k, ((reg, va, so, imm, lo, hi), ms) in enumerate(zip(items, pool)):
            A(f"s_mov_b64 exec, s[{ms}:{ms+1}]")
            if len(items) > 1: A(f"s_cbranch_execz L_g_{tag}_s{k}")
            A(f"buffer_load_dwordx4 v[{reg}:{reg+3}], v{va}, {WSR}, {so} offen offset:{imm} sc1")
            if len(items) > 1: lab(f"L_g_{tag}_s{k}")
        A("s_waitcnt vmcnt(0)")
        for k, ((reg, va, so, imm, lo, hi), ms) in enumerate(zip(items, pool)):
            if len(items) > 1: A(f"s_mov_b64 exec, s[{ms}:{ms+1}]")
            A(f"v_cmp_ne_u32 vcc, s12, v{reg+1}"); A(f"v_cmp_ne_u32 s[{ms}:{ms+1}], s12, v{reg+3}")
            A(f"s_or_b64 s[{ms}:{ms+1}], s[{ms}:{ms+1}], vcc")
            if k == 0: A(f"s_mov_b64 s[14:15], s[{ms}:{ms+1}]")
            else: A(f"s_or_b64 s[14:15], s[14:15], s[{ms}:{ms+1}]")
        A("s_cmp_eq_u64 s[14:15], 0"); A(f"s_cbranch_scc1 L_g_{tag}_ok")
        spin_tail(f"L_g_{tag}", sleep)
        lab(f"L_g_{tag}_ok")
        A("s_mov_b64 exec, -1")

    def poll_issue(sets, k, items):
        for j, (va, so, imm) in enumerate(items):
            r = sets[k] + 4 * j
            A(f"buffer_load_dwordx4 v[{r}:{r+3}], v{va}, {WSR}, {so} offen offset:{imm} sc1")
    def poll_loop(tag, sets, items, first):
        n = len(sets); ni = len(items)
        for k in range(1, n):
            if pgap: A(f"s_sleep {pgap}")
            poll_issue(sets, k, items)
        A(f"s_mov_b32 s80, {SPIN_MAX}")
        lab(f"L_p_{tag}")
        for k in range(n):
            A(f"s_waitcnt vmcnt({(n - 1) * ni})")
            for j in range(ni):
                r = sets[k] + 4 * j
                A(f"v_cmp_ne_u32 {'vcc' if j == 0 else 's[84:85]'}, s12, v{r+1}"); A(f"v_cmp_ne_u32 s[{82 + 4 * j}:{83 + 4 * j}], s12, v{r+3}")
            if ni == 2: A("s_or_b64 vcc, vcc, s[84:85]"); A("s_or_b64 vcc, vcc, s[86:87]")
            A("s_or_b64 vcc, vcc, s[82:83]")
            A(f"s_cbranch_scc0 L_p_{tag}_ok{k}")
            poll_issue(sets, k, items)
        A("s_sub_u32 s80, s80, 1"); A("s_cmp_lg_u32 s80, 0"); A(f"s_cbranch_scc1 L_p_{tag}")
        A("s_waitcnt vmcnt(0)")
        for k in range(n):
            lab(f"L_p_{tag}_ok{k}")
            first(sets[k])
            if k < n - 1: A(f"s_branch L_p_{tag}_done")
        lab(f"L_p_{tag}_done")
        A("s_nop 1")

    if dbg and early: A("s_memrealtime s[88:89]")
    A("s_cmp_ge_u32 s2, 256"); A("s_cbranch_scc1 L_end")
    A("s_load_dwordx16 s[16:31], s[0:1], 0")
    A("s_load_dwordx8 s[32:39], s[0:1], 64")
    A("v_lshrrev_b32 v2, 6, v0"); A("v_and_b32 v1, 63, v0")
    A("v_readfirstlane_b32 s3, v2")
    A("s_and_b32 s14, s2, 7"); A("s_lshr_b32 s15, s2, 3")
    A("s_lshr_b32 s4, s15, 4")
    A("s_bfe_u32 s5, s15, 0x10003"); A("s_lshl_b32 s14, s14, 1"); A("s_add_u32 s5, s5, s14")
    A("s_and_b32 s6, s15, 7")
    A("s_lshl_b32 s7, s4, 4"); A("s_add_u32 s7, s7, s5")
    A("s_lshl_b32 s10, s5, 3"); A("s_add_u32 s10, s10, s6")
    if dbg:
        A("s_mov_b32 s93, s3"); A("v_mov_b32 v167, 0")
        if not early: A("s_memrealtime s[88:89]")
    A("s_cmp_eq_u32 s3, 0"); A("s_cbranch_scc1 L_service")

    A("s_sub_u32 s3, s3, 1")
    vK, vV, vWo, vW2, t0, t1 = 2, 3, 4, 5, 6, 7
    M = [8, 9, 10, 11]; Q = [12, 16]; DB = [20, 24]; AB = [20, 24]; SG_ = [28, 29, 30, 31]; ACC = 32
    vMW = 12; vE = [13, 14, 15, 16]; vLW = 17
    RING = 36
    A(f"v_bfe_u32 v{t0}, v1, 2, 2"); A(f"v_lshlrev_b32 v{vK}, 9, v{t0}")
    A(f"v_lshrrev_b32 v{t0}, 4, v1"); A(f"v_lshl_add_u32 v{vK}, v{t0}, 6, v{vK}")
    A(f"v_and_b32 v{t0}, 3, v1"); A(f"v_lshl_add_u32 v{vK}, v{t0}, 4, v{vK}")
    A("s_lshl_b32 s8, s7, 21"); A("s_lshl_b32 s14, s3, 12"); A("s_add_u32 s8, s8, s14")
    A("s_lshl_b32 s14, s6, 18"); A("s_add_u32 s8, s8, s14")
    A(f"v_add_u32 v{vK}, s8, v{vK}")
    A("s_waitcnt lgkmcnt(0)")
    srd(SK, 18, 0x4000000)

    loads = [("K", beta, tp, jh) for beta in range(8) for tp in range(2) for jh in range(2)]
    loads += [("V", beta, tp, kp) for beta in range(8) for tp in range(2) for kp in range(2)]
    loads += [("F", cb) for cb in range(2)] + [("W", r, cb) for r in range(2) for cb in range(2)]
    free = list(range(R)); slot = {}
    nissued = [0]; landed = [-1]; cur_soff = [None]
    if rot:
        A(f"s_mul_i32 s11, s2, {rot}"); A("s_lshr_b32 s14, s2, 3"); A("s_add_u32 s11, s11, s14"); A("s_and_b32 s11, s11, 7"); A("s_lshl_b32 s11, s11, 15")
    def soff(val):
        if val == 0 and not rot: return "0"
        if cur_soff[0] != val:
            if rot: A(f"s_add_u32 s13, s11, {val}"); A("s_and_b32 s13, s13, 0x3ffff")
            else: A(f"s_mov_b32 s13, {val}")
            cur_soff[0] = val
        return "s13"
    def wait_landed(n):
        if n <= landed[0]: return
        A(f"s_waitcnt vmcnt({nissued[0] - 1 - n})"); landed[0] = n
    def issue(n):
        ld = loads[n]; sl = free.pop(0); slot[n] = sl; r = RING + 4 * sl
        if ld[0] == "K":
            A(f"buffer_load_dwordx4 v[{r}:{r+3}], v{vK}, s[{SK}:{SK+3}], {soff(ld[1] * 32768)} offen offset:{ld[2] * 2048 + ld[3] * 256} {kflags}")
        elif ld[0] == "V":
            A(f"buffer_load_dwordx4 v[{r}:{r+3}], v{vV}, s[{SV}:{SV+3}], {soff(ld[1] * 32768)} offen offset:{ld[2] * 2048 + ld[3] * 1024} {kflags}")
        elif ld[0] == "W":
            A(f"buffer_load_dwordx4 v[{r}:{r+3}], v{vWo}, s[{SWO}:{SWO+3}], 0 offen offset:{ld[1] * 896 + ld[2] * 512} {wflags}")
        else:
            A(f"buffer_load_dwordx4 v[{r}:{r+3}], v{vW2}, s[{SW2}:{SW2+3}], 0 offen offset:{ld[1] * 512} {wflags}")
        nissued[0] += 1
    sreg = lambda n: RING + 4 * slot[n]
    qk_next = [0]; qk_post = [None]; pv_next = [0]; pslot = {}
    def qk_dpp(tau):
        beta, tp = tau >> 1, tau & 1; G = beta >> 1; t = 2 * (beta & 1) + tp; d = DB[tau & 1]
        A(f"v_mov_b32_dpp v{t0}, v{d} quad_perm:[0,0,0,0] {DPPF}")
        A(f"v_add_f32_dpp v{t0}, v{d+1}, v{t0} quad_perm:[1,1,1,1] {DPPF}")
        A(f"v_add_f32_dpp v{t0}, v{d+2}, v{t0} quad_perm:[2,2,2,2] {DPPF}")
        A(f"v_add_f32_dpp v{SG_[G]}, v{d+3}, v{t0} quad_perm:[3,3,3,3] row_mask:0xf bank_mask:{hex(1 << t)}")
    def qk_tile(tau):
        d = DB[tau & 1]; a0 = sreg(2 * tau); a1 = sreg(2 * tau + 1)
        A(f"v_mfma_f32_16x16x32_bf16 v[{d}:{d+3}], v[{a0}:{a0+3}], v[{Q[0]}:{Q[0]+3}], 0")
        A(f"v_mfma_f32_16x16x32_bf16 v[{d}:{d+3}], v[{a1}:{a1+3}], v[{Q[1]}:{Q[1]+3}], v[{d}:{d+3}]")
        free.extend([slot[2 * tau], slot[2 * tau + 1]])
        if qk_post[0] is not None: qk_dpp(qk_post[0])
        qk_post[0] = tau
    def red_hi(op, v, t):
        for ctl in ("row_ror:4", "row_ror:8"): A(f"v_{op}_f32_dpp v{v}, v{v}, v{v} {ctl} {DPPF}")
        for sw in ("v_permlane16_swap_b32", "v_permlane32_swap_b32"):
            A(f"v_mov_b32 v{t}, v{v}"); A(f"{sw} v{v}, v{t}"); A(f"v_{op}_f32 v{v}, v{v}, v{t}")
    def sm_a():
        qk_dpp(qk_post[0]); qk_post[0] = None
        S = SG_
        A(f"v_cvt_pk_bf16_f32 v{t0}, v{S[0]}, v{S[1]}"); A(f"v_cvt_pk_bf16_f32 v{t1}, v{S[2]}, v{S[3]}")
        A(f"v_lshlrev_b32 v{S[0]}, 16, v{t0}"); A(f"v_and_b32 v{S[1]}, 0xffff0000, v{t0}")
        A(f"v_lshlrev_b32 v{S[2]}, 16, v{t1}"); A(f"v_and_b32 v{S[3]}, 0xffff0000, v{t1}")
        A(f"v_max3_f32 v{vMW}, v{S[0]}, v{S[1]}, v{S[2]}"); A(f"v_max_f32 v{vMW}, v{vMW}, v{S[3]}")
        red_hi("max", vMW, t0)
    def sm_b():
        S = SG_
        A(f"s_mov_b32 s81, {CEXP}"); A(f"v_mul_f32 v{vMW}, s81, v{vMW}")
        for k in range(4): A(f"v_fma_f32 v{vE[k]}, v{S[k]}, s81, -v{vMW}")
        for k in range(4): A(f"v_exp_f32 v{vE[k]}, v{vE[k]}")
        A("s_lshl_b32 s14, s3, 8"); A(f"v_lshl_add_u32 v{t1}, v1, 2, s14")
        for k in range(4): A(f"v_cvt_pk_bf16_f32 v{S[k]}, v{vE[k]}, v{vE[k]}")
        A("s_mov_b32 exec_lo, 0x11111111"); A("s_mov_b32 exec_hi, 0x11111111")
        A(f"ds_write_b128 v{t1}, v[{S[0]}:{S[3]}] offset:{L_PW}")
        A("s_mov_b64 exec, -1")
        A(f"v_lshrrev_b32 v{t1}, 5, v1"); A(f"v_lshl_add_u32 v{t1}, v{t1}, 6, s14")
        for t in range(4):
            for kp in range(2):
                sl = free.pop(0); pslot[(t, kp)] = sl; r = RING + 4 * sl
                A(f"ds_read_b128 v[{r}:{r+3}], v{t1} offset:{L_PW + (8 * kp + t) * 16}")
        A(f"v_add_f32 v{vLW}, v{vE[0]}, v{vE[1]}"); A(f"v_add_f32 v{t0}, v{vE[2]}, v{vE[3]}"); A(f"v_add_f32 v{vLW}, v{vLW}, v{t0}")
    def sm_c():
        red_hi("add", vLW, t0)
        A(f"v_mov_b32 v{vMW+1}, v{vLW}")
        A("s_lshl_b32 s14, s3, 3"); A(f"v_mov_b32 v{t0}, s14"); A(f"v_mov_b32 v{t1}, 1"); A(f"v_mov_b32 v{vE[2]}, 0")
        A("s_mov_b64 exec, 1")
        A(f"ds_write_b64 v{t0}, v[{vMW}:{vMW+1}] offset:{L_WST}")
        A(f"ds_add_u32 v{vE[2]}, v{t1} offset:{L_FLAG + 8}")
        A("s_mov_b64 exec, -1")
        A("s_waitcnt lgkmcnt(0)")
        stamp(3)
    def pv_tile(m):
        beta, tp, kp = m >> 2, (m >> 1) & 1, m & 1; G = beta >> 1; t = 2 * (beta & 1) + tp
        a = AB[m & 1]; p = RING + 4 * pslot[(t, kp)] + G; bv = sreg(32 + m)
        for r in range(4): A(f"v_and_b32 v{a+r}, v{p}, v{M[r]}")
        c = "0" if m == 0 else f"v[{ACC}:{ACC+3}]"
        A(f"v_mfma_f32_16x16x32_bf16 v[{ACC}:{ACC+3}], v[{a}:{a+3}], v[{bv}:{bv+3}], {c}")
        free.append(slot[32 + m])
    vFS = 18; vHP = 19
    GG = 14
    def fetch_stats():
        stamp(4); lds_wait(L_FLAG + 4, 1, "st", t0, t1); stamp(5)
        A(f"ds_read_b128 v[14:17], v{t0} offset:{L_G}")
        A(f"v_lshrrev_b32 v{t1}, 5, v1"); A("s_lshl_b32 s14, s3, 3"); A(f"v_lshl_add_u32 v{t1}, v{t1}, 2, s14")
        A(f"ds_read_b32 v{vHP}, v{t1} offset:{L_H}")
        A("s_waitcnt lgkmcnt(0)")
        A(f"v_add_f32 v{vFS}, v{vMW}, v16"); A(f"v_exp_f32 v{vFS}, v{vFS}"); A(f"v_mul_f32 v{vFS}, v{vFS}, v17")

    N = len(loads); chunks = [sm_a, sm_b, sm_c]; sm_done = False
    for n in range(N):
        if n < 64:
            lim = LIM if n < 32 else LIMV
            if LE and n >= LE[0]: lim = LE[1]
            if n > lim: wait_landed(n - lim - 1)
        if n in (LIM + 1, 8, 16, 48): stamp({LIM + 1: 12, 8: 13, 16: 14, 48: 15}[n])
        if n == NQ:
            stamp(1)
            lds_wait(L_FLAG, 1, "q", t0, t1)
            A(f"v_lshrrev_b32 v{t0}, 4, v1"); A(f"v_and_b32 v{t1}, 3, v1"); A(f"v_lshl_add_u32 v{t0}, v{t0}, 2, v{t1}"); A(f"v_lshlrev_b32 v{t0}, 4, v{t0}")
            A(f"ds_read_b128 v[{Q[0]}:{Q[0]+3}], v{t0} offset:{L_Q}")
            A(f"ds_read_b128 v[{Q[1]}:{Q[1]+3}], v{t0} offset:{L_Q + 256}")
            A(f"v_mov_b32 v{t0}, 0"); A(f"ds_read_b32 v{t1}, v{t0} offset:{L_G + 16}")
            A("s_waitcnt lgkmcnt(0)"); A(f"v_readfirstlane_b32 s12, v{t1}")
            stamp(2)
        assert free, f"no free slot at load {n}"
        issue(n)
        if n == LIM:
            srd(SV, 20, 0x4000000); srd(SWO, 24, 3670016); srd(SW2, 30, 1605632); srd(SWS, 38, WS_SIZE)
            A("s_barrier")
            A(f"v_lshl_add_u32 v{vV}, v1, 4, s8")
            A(f"v_and_b32 v{t0}, 31, v1"); A(f"v_lshlrev_b32 v{t0}, 4, v{t0}"); A(f"v_lshrrev_b32 v{t1}, 5, v1")
            A(f"v_mul_u32_u24 v{vWo}, 1792, v{t1}"); A(f"v_add_u32 v{vWo}, v{vWo}, v{t0}")
            A(f"v_mul_u32_u24 v{vW2}, 896, v{t1}"); A(f"v_add_u32 v{vW2}, v{vW2}, v{t0}")
            A("s_lshl_b32 s14, s10, 5"); A("s_lshl_b32 s15, s3, 2"); A("s_add_u32 s14, s14, s15"); A("s_mul_i32 s14, s14, 896")
            A(f"v_add_u32 v{vWo}, s14, v{vWo}")
            A("s_lshl_b32 s14, s10, 4"); A("s_lshl_b32 s15, s3, 1"); A("s_add_u32 s14, s14, s15"); A("s_mul_i32 s14, s14, 896")
            A(f"v_add_u32 v{vW2}, s14, v{vW2}")
            masks(A, M, t0, t1); mask_prime(A, M, t0, t1)
            if dbg: A("s_waitcnt lgkmcnt(0)"); A("v_writelane_b32 v167, s88, 0")
        if n >= NQ and not sm_done:
            c = 0
            while qk_next[0] < 16 and c < CQ and 2 * qk_next[0] + 1 <= landed[0]:
                qk_tile(qk_next[0]); qk_next[0] += 1; c += 1
            if qk_next[0] == 16:
                chunks.pop(0)()
                sm_done = not chunks
        elif sm_done:
            c = 0
            while pv_next[0] < 32 and c < CP and 32 + pv_next[0] <= landed[0]:
                pv_tile(pv_next[0]); pv_next[0] += 1; c += 1
        if n == NF: fetch_stats()
        if n in (NG, NS):
            A(f"v_mov_b32 v{t0}, 0"); A(f"v_mov_b32 v{t1}, {1 if n == NG else 2}")
            A("s_mov_b64 exec, 1"); A(f"ds_max_u32 v{t0}, v{t1} offset:{L_FLAG + 12}"); A("s_mov_b64 exec, -1")
    assert sm_done
    vRw, vO, vY = vK, vV, vWo
    red2_lane(A, vRw, t0)
    A("s_lshl_b32 s14, s3, 10"); A(f"v_add_u32 v{vW2}, s14, v{vRw}")
    A("s_lshl_b32 s14, s3, 11"); A(f"s_add_u32 s14, s14, {L_RED2}"); A(f"v_add_u32 v{vRw}, s14, v{vRw}")
    A("s_lshl_b32 s14, s3, 6"); A(f"v_add_u32 v{vY}, s14, v1")
    A(f"v_lshrrev_b32 v{t0}, 4, v{vY}"); A(f"v_lshlrev_b32 v{vO}, 11, v{t0}"); A(f"v_and_b32 v{t0}, 15, v1"); A(f"v_lshl_add_u32 v{vO}, v{t0}, 4, v{vO}")
    A("s_lshl_b32 s9, s7, 14"); A(f"s_add_u32 s9, s9, {WS_O}"); A("s_lshl_b32 s14, s6, 8"); A("s_add_u32 s11, s9, s14")
    A("s_lshl_b32 s14, s6, 11"); A("s_add_u32 s9, s9, s14")
    while pv_next[0] < 32:
        wait_landed(32 + pv_next[0]); pv_tile(pv_next[0]); pv_next[0] += 1
    stamp(6)
    A(f"v_lshlrev_b32 v{t0}, 3, v{vY}")
    for k in range(4): A(f"v_mul_f32 v{ACC+k}, v{vFS}, v{ACC+k}")
    A(f"ds_write_b128 v{vW2}, v[{ACC}:{ACC+3}] offset:{L_RED1}")
    A("s_waitcnt lgkmcnt(0)"); A("s_barrier")
    fr = [RING + 4 * s_ for s_ in sorted(free + list(pslot.values()))]
    run = [r for r in fr if all(r + 4 * k in fr for k in range(4))][0]
    rest = [r for r in fr if not run <= r < run + 16]
    FS = []
    for _ in range(pp):
        r = [r for r in rest if r + 4 in rest][0]; FS.append(r); rest.remove(r); rest.remove(r + 4)
    PS = rest[:pp]; assert len(PS) == pp
    Y = run; U = 20
    A("s_cmp_ge_u32 s3, 2"); A("s_cbranch_scc1 L_odone")
    for k in range(8): A(f"ds_read_b64 v[{Y+2*k}:{Y+2*k+1}], v{t0} offset:{L_RED1 + 1024 * k}")
    A(f"v_mov_b32 v{U+1}, s12"); A(f"v_mov_b32 v{U+3}, s12")
    A("s_waitcnt lgkmcnt(0)")
    for st in (1, 2):
        for k in range(0, 8, 2 * st):
            for c_ in range(2): A(f"v_add_f32 v{Y+2*k+c_}, v{Y+2*k+c_}, v{Y+2*(k+st)+c_}")
    A(f"v_add_f32 v{U}, v{Y}, v{Y+8}"); A(f"v_add_f32 v{U+2}, v{Y+1}, v{Y+9}")
    A(f"buffer_store_dwordx4 v[{U}:{U+3}], v{vO}, {WSR}, s11 offen sc1")
    lab("L_odone")
    stamp(7)
    OG = 28; DA, DBb = Y, Y + 4
    for q in range(4): A(f"v_and_b32 v{ACC+q}, v{vHP}, v{M[q]}")
    A(f"v_add_u32 v{t0}, {L_RED2}, v{t0}")
    A(f"v_lshrrev_b32 v{t1}, 5, v1"); A("s_lshl_b32 s14, s3, 4"); A(f"v_lshl_add_u32 v{t1}, v{t1}, 3, s14")
    A("s_waitcnt vmcnt(4)")
    for cb, d in ((0, DA), (1, DBb)):
        bw = sreg(64 + cb); A(f"v_mfma_f32_16x16x32_bf16 v[{d}:{d+3}], v[{ACC}:{ACC+3}], v[{bw}:{bw+3}], 0")
    for k in range(8): A(f"v_mul_f32 v{DA+k}, v15, v{DA+k}")
    A("s_cmp_lg_u32 s3, 2"); A("s_cbranch_scc1 L_onopoll")
    P0, P1 = FS[0], FS[0] + 4
    A(f"v_and_b32 v{ACC}, 15, v1"); A(f"v_bfe_u32 v{vO}, v1, 4, 1"); A(f"v_lshl_add_u32 v{ACC}, v{ACC}, 1, v{vO}"); A(f"v_lshlrev_b32 v{ACC}, 2, v{ACC}")
    A(f"v_lshlrev_b32 v{vO}, 4, v1")
    gather("o", [(P0, vO, "s9", 0, -1, -1), (P1, vO, "s9", 1024, -1, -1)], osleep, [82, 84])
    A(f"v_add_f32 v{P0}, v{P0}, v{P1}"); A(f"v_add_f32 v{P0+2}, v{P0+2}, v{P1+2}")
    A(f"v_permlane16_swap_b32 v{P0}, v{P0+2}"); A(f"v_add_f32 v{P0}, v{P0}, v{P0+2}")
    A(f"v_mov_b32 v{P0+2}, v{P0}"); A(f"v_permlane32_swap_b32 v{P0}, v{P0+2}"); A(f"v_add_f32 v{P0}, v{P0}, v{P0+2}")
    A(f"v_cvt_pk_bf16_f32 v{P0}, v{P0}, v{P0}")
    A(f"ds_write_b32 v{ACC}, v{P0} offset:{L_OL}")
    lab("L_onopoll")
    A("s_cmp_lt_u32 s3, 2"); A("s_cbranch_scc1 L_ow1"); A("s_waitcnt vmcnt(0)"); lab("L_ow1"); A("s_waitcnt vmcnt(1) lgkmcnt(0)")
    A("s_barrier")
    A(f"ds_read_b64 v[{OG}:{OG+1}], v{t1} offset:{L_OL}")
    stamp(8)
    A("s_waitcnt lgkmcnt(0)")
    for r in range(2):
        for q in range(4): A(f"v_and_b32 v{AB[r]+q}, v{OG+r}, v{M[q]}")
    for r in range(2):
        for cb, d in ((0, DA), (1, DBb)):
            bw = sreg(66 + 2 * r + cb)
            A(f"v_mfma_f32_16x16x32_bf16 v[{d}:{d+3}], v[{AB[r]}:{AB[r]+3}], v[{bw}:{bw+3}], v[{d}:{d+3}]")
    A(f"ds_write_b128 v{vRw}, v[{DA}:{DA+3}]"); A(f"ds_write_b128 v{vRw}, v[{DBb}:{DBb+3}] offset:1024")
    A("s_waitcnt lgkmcnt(0)"); A("s_barrier")
    A("s_cmp_ge_u32 s3, 4"); A("s_cbranch_scc1 L_ydone")
    for k in range(8): A(f"ds_read_b64 v[{Y+2*k}:{Y+2*k+1}], v{t0} offset:{2048 * k}")
    A(f"v_cmp_gt_u32 vcc, 224, v{vY}")
    A(f"v_lshrrev_b32 v{t1}, 3, v{vY}"); A(f"v_lshlrev_b32 v{vO}, 14, v{t1}")
    A(f"v_and_b32 v{t1}, 7, v1"); A(f"v_lshl_add_u32 v{vO}, v{t1}, 4, v{vO}")
    A(f"s_mul_i32 s14, s4, {28 * 16384}"); A("s_lshl_b32 s15, s10, 7"); A("s_add_u32 s14, s14, s15"); A(f"s_add_u32 s14, s14, {WS_Y}")
    A(f"v_mov_b32 v{U+1}, s12"); A(f"v_mov_b32 v{U+3}, s12")
    A("s_waitcnt lgkmcnt(0)")
    for st in (1, 2):
        for k in range(0, 8, 2 * st):
            for c_ in range(2): A(f"v_add_f32 v{Y+2*k+c_}, v{Y+2*k+c_}, v{Y+2*(k+st)+c_}")
    A(f"v_add_f32 v{U}, v{Y}, v{Y+8}"); A(f"v_add_f32 v{U+2}, v{Y+1}, v{Y+9}")
    A("s_and_saveexec_b64 s[82:83], vcc")
    A(f"buffer_store_dwordx4 v[{U}:{U+3}], v{vO}, {WSR}, s14 offen sc1")
    A("s_mov_b64 exec, s[82:83]")
    lab("L_ydone")
    stamp(9)
    A("s_cmp_ge_u32 s2, 56"); A("s_cbranch_scc1 L_fin_skip")
    A("s_lshl_b32 s13, s2, 14"); A("s_lshl_b32 s15, s3, 11"); A("s_add_u32 s13, s13, s15"); A(f"s_add_u32 s13, s13, {WS_Y}")
    A(f"v_lshlrev_b32 v{t0}, 4, v1")
    F = 24
    gather("fin", [(F, t0, "s13", 0, -1, -1), (F + 4, t0, "s13", 1024, -1, -1)], fsleep, [82, 84])
    srd(SO, 34, 1792)
    A(f"v_add_f32 v{F}, v{F}, v{F+4}"); A(f"v_add_f32 v{F+2}, v{F+2}, v{F+6}")
    stamp(10)
    A(f"v_add_f32_dpp v{F}, v{F}, v{F} row_ror:8 {DPPF}"); A(f"v_add_f32_dpp v{F+2}, v{F+2}, v{F+2} row_ror:8 {DPPF}")
    A(f"v_permlane16_swap_b32 v{F}, v{F+2}"); A(f"v_add_f32 v{F}, v{F}, v{F+2}")
    A(f"v_mov_b32 v{F+2}, v{F}"); A(f"v_permlane32_swap_b32 v{F}, v{F+2}"); A(f"v_add_f32 v{F}, v{F}, v{F+2}")
    A(f"v_and_b32 v{t0}, 7, v1"); A(f"v_bfe_u32 v{t1}, v1, 4, 1"); A(f"v_lshl_add_u32 v{t0}, v{t0}, 1, v{t1}")
    A(f"v_lshlrev_b32 v{t0}, 5, v{t0}"); A("s_lshl_b32 s14, s3, 2"); A(f"v_add_u32 v{t0}, s14, v{t0}")
    A("s_mov_b32 exec_lo, 0x00ff00ff"); A("s_mov_b32 exec_hi, 0")
    A(f"ds_write_b32 v{t0}, v{F} offset:{L_FIN}")
    A("s_mov_b64 exec, -1")
    A("s_waitcnt lgkmcnt(0)"); A("s_barrier")
    A("s_cmp_lg_u32 s3, 0"); A("s_cbranch_scc1 L_fin_skip")
    A(f"v_and_b32 v{t0}, 15, v1"); A(f"v_lshlrev_b32 v{t1}, 5, v{t0}")
    A(f"ds_read_b128 v[{F}:{F+3}], v{t1} offset:{L_FIN}"); A(f"ds_read_b128 v[{F+4}:{F+7}], v{t1} offset:{L_FIN + 16}")
    A(f"v_lshlrev_b32 v{t0}, 1, v{t0}"); A("s_lshl_b32 s14, s2, 5")
    A("s_waitcnt lgkmcnt(0)")
    for st in (1, 2, 4):
        for k in range(0, 8, 2 * st): A(f"v_add_f32 v{F+k}, v{F+k}, v{F+k+st}")
    A(f"v_cvt_pk_bf16_f32 v{F}, v{F}, v{F}")
    A("s_mov_b64 exec, 0xffff")
    A(f"buffer_store_short v{F}, v{t0}, s[{SO}:{SO+3}], s14 offen")
    A("s_cmp_lg_u32 s2, 0"); A("s_cbranch_scc1 L_fin_noep")
    A("s_mov_b64 exec, 1"); A(f"v_mov_b32 v{t0}, 0"); A(f"v_mov_b32 v{t1}, s12")
    A(f"s_mov_b32 s13, {wsb}"); A(f"buffer_store_dword v{t1}, v{t0}, {WSR}, s13 offen")
    lab("L_fin_noep")
    A("s_mov_b64 exec, -1")
    lab("L_fin_skip")
    stamp(11)
    dump_stamps()
    if diag2 is not None:
        role, kk, op = diag2
        A("s_cmp_lg_u32 s2, 0"); A("s_cbranch_scc1 L_diag_end"); A("s_cmp_lg_u32 s3, 0"); A("s_cbranch_scc1 L_diag_end")
        A("s_add_u32 s84, s88, 7000"); lab("L_diag1"); A("s_sleep 8")
        A("s_memrealtime s[90:91]"); A("s_waitcnt lgkmcnt(0)"); A("s_sub_u32 s85, s90, s84"); A("s_cmp_lt_i32 s85, 0"); A("s_cbranch_scc1 L_diag1")
        A("v_mov_b32 v10, 0"); A("v_mov_b32 v11, -1"); A("v_mov_b32 v14, 0")
        nr = 4 if role else 32
        for r in range(nr):
            if role: A(f"v_add_u32 v12, {r * 64}, v1"); A("v_mul_u32_u24 v12, 2304, v12")
            else:
                A(f"v_lshrrev_b32 v12, 3, v1"); A(f"v_add_u32 v12, {r * 8}, v12"); A("v_mul_u32_u24 v12, 9, v12"); A("v_and_b32 v13, 7, v1"); A("v_add_u32 v12, v12, v13")
                A("v_add_u32 v12, 1, v12"); A("v_lshlrev_b32 v12, 8, v12")
            A(f"s_mov_b32 s13, {WS_DBG}")
            A(f"buffer_load_dword v8, v12, {WSR}, s13 offen sc1"); A(f"buffer_load_dword v9, v12, {WSR}, s13 offen offset:{4 * kk} sc1"); A("s_waitcnt vmcnt(0)")
            A("v_subrev_u32 v8, s88, v8"); A("v_add_u32 v8, 0x1000, v8"); A("v_min_u32 v11, v11, v8")
            A("v_cmp_ne_u32 vcc, 0, v9"); A("v_subrev_u32 v9, s88, v9"); A("v_add_u32 v9, 0x1000, v9"); A("v_cndmask_b32 v9, 0, v9, vcc")
            A("v_max_u32 v10, v10, v9"); A("v_add_u32 v14, v14, v9")
        if op == "mean": A(f"v_lshrrev_b32 v10, {2 if role else 5}, v14")
        for v, o in ((10, "add" if op == "mean" else "max"), (11, "min")):
            for ctl in ("quad_perm:[1,0,3,2]", "quad_perm:[2,3,0,1]", "row_half_mirror", "row_mirror"): A(f"v_{o}_u32_dpp v{v}, v{v}, v{v} {ctl} {DPPF}")
            for sw in ("v_permlane16_swap_b32", "v_permlane32_swap_b32"):
                A(f"v_mov_b32 v12, v{v}"); A(f"{sw} v{v}, v12"); A(f"v_{o}_u32 v{v}, v{v}, v12")
        if op == "mean": A("v_lshrrev_b32 v10, 6, v10")
        A("v_sub_u32 v10, v10, v11"); A("v_readfirstlane_b32 s85, v10"); A("s_lshl_b32 s85, s85, 2")
        if kk < 0: A("s_mov_b32 s85, 0")
        A("s_min_u32 s85, s85, 40000"); A(f"s_add_u32 s84, s88, {dbase}"); A("s_add_u32 s84, s84, s85")
        lab("L_diag2")
        A("s_memrealtime s[90:91]"); A("s_waitcnt lgkmcnt(0)"); A("s_sub_u32 s85, s90, s84"); A("s_cmp_lt_i32 s85, 0"); A("s_cbranch_scc1 L_diag2")
        lab("L_diag_end")
    if diag is not None:
        A("s_cmp_lg_u32 s2, 0"); A("s_cbranch_scc1 L_diag_end"); A("s_cmp_lg_u32 s3, 0"); A("s_cbranch_scc1 L_diag_end")
        A("s_add_u32 s84, s88, 7000")
        lab("L_diag1")
        A("s_memrealtime s[90:91]"); A("s_waitcnt lgkmcnt(0)"); A("s_sub_u32 s85, s90, s84"); A("s_cmp_lt_i32 s85, 0"); A("s_cbranch_scc1 L_diag1")
        A("v_lshlrev_b32 v166, 2, v1"); A("buffer_load_dword v165, v166, s[92:95], 0 offen sc1"); A("s_waitcnt vmcnt(0)")
        A("v_readlane_b32 s84, v165, 0"); A(f"v_readlane_b32 s85, v165, {max(diag, 0)}")
        A("s_not_b32 s84, s84"); A("s_sub_u32 s85, s85, s84"); A("s_lshl_b32 s85, s85, 2")
        if diag <= 0: A("s_mov_b32 s85, 0")
        A("s_min_u32 s85, s85, 40000"); A(f"s_add_u32 s84, s88, {dbase}"); A("s_add_u32 s84, s84, s85")
        lab("L_diag2")
        A("s_memrealtime s[90:91]"); A("s_waitcnt lgkmcnt(0)"); A("s_sub_u32 s85, s90, s84"); A("s_cmp_lt_i32 s85, 0"); A("s_cbranch_scc1 L_diag2")
        lab("L_diag_end")
    A("s_endpgm")

    lab("L_service")
    A("s_setprio 3")
    vL16, vQe, vQo, vFe, vFo, vXq, vXf = 2, 3, 4, 5, 6, 7, 8
    vTr = [9, 10, 11, 12]; a_, b_, c_, d_ = 14, 15, 16, 17; vG, vOG = 20, 21
    A(f"v_mov_b32 v{a_}, 0"); A(f"v_mov_b32 v{b_}, 0"); A(f"v_mov_b32 v{c_}, 0"); A(f"v_mov_b32 v{d_}, 0")
    A(f"ds_write_b128 v{a_}, v[{a_}:{d_}] offset:{L_FLAG}")
    A(f"v_lshlrev_b32 v{vL16}, 4, v1")
    A("s_and_b32 s8, s6, 3"); A("s_lshr_b32 s9, s6, 2"); A("s_lshl_b32 s14, s4, 1"); A("s_add_u32 s9, s9, s14")
    A("s_mul_i32 s11, s2, 9363"); A("s_lshr_b32 s11, s11, 16"); A("s_mul_i32 s14, s11, 7"); A("s_sub_u32 s81, s2, s14")
    A(f"v_bfe_u32 v{a_}, v1, 4, 1"); A(f"v_lshlrev_b32 v{a_}, 1, v{a_}"); A(f"v_and_b32 v{b_}, 7, v1"); A(f"v_xor_b32 v{a_}, v{a_}, v{b_}")
    A(f"v_xor_b32 v{b_}, 4, v{a_}"); A(f"v_lshrrev_b32 v{c_}, 3, v1")
    A(f"s_mul_i32 s14, s9, {112 * 8192}"); A("s_lshl_b32 s15, s5, 9"); A("s_add_u32 s14, s14, s15"); A("s_lshl_b32 s15, s8, 7"); A("s_add_u32 s14, s14, s15")
    A(f"v_lshl_add_u32 v{d_}, v{c_}, 13, s14")
    A(f"v_lshl_add_u32 v{vQe}, v{a_}, 4, v{d_}"); A(f"v_lshl_add_u32 v{vQo}, v{b_}, 4, v{d_}")
    A(f"s_mul_i32 s14, s81, {64 * 3584}"); A("s_lshl_b32 s15, s11, 7"); A("s_add_u32 s14, s14, s15")
    A(f"v_mul_u32_u24 v{d_}, 3584, v{c_}"); A(f"v_add_u32 v{d_}, s14, v{d_}")
    A(f"v_lshl_add_u32 v{vFe}, v{a_}, 4, v{d_}"); A(f"v_lshl_add_u32 v{vFo}, v{b_}, 4, v{d_}")
    A("s_waitcnt lgkmcnt(0)")
    A(f"s_mov_b32 s13, {wsb}"); A("s_load_dword s12, s[38:39], s13")
    srd(SX, 16, 1792); srd(SWQ, 22, 3670016); srd(SG, 32, 896); srd(SW1, 28, 1605632)
    A("s_cmp_lt_u32 s2, 196"); A(f"s_cselect_b32 s{SW1+2}, s{SW1+2}, 0")
    if svc == 0:
        for d in (SX, SWQ, SG, SW1): A(f"s_mov_b32 s{d+2}, 0")
    if svc == 0.5:
        for d in (SW1,): A(f"s_mov_b32 s{d+2}, 0")
    A(f"s_mov_b32 m0, {L_X}")
    for k in range(2): A(f"buffer_load_dwordx4 v{vL16}, s[{SX}:{SX+3}], 0 offen offset:{1024 * k} lds")
    for m in range(16):
        A(f"s_mov_b32 m0, {L_W + 1024 * m}")
        A(f"s_mov_b32 s13, {m * 65536 if m < 14 else 0x7f000000}")
        A(f"buffer_load_dwordx4 v{vQo if m & 1 else vQe}, s[{SWQ}:{SWQ+3}], s13 offen {wflags} lds")
    for m in range(8):
        A(f"s_mov_b32 m0, {L_W1 + 1024 * m}"); A(f"s_mov_b32 s13, {m * 8 * 3584}")
        A(f"buffer_load_dwordx4 v{vFo if m & 1 else vFe}, s[{SW1}:{SW1+3}], s13 offen {wflags} lds")
    GW = 24
    A(f"buffer_load_dwordx4 v[{GW}:{GW+3}], v{vL16}, s[{SG}:{SG+3}], 0 offen")
    A("s_barrier")
    srd(SWS, 38, WS_SIZE)
    A(f"v_and_b32 v{a_}, 1, v1"); A(f"v_mul_u32_u24 v{b_}, 896, v{a_}"); A(f"v_lshrrev_b32 v{a_}, 4, v1"); A(f"v_lshl_add_u32 v{b_}, v{a_}, 4, v{b_}")
    A("s_mul_i32 s14, s9, 224"); A(f"v_add_u32 v{vXq}, s14, v{b_}"); A("s_lshl_b32 s14, s81, 7"); A(f"v_add_u32 v{vXf}, s14, v{b_}")
    A(f"v_lshlrev_b32 v{b_}, 10, v{a_}"); A(f"v_bfe_u32 v{c_}, v1, 2, 2"); A(f"v_lshl_add_u32 v{b_}, v{c_}, 7, v{b_}")
    A(f"v_bfe_u32 v{c_}, v1, 1, 1"); A(f"v_lshl_add_u32 v{b_}, v{c_}, 4, v{b_}"); A(f"v_and_b32 v{c_}, 1, v1"); A(f"v_lshl_add_u32 v{b_}, v{c_}, 3, v{b_}")
    A(f"v_bfe_u32 v{c_}, v1, 3, 2")
    for cg in range(4):
        A(f"v_xor_b32 v{d_}, {cg}, v{c_}"); A(f"v_lshl_add_u32 v{vTr[cg]}, v{d_}, 5, v{b_}")
    A("s_lshl_b32 s8, s8, 9"); A("s_lshl_b32 s9, s9, 11"); A("s_add_u32 s8, s8, s9"); A("s_lshl_b32 s9, s5, 13"); A("s_add_u32 s8, s8, s9")
    A(f"s_add_u32 s8, s8, {WS_Q}"); A(f"s_add_u32 s9, s8, {16 * 8192}")
    A("s_lshl_b32 s11, s11, 12"); A("s_lshl_b32 s81, s81, 9"); A("s_add_u32 s11, s11, s81"); A(f"s_add_u32 s11, s11, {WS_H}")
    A("s_mov_b32 s82, 0xffff0000"); A("s_mov_b32 s83, 0"); A("s_mov_b32 s84, 0"); A("s_mov_b32 s85, 0xffff"); A("s_mov_b32 s86, 0"); A("s_mov_b32 s87, 0xffff0000")
    if dbg: A("s_waitcnt lgkmcnt(0)"); A("v_writelane_b32 v167, s88, 0")
    A("s_waitcnt lgkmcnt(0)"); A(f"s_add_u32 s12, s12, {TAGC}")
    XA = 28; TB = 56; D = 120; UQ = 136
    A("s_waitcnt vmcnt(25)")
    for m in range(4): A(f"ds_read_b128 v[{XA+4*m}:{XA+4*m+3}], v{vXq} offset:{L_X + 64 * m}")
    for m in range(2): A(f"ds_read_b128 v[{XA+16+4*m}:{XA+16+4*m+3}], v{vXf} offset:{L_X + 64 * m}")
    def gemv(img, steps, xa, vm_after):
        for m in range(steps):
            A(f"s_waitcnt vmcnt({vm_after + 4 * (steps - 1 - m)})")
            for cg in range(4):
                r = TB + 16 * m + 4 * cg
                A(f"ds_read_b64_tr_b16 v[{r}:{r+1}], v{vTr[cg]} offset:{img + 4096 * m}")
                A(f"ds_read_b64_tr_b16 v[{r+2}:{r+3}], v{vTr[cg]} offset:{img + 4096 * m + 512}")
            if m: mf(m - 1, xa, 8)
        mf(steps - 1, xa, 0)
        for bb in range(2):
            for cg in range(1, 4): A(f"v_cndmask_b32 v{D+bb}, v{D+bb}, v{D+4*cg+bb}, s[{80+2*cg}:{81+2*cg}]")
        for bb in range(2):
            A(f"v_mov_b32 v{UQ+4*bb}, v{D+bb}"); A(f"v_mov_b32_dpp v{UQ+4*bb+2}, v{D+bb} quad_perm:[1,1,3,3] {DPPF}")
            A(f"v_mov_b32 v{UQ+4*bb+1}, s12"); A(f"v_mov_b32 v{UQ+4*bb+3}, s12")
    def mf(m, xa, lg):
        A(f"s_waitcnt lgkmcnt({lg})")
        for cg in range(4):
            r = TB + 16 * m + 4 * cg; d = D + 4 * cg; c = "0" if m == 0 else f"v[{d}:{d+3}]"
            A(f"v_mfma_f32_16x16x32_bf16 v[{d}:{d+3}], v[{xa+4*m}:{xa+4*m+3}], v[{r}:{r+3}], {c}")
    def publish(s0, s1):
        if svc < 2: return
        A("s_mov_b32 exec_lo, 0x55555555"); A("s_mov_b32 exec_hi, 0x55555555")
        A(f"buffer_store_dwordx4 v[{UQ}:{UQ+3}], v{d_}, {WSR}, {s0} offen sc1")
        A(f"buffer_store_dwordx4 v[{UQ+4}:{UQ+7}], v{d_}, {WSR}, {s1} offen sc1")
        A("s_mov_b64 exec, -1")
    A(f"v_lshlrev_b32 v{d_}, 3, v1")
    gemv(L_W, 4, XA, 9)
    publish("s8", "s9")
    stamp(1)
    gemv(L_W1, 2, XA + 16, 3)
    A("s_cmp_ge_u32 s2, 196"); A("s_cbranch_scc1 L_sv_noh")
    A(f"s_add_u32 s9, s11, {28 * 4096}")
    publish("s11", "s9")
    lab("L_sv_noh")
    stamp(2)
    QP = 56
    if NG is not None: lds_wait(L_FLAG + 12, 1, "pg1", a_, b_, sleep=4, cmp="ge")
    A("s_lshl_b32 s8, s7, 13"); A(f"s_add_u32 s8, s8, {WS_Q}"); A("s_add_u32 s9, s8, 4096")
    gather("q", [(QP + 4 * k, vL16, "s9" if k >= 4 else "s8", 1024 * (k & 3), -1, -1) for k in range(8)], psleep,
           [40, 42, 44, 46, 48, 50, 82, 84])
    for hf in range(2):
        r = QP + 4 * hf
        for e in (0, 2):
            A(f"v_add_f32 v{r+e}, v{r+e}, v{r+8+e}"); A(f"v_add_f32 v{r+16+e}, v{r+16+e}, v{r+24+e}")
        for e in (0, 2): A(f"v_add_f32 v{r+e}, v{r+e}, v{r+16+e}")
        A(f"v_cvt_pk_bf16_f32 v{r}, v{r}, v{r+2}")
    A(f"v_lshlrev_b32 v{a_}, 2, v1")
    A(f"ds_write_b32 v{a_}, v{QP} offset:{L_Q}"); A(f"ds_write_b32 v{a_}, v{QP+4} offset:{L_Q + 256}")
    A(f"v_mov_b32 v{a_}, 0"); A(f"v_mov_b32 v{b_}, s12"); A(f"v_mov_b32 v{c_}, 1")
    A(f"ds_write_b32 v{a_}, v{b_} offset:{L_G + 16}")
    A(f"ds_write_b32 v{a_}, v{c_} offset:{L_FLAG}")
    stamp(3)
    XG = 28
    A("s_mul_i32 s14, s4, 896"); A(f"v_add_u32 v{a_}, s14, v{vL16}")
    A(f"ds_read_b128 v[{XG}:{XG+3}], v{a_} offset:{L_X}")
    A("s_waitcnt lgkmcnt(0)")
    A(f"v_mov_b32 v{vG}, 0")
    for k in range(4):
        A(f"v_lshlrev_b32 v{a_}, 16, v{XG+k}"); A(f"v_and_b32 v{b_}, 0xffff0000, v{XG+k}")
        A(f"v_lshlrev_b32 v{c_}, 16, v{GW+k}"); A(f"v_and_b32 v{d_}, 0xffff0000, v{GW+k}")
        A(f"v_mul_f32 v{a_}, v{a_}, v{c_}"); A(f"v_mul_f32 v{b_}, v{b_}, v{d_}")
        A(f"v_cvt_pk_bf16_f32 v{a_}, v{a_}, v{b_}")
        A(f"v_lshlrev_b32 v{b_}, 16, v{a_}"); A(f"v_and_b32 v{a_}, 0xffff0000, v{a_}")
        A(f"v_add_f32 v{vG}, v{vG}, v{b_}"); A(f"v_add_f32 v{vG}, v{vG}, v{a_}")
    A("v_cmp_gt_u32 vcc, 56, v1"); A(f"v_cndmask_b32 v{vG}, 0, v{vG}, vcc")
    wave_reduce(A, "add", vG, a_)
    A(f"v_cvt_pk_bf16_f32 v{vG}, v{vG}, v{vG}"); A(f"v_lshlrev_b32 v{vG}, 16, v{vG}")
    A(f"v_mul_f32 v{vG}, 0xbfb8aa3b, v{vG}"); A(f"v_exp_f32 v{vG}, v{vG}"); A(f"v_add_f32 v{vG}, 1.0, v{vG}"); A(f"v_rcp_f32 v{vG}, v{vG}")
    A(f"v_cvt_pk_bf16_f32 v{vG}, v{vG}, v{vG}"); A(f"v_lshlrev_b32 v{vG}, 16, v{vG}")
    A(f"v_sub_f32 v{vOG}, 1.0, v{vG}"); A(f"v_cvt_pk_bf16_f32 v{vOG}, v{vOG}, v{vOG}"); A(f"v_lshlrev_b32 v{vOG}, 16, v{vOG}")
    lds_wait(L_FLAG + 8, 8, "cnt", a_, b_, sleep=2)
    ST = 32
    def combine(m, l):
        A(f"v_mov_b32 v{a_}, v{m}")
        for ctl in ("quad_perm:[1,0,3,2]", "quad_perm:[2,3,0,1]", "row_half_mirror"): A(f"v_max_f32_dpp v{a_}, v{a_}, v{a_} {ctl} {DPPF}")
        A(f"v_sub_f32 v{b_}, v{m}, v{a_}"); A(f"v_exp_f32 v{b_}, v{b_}"); A(f"v_mul_f32 v{b_}, v{b_}, v{l}")
        for ctl in ("quad_perm:[1,0,3,2]", "quad_perm:[2,3,0,1]", "row_half_mirror"): A(f"v_add_f32_dpp v{b_}, v{b_}, v{b_} {ctl} {DPPF}")
    A(f"v_and_b32 v{c_}, 7, v1"); A(f"v_lshlrev_b32 v{c_}, 3, v{c_}")
    A(f"ds_read_b64 v[{ST+4}:{ST+5}], v{c_} offset:{L_WST}"); A("s_waitcnt lgkmcnt(0)")
    combine(ST + 4, ST + 5)
    A(f"v_mov_b32 v{ST}, v{a_}"); A(f"v_mov_b32 v{ST+1}, s12"); A(f"v_mov_b32 v{ST+2}, v{b_}"); A(f"v_mov_b32 v{ST+3}, s12")
    A("s_lshl_b32 s11, s7, 10"); A(f"s_add_u32 s11, s11, {WS_ST}"); A("s_lshl_b32 s9, s6, 7"); A("s_add_u32 s9, s9, s11")
    A("s_mov_b64 exec, 0xff"); A(f"buffer_store_dwordx4 v[{ST}:{ST+3}], v{vL16}, {WSR}, s9 offen sc1"); A("s_mov_b64 exec, -1")
    if NS is not None: lds_wait(L_FLAG + 12, 2, "pg2", a_, b_, sleep=8, cmp="ge")
    HP = 28
    A(f"v_mov_b32 v{HP}, 0"); A(f"v_mov_b32 v{HP+2}, 0")
    A("s_cmp_ge_u32 s10, 112"); A("s_cbranch_scc1 L_sv_hz")
    A(f"v_lshrrev_b32 v{a_}, 3, v1"); A(f"v_lshlrev_b32 v{a_}, 9, v{a_}"); A(f"v_and_b32 v{b_}, 7, v1"); A(f"v_lshl_add_u32 v{a_}, v{b_}, 4, v{a_}")
    A("s_lshr_b32 s8, s10, 2"); A("s_mul_i32 s9, s4, 28"); A("s_add_u32 s8, s8, s9"); A("s_lshl_b32 s8, s8, 12")
    A("s_and_b32 s9, s10, 3"); A("s_lshl_b32 s9, s9, 7"); A("s_add_u32 s8, s8, s9"); A(f"s_add_u32 s8, s8, {WS_H}")
    gather("h", [(HP, a_, "s8", 0, -1, "0x00ffffff")], psleep, [82])
    lab("L_sv_hz")
    for k in (0, 2): A(f"v_add_f32_dpp v{HP+k}, v{HP+k}, v{HP+k} row_ror:8 {DPPF}")
    for sw in ("v_permlane16_swap_b32", "v_permlane32_swap_b32"):
        for k in (0, 2): A(f"v_mov_b32 v{HP+k+1}, v{HP+k}")
        for k in (0, 2): A(f"{sw} v{HP+k}, v{HP+k+1}")
        for k in (0, 2): A(f"v_add_f32 v{HP+k}, v{HP+k}, v{HP+k+1}")
    for k in (0, 2): A(f"v_max_f32 v{HP+k}, 0, v{HP+k}")
    A(f"v_cvt_pk_bf16_f32 v{HP}, v{HP}, v{HP}"); A(f"v_cvt_pk_bf16_f32 v{HP+1}, v{HP+2}, v{HP+2}")
    A(f"v_lshlrev_b32 v{a_}, 3, v1")
    A("s_mov_b64 exec, 0xff"); A(f"ds_write_b64 v{a_}, v[{HP}:{HP+1}] offset:{L_H}"); A("s_mov_b64 exec, -1")
    stamp(4)
    A(f"v_lshlrev_b32 v{c_}, 7, v1")
    gather("st", [(ST + 4, c_, "s11", 0, "0xff", 0)], 8, [82])
    combine(ST + 4, ST + 6)
    A(f"v_sub_f32 v{vG+2}, 0, v{a_}"); A(f"v_rcp_f32 v{vG+3}, v{b_}"); A(f"v_mul_f32 v{vG+3}, v{vG+3}, v{vG}")
    A(f"v_mov_b32 v{a_}, 0"); A(f"v_mov_b32 v{b_}, 1")
    A("s_mov_b64 exec, 1")
    A(f"ds_write_b128 v{a_}, v[{vG}:{vG+3}] offset:{L_G}")
    A(f"ds_write_b32 v{a_}, v{b_} offset:{L_FLAG + 4}")
    A("s_mov_b64 exec, -1")
    A("s_waitcnt lgkmcnt(0)")
    stamp(5)
    dump_stamps(True)
    lab("L_end")
    A("s_endpgm")

    body = pad_hazards(L)
    out = [HEADER.rstrip("\n"),
           "; Single fused launch: 256 workgroups (one per CU) x 9 waves (wave 0 = service, waves 1-8 stream K/V).",
           f"; @launch grid=(256,1,1) block=(576,1,1) lds={lds or LDS_MIN}",
           '.amdgcn_target "amdgcn-amd-amdhsa--gfx950"', ".text", f".globl {NAME}", ".p2align 8", f".type {NAME},@function", f"{NAME}:"]
    out += body
    out += ['.section .rodata,"a"', ".p2align 6", f".amdhsa_kernel {NAME}",
            "  .amdhsa_next_free_vgpr 168", "  .amdhsa_next_free_sgpr 96", "  .amdhsa_accum_offset 168",
            "  .amdhsa_group_segment_fixed_size 0", "  .amdhsa_kernarg_size 96", "  .amdhsa_user_sgpr_count 2",
            "  .amdhsa_user_sgpr_kernarg_segment_ptr 1", "  .amdhsa_system_sgpr_workgroup_id_x 1", ".end_amdhsa_kernel"]
    return "\n".join(out) + "\n"

def masks(A, M, t0, t1):
    A(f"v_and_b32 v{t0}, 1, v1"); A(f"v_lshlrev_b32 v{t0}, 4, v{t0}"); A(f"v_mov_b32 v{t1}, 0xffff"); A(f"v_lshlrev_b32 v{t1}, v{t0}, v{t1}")
    A(f"v_bfe_u32 v{t0}, v1, 1, 2")
    for r in range(4): A(f"v_cmp_eq_u32 s[{80+2*r}:{81+2*r}], {r}, v{t0}")
    for r in range(4): A(f"v_cndmask_b32 v{M[r]}, 0, v{t1}, s[{80+2*r}:{81+2*r}]")

def mask_prime(A, M, t0, t1):
    A(f"v_lshrrev_b32 v{t0}, 1, v1"); A(f"v_xor_b32 v{t0}, v{t0}, v1"); A(f"v_bfe_u32 v{t0}, v{t0}, 3, 1")
    A(f"v_add_u32 v{t0}, -1, v{t0}")
    for r in range(4): A(f"v_and_b32 v{M[r]}, v{M[r]}, v{t0}")

def red2_lane(A, d, t0):
    A(f"v_and_b32 v{t0}, 15, v1"); A(f"v_lshlrev_b32 v{d}, 5, v{t0}")
    A(f"v_lshrrev_b32 v{t0}, 5, v1"); A(f"v_lshl_add_u32 v{d}, v{t0}, 9, v{d}")
    A(f"v_bfe_u32 v{t0}, v1, 4, 1"); A(f"v_lshl_add_u32 v{d}, v{t0}, 4, v{d}")

def wave_reduce(A, op, v, t):
    for ctl in ("quad_perm:[1,0,3,2]", "quad_perm:[2,3,0,1]", "row_half_mirror", "row_mirror"):
        A(f"v_{op}_f32_dpp v{v}, v{v}, v{v} {ctl} {DPPF}")
    for sw in ("v_permlane16_swap_b32", "v_permlane32_swap_b32"):
        A(f"v_mov_b32 v{t}, v{v}"); A(f"{sw} v{v}, v{t}"); A(f"v_{op}_f32 v{v}, v{v}, v{t}")

if __name__ == "__main__":
    kw = eval("dict(%s)" % (sys.argv[2] if len(sys.argv) > 2 else ""))
    open(sys.argv[1], "w").write(gen(**kw))
```

```python
import sys
sys.path.insert(0, "dev")
from asmlib import pad_hazards

NAME = "gated_mix__mha_block_cached__dense_activation_relu__decode_kernel"
HEADER = open("gated_mix__mha_block_cached__dense_activation_relu__decode.s.ref").read().split("; Override launch")[0]

WS_ST = 0x1F0000
WS_H = 0x8000
WS_Q = 0x40000
WS_O = 0x80000
WS_Y = 0x100000
WS_DBG = 0x400000
WS_SIZE = 268435456
L_W = 0x0000
L_W1 = 0x4000
L_RED1 = 0x0000
L_X = 0x6000
L_Q = 0x6800
L_H = 0x6A00
L_G = 0x6A40
L_FLAG = 0x6A80
L_WST = 0x6AC0
L_FIN = 0x6C00
L_OL = 0x6B00
L_PW = 0x7000
L_RED2 = 0x8000
LDS_MIN = L_RED2 + 8 * 2048
TAGC = 0x9E3779B9
SPIN_MAX = 1 << 18
DPPF = "row_mask:0xf bank_mask:0xf"
CEXP = "0x3db8aa3b"

def gen(LIM=2, LIMV=None, NQ=24, CQ=3, CP=3, R=33, NF=62, dbg=False, hdbg=False, diag=None,
        psleep=2, osleep=0, fsleep=0, svc=9, kflags="nt", wflags="nt", lds=None, LE=None, NG=12, NS=46, rot=None, early=False, dbase=10000, pp=1, pgap=8, wsb=0, diag2=None, xmap=0, spread=0, LP=None, kmap=0, ofl=''):
    if LIMV is None: LIMV = LIM
    WS_ST, WS_H, WS_Q, WS_O, WS_Y = (x + wsb for x in (0x1F0000, 0x8000, 0x40000, 0x80000, 0x100000))
    L = []
    A = lambda s: L.append("  " + s)
    lab = lambda s: L.append(s + ":")
    def srd(d, p, nbytes):
        A(f"s_mov_b32 s{d}, s{p}"); A(f"s_mov_b32 s{d+1}, s{p+1}"); A(f"s_mov_b32 s{d+2}, {nbytes}"); A(f"s_mov_b32 s{d+3}, 0x20000")
    SK, SV, SWO, SWS, SWQ, SW1, SW2, SX, SG, SO = 40, 44, 48, 52, 56, 60, 64, 68, 72, 76
    WSR = f"s[{SWS}:{SWS+3}]"
    if diag is not None: hdbg = True
    if diag2 is not None: dbg = True
    if hdbg: dbg = True
    def stamp(idx):
        if dbg:
            A("s_memrealtime s[90:91]"); A("s_waitcnt lgkmcnt(0)"); A(f"v_writelane_b32 v167, s90, {idx}")
    def dump_stamps(service=False):
        if hdbg:
            A("s_mov_b32 s92, s36"); A("s_mov_b32 s93, s37"); A("s_mov_b32 s94, 256"); A("s_mov_b32 s95, 0x20000")
            A("v_not_b32 v165, v167"); A("v_cmp_eq_u32 vcc, 0, v1"); A("v_cndmask_b32 v167, v167, v165, vcc")
            A("v_lshlrev_b32 v166, 2, v1")
            if service: A("v_add_u32 v166, 64, v166"); A("s_mov_b64 exec, 0x3e")
            else: A("s_mov_b64 exec, 0xffff")
            A("buffer_atomic_umax v167, v166, s[92:95], 0 offen"); A("s_mov_b64 exec, -1")
        elif dbg:
            if diag2 is not None and not service:
                tg = "s" if service else "m"
                A("s_add_u32 s84, s88, 4500"); lab(f"L_dd_{tg}"); A("s_sleep 8")
                A("s_memrealtime s[90:91]"); A("s_waitcnt lgkmcnt(0)"); A("s_sub_u32 s85, s90, s84"); A("s_cmp_lt_i32 s85, 0"); A(f"s_cbranch_scc1 L_dd_{tg}")
            A("s_mul_i32 s92, s2, 9"); A("s_add_u32 s92, s92, s93"); A("s_lshl_b32 s92, s92, 8"); A(f"s_add_u32 s92, s92, {WS_DBG}")
            A("v_lshlrev_b32 v166, 2, v1"); A(f"buffer_store_dword v167, v166, {WSR}, s92 offen sc1")
    if dbg: R = min(R, 32)
    def spin_tail(label, sleep):
        if sleep: A(f"s_sleep {sleep}")
        A("s_sub_u32 s80, s80, 1"); A("s_cmp_lg_u32 s80, 0"); A(f"s_cbranch_scc1 {label}")
    def lds_wait(off, val, tag, ta, tb, sleep=1, cmp="eq"):
        A(f"v_mov_b32 v{ta}, 0"); A(f"s_mov_b32 s80, {SPIN_MAX}")
        lab(f"L_wait_{tag}")
        A(f"ds_read_b32 v{tb}, v{ta} offset:{off}"); A("s_waitcnt lgkmcnt(0)"); A(f"v_readfirstlane_b32 s81, v{tb}")
        A(f"s_cmp_{cmp}_u32 s81, {val}"); A(f"s_cbranch_scc1 L_got_{tag}")
        spin_tail(f"L_wait_{tag}", sleep)
        lab(f"L_got_{tag}")
    def gather(tag, items, sleep, pool):
        if svc < {"q": 3, "h": 4, "st": 5}.get(tag, 0):
            A("s_waitcnt vmcnt(0)"); return
        assert len(pool) >= len(items)
        for (reg, va, so, imm, lo, hi), ms in zip(items, pool): A(f"s_mov_b32 s{ms}, {lo}"); A(f"s_mov_b32 s{ms+1}, {hi}")
        A(f"s_mov_b32 s80, {SPIN_MAX}")
        lab(f"L_g_{tag}")
        for k, ((reg, va, so, imm, lo, hi), ms) in enumerate(zip(items, pool)):
            A(f"s_mov_b64 exec, s[{ms}:{ms+1}]")
            if len(items) > 1: A(f"s_cbranch_execz L_g_{tag}_s{k}")
            A(f"buffer_load_dwordx4 v[{reg}:{reg+3}], v{va}, {WSR}, {so} offen offset:{imm} sc1")
            if len(items) > 1: lab(f"L_g_{tag}_s{k}")
        A("s_waitcnt vmcnt(0)")
        for k, ((reg, va, so, imm, lo, hi), ms) in enumerate(zip(items, pool)):
            if len(items) > 1: A(f"s_mov_b64 exec, s[{ms}:{ms+1}]")
            A(f"v_cmp_ne_u32 vcc, s12, v{reg+1}"); A(f"v_cmp_ne_u32 s[{ms}:{ms+1}], s12, v{reg+3}")
            A(f"s_or_b64 s[{ms}:{ms+1}], s[{ms}:{ms+1}], vcc")
            if k == 0: A(f"s_mov_b64 s[14:15], s[{ms}:{ms+1}]")
            else: A(f"s_or_b64 s[14:15], s[14:15], s[{ms}:{ms+1}]")
        A("s_cmp_eq_u64 s[14:15], 0"); A(f"s_cbranch_scc1 L_g_{tag}_ok")
        spin_tail(f"L_g_{tag}", sleep)
        lab(f"L_g_{tag}_ok")
        A("s_mov_b64 exec, -1")

    def poll_issue(sets, k, items):
        for j, (va, so, imm) in enumerate(items):
            r = sets[k] + 4 * j
            A(f"buffer_load_dwordx4 v[{r}:{r+3}], v{va}, {WSR}, {so} offen offset:{imm} sc1")
    def poll_loop(tag, sets, items, first):
        n = len(sets); ni = len(items)
        for k in range(1, n):
            if pgap: A(f"s_sleep {pgap}")
            poll_issue(sets, k, items)
        A(f"s_mov_b32 s80, {SPIN_MAX}")
        lab(f"L_p_{tag}")
        for k in range(n):
            A(f"s_waitcnt vmcnt({(n - 1) * ni})")
            for j in range(ni):
                r = sets[k] + 4 * j
                A(f"v_cmp_ne_u32 {'vcc' if j == 0 else 's[84:85]'}, s12, v{r+1}"); A(f"v_cmp_ne_u32 s[{82 + 4 * j}:{83 + 4 * j}], s12, v{r+3}")
            if ni == 2: A("s_or_b64 vcc, vcc, s[84:85]"); A("s_or_b64 vcc, vcc, s[86:87]")
            A("s_or_b64 vcc, vcc, s[82:83]")
            A(f"s_cbranch_scc0 L_p_{tag}_ok{k}")
            poll_issue(sets, k, items)
        A("s_sub_u32 s80, s80, 1"); A("s_cmp_lg_u32 s80, 0"); A(f"s_cbranch_scc1 L_p_{tag}")
        A("s_waitcnt vmcnt(0)")
        for k in range(n):
            lab(f"L_p_{tag}_ok{k}")
            first(sets[k])
            if k < n - 1: A(f"s_branch L_p_{tag}_done")
        lab(f"L_p_{tag}_done")
        A("s_nop 1")

    if dbg and early: A("s_memrealtime s[88:89]")
    A("s_cmp_ge_u32 s2, 256"); A("s_cbranch_scc1 L_end")
    A("s_load_dwordx16 s[16:31], s[0:1], 0")
    A("s_load_dwordx8 s[32:39], s[0:1], 64")
    A("v_lshrrev_b32 v2, 6, v0"); A("v_and_b32 v1, 63, v0")
    A("v_readfirstlane_b32 s3, v2")
    A("s_and_b32 s14, s2, 7"); A("s_lshr_b32 s15, s2, 3")
    if xmap: A(f"s_xor_b32 s14, s14, {xmap}")
    if spread:
        mk = (1 << spread) - 1
        sh = 3 - spread
        A(f"s_lshr_b32 s4, s14, {sh}"); A(f"s_and_b32 s5, s15, {mk}"); A("s_xor_b32 s6, s4, s5")
        A("s_xor_b32 s15, s15, s6"); A(f"s_lshl_b32 s6, s6, {sh}"); A("s_xor_b32 s14, s14, s6")
    A("s_lshr_b32 s4, s15, 4")
    A("s_bfe_u32 s5, s15, 0x10003"); A("s_lshl_b32 s14, s14, 1"); A("s_add_u32 s5, s5, s14")
    A("s_and_b32 s6, s15, 7")
    A("s_lshl_b32 s7, s4, 4"); A("s_add_u32 s7, s7, s5")
    A("s_lshl_b32 s10, s5, 3"); A("s_add_u32 s10, s10, s6")
    if dbg:
        A("s_mov_b32 s93, s3"); A("v_mov_b32 v167, 0")
        if not early: A("s_memrealtime s[88:89]")
    A("s_cmp_eq_u32 s3, 0"); A("s_cbranch_scc1 L_service")

    A("s_sub_u32 s3, s3, 1")
    vK, vV, vWo, vW2, t0, t1 = 2, 3, 4, 5, 6, 7
    M = [8, 9, 10, 11]; Q = [12, 16]; DB = [20, 24]; AB = [20, 24]; SG_ = [28, 29, 30, 31]; ACC = 32
    vMW = 12; vE = [13, 14, 15, 16]; vLW = 17
    RING = 36
    A(f"v_bfe_u32 v{t0}, v1, 2, 2"); A(f"v_lshlrev_b32 v{vK}, 9, v{t0}")
    A(f"v_lshrrev_b32 v{t0}, 4, v1"); A(f"v_lshl_add_u32 v{vK}, v{t0}, 6, v{vK}")
    A(f"v_and_b32 v{t0}, 3, v1"); A(f"v_lshl_add_u32 v{vK}, v{t0}, 4, v{vK}")
    wsh, ssh, BSTEP = {0: (12, 18, 32768), 1: (12, 15, 262144), 2: (15, 12, 262144)}[kmap]
    A("s_lshl_b32 s8, s7, 21"); A(f"s_lshl_b32 s14, s3, {wsh}"); A("s_add_u32 s8, s8, s14")
    A(f"s_lshl_b32 s14, s6, {ssh}"); A("s_add_u32 s8, s8, s14")
    A(f"v_add_u32 v{vK}, s8, v{vK}")
    A("s_waitcnt lgkmcnt(0)")
    srd(SK, 18, 0x4000000)

    loads = [("K", beta, tp, jh) for beta in range(8) for tp in range(2) for jh in range(2)]
    loads += [("V", beta, tp, kp) for beta in range(8) for tp in range(2) for kp in range(2)]
    loads += [("F", cb) for cb in range(2)] + [("W", r, cb) for r in range(2) for cb in range(2)]
    free = list(range(R)); slot = {}
    nissued = [0]; landed = [-1]; cur_soff = [None]
    if rot:
        A(f"s_mul_i32 s11, s2, {rot}"); A("s_lshr_b32 s14, s2, 3"); A("s_add_u32 s11, s11, s14"); A("s_and_b32 s11, s11, 7"); A("s_lshl_b32 s11, s11, 15")
    def soff(val):
        if val == 0 and not rot: return "0"
        if cur_soff[0] != val:
            if rot: A(f"s_add_u32 s13, s11, {val}"); A("s_and_b32 s13, s13, 0x3ffff")
            else: A(f"s_mov_b32 s13, {val}")
            cur_soff[0] = val
        return "s13"
    def wait_landed(n):
        if n <= landed[0]: return
        A(f"s_waitcnt vmcnt({nissued[0] - 1 - n})"); landed[0] = n
    def issue(n):
        ld = loads[n]; sl = free.pop(0); slot[n] = sl; r = RING + 4 * sl
        if ld[0] == "K":
            A(f"buffer_load_dwordx4 v[{r}:{r+3}], v{vK}, s[{SK}:{SK+3}], {soff(ld[1] * BSTEP)} offen offset:{ld[2] * 2048 + ld[3] * 256} {kflags}")
        elif ld[0] == "V":
            A(f"buffer_load_dwordx4 v[{r}:{r+3}], v{vV}, s[{SV}:{SV+3}], {soff(ld[1] * BSTEP)} offen offset:{ld[2] * 2048 + ld[3] * 1024} {kflags}")
        elif ld[0] == "W":
            A(f"buffer_load_dwordx4 v[{r}:{r+3}], v{vWo}, s[{SWO}:{SWO+3}], 0 offen offset:{ld[1] * 896 + ld[2] * 512} {wflags}")
        else:
            A(f"buffer_load_dwordx4 v[{r}:{r+3}], v{vW2}, s[{SW2}:{SW2+3}], 0 offen offset:{ld[1] * 512} {wflags}")
        nissued[0] += 1
    sreg = lambda n: RING + 4 * slot[n]
    qk_next = [0]; qk_post = [None]; pv_next = [0]; pslot = {}
    def qk_dpp(tau):
        beta, tp = tau >> 1, tau & 1; G = beta >> 1; t = 2 * (beta & 1) + tp; d = DB[tau & 1]
        A(f"v_mov_b32_dpp v{t0}, v{d} quad_perm:[0,0,0,0] {DPPF}")
        A(f"v_add_f32_dpp v{t0}, v{d+1}, v{t0} quad_perm:[1,1,1,1] {DPPF}")
        A(f"v_add_f32_dpp v{t0}, v{d+2}, v{t0} quad_perm:[2,2,2,2] {DPPF}")
        A(f"v_add_f32_dpp v{SG_[G]}, v{d+3}, v{t0} quad_perm:[3,3,3,3] row_mask:0xf bank_mask:{hex(1 << t)}")
    def qk_tile(tau):
        d = DB[tau & 1]; a0 = sreg(2 * tau); a1 = sreg(2 * tau + 1)
        A(f"v_mfma_f32_16x16x32_bf16 v[{d}:{d+3}], v[{a0}:{a0+3}], v[{Q[0]}:{Q[0]+3}], 0")
        A(f"v_mfma_f32_16x16x32_bf16 v[{d}:{d+3}], v[{a1}:{a1+3}], v[{Q[1]}:{Q[1]+3}], v[{d}:{d+3}]")
        free.extend([slot[2 * tau], slot[2 * tau + 1]])
        if qk_post[0] is not None: qk_dpp(qk_post[0])
        qk_post[0] = tau
    def red_hi(op, v, t):
        for ctl in ("row_ror:4", "row_ror:8"): A(f"v_{op}_f32_dpp v{v}, v{v}, v{v} {ctl} {DPPF}")
        for sw in ("v_permlane16_swap_b32", "v_permlane32_swap_b32"):
            A(f"v_mov_b32 v{t}, v{v}"); A(f"{sw} v{v}, v{t}"); A(f"v_{op}_f32 v{v}, v{v}, v{t}")
    def sm_a():
        qk_dpp(qk_post[0]); qk_post[0] = None
        S = SG_
        A(f"v_cvt_pk_bf16_f32 v{t0}, v{S[0]}, v{S[1]}"); A(f"v_cvt_pk_bf16_f32 v{t1}, v{S[2]}, v{S[3]}")
        A(f"v_lshlrev_b32 v{S[0]}, 16, v{t0}"); A(f"v_and_b32 v{S[1]}, 0xffff0000, v{t0}")
        A(f"v_lshlrev_b32 v{S[2]}, 16, v{t1}"); A(f"v_and_b32 v{S[3]}, 0xffff0000, v{t1}")
        A(f"v_max3_f32 v{vMW}, v{S[0]}, v{S[1]}, v{S[2]}"); A(f"v_max_f32 v{vMW}, v{vMW}, v{S[3]}")
        red_hi("max", vMW, t0)
    def sm_b():
        S = SG_
        A(f"s_mov_b32 s81, {CEXP}"); A(f"v_mul_f32 v{vMW}, s81, v{vMW}")
        for k in range(4): A(f"v_fma_f32 v{vE[k]}, v{S[k]}, s81, -v{vMW}")
        for k in range(4): A(f"v_exp_f32 v{vE[k]}, v{vE[k]}")
        A("s_lshl_b32 s14, s3, 8"); A(f"v_lshl_add_u32 v{t1}, v1, 2, s14")
        for k in range(4): A(f"v_cvt_pk_bf16_f32 v{S[k]}, v{vE[k]}, v{vE[k]}")
        A("s_mov_b32 exec_lo, 0x11111111"); A("s_mov_b32 exec_hi, 0x11111111")
        A(f"ds_write_b128 v{t1}, v[{S[0]}:{S[3]}] offset:{L_PW}")
        A("s_mov_b64 exec, -1")
        A(f"v_lshrrev_b32 v{t1}, 5, v1"); A(f"v_lshl_add_u32 v{t1}, v{t1}, 6, s14")
        for t in range(4):
            for kp in range(2):
                sl = free.pop(0); pslot[(t, kp)] = sl; r = RING + 4 * sl
                A(f"ds_read_b128 v[{r}:{r+3}], v{t1} offset:{L_PW + (8 * kp + t) * 16}")
        A(f"v_add_f32 v{vLW}, v{vE[0]}, v{vE[1]}"); A(f"v_add_f32 v{t0}, v{vE[2]}, v{vE[3]}"); A(f"v_add_f32 v{vLW}, v{vLW}, v{t0}")
    def sm_c():
        red_hi("add", vLW, t0)
        A(f"v_mov_b32 v{vMW+1}, v{vLW}")
        A("s_lshl_b32 s14, s3, 3"); A(f"v_mov_b32 v{t0}, s14"); A(f"v_mov_b32 v{t1}, 1"); A(f"v_mov_b32 v{vE[2]}, 0")
        A("s_mov_b64 exec, 1")
        A(f"ds_write_b64 v{t0}, v[{vMW}:{vMW+1}] offset:{L_WST}")
        A(f"ds_add_u32 v{vE[2]}, v{t1} offset:{L_FLAG + 8}")
        A("s_mov_b64 exec, -1")
        A("s_waitcnt lgkmcnt(0)")
        stamp(3)
    def pv_tile(m):
        beta, tp, kp = m >> 2, (m >> 1) & 1, m & 1; G = beta >> 1; t = 2 * (beta & 1) + tp
        a = AB[m & 1]; p = RING + 4 * pslot[(t, kp)] + G; bv = sreg(32 + m)
        for r in range(4): A(f"v_and_b32 v{a+r}, v{p}, v{M[r]}")
        c = "0" if m == 0 else f"v[{ACC}:{ACC+3}]"
        A(f"v_mfma_f32_16x16x32_bf16 v[{ACC}:{ACC+3}], v[{a}:{a+3}], v[{bv}:{bv+3}], {c}")
        free.append(slot[32 + m])
    vFS = 18; vHP = 19
    GG = 14
    def fetch_stats():
        stamp(4); lds_wait(L_FLAG + 4, 1, "st", t0, t1); stamp(5)
        A(f"ds_read_b128 v[14:17], v{t0} offset:{L_G}")
        A(f"v_lshrrev_b32 v{t1}, 5, v1"); A("s_lshl_b32 s14, s3, 3"); A(f"v_lshl_add_u32 v{t1}, v{t1}, 2, s14")
        A(f"ds_read_b32 v{vHP}, v{t1} offset:{L_H}")
        A("s_waitcnt lgkmcnt(0)")
        A(f"v_add_f32 v{vFS}, v{vMW}, v16"); A(f"v_exp_f32 v{vFS}, v{vFS}"); A(f"v_mul_f32 v{vFS}, v{vFS}, v17")

    N = len(loads); chunks = [sm_a, sm_b, sm_c]; sm_done = False
    for n in range(N):
        if n < 64:
            lim = LIM if n < 32 else LIMV
            if LP: lim = LP[n % len(LP)]
            if LE and n >= LE[0]: lim = LE[1]
            if n > max(lim, LIM): wait_landed(n - lim - 1)
        if n in (LIM + 1, 8, 16, 48): stamp({LIM + 1: 12, 8: 13, 16: 14, 48: 15}[n])
        if n == NQ:
            stamp(1)
            lds_wait(L_FLAG, 1, "q", t0, t1)
            A(f"v_lshrrev_b32 v{t0}, 4, v1"); A(f"v_and_b32 v{t1}, 3, v1"); A(f"v_lshl_add_u32 v{t0}, v{t0}, 2, v{t1}"); A(f"v_lshlrev_b32 v{t0}, 4, v{t0}")
            A(f"ds_read_b128 v[{Q[0]}:{Q[0]+3}], v{t0} offset:{L_Q}")
            A(f"ds_read_b128 v[{Q[1]}:{Q[1]+3}], v{t0} offset:{L_Q + 256}")
            A(f"v_mov_b32 v{t0}, 0"); A(f"ds_read_b32 v{t1}, v{t0} offset:{L_G + 16}")
            A("s_waitcnt lgkmcnt(0)"); A(f"v_readfirstlane_b32 s12, v{t1}")
            stamp(2)
        assert free, f"no free slot at load {n}"
        issue(n)
        if n == LIM:
            srd(SV, 20, 0x4000000); srd(SWO, 24, 3670016); srd(SW2, 30, 1605632); srd(SWS, 38, WS_SIZE)
            A("s_barrier")
            A(f"v_lshl_add_u32 v{vV}, v1, 4, s8")
            A(f"v_and_b32 v{t0}, 31, v1"); A(f"v_lshlrev_b32 v{t0}, 4, v{t0}"); A(f"v_lshrrev_b32 v{t1}, 5, v1")
            A(f"v_mul_u32_u24 v{vWo}, 1792, v{t1}"); A(f"v_add_u32 v{vWo}, v{vWo}, v{t0}")
            A(f"v_mul_u32_u24 v{vW2}, 896, v{t1}"); A(f"v_add_u32 v{vW2}, v{vW2}, v{t0}")
            A("s_lshl_b32 s14, s10, 5"); A("s_lshl_b32 s15, s3, 2"); A("s_add_u32 s14, s14, s15"); A("s_mul_i32 s14, s14, 896")
            A(f"v_add_u32 v{vWo}, s14, v{vWo}")
            A("s_lshl_b32 s14, s10, 4"); A("s_lshl_b32 s15, s3, 1"); A("s_add_u32 s14, s14, s15"); A("s_mul_i32 s14, s14, 896")
            A(f"v_add_u32 v{vW2}, s14, v{vW2}")
            masks(A, M, t0, t1); mask_prime(A, M, t0, t1)
            if dbg: A("s_waitcnt lgkmcnt(0)"); A("v_writelane_b32 v167, s88, 0")
        if n >= NQ and not sm_done:
            c = 0
            while qk_next[0] < 16 and c < CQ and 2 * qk_next[0] + 1 <= landed[0]:
                qk_tile(qk_next[0]); qk_next[0] += 1; c += 1
            if qk_next[0] == 16:
                chunks.pop(0)()
                sm_done = not chunks
        elif sm_done:
            c = 0
            while pv_next[0] < 32 and c < CP and 32 + pv_next[0] <= landed[0]:
                pv_tile(pv_next[0]); pv_next[0] += 1; c += 1
        if n == NF: fetch_stats()
        if n in (NG, NS):
            A(f"v_mov_b32 v{t0}, 0"); A(f"v_mov_b32 v{t1}, {1 if n == NG else 2}")
            A("s_mov_b64 exec, 1"); A(f"ds_max_u32 v{t0}, v{t1} offset:{L_FLAG + 12}"); A("s_mov_b64 exec, -1")
    assert sm_done
    vRw, vO, vY = vK, vV, vWo
    red2_lane(A, vRw, t0)
    A("s_lshl_b32 s14, s3, 10"); A(f"v_add_u32 v{vW2}, s14, v{vRw}")
    A("s_lshl_b32 s14, s3, 11"); A(f"s_add_u32 s14, s14, {L_RED2}"); A(f"v_add_u32 v{vRw}, s14, v{vRw}")
    A("s_lshl_b32 s14, s3, 6"); A(f"v_add_u32 v{vY}, s14, v1")
    A(f"v_lshrrev_b32 v{t0}, 4, v{vY}"); A(f"v_lshlrev_b32 v{vO}, 11, v{t0}"); A(f"v_and_b32 v{t0}, 15, v1"); A(f"v_lshl_add_u32 v{vO}, v{t0}, 4, v{vO}")
    A("s_lshl_b32 s9, s7, 14"); A(f"s_add_u32 s9, s9, {WS_O}"); A("s_lshl_b32 s14, s6, 8"); A("s_add_u32 s11, s9, s14")
    A("s_lshl_b32 s14, s6, 11"); A("s_add_u32 s9, s9, s14")
    while pv_next[0] < 32:
        wait_landed(32 + pv_next[0]); pv_tile(pv_next[0]); pv_next[0] += 1
    stamp(6)
    A(f"v_lshlrev_b32 v{t0}, 3, v{vY}")
    for k in range(4): A(f"v_mul_f32 v{ACC+k}, v{vFS}, v{ACC+k}")
    A(f"ds_write_b128 v{vW2}, v[{ACC}:{ACC+3}] offset:{L_RED1}")
    A("s_waitcnt lgkmcnt(0)"); A("s_barrier")
    fr = [RING + 4 * s_ for s_ in sorted(free + list(pslot.values()))]
    run = [r for r in fr if all(r + 4 * k in fr for k in range(4))][0]
    rest = [r for r in fr if not run <= r < run + 16]
    FS = []
    for _ in range(pp):
        r = [r for r in rest if r + 4 in rest][0]; FS.append(r); rest.remove(r); rest.remove(r + 4)
    PS = rest[:pp]; assert len(PS) == pp
    Y = run; U = 20
    A("s_cmp_ge_u32 s3, 2"); A("s_cbranch_scc1 L_odone")
    for k in range(8): A(f"ds_read_b64 v[{Y+2*k}:{Y+2*k+1}], v{t0} offset:{L_RED1 + 1024 * k}")
    A(f"v_mov_b32 v{U+1}, s12"); A(f"v_mov_b32 v{U+3}, s12")
    A("s_waitcnt lgkmcnt(0)")
    for st in (1, 2):
        for k in range(0, 8, 2 * st):
            for c_ in range(2): A(f"v_add_f32 v{Y+2*k+c_}, v{Y+2*k+c_}, v{Y+2*(k+st)+c_}")
    A(f"v_add_f32 v{U}, v{Y}, v{Y+8}"); A(f"v_add_f32 v{U+2}, v{Y+1}, v{Y+9}")
    A(f"buffer_store_dwordx4 v[{U}:{U+3}], v{vO}, {WSR}, s11 offen sc1")
    lab("L_odone")
    stamp(7)
    OG = 28; DA, DBb = Y, Y + 4
    for q in range(4): A(f"v_and_b32 v{ACC+q}, v{vHP}, v{M[q]}")
    A(f"v_add_u32 v{t0}, {L_RED2}, v{t0}")
    A(f"v_lshrrev_b32 v{t1}, 5, v1"); A("s_lshl_b32 s14, s3, 4"); A(f"v_lshl_add_u32 v{t1}, v{t1}, 3, s14")
    A("s_waitcnt vmcnt(4)")
    for cb, d in ((0, DA), (1, DBb)):
        bw = sreg(64 + cb); A(f"v_mfma_f32_16x16x32_bf16 v[{d}:{d+3}], v[{ACC}:{ACC+3}], v[{bw}:{bw+3}], 0")
    for k in range(8): A(f"v_mul_f32 v{DA+k}, v15, v{DA+k}")
    A("s_cmp_lg_u32 s3, 2"); A("s_cbranch_scc1 L_onopoll")
    P0, P1 = FS[0], FS[0] + 4
    A(f"v_and_b32 v{ACC}, 15, v1"); A(f"v_bfe_u32 v{vO}, v1, 4, 1"); A(f"v_lshl_add_u32 v{ACC}, v{ACC}, 1, v{vO}"); A(f"v_lshlrev_b32 v{ACC}, 2, v{ACC}")
    A(f"v_lshlrev_b32 v{vO}, 4, v1")
    gather("o", [(P0, vO, "s9", 0, -1, -1), (P1, vO, "s9", 1024, -1, -1)], osleep, [82, 84])
    A(f"v_add_f32 v{P0}, v{P0}, v{P1}"); A(f"v_add_f32 v{P0+2}, v{P0+2}, v{P1+2}")
    A(f"v_permlane16_swap_b32 v{P0}, v{P0+2}"); A(f"v_add_f32 v{P0}, v{P0}, v{P0+2}")
    A(f"v_mov_b32 v{P0+2}, v{P0}"); A(f"v_permlane32_swap_b32 v{P0}, v{P0+2}"); A(f"v_add_f32 v{P0}, v{P0}, v{P0+2}")
    A(f"v_cvt_pk_bf16_f32 v{P0}, v{P0}, v{P0}")
    A(f"ds_write_b32 v{ACC}, v{P0} offset:{L_OL}")
    lab("L_onopoll")
    A("s_cmp_lt_u32 s3, 2"); A("s_cbranch_scc1 L_ow1"); A("s_waitcnt vmcnt(0)"); lab("L_ow1"); A("s_waitcnt vmcnt(1) lgkmcnt(0)")
    A("s_barrier")
    A(f"ds_read_b64 v[{OG}:{OG+1}], v{t1} offset:{L_OL}")
    stamp(8)
    A("s_waitcnt lgkmcnt(0)")
    for r in range(2):
        for q in range(4): A(f"v_and_b32 v{AB[r]+q}, v{OG+r}, v{M[q]}")
    for r in range(2):
        for cb, d in ((0, DA), (1, DBb)):
            bw = sreg(66 + 2 * r + cb)
            A(f"v_mfma_f32_16x16x32_bf16 v[{d}:{d+3}], v[{AB[r]}:{AB[r]+3}], v[{bw}:{bw+3}], v[{d}:{d+3}]")
    A(f"ds_write_b128 v{vRw}, v[{DA}:{DA+3}]"); A(f"ds_write_b128 v{vRw}, v[{DBb}:{DBb+3}] offset:1024")
    A("s_waitcnt lgkmcnt(0)"); A("s_barrier")
    A("s_cmp_ge_u32 s3, 4"); A("s_cbranch_scc1 L_ydone")
    for k in range(8): A(f"ds_read_b64 v[{Y+2*k}:{Y+2*k+1}], v{t0} offset:{2048 * k}")
    A(f"v_cmp_gt_u32 vcc, 224, v{vY}")
    A(f"v_lshrrev_b32 v{t1}, 3, v{vY}"); A(f"v_lshlrev_b32 v{vO}, 14, v{t1}")
    A(f"v_and_b32 v{t1}, 7, v1"); A(f"v_lshl_add_u32 v{vO}, v{t1}, 4, v{vO}")
    A(f"s_mul_i32 s14, s4, {28 * 16384}"); A("s_lshl_b32 s15, s10, 7"); A("s_add_u32 s14, s14, s15"); A(f"s_add_u32 s14, s14, {WS_Y}")
    A(f"v_mov_b32 v{U+1}, s12"); A(f"v_mov_b32 v{U+3}, s12")
    A("s_waitcnt lgkmcnt(0)")
    for st in (1, 2):
        for k in range(0, 8, 2 * st):
            for c_ in range(2): A(f"v_add_f32 v{Y+2*k+c_}, v{Y+2*k+c_}, v{Y+2*(k+st)+c_}")
    A(f"v_add_f32 v{U}, v{Y}, v{Y+8}"); A(f"v_add_f32 v{U+2}, v{Y+1}, v{Y+9}")
    A("s_and_saveexec_b64 s[82:83], vcc")
    A(f"buffer_store_dwordx4 v[{U}:{U+3}], v{vO}, {WSR}, s14 offen sc1")
    A("s_mov_b64 exec, s[82:83]")
    lab("L_ydone")
    stamp(9)
    A("s_cmp_ge_u32 s2, 56"); A("s_cbranch_scc1 L_fin_skip")
    A("s_lshl_b32 s13, s2, 14"); A("s_lshl_b32 s15, s3, 11"); A("s_add_u32 s13, s13, s15"); A(f"s_add_u32 s13, s13, {WS_Y}")
    A(f"v_lshlrev_b32 v{t0}, 4, v1")
    F = 24
    gather("fin", [(F, t0, "s13", 0, -1, -1), (F + 4, t0, "s13", 1024, -1, -1)], fsleep, [82, 84])
    srd(SO, 34, 1792)
    A(f"v_add_f32 v{F}, v{F}, v{F+4}"); A(f"v_add_f32 v{F+2}, v{F+2}, v{F+6}")
    stamp(10)
    A(f"v_add_f32_dpp v{F}, v{F}, v{F} row_ror:8 {DPPF}"); A(f"v_add_f32_dpp v{F+2}, v{F+2}, v{F+2} row_ror:8 {DPPF}")
    A(f"v_permlane16_swap_b32 v{F}, v{F+2}"); A(f"v_add_f32 v{F}, v{F}, v{F+2}")
    A(f"v_mov_b32 v{F+2}, v{F}"); A(f"v_permlane32_swap_b32 v{F}, v{F+2}"); A(f"v_add_f32 v{F}, v{F}, v{F+2}")
    A(f"v_and_b32 v{t0}, 7, v1"); A(f"v_bfe_u32 v{t1}, v1, 4, 1"); A(f"v_lshl_add_u32 v{t0}, v{t0}, 1, v{t1}")
    A(f"v_lshlrev_b32 v{t0}, 5, v{t0}"); A("s_lshl_b32 s14, s3, 2"); A(f"v_add_u32 v{t0}, s14, v{t0}")
    A("s_mov_b32 exec_lo, 0x00ff00ff"); A("s_mov_b32 exec_hi, 0")
    A(f"ds_write_b32 v{t0}, v{F} offset:{L_FIN}")
    A("s_mov_b64 exec, -1")
    A("s_waitcnt lgkmcnt(0)"); A("s_barrier")
    A("s_cmp_lg_u32 s3, 0"); A("s_cbranch_scc1 L_fin_skip")
    A(f"v_and_b32 v{t0}, 15, v1"); A(f"v_lshlrev_b32 v{t1}, 5, v{t0}")
    A(f"ds_read_b128 v[{F}:{F+3}], v{t1} offset:{L_FIN}"); A(f"ds_read_b128 v[{F+4}:{F+7}], v{t1} offset:{L_FIN + 16}")
    A(f"v_lshlrev_b32 v{t0}, 1, v{t0}"); A("s_lshl_b32 s14, s2, 5")
    A("s_waitcnt lgkmcnt(0)")
    for st in (1, 2, 4):
        for k in range(0, 8, 2 * st): A(f"v_add_f32 v{F+k}, v{F+k}, v{F+k+st}")
    A(f"v_cvt_pk_bf16_f32 v{F}, v{F}, v{F}")
    A("s_mov_b64 exec, 0xffff")
    A(f"buffer_store_short v{F}, v{t0}, s[{SO}:{SO+3}], s14 offen {ofl}")
    A("s_cmp_lg_u32 s2, 0"); A("s_cbranch_scc1 L_fin_noep")
    A("s_mov_b64 exec, 1"); A(f"v_mov_b32 v{t0}, 0"); A(f"v_mov_b32 v{t1}, s12")
    A(f"s_mov_b32 s13, {wsb}"); A(f"buffer_store_dword v{t1}, v{t0}, {WSR}, s13 offen {ofl}")
    lab("L_fin_noep")
    A("s_mov_b64 exec, -1")
    lab("L_fin_skip")
    stamp(11)
    dump_stamps()
    if diag2 is not None:
        role, kk, op = diag2
        A("s_cmp_lg_u32 s2, 0"); A("s_cbranch_scc1 L_diag_end"); A("s_cmp_lg_u32 s3, 0"); A("s_cbranch_scc1 L_diag_end")
        A("s_add_u32 s84, s88, 7000"); lab("L_diag1"); A("s_sleep 8")
        A("s_memrealtime s[90:91]"); A("s_waitcnt lgkmcnt(0)"); A("s_sub_u32 s85, s90, s84"); A("s_cmp_lt_i32 s85, 0"); A("s_cbranch_scc1 L_diag1")
        A("v_mov_b32 v10, 0"); A("v_mov_b32 v11, -1"); A("v_mov_b32 v14, 0")
        nr = 4 if role else 32
        for r in range(nr):
            if role: A(f"v_add_u32 v12, {r * 64}, v1"); A("v_mul_u32_u24 v12, 2304, v12")
            else:
                A(f"v_lshrrev_b32 v12, 3, v1"); A(f"v_add_u32 v12, {r * 8}, v12"); A("v_mul_u32_u24 v12, 9, v12"); A("v_and_b32 v13, 7, v1"); A("v_add_u32 v12, v12, v13")
                A("v_add_u32 v12, 1, v12"); A("v_lshlrev_b32 v12, 8, v12")
            A(f"s_mov_b32 s13, {WS_DBG}")
            A(f"buffer_load_dword v8, v12, {WSR}, s13 offen sc1"); A(f"buffer_load_dword v9, v12, {WSR}, s13 offen offset:{4 * kk} sc1"); A("s_waitcnt vmcnt(0)")
            A("v_subrev_u32 v8, s88, v8"); A("v_add_u32 v8, 0x1000, v8"); A("v_min_u32 v11, v11, v8")
            A("v_cmp_ne_u32 vcc, 0, v9"); A("v_subrev_u32 v9, s88, v9"); A("v_add_u32 v9, 0x1000, v9"); A("v_cndmask_b32 v9, 0, v9, vcc")
            A("v_max_u32 v10, v10, v9"); A("v_add_u32 v14, v14, v9")
        if op == "mean": A(f"v_lshrrev_b32 v10, {2 if role else 5}, v14")
        for v, o in ((10, "add" if op == "mean" else "max"), (11, "min")):
            for ctl in ("quad_perm:[1,0,3,2]", "quad_perm:[2,3,0,1]", "row_half_mirror", "row_mirror"): A(f"v_{o}_u32_dpp v{v}, v{v}, v{v} {ctl} {DPPF}")
            for sw in ("v_permlane16_swap_b32", "v_permlane32_swap_b32"):
                A(f"v_mov_b32 v12, v{v}"); A(f"{sw} v{v}, v12"); A(f"v_{o}_u32 v{v}, v{v}, v12")
        if op == "mean": A("v_lshrrev_b32 v10, 6, v10")
        A("v_sub_u32 v10, v10, v11"); A("v_readfirstlane_b32 s85, v10"); A("s_lshl_b32 s85, s85, 2")
        if kk < 0: A("s_mov_b32 s85, 0")
        A("s_min_u32 s85, s85, 40000"); A(f"s_add_u32 s84, s88, {dbase}"); A("s_add_u32 s84, s84, s85")
        lab("L_diag2")
        A("s_memrealtime s[90:91]"); A("s_waitcnt lgkmcnt(0)"); A("s_sub_u32 s85, s90, s84"); A("s_cmp_lt_i32 s85, 0"); A("s_cbranch_scc1 L_diag2")
        lab("L_diag_end")
    if diag is not None:
        A("s_cmp_lg_u32 s2, 0"); A("s_cbranch_scc1 L_diag_end"); A("s_cmp_lg_u32 s3, 0"); A("s_cbranch_scc1 L_diag_end")
        A("s_add_u32 s84, s88, 7000")
        lab("L_diag1")
        A("s_memrealtime s[90:91]"); A("s_waitcnt lgkmcnt(0)"); A("s_sub_u32 s85, s90, s84"); A("s_cmp_lt_i32 s85, 0"); A("s_cbranch_scc1 L_diag1")
        A("v_lshlrev_b32 v166, 2, v1"); A("buffer_load_dword v165, v166, s[92:95], 0 offen sc1"); A("s_waitcnt vmcnt(0)")
        A("v_readlane_b32 s84, v165, 0"); A(f"v_readlane_b32 s85, v165, {max(diag, 0)}")
        A("s_not_b32 s84, s84"); A("s_sub_u32 s85, s85, s84"); A("s_lshl_b32 s85, s85, 2")
        if diag <= 0: A("s_mov_b32 s85, 0")
        A("s_min_u32 s85, s85, 40000"); A(f"s_add_u32 s84, s88, {dbase}"); A("s_add_u32 s84, s84, s85")
        lab("L_diag2")
        A("s_memrealtime s[90:91]"); A("s_waitcnt lgkmcnt(0)"); A("s_sub_u32 s85, s90, s84"); A("s_cmp_lt_i32 s85, 0"); A("s_cbranch_scc1 L_diag2")
        lab("L_diag_end")
    A("s_endpgm")

    lab("L_service")
    A("s_setprio 3")
    vL16, vQe, vQo, vFe, vFo, vXq, vXf = 2, 3, 4, 5, 6, 7, 8
    vTr = [9, 10, 11, 12]; a_, b_, c_, d_ = 14, 15, 16, 17; vG, vOG = 20, 21
    A(f"v_mov_b32 v{a_}, 0"); A(f"v_mov_b32 v{b_}, 0"); A(f"v_mov_b32 v{c_}, 0"); A(f"v_mov_b32 v{d_}, 0")
    A(f"ds_write_b128 v{a_}, v[{a_}:{d_}] offset:{L_FLAG}")
    A(f"v_lshlrev_b32 v{vL16}, 4, v1")
    A("s_and_b32 s8, s6, 3"); A("s_lshr_b32 s9, s6, 2"); A("s_lshl_b32 s14, s4, 1"); A("s_add_u32 s9, s9, s14")
    A("s_mul_i32 s11, s2, 9363"); A("s_lshr_b32 s11, s11, 16"); A("s_mul_i32 s14, s11, 7"); A("s_sub_u32 s81, s2, s14")
    A(f"v_bfe_u32 v{a_}, v1, 4, 1"); A(f"v_lshlrev_b32 v{a_}, 1, v{a_}"); A(f"v_and_b32 v{b_}, 7, v1"); A(f"v_xor_b32 v{a_}, v{a_}, v{b_}")
    A(f"v_xor_b32 v{b_}, 4, v{a_}"); A(f"v_lshrrev_b32 v{c_}, 3, v1")
    A(f"s_mul_i32 s14, s9, {112 * 8192}"); A("s_lshl_b32 s15, s5, 9"); A("s_add_u32 s14, s14, s15"); A("s_lshl_b32 s15, s8, 7"); A("s_add_u32 s14, s14, s15")
    A(f"v_lshl_add_u32 v{d_}, v{c_}, 13, s14")
    A(f"v_lshl_add_u32 v{vQe}, v{a_}, 4, v{d_}"); A(f"v_lshl_add_u32 v{vQo}, v{b_}, 4, v{d_}")
    A(f"s_mul_i32 s14, s81, {64 * 3584}"); A("s_lshl_b32 s15, s11, 7"); A("s_add_u32 s14, s14, s15")
    A(f"v_mul_u32_u24 v{d_}, 3584, v{c_}"); A(f"v_add_u32 v{d_}, s14, v{d_}")
    A(f"v_lshl_add_u32 v{vFe}, v{a_}, 4, v{d_}"); A(f"v_lshl_add_u32 v{vFo}, v{b_}, 4, v{d_}")
    A("s_waitcnt lgkmcnt(0)")
    A(f"s_mov_b32 s13, {wsb}"); A("s_load_dword s12, s[38:39], s13")
    srd(SX, 16, 1792); srd(SWQ, 22, 3670016); srd(SG, 32, 896); srd(SW1, 28, 1605632)
    A("s_cmp_lt_u32 s2, 196"); A(f"s_cselect_b32 s{SW1+2}, s{SW1+2}, 0")
    if svc == 0:
        for d in (SX, SWQ, SG, SW1): A(f"s_mov_b32 s{d+2}, 0")
    if svc == 0.5:
        for d in (SW1,): A(f"s_mov_b32 s{d+2}, 0")
    A(f"s_mov_b32 m0, {L_X}")
    for k in range(2): A(f"buffer_load_dwordx4 v{vL16}, s[{SX}:{SX+3}], 0 offen offset:{1024 * k} lds")
    for m in range(16):
        A(f"s_mov_b32 m0, {L_W + 1024 * m}")
        A(f"s_mov_b32 s13, {m * 65536 if m < 14 else 0x7f000000}")
        A(f"buffer_load_dwordx4 v{vQo if m & 1 else vQe}, s[{SWQ}:{SWQ+3}], s13 offen {wflags} lds")
    for m in range(8):
        A(f"s_mov_b32 m0, {L_W1 + 1024 * m}"); A(f"s_mov_b32 s13, {m * 8 * 3584}")
        A(f"buffer_load_dwordx4 v{vFo if m & 1 else vFe}, s[{SW1}:{SW1+3}], s13 offen {wflags} lds")
    GW = 24
    A(f"buffer_load_dwordx4 v[{GW}:{GW+3}], v{vL16}, s[{SG}:{SG+3}], 0 offen")
    A("s_barrier")
    srd(SWS, 38, WS_SIZE)
    A(f"v_and_b32 v{a_}, 1, v1"); A(f"v_mul_u32_u24 v{b_}, 896, v{a_}"); A(f"v_lshrrev_b32 v{a_}, 4, v1"); A(f"v_lshl_add_u32 v{b_}, v{a_}, 4, v{b_}")
    A("s_mul_i32 s14, s9, 224"); A(f"v_add_u32 v{vXq}, s14, v{b_}"); A("s_lshl_b32 s14, s81, 7"); A(f"v_add_u32 v{vXf}, s14, v{b_}")
    A(f"v_lshlrev_b32 v{b_}, 10, v{a_}"); A(f"v_bfe_u32 v{c_}, v1, 2, 2"); A(f"v_lshl_add_u32 v{b_}, v{c_}, 7, v{b_}")
    A(f"v_bfe_u32 v{c_}, v1, 1, 1"); A(f"v_lshl_add_u32 v{b_}, v{c_}, 4, v{b_}"); A(f"v_and_b32 v{c_}, 1, v1"); A(f"v_lshl_add_u32 v{b_}, v{c_}, 3, v{b_}")
    A(f"v_bfe_u32 v{c_}, v1, 3, 2")
    for cg in range(4):
        A(f"v_xor_b32 v{d_}, {cg}, v{c_}"); A(f"v_lshl_add_u32 v{vTr[cg]}, v{d_}, 5, v{b_}")
    A("s_lshl_b32 s8, s8, 9"); A("s_lshl_b32 s9, s9, 11"); A("s_add_u32 s8, s8, s9"); A("s_lshl_b32 s9, s5, 13"); A("s_add_u32 s8, s8, s9")
    A(f"s_add_u32 s8, s8, {WS_Q}"); A(f"s_add_u32 s9, s8, {16 * 8192}")
    A("s_lshl_b32 s11, s11, 12"); A("s_lshl_b32 s81, s81, 9"); A("s_add_u32 s11, s11, s81"); A(f"s_add_u32 s11, s11, {WS_H}")
    A("s_mov_b32 s82, 0xffff0000"); A("s_mov_b32 s83, 0"); A("s_mov_b32 s84, 0"); A("s_mov_b32 s85, 0xffff"); A("s_mov_b32 s86, 0"); A("s_mov_b32 s87, 0xffff0000")
    if dbg: A("s_waitcnt lgkmcnt(0)"); A("v_writelane_b32 v167, s88, 0")
    A("s_waitcnt lgkmcnt(0)"); A(f"s_add_u32 s12, s12, {TAGC}")
    XA = 28; TB = 56; D = 120; UQ = 136
    A("s_waitcnt vmcnt(25)")
    for m in range(4): A(f"ds_read_b128 v[{XA+4*m}:{XA+4*m+3}], v{vXq} offset:{L_X + 64 * m}")
    for m in range(2): A(f"ds_read_b128 v[{XA+16+4*m}:{XA+16+4*m+3}], v{vXf} offset:{L_X + 64 * m}")
    def gemv(img, steps, xa, vm_after):
        for m in range(steps):
            A(f"s_waitcnt vmcnt({vm_after + 4 * (steps - 1 - m)})")
            for cg in range(4):
                r = TB + 16 * m + 4 * cg
                A(f"ds_read_b64_tr_b16 v[{r}:{r+1}], v{vTr[cg]} offset:{img + 4096 * m}")
                A(f"ds_read_b64_tr_b16 v[{r+2}:{r+3}], v{vTr[cg]} offset:{img + 4096 * m + 512}")
            if m: mf(m - 1, xa, 8)
        mf(steps - 1, xa, 0)
        for bb in range(2):
            for cg in range(1, 4): A(f"v_cndmask_b32 v{D+bb}, v{D+bb}, v{D+4*cg+bb}, s[{80+2*cg}:{81+2*cg}]")
        for bb in range(2):
            A(f"v_mov_b32 v{UQ+4*bb}, v{D+bb}"); A(f"v_mov_b32_dpp v{UQ+4*bb+2}, v{D+bb} quad_perm:[1,1,3,3] {DPPF}")
            A(f"v_mov_b32 v{UQ+4*bb+1}, s12"); A(f"v_mov_b32 v{UQ+4*bb+3}, s12")
    def mf(m, xa, lg):
        A(f"s_waitcnt lgkmcnt({lg})")
        for cg in range(4):
            r = TB + 16 * m + 4 * cg; d = D + 4 * cg; c = "0" if m == 0 else f"v[{d}:{d+3}]"
            A(f"v_mfma_f32_16x16x32_bf16 v[{d}:{d+3}], v[{xa+4*m}:{xa+4*m+3}], v[{r}:{r+3}], {c}")
    def publish(s0, s1):
        if svc < 2: return
        A("s_mov_b32 exec_lo, 0x55555555"); A("s_mov_b32 exec_hi, 0x55555555")
        A(f"buffer_store_dwordx4 v[{UQ}:{UQ+3}], v{d_}, {WSR}, {s0} offen sc1")
        A(f"buffer_store_dwordx4 v[{UQ+4}:{UQ+7}], v{d_}, {WSR}, {s1} offen sc1")
        A("s_mov_b64 exec, -1")
    A(f"v_lshlrev_b32 v{d_}, 3, v1")
    gemv(L_W, 4, XA, 9)
    publish("s8", "s9")
    stamp(1)
    gemv(L_W1, 2, XA + 16, 3)
    A("s_cmp_ge_u32 s2, 196"); A("s_cbranch_scc1 L_sv_noh")
    A(f"s_add_u32 s9, s11, {28 * 4096}")
    publish("s11", "s9")
    lab("L_sv_noh")
    stamp(2)
    QP = 56
    if NG is not None: lds_wait(L_FLAG + 12, 1, "pg1", a_, b_, sleep=4, cmp="ge")
    A("s_lshl_b32 s8, s7, 13"); A(f"s_add_u32 s8, s8, {WS_Q}"); A("s_add_u32 s9, s8, 4096")
    gather("q", [(QP + 4 * k, vL16, "s9" if k >= 4 else "s8", 1024 * (k & 3), -1, -1) for k in range(8)], psleep,
           [40, 42, 44, 46, 48, 50, 82, 84])
    for hf in range(2):
        r = QP + 4 * hf
        for e in (0, 2):
            A(f"v_add_f32 v{r+e}, v{r+e}, v{r+8+e}"); A(f"v_add_f32 v{r+16+e}, v{r+16+e}, v{r+24+e}")
        for e in (0, 2): A(f"v_add_f32 v{r+e}, v{r+e}, v{r+16+e}")
        A(f"v_cvt_pk_bf16_f32 v{r}, v{r}, v{r+2}")
    A(f"v_lshlrev_b32 v{a_}, 2, v1")
    A(f"ds_write_b32 v{a_}, v{QP} offset:{L_Q}"); A(f"ds_write_b32 v{a_}, v{QP+4} offset:{L_Q + 256}")
    A(f"v_mov_b32 v{a_}, 0"); A(f"v_mov_b32 v{b_}, s12"); A(f"v_mov_b32 v{c_}, 1")
    A(f"ds_write_b32 v{a_}, v{b_} offset:{L_G + 16}")
    A(f"ds_write_b32 v{a_}, v{c_} offset:{L_FLAG}")
    stamp(3)
    XG = 28
    A("s_mul_i32 s14, s4, 896"); A(f"v_add_u32 v{a_}, s14, v{vL16}")
    A(f"ds_read_b128 v[{XG}:{XG+3}], v{a_} offset:{L_X}")
    A("s_waitcnt lgkmcnt(0)")
    A(f"v_mov_b32 v{vG}, 0")
    for k in range(4):
        A(f"v_lshlrev_b32 v{a_}, 16, v{XG+k}"); A(f"v_and_b32 v{b_}, 0xffff0000, v{XG+k}")
        A(f"v_lshlrev_b32 v{c_}, 16, v{GW+k}"); A(f"v_and_b32 v{d_}, 0xffff0000, v{GW+k}")
        A(f"v_mul_f32 v{a_}, v{a_}, v{c_}"); A(f"v_mul_f32 v{b_}, v{b_}, v{d_}")
        A(f"v_cvt_pk_bf16_f32 v{a_}, v{a_}, v{b_}")
        A(f"v_lshlrev_b32 v{b_}, 16, v{a_}"); A(f"v_and_b32 v{a_}, 0xffff0000, v{a_}")
        A(f"v_add_f32 v{vG}, v{vG}, v{b_}"); A(f"v_add_f32 v{vG}, v{vG}, v{a_}")
    A("v_cmp_gt_u32 vcc, 56, v1"); A(f"v_cndmask_b32 v{vG}, 0, v{vG}, vcc")
    wave_reduce(A, "add", vG, a_)
    A(f"v_cvt_pk_bf16_f32 v{vG}, v{vG}, v{vG}"); A(f"v_lshlrev_b32 v{vG}, 16, v{vG}")
    A(f"v_mul_f32 v{vG}, 0xbfb8aa3b, v{vG}"); A(f"v_exp_f32 v{vG}, v{vG}"); A(f"v_add_f32 v{vG}, 1.0, v{vG}"); A(f"v_rcp_f32 v{vG}, v{vG}")
    A(f"v_cvt_pk_bf16_f32 v{vG}, v{vG}, v{vG}"); A(f"v_lshlrev_b32 v{vG}, 16, v{vG}")
    A(f"v_sub_f32 v{vOG}, 1.0, v{vG}"); A(f"v_cvt_pk_bf16_f32 v{vOG}, v{vOG}, v{vOG}"); A(f"v_lshlrev_b32 v{vOG}, 16, v{vOG}")
    lds_wait(L_FLAG + 8, 8, "cnt", a_, b_, sleep=2)
    ST = 32
    def combine(m, l):
        A(f"v_mov_b32 v{a_}, v{m}")
        for ctl in ("quad_perm:[1,0,3,2]", "quad_perm:[2,3,0,1]", "row_half_mirror"): A(f"v_max_f32_dpp v{a_}, v{a_}, v{a_} {ctl} {DPPF}")
        A(f"v_sub_f32 v{b_}, v{m}, v{a_}"); A(f"v_exp_f32 v{b_}, v{b_}"); A(f"v_mul_f32 v{b_}, v{b_}, v{l}")
        for ctl in ("quad_perm:[1,0,3,2]", "quad_perm:[2,3,0,1]", "row_half_mirror"): A(f"v_add_f32_dpp v{b_}, v{b_}, v{b_} {ctl} {DPPF}")
    A(f"v_and_b32 v{c_}, 7, v1"); A(f"v_lshlrev_b32 v{c_}, 3, v{c_}")
    A(f"ds_read_b64 v[{ST+4}:{ST+5}], v{c_} offset:{L_WST}"); A("s_waitcnt lgkmcnt(0)")
    combine(ST + 4, ST + 5)
    A(f"v_mov_b32 v{ST}, v{a_}"); A(f"v_mov_b32 v{ST+1}, s12"); A(f"v_mov_b32 v{ST+2}, v{b_}"); A(f"v_mov_b32 v{ST+3}, s12")
    A("s_lshl_b32 s11, s7, 10"); A(f"s_add_u32 s11, s11, {WS_ST}"); A("s_lshl_b32 s9, s6, 7"); A("s_add_u32 s9, s9, s11")
    A("s_mov_b64 exec, 0xff"); A(f"buffer_store_dwordx4 v[{ST}:{ST+3}], v{vL16}, {WSR}, s9 offen sc1"); A("s_mov_b64 exec, -1")
    if NS is not None: lds_wait(L_FLAG + 12, 2, "pg2", a_, b_, sleep=8, cmp="ge")
    HP = 28
    A(f"v_mov_b32 v{HP}, 0"); A(f"v_mov_b32 v{HP+2}, 0")
    A("s_cmp_ge_u32 s10, 112"); A("s_cbranch_scc1 L_sv_hz")
    A(f"v_lshrrev_b32 v{a_}, 3, v1"); A(f"v_lshlrev_b32 v{a_}, 9, v{a_}"); A(f"v_and_b32 v{b_}, 7, v1"); A(f"v_lshl_add_u32 v{a_}, v{b_}, 4, v{a_}")
    A("s_lshr_b32 s8, s10, 2"); A("s_mul_i32 s9, s4, 28"); A("s_add_u32 s8, s8, s9"); A("s_lshl_b32 s8, s8, 12")
    A("s_and_b32 s9, s10, 3"); A("s_lshl_b32 s9, s9, 7"); A("s_add_u32 s8, s8, s9"); A(f"s_add_u32 s8, s8, {WS_H}")
    gather("h", [(HP, a_, "s8", 0, -1, "0x00ffffff")], psleep, [82])
    lab("L_sv_hz")
    for k in (0, 2): A(f"v_add_f32_dpp v{HP+k}, v{HP+k}, v{HP+k} row_ror:8 {DPPF}")
    for sw in ("v_permlane16_swap_b32", "v_permlane32_swap_b32"):
        for k in (0, 2): A(f"v_mov_b32 v{HP+k+1}, v{HP+k}")
        for k in (0, 2): A(f"{sw} v{HP+k}, v{HP+k+1}")
        for k in (0, 2): A(f"v_add_f32 v{HP+k}, v{HP+k}, v{HP+k+1}")
    for k in (0, 2): A(f"v_max_f32 v{HP+k}, 0, v{HP+k}")
    A(f"v_cvt_pk_bf16_f32 v{HP}, v{HP}, v{HP}"); A(f"v_cvt_pk_bf16_f32 v{HP+1}, v{HP+2}, v{HP+2}")
    A(f"v_lshlrev_b32 v{a_}, 3, v1")
    A("s_mov_b64 exec, 0xff"); A(f"ds_write_b64 v{a_}, v[{HP}:{HP+1}] offset:{L_H}"); A("s_mov_b64 exec, -1")
    stamp(4)
    A(f"v_lshlrev_b32 v{c_}, 7, v1")
    gather("st", [(ST + 4, c_, "s11", 0, "0xff", 0)], 8, [82])
    combine(ST + 4, ST + 6)
    A(f"v_sub_f32 v{vG+2}, 0, v{a_}"); A(f"v_rcp_f32 v{vG+3}, v{b_}"); A(f"v_mul_f32 v{vG+3}, v{vG+3}, v{vG}")
    A(f"v_mov_b32 v{a_}, 0"); A(f"v_mov_b32 v{b_}, 1")
    A("s_mov_b64 exec, 1")
    A(f"ds_write_b128 v{a_}, v[{vG}:{vG+3}] offset:{L_G}")
    A(f"ds_write_b32 v{a_}, v{b_} offset:{L_FLAG + 4}")
    A("s_mov_b64 exec, -1")
    A("s_waitcnt lgkmcnt(0)")
    stamp(5)
    dump_stamps(True)
    lab("L_end")
    A("s_endpgm")

    body = pad_hazards(L)
    out = [HEADER.rstrip("\n"),
           "; Single fused launch: 256 workgroups (one per CU) x 9 waves (wave 0 = service, waves 1-8 stream K/V).",
           f"; @launch grid=(256,1,1) block=(576,1,1) lds={lds or LDS_MIN}",
           '.amdgcn_target "amdgcn-amd-amdhsa--gfx950"', ".text", f".globl {NAME}", ".p2align 8", f".type {NAME},@function", f"{NAME}:"]
    out += body
    out += ['.section .rodata,"a"', ".p2align 6", f".amdhsa_kernel {NAME}",
            "  .amdhsa_next_free_vgpr 168", "  .amdhsa_next_free_sgpr 96", "  .amdhsa_accum_offset 168",
            "  .amdhsa_group_segment_fixed_size 0", "  .amdhsa_kernarg_size 96", "  .amdhsa_user_sgpr_count 2",
            "  .amdhsa_user_sgpr_kernarg_segment_ptr 1", "  .amdhsa_system_sgpr_workgroup_id_x 1", ".end_amdhsa_kernel"]
    return "\n".join(out) + "\n"

def masks(A, M, t0, t1):
    A(f"v_and_b32 v{t0}, 1, v1"); A(f"v_lshlrev_b32 v{t0}, 4, v{t0}"); A(f"v_mov_b32 v{t1}, 0xffff"); A(f"v_lshlrev_b32 v{t1}, v{t0}, v{t1}")
    A(f"v_bfe_u32 v{t0}, v1, 1, 2")
    for r in range(4): A(f"v_cmp_eq_u32 s[{80+2*r}:{81+2*r}], {r}, v{t0}")
    for r in range(4): A(f"v_cndmask_b32 v{M[r]}, 0, v{t1}, s[{80+2*r}:{81+2*r}]")

def mask_prime(A, M, t0, t1):
    A(f"v_lshrrev_b32 v{t0}, 1, v1"); A(f"v_xor_b32 v{t0}, v{t0}, v1"); A(f"v_bfe_u32 v{t0}, v{t0}, 3, 1")
    A(f"v_add_u32 v{t0}, -1, v{t0}")
    for r in range(4): A(f"v_and_b32 v{M[r]}, v{M[r]}, v{t0}")

def red2_lane(A, d, t0):
    A(f"v_and_b32 v{t0}, 15, v1"); A(f"v_lshlrev_b32 v{d}, 5, v{t0}")
    A(f"v_lshrrev_b32 v{t0}, 5, v1"); A(f"v_lshl_add_u32 v{d}, v{t0}, 9, v{d}")
    A(f"v_bfe_u32 v{t0}, v1, 4, 1"); A(f"v_lshl_add_u32 v{d}, v{t0}, 4, v{d}")

def wave_reduce(A, op, v, t):
    for ctl in ("quad_perm:[1,0,3,2]", "quad_perm:[2,3,0,1]", "row_half_mirror", "row_mirror"):
        A(f"v_{op}_f32_dpp v{v}, v{v}, v{v} {ctl} {DPPF}")
    for sw in ("v_permlane16_swap_b32", "v_permlane32_swap_b32"):
        A(f"v_mov_b32 v{t}, v{v}"); A(f"{sw} v{v}, v{t}"); A(f"v_{op}_f32 v{v}, v{v}, v{t}")

if __name__ == "__main__":
    kw = eval("dict(%s)" % (sys.argv[2] if len(sys.argv) > 2 else ""))
    open(sys.argv[1], "w").write(gen(**kw))
```

```python
import sys
sys.path.insert(0, "dev")
from asmlib import pad_hazards

NAME = "gated_mix__mha_block_cached__dense_activation_relu__decode_kernel"
HEADER = open("gated_mix__mha_block_cached__dense_activation_relu__decode.s.ref").read().split("; Override launch")[0]

WS_ST = 0x1F0000
WS_H = 0x8000
WS_Q = 0x40000
WS_O = 0x80000
WS_Y = 0x100000
WS_DBG = 0x400000
WS_SIZE = 268435456
L_W = 0x0000
L_W1 = 0x4000
L_RED1 = 0x0000
L_X = 0x6000
L_Q = 0x6800
L_H = 0x6A00
L_G = 0x6A40
L_FLAG = 0x6A80
L_WST = 0x6AC0
L_FIN = 0x6C00
L_OL = 0x6B00
L_PW = 0x7000
L_RED2 = 0x8000
LDS_MIN = L_RED2 + 8 * 2048
TAGC = 0x9E3779B9
SPIN_MAX = 1 << 18
DPPF = "row_mask:0xf bank_mask:0xf"
CEXP = "0x3db8aa3b"

def gen(LIM=2, LIMV=None, NQ=24, CQ=3, CP=3, R=33, NF=62, dbg=False, hdbg=False, diag=None,
        psleep=2, osleep=0, fsleep=0, svc=9, kflags="nt", wflags="nt", lds=None, LE=None, NG=12, NS=46, rot=None, early=False, dbase=10000, pp=1, pgap=8, wsb=0, diag2=None, xmap=0, spread=0, LP=None, kmap=0, ofl='', pat='tp w0 w1 w2 b0 b1 b2 s0 s1 s2'):
    if LIMV is None: LIMV = LIM
    WS_ST, WS_H, WS_Q, WS_O, WS_Y = (x + wsb for x in (0x1F0000, 0x8000, 0x40000, 0x80000, 0x100000))
    L = []
    A = lambda s: L.append("  " + s)
    lab = lambda s: L.append(s + ":")
    def srd(d, p, nbytes):
        A(f"s_mov_b32 s{d}, s{p}"); A(f"s_mov_b32 s{d+1}, s{p+1}"); A(f"s_mov_b32 s{d+2}, {nbytes}"); A(f"s_mov_b32 s{d+3}, 0x20000")
    SK, SV, SWO, SWS, SWQ, SW1, SW2, SX, SG, SO = 40, 44, 48, 52, 56, 60, 64, 68, 72, 76
    WSR = f"s[{SWS}:{SWS+3}]"
    if diag is not None: hdbg = True
    if diag2 is not None: dbg = True
    if hdbg: dbg = True
    def stamp(idx):
        if dbg:
            A("s_memrealtime s[90:91]"); A("s_waitcnt lgkmcnt(0)"); A(f"v_writelane_b32 v167, s90, {idx}")
    def dump_stamps(service=False):
        if hdbg:
            A("s_mov_b32 s92, s36"); A("s_mov_b32 s93, s37"); A("s_mov_b32 s94, 256"); A("s_mov_b32 s95, 0x20000")
            A("v_not_b32 v165, v167"); A("v_cmp_eq_u32 vcc, 0, v1"); A("v_cndmask_b32 v167, v167, v165, vcc")
            A("v_lshlrev_b32 v166, 2, v1")
            if service: A("v_add_u32 v166, 64, v166"); A("s_mov_b64 exec, 0x3e")
            else: A("s_mov_b64 exec, 0xffff")
            A("buffer_atomic_umax v167, v166, s[92:95], 0 offen"); A("s_mov_b64 exec, -1")
        elif dbg:
            if diag2 is not None and not service:
                tg = "s" if service else "m"
                A("s_add_u32 s84, s88, 4500"); lab(f"L_dd_{tg}"); A("s_sleep 8")
                A("s_memrealtime s[90:91]"); A("s_waitcnt lgkmcnt(0)"); A("s_sub_u32 s85, s90, s84"); A("s_cmp_lt_i32 s85, 0"); A(f"s_cbranch_scc1 L_dd_{tg}")
            A("s_mul_i32 s92, s2, 9"); A("s_add_u32 s92, s92, s93"); A("s_lshl_b32 s92, s92, 8"); A(f"s_add_u32 s92, s92, {WS_DBG}")
            A("v_lshlrev_b32 v166, 2, v1"); A(f"buffer_store_dword v167, v166, {WSR}, s92 offen sc1")
    if dbg: R = min(R, 32)
    def spin_tail(label, sleep):
        if sleep: A(f"s_sleep {sleep}")
        A("s_sub_u32 s80, s80, 1"); A("s_cmp_lg_u32 s80, 0"); A(f"s_cbranch_scc1 {label}")
    def lds_wait(off, val, tag, ta, tb, sleep=1, cmp="eq"):
        A(f"v_mov_b32 v{ta}, 0"); A(f"s_mov_b32 s80, {SPIN_MAX}")
        lab(f"L_wait_{tag}")
        A(f"ds_read_b32 v{tb}, v{ta} offset:{off}"); A("s_waitcnt lgkmcnt(0)"); A(f"v_readfirstlane_b32 s81, v{tb}")
        A(f"s_cmp_{cmp}_u32 s81, {val}"); A(f"s_cbranch_scc1 L_got_{tag}")
        spin_tail(f"L_wait_{tag}", sleep)
        lab(f"L_got_{tag}")
    def gather(tag, items, sleep, pool):
        if svc < {"q": 3, "h": 4, "st": 5}.get(tag, 0):
            A("s_waitcnt vmcnt(0)"); return
        assert len(pool) >= len(items)
        for (reg, va, so, imm, lo, hi), ms in zip(items, pool): A(f"s_mov_b32 s{ms}, {lo}"); A(f"s_mov_b32 s{ms+1}, {hi}")
        A(f"s_mov_b32 s80, {SPIN_MAX}")
        lab(f"L_g_{tag}")
        for k, ((reg, va, so, imm, lo, hi), ms) in enumerate(zip(items, pool)):
            A(f"s_mov_b64 exec, s[{ms}:{ms+1}]")
            if len(items) > 1: A(f"s_cbranch_execz L_g_{tag}_s{k}")
            A(f"buffer_load_dwordx4 v[{reg}:{reg+3}], v{va}, {WSR}, {so} offen offset:{imm} sc1")
            if len(items) > 1: lab(f"L_g_{tag}_s{k}")
        A("s_waitcnt vmcnt(0)")
        for k, ((reg, va, so, imm, lo, hi), ms) in enumerate(zip(items, pool)):
            if len(items) > 1: A(f"s_mov_b64 exec, s[{ms}:{ms+1}]")
            A(f"v_cmp_ne_u32 vcc, s12, v{reg+1}"); A(f"v_cmp_ne_u32 s[{ms}:{ms+1}], s12, v{reg+3}")
            A(f"s_or_b64 s[{ms}:{ms+1}], s[{ms}:{ms+1}], vcc")
            if k == 0: A(f"s_mov_b64 s[14:15], s[{ms}:{ms+1}]")
            else: A(f"s_or_b64 s[14:15], s[14:15], s[{ms}:{ms+1}]")
        A("s_cmp_eq_u64 s[14:15], 0"); A(f"s_cbranch_scc1 L_g_{tag}_ok")
        spin_tail(f"L_g_{tag}", sleep)
        lab(f"L_g_{tag}_ok")
        A("s_mov_b64 exec, -1")

    def poll_issue(sets, k, items):
        for j, (va, so, imm) in enumerate(items):
            r = sets[k] + 4 * j
            A(f"buffer_load_dwordx4 v[{r}:{r+3}], v{va}, {WSR}, {so} offen offset:{imm} sc1")
    def poll_loop(tag, sets, items, first):
        n = len(sets); ni = len(items)
        for k in range(1, n):
            if pgap: A(f"s_sleep {pgap}")
            poll_issue(sets, k, items)
        A(f"s_mov_b32 s80, {SPIN_MAX}")
        lab(f"L_p_{tag}")
        for k in range(n):
            A(f"s_waitcnt vmcnt({(n - 1) * ni})")
            for j in range(ni):
                r = sets[k] + 4 * j
                A(f"v_cmp_ne_u32 {'vcc' if j == 0 else 's[84:85]'}, s12, v{r+1}"); A(f"v_cmp_ne_u32 s[{82 + 4 * j}:{83 + 4 * j}], s12, v{r+3}")
            if ni == 2: A("s_or_b64 vcc, vcc, s[84:85]"); A("s_or_b64 vcc, vcc, s[86:87]")
            A("s_or_b64 vcc, vcc, s[82:83]")
            A(f"s_cbranch_scc0 L_p_{tag}_ok{k}")
            poll_issue(sets, k, items)
        A("s_sub_u32 s80, s80, 1"); A("s_cmp_lg_u32 s80, 0"); A(f"s_cbranch_scc1 L_p_{tag}")
        A("s_waitcnt vmcnt(0)")
        for k in range(n):
            lab(f"L_p_{tag}_ok{k}")
            first(sets[k])
            if k < n - 1: A(f"s_branch L_p_{tag}_done")
        lab(f"L_p_{tag}_done")
        A("s_nop 1")

    if dbg and early: A("s_memrealtime s[88:89]")
    A("s_cmp_ge_u32 s2, 256"); A("s_cbranch_scc1 L_end")
    A("s_load_dwordx16 s[16:31], s[0:1], 0")
    A("s_load_dwordx8 s[32:39], s[0:1], 64")
    A("v_lshrrev_b32 v2, 6, v0"); A("v_and_b32 v1, 63, v0")
    A("v_readfirstlane_b32 s3, v2")
    A("s_and_b32 s14, s2, 7"); A("s_lshr_b32 s15, s2, 3")
    if xmap: A(f"s_xor_b32 s14, s14, {xmap}")
    if spread:
        mk = (1 << spread) - 1
        sh = 3 - spread
        A(f"s_lshr_b32 s4, s14, {sh}"); A(f"s_and_b32 s5, s15, {mk}"); A("s_xor_b32 s6, s4, s5")
        A("s_xor_b32 s15, s15, s6"); A(f"s_lshl_b32 s6, s6, {sh}"); A("s_xor_b32 s14, s14, s6")
    A("s_lshr_b32 s4, s15, 4")
    A("s_bfe_u32 s5, s15, 0x10003"); A("s_lshl_b32 s14, s14, 1"); A("s_add_u32 s5, s5, s14")
    A("s_and_b32 s6, s15, 7")
    A("s_lshl_b32 s7, s4, 4"); A("s_add_u32 s7, s7, s5")
    A("s_lshl_b32 s10, s5, 3"); A("s_add_u32 s10, s10, s6")
    if dbg:
        A("s_mov_b32 s93, s3"); A("v_mov_b32 v167, 0")
        if not early: A("s_memrealtime s[88:89]")
    A("s_cmp_eq_u32 s3, 0"); A("s_cbranch_scc1 L_service")

    A("s_sub_u32 s3, s3, 1")
    vK, vV, vWo, vW2, t0, t1 = 2, 3, 4, 5, 6, 7
    M = [8, 9, 10, 11]; Q = [12, 16]; DB = [20, 24]; AB = [20, 24]; SG_ = [28, 29, 30, 31]; ACC = 32
    vMW = 12; vE = [13, 14, 15, 16]; vLW = 17
    RING = 36
    A(f"v_bfe_u32 v{t0}, v1, 2, 2"); A(f"v_lshlrev_b32 v{vK}, 9, v{t0}")
    A(f"v_lshrrev_b32 v{t0}, 4, v1"); A(f"v_lshl_add_u32 v{vK}, v{t0}, 6, v{vK}")
    A(f"v_and_b32 v{t0}, 3, v1"); A(f"v_lshl_add_u32 v{vK}, v{t0}, 4, v{vK}")
    PB = {t: 11 + k for k, t in enumerate(pat.split())}
    A("s_lshl_b32 s8, s7, 21")
    for reg, nm in (("s3", "w"), ("s6", "s")):
        k = 0
        while k < 3:
            e = k
            while e < 2 and PB[f"{nm}{e+1}"] == PB[f"{nm}{e}"] + 1: e += 1
            A(f"s_bfe_u32 s14, {reg}, {hex(((e - k + 1) << 16) + k)}"); A(f"s_lshl_b32 s14, s14, {PB[f'{nm}{k}']}"); A("s_add_u32 s8, s8, s14")
            k = e + 1
    def toff(beta, tp):
        o = (tp << PB["tp"]) | ((beta & 1) << PB["b0"]) | (((beta >> 1) & 1) << PB["b1"]) | ((beta >> 2) << PB["b2"])
        return o & ~0xfff, o & 0xfff
    A(f"v_add_u32 v{vK}, s8, v{vK}")
    A("s_waitcnt lgkmcnt(0)")
    srd(SK, 18, 0x4000000)

    loads = [("K", beta, tp, jh) for beta in range(8) for tp in range(2) for jh in range(2)]
    loads += [("V", beta, tp, kp) for beta in range(8) for tp in range(2) for kp in range(2)]
    loads += [("F", cb) for cb in range(2)] + [("W", r, cb) for r in range(2) for cb in range(2)]
    free = list(range(R)); slot = {}
    nissued = [0]; landed = [-1]; cur_soff = [None]
    if rot:
        A(f"s_mul_i32 s11, s2, {rot}"); A("s_lshr_b32 s14, s2, 3"); A("s_add_u32 s11, s11, s14"); A("s_and_b32 s11, s11, 7"); A("s_lshl_b32 s11, s11, 15")
    def soff(val):
        if val == 0 and not rot: return "0"
        if cur_soff[0] != val:
            if rot: A(f"s_add_u32 s13, s11, {val}"); A("s_and_b32 s13, s13, 0x3ffff")
            else: A(f"s_mov_b32 s13, {val}")
            cur_soff[0] = val
        return "s13"
    def wait_landed(n):
        if n <= landed[0]: return
        A(f"s_waitcnt vmcnt({nissued[0] - 1 - n})"); landed[0] = n
    def issue(n):
        ld = loads[n]; sl = free.pop(0); slot[n] = sl; r = RING + 4 * sl
        if ld[0] == "K":
            A(f"buffer_load_dwordx4 v[{r}:{r+3}], v{vK}, s[{SK}:{SK+3}], {soff(toff(ld[1], ld[2])[0])} offen offset:{toff(ld[1], ld[2])[1] + ld[3] * 256} {kflags}")
        elif ld[0] == "V":
            A(f"buffer_load_dwordx4 v[{r}:{r+3}], v{vV}, s[{SV}:{SV+3}], {soff(toff(ld[1], ld[2])[0])} offen offset:{toff(ld[1], ld[2])[1] + ld[3] * 1024} {kflags}")
        elif ld[0] == "W":
            A(f"buffer_load_dwordx4 v[{r}:{r+3}], v{vWo}, s[{SWO}:{SWO+3}], 0 offen offset:{ld[1] * 896 + ld[2] * 512} {wflags}")
        else:
            A(f"buffer_load_dwordx4 v[{r}:{r+3}], v{vW2}, s[{SW2}:{SW2+3}], 0 offen offset:{ld[1] * 512} {wflags}")
        nissued[0] += 1
    sreg = lambda n: RING + 4 * slot[n]
    qk_next = [0]; qk_post = [None]; pv_next = [0]; pslot = {}
    def qk_dpp(tau):
        beta, tp = tau >> 1, tau & 1; G = beta >> 1; t = 2 * (beta & 1) + tp; d = DB[tau & 1]
        A(f"v_mov_b32_dpp v{t0}, v{d} quad_perm:[0,0,0,0] {DPPF}")
        A(f"v_add_f32_dpp v{t0}, v{d+1}, v{t0} quad_perm:[1,1,1,1] {DPPF}")
        A(f"v_add_f32_dpp v{t0}, v{d+2}, v{t0} quad_perm:[2,2,2,2] {DPPF}")
        A(f"v_add_f32_dpp v{SG_[G]}, v{d+3}, v{t0} quad_perm:[3,3,3,3] row_mask:0xf bank_mask:{hex(1 << t)}")
    def qk_tile(tau):
        d = DB[tau & 1]; a0 = sreg(2 * tau); a1 = sreg(2 * tau + 1)
        A(f"v_mfma_f32_16x16x32_bf16 v[{d}:{d+3}], v[{a0}:{a0+3}], v[{Q[0]}:{Q[0]+3}], 0")
        A(f"v_mfma_f32_16x16x32_bf16 v[{d}:{d+3}], v[{a1}:{a1+3}], v[{Q[1]}:{Q[1]+3}], v[{d}:{d+3}]")
        free.extend([slot[2 * tau], slot[2 * tau + 1]])
        if qk_post[0] is not None: qk_dpp(qk_post[0])
        qk_post[0] = tau
    def red_hi(op, v, t):
        for ctl in ("row_ror:4", "row_ror:8"): A(f"v_{op}_f32_dpp v{v}, v{v}, v{v} {ctl} {DPPF}")
        for sw in ("v_permlane16_swap_b32", "v_permlane32_swap_b32"):
            A(f"v_mov_b32 v{t}, v{v}"); A(f"{sw} v{v}, v{t}"); A(f"v_{op}_f32 v{v}, v{v}, v{t}")
    def sm_a():
        qk_dpp(qk_post[0]); qk_post[0] = None
        S = SG_
        A(f"v_cvt_pk_bf16_f32 v{t0}, v{S[0]}, v{S[1]}"); A(f"v_cvt_pk_bf16_f32 v{t1}, v{S[2]}, v{S[3]}")
        A(f"v_lshlrev_b32 v{S[0]}, 16, v{t0}"); A(f"v_and_b32 v{S[1]}, 0xffff0000, v{t0}")
        A(f"v_lshlrev_b32 v{S[2]}, 16, v{t1}"); A(f"v_and_b32 v{S[3]}, 0xffff0000, v{t1}")
        A(f"v_max3_f32 v{vMW}, v{S[0]}, v{S[1]}, v{S[2]}"); A(f"v_max_f32 v{vMW}, v{vMW}, v{S[3]}")
        red_hi("max", vMW, t0)
    def sm_b():
        S = SG_
        A(f"s_mov_b32 s81, {CEXP}"); A(f"v_mul_f32 v{vMW}, s81, v{vMW}")
        for k in range(4): A(f"v_fma_f32 v{vE[k]}, v{S[k]}, s81, -v{vMW}")
        for k in range(4): A(f"v_exp_f32 v{vE[k]}, v{vE[k]}")
        A("s_lshl_b32 s14, s3, 8"); A(f"v_lshl_add_u32 v{t1}, v1, 2, s14")
        for k in range(4): A(f"v_cvt_pk_bf16_f32 v{S[k]}, v{vE[k]}, v{vE[k]}")
        A("s_mov_b32 exec_lo, 0x11111111"); A("s_mov_b32 exec_hi, 0x11111111")
        A(f"ds_write_b128 v{t1}, v[{S[0]}:{S[3]}] offset:{L_PW}")
        A("s_mov_b64 exec, -1")
        A(f"v_lshrrev_b32 v{t1}, 5, v1"); A(f"v_lshl_add_u32 v{t1}, v{t1}, 6, s14")
        for t in range(4):
            for kp in range(2):
                sl = free.pop(0); pslot[(t, kp)] = sl; r = RING + 4 * sl
                A(f"ds_read_b128 v[{r}:{r+3}], v{t1} offset:{L_PW + (8 * kp + t) * 16}")
        A(f"v_add_f32 v{vLW}, v{vE[0]}, v{vE[1]}"); A(f"v_add_f32 v{t0}, v{vE[2]}, v{vE[3]}"); A(f"v_add_f32 v{vLW}, v{vLW}, v{t0}")
    def sm_c():
        red_hi("add", vLW, t0)
        A(f"v_mov_b32 v{vMW+1}, v{vLW}")
        A("s_lshl_b32 s14, s3, 3"); A(f"v_mov_b32 v{t0}, s14"); A(f"v_mov_b32 v{t1}, 1"); A(f"v_mov_b32 v{vE[2]}, 0")
        A("s_mov_b64 exec, 1")
        A(f"ds_write_b64 v{t0}, v[{vMW}:{vMW+1}] offset:{L_WST}")
        A(f"ds_add_u32 v{vE[2]}, v{t1} offset:{L_FLAG + 8}")
        A("s_mov_b64 exec, -1")
        A("s_waitcnt lgkmcnt(0)")
        stamp(3)
    def pv_tile(m):
        beta, tp, kp = m >> 2, (m >> 1) & 1, m & 1; G = beta >> 1; t = 2 * (beta & 1) + tp
        a = AB[m & 1]; p = RING + 4 * pslot[(t, kp)] + G; bv = sreg(32 + m)
        for r in range(4): A(f"v_and_b32 v{a+r}, v{p}, v{M[r]}")
        c = "0" if m == 0 else f"v[{ACC}:{ACC+3}]"
        A(f"v_mfma_f32_16x16x32_bf16 v[{ACC}:{ACC+3}], v[{a}:{a+3}], v[{bv}:{bv+3}], {c}")
        free.append(slot[32 + m])
    vFS = 18; vHP = 19
    GG = 14
    def fetch_stats():
        stamp(4); lds_wait(L_FLAG + 4, 1, "st", t0, t1); stamp(5)
        A(f"ds_read_b128 v[14:17], v{t0} offset:{L_G}")
        A(f"v_lshrrev_b32 v{t1}, 5, v1"); A("s_lshl_b32 s14, s3, 3"); A(f"v_lshl_add_u32 v{t1}, v{t1}, 2, s14")
        A(f"ds_read_b32 v{vHP}, v{t1} offset:{L_H}")
        A("s_waitcnt lgkmcnt(0)")
        A(f"v_add_f32 v{vFS}, v{vMW}, v16"); A(f"v_exp_f32 v{vFS}, v{vFS}"); A(f"v_mul_f32 v{vFS}, v{vFS}, v17")

    N = len(loads); chunks = [sm_a, sm_b, sm_c]; sm_done = False
    for n in range(N):
        if n < 64:
            lim = LIM if n < 32 else LIMV
            if LP: lim = LP[n % len(LP)]
            if LE and n >= LE[0]: lim = LE[1]
            if n > max(lim, LIM): wait_landed(n - lim - 1)
        if n in (LIM + 1, 8, 16, 48): stamp({LIM + 1: 12, 8: 13, 16: 14, 48: 15}[n])
        if n == NQ:
            stamp(1)
            lds_wait(L_FLAG, 1, "q", t0, t1)
            A(f"v_lshrrev_b32 v{t0}, 4, v1"); A(f"v_and_b32 v{t1}, 3, v1"); A(f"v_lshl_add_u32 v{t0}, v{t0}, 2, v{t1}"); A(f"v_lshlrev_b32 v{t0}, 4, v{t0}")
            A(f"ds_read_b128 v[{Q[0]}:{Q[0]+3}], v{t0} offset:{L_Q}")
            A(f"ds_read_b128 v[{Q[1]}:{Q[1]+3}], v{t0} offset:{L_Q + 256}")
            A(f"v_mov_b32 v{t0}, 0"); A(f"ds_read_b32 v{t1}, v{t0} offset:{L_G + 16}")
            A("s_waitcnt lgkmcnt(0)"); A(f"v_readfirstlane_b32 s12, v{t1}")
            stamp(2)
        assert free, f"no free slot at load {n}"
        issue(n)
        if n == LIM:
            srd(SV, 20, 0x4000000); srd(SWO, 24, 3670016); srd(SW2, 30, 1605632); srd(SWS, 38, WS_SIZE)
            A("s_barrier")
            A(f"v_lshl_add_u32 v{vV}, v1, 4, s8")
            A(f"v_and_b32 v{t0}, 31, v1"); A(f"v_lshlrev_b32 v{t0}, 4, v{t0}"); A(f"v_lshrrev_b32 v{t1}, 5, v1")
            A(f"v_mul_u32_u24 v{vWo}, 1792, v{t1}"); A(f"v_add_u32 v{vWo}, v{vWo}, v{t0}")
            A(f"v_mul_u32_u24 v{vW2}, 896, v{t1}"); A(f"v_add_u32 v{vW2}, v{vW2}, v{t0}")
            A("s_lshl_b32 s14, s10, 5"); A("s_lshl_b32 s15, s3, 2"); A("s_add_u32 s14, s14, s15"); A("s_mul_i32 s14, s14, 896")
            A(f"v_add_u32 v{vWo}, s14, v{vWo}")
            A("s_lshl_b32 s14, s10, 4"); A("s_lshl_b32 s15, s3, 1"); A("s_add_u32 s14, s14, s15"); A("s_mul_i32 s14, s14, 896")
            A(f"v_add_u32 v{vW2}, s14, v{vW2}")
            masks(A, M, t0, t1); mask_prime(A, M, t0, t1)
            if dbg: A("s_waitcnt lgkmcnt(0)"); A("v_writelane_b32 v167, s88, 0")
        if n >= NQ and not sm_done:
            c = 0
            while qk_next[0] < 16 and c < CQ and 2 * qk_next[0] + 1 <= landed[0]:
                qk_tile(qk_next[0]); qk_next[0] += 1; c += 1
            if qk_next[0] == 16:
                chunks.pop(0)()
                sm_done = not chunks
        elif sm_done:
            c = 0
            while pv_next[0] < 32 and c < CP and 32 + pv_next[0] <= landed[0]:
                pv_tile(pv_next[0]); pv_next[0] += 1; c += 1
        if n == NF: fetch_stats()
        if n in (NG, NS):
            A(f"v_mov_b32 v{t0}, 0"); A(f"v_mov_b32 v{t1}, {1 if n == NG else 2}")
            A("s_mov_b64 exec, 1"); A(f"ds_max_u32 v{t0}, v{t1} offset:{L_FLAG + 12}"); A("s_mov_b64 exec, -1")
    assert sm_done
    vRw, vO, vY = vK, vV, vWo
    red2_lane(A, vRw, t0)
    A("s_lshl_b32 s14, s3, 10"); A(f"v_add_u32 v{vW2}, s14, v{vRw}")
    A("s_lshl_b32 s14, s3, 11"); A(f"s_add_u32 s14, s14, {L_RED2}"); A(f"v_add_u32 v{vRw}, s14, v{vRw}")
    A("s_lshl_b32 s14, s3, 6"); A(f"v_add_u32 v{vY}, s14, v1")
    A(f"v_lshrrev_b32 v{t0}, 4, v{vY}"); A(f"v_lshlrev_b32 v{vO}, 11, v{t0}"); A(f"v_and_b32 v{t0}, 15, v1"); A(f"v_lshl_add_u32 v{vO}, v{t0}, 4, v{vO}")
    A("s_lshl_b32 s9, s7, 14"); A(f"s_add_u32 s9, s9, {WS_O}"); A("s_lshl_b32 s14, s6, 8"); A("s_add_u32 s11, s9, s14")
    A("s_lshl_b32 s14, s6, 11"); A("s_add_u32 s9, s9, s14")
    while pv_next[0] < 32:
        wait_landed(32 + pv_next[0]); pv_tile(pv_next[0]); pv_next[0] += 1
    stamp(6)
    A(f"v_lshlrev_b32 v{t0}, 3, v{vY}")
    for k in range(4): A(f"v_mul_f32 v{ACC+k}, v{vFS}, v{ACC+k}")
    A(f"ds_write_b128 v{vW2}, v[{ACC}:{ACC+3}] offset:{L_RED1}")
    A("s_waitcnt lgkmcnt(0)"); A("s_barrier")
    fr = [RING + 4 * s_ for s_ in sorted(free + list(pslot.values()))]
    run = [r for r in fr if all(r + 4 * k in fr for k in range(4))][0]
    rest = [r for r in fr if not run <= r < run + 16]
    FS = []
    for _ in range(pp):
        r = [r for r in rest if r + 4 in rest][0]; FS.append(r); rest.remove(r); rest.remove(r + 4)
    PS = rest[:pp]; assert len(PS) == pp
    Y = run; U = 20
    A("s_cmp_ge_u32 s3, 2"); A("s_cbranch_scc1 L_odone")
    for k in range(8): A(f"ds_read_b64 v[{Y+2*k}:{Y+2*k+1}], v{t0} offset:{L_RED1 + 1024 * k}")
    A(f"v_mov_b32 v{U+1}, s12"); A(f"v_mov_b32 v{U+3}, s12")
    A("s_waitcnt lgkmcnt(0)")
    for st in (1, 2):
        for k in range(0, 8, 2 * st):
            for c_ in range(2): A(f"v_add_f32 v{Y+2*k+c_}, v{Y+2*k+c_}, v{Y+2*(k+st)+c_}")
    A(f"v_add_f32 v{U}, v{Y}, v{Y+8}"); A(f"v_add_f32 v{U+2}, v{Y+1}, v{Y+9}")
    A(f"buffer_store_dwordx4 v[{U}:{U+3}], v{vO}, {WSR}, s11 offen sc1")
    lab("L_odone")
    stamp(7)
    OG = 28; DA, DBb = Y, Y + 4
    for q in range(4): A(f"v_and_b32 v{ACC+q}, v{vHP}, v{M[q]}")
    A(f"v_add_u32 v{t0}, {L_RED2}, v{t0}")
    A(f"v_lshrrev_b32 v{t1}, 5, v1"); A("s_lshl_b32 s14, s3, 4"); A(f"v_lshl_add_u32 v{t1}, v{t1}, 3, s14")
    A("s_waitcnt vmcnt(4)")
    for cb, d in ((0, DA), (1, DBb)):
        bw = sreg(64 + cb); A(f"v_mfma_f32_16x16x32_bf16 v[{d}:{d+3}], v[{ACC}:{ACC+3}], v[{bw}:{bw+3}], 0")
    for k in range(8): A(f"v_mul_f32 v{DA+k}, v15, v{DA+k}")
    A("s_cmp_lg_u32 s3, 2"); A("s_cbranch_scc1 L_onopoll")
    P0, P1 = FS[0], FS[0] + 4
    A(f"v_and_b32 v{ACC}, 15, v1"); A(f"v_bfe_u32 v{vO}, v1, 4, 1"); A(f"v_lshl_add_u32 v{ACC}, v{ACC}, 1, v{vO}"); A(f"v_lshlrev_b32 v{ACC}, 2, v{ACC}")
    A(f"v_lshlrev_b32 v{vO}, 4, v1")
    gather("o", [(P0, vO, "s9", 0, -1, -1), (P1, vO, "s9", 1024, -1, -1)], osleep, [82, 84])
    A(f"v_add_f32 v{P0}, v{P0}, v{P1}"); A(f"v_add_f32 v{P0+2}, v{P0+2}, v{P1+2}")
    A(f"v_permlane16_swap_b32 v{P0}, v{P0+2}"); A(f"v_add_f32 v{P0}, v{P0}, v{P0+2}")
    A(f"v_mov_b32 v{P0+2}, v{P0}"); A(f"v_permlane32_swap_b32 v{P0}, v{P0+2}"); A(f"v_add_f32 v{P0}, v{P0}, v{P0+2}")
    A(f"v_cvt_pk_bf16_f32 v{P0}, v{P0}, v{P0}")
    A(f"ds_write_b32 v{ACC}, v{P0} offset:{L_OL}")
    lab("L_onopoll")
    A("s_cmp_lt_u32 s3, 2"); A("s_cbranch_scc1 L_ow1"); A("s_waitcnt vmcnt(0)"); lab("L_ow1"); A("s_waitcnt vmcnt(1) lgkmcnt(0)")
    A("s_barrier")
    A(f"ds_read_b64 v[{OG}:{OG+1}], v{t1} offset:{L_OL}")
    stamp(8)
    A("s_waitcnt lgkmcnt(0)")
    for r in range(2):
        for q in range(4): A(f"v_and_b32 v{AB[r]+q}, v{OG+r}, v{M[q]}")
    for r in range(2):
        for cb, d in ((0, DA), (1, DBb)):
            bw = sreg(66 + 2 * r + cb)
            A(f"v_mfma_f32_16x16x32_bf16 v[{d}:{d+3}], v[{AB[r]}:{AB[r]+3}], v[{bw}:{bw+3}], v[{d}:{d+3}]")
    A(f"ds_write_b128 v{vRw}, v[{DA}:{DA+3}]"); A(f"ds_write_b128 v{vRw}, v[{DBb}:{DBb+3}] offset:1024")
    A("s_waitcnt lgkmcnt(0)"); A("s_barrier")
    A("s_cmp_ge_u32 s3, 4"); A("s_cbranch_scc1 L_ydone")
    for k in range(8): A(f"ds_read_b64 v[{Y+2*k}:{Y+2*k+1}], v{t0} offset:{2048 * k}")
    A(f"v_cmp_gt_u32 vcc, 224, v{vY}")
    A(f"v_lshrrev_b32 v{t1}, 3, v{vY}"); A(f"v_lshlrev_b32 v{vO}, 14, v{t1}")
    A(f"v_and_b32 v{t1}, 7, v1"); A(f"v_lshl_add_u32 v{vO}, v{t1}, 4, v{vO}")
    A(f"s_mul_i32 s14, s4, {28 * 16384}"); A("s_lshl_b32 s15, s10, 7"); A("s_add_u32 s14, s14, s15"); A(f"s_add_u32 s14, s14, {WS_Y}")
    A(f"v_mov_b32 v{U+1}, s12"); A(f"v_mov_b32 v{U+3}, s12")
    A("s_waitcnt lgkmcnt(0)")
    for st in (1, 2):
        for k in range(0, 8, 2 * st):
            for c_ in range(2): A(f"v_add_f32 v{Y+2*k+c_}, v{Y+2*k+c_}, v{Y+2*(k+st)+c_}")
    A(f"v_add_f32 v{U}, v{Y}, v{Y+8}"); A(f"v_add_f32 v{U+2}, v{Y+1}, v{Y+9}")
    A("s_and_saveexec_b64 s[82:83], vcc")
    A(f"buffer_store_dwordx4 v[{U}:{U+3}], v{vO}, {WSR}, s14 offen sc1")
    A("s_mov_b64 exec, s[82:83]")
    lab("L_ydone")
    stamp(9)
    A("s_cmp_ge_u32 s2, 56"); A("s_cbranch_scc1 L_fin_skip")
    A("s_lshl_b32 s13, s2, 14"); A("s_lshl_b32 s15, s3, 11"); A("s_add_u32 s13, s13, s15"); A(f"s_add_u32 s13, s13, {WS_Y}")
    A(f"v_lshlrev_b32 v{t0}, 4, v1")
    F = 24
    gather("fin", [(F, t0, "s13", 0, -1, -1), (F + 4, t0, "s13", 1024, -1, -1)], fsleep, [82, 84])
    srd(SO, 34, 1792)
    A(f"v_add_f32 v{F}, v{F}, v{F+4}"); A(f"v_add_f32 v{F+2}, v{F+2}, v{F+6}")
    stamp(10)
    A(f"v_add_f32_dpp v{F}, v{F}, v{F} row_ror:8 {DPPF}"); A(f"v_add_f32_dpp v{F+2}, v{F+2}, v{F+2} row_ror:8 {DPPF}")
    A(f"v_permlane16_swap_b32 v{F}, v{F+2}"); A(f"v_add_f32 v{F}, v{F}, v{F+2}")
    A(f"v_mov_b32 v{F+2}, v{F}"); A(f"v_permlane32_swap_b32 v{F}, v{F+2}"); A(f"v_add_f32 v{F}, v{F}, v{F+2}")
    A(f"v_and_b32 v{t0}, 7, v1"); A(f"v_bfe_u32 v{t1}, v1, 4, 1"); A(f"v_lshl_add_u32 v{t0}, v{t0}, 1, v{t1}")
    A(f"v_lshlrev_b32 v{t0}, 5, v{t0}"); A("s_lshl_b32 s14, s3, 2"); A(f"v_add_u32 v{t0}, s14, v{t0}")
    A("s_mov_b32 exec_lo, 0x00ff00ff"); A("s_mov_b32 exec_hi, 0")
    A(f"ds_write_b32 v{t0}, v{F} offset:{L_FIN}")
    A("s_mov_b64 exec, -1")
    A("s_waitcnt lgkmcnt(0)"); A("s_barrier")
    A("s_cmp_lg_u32 s3, 0"); A("s_cbranch_scc1 L_fin_skip")
    A(f"v_and_b32 v{t0}, 15, v1"); A(f"v_lshlrev_b32 v{t1}, 5, v{t0}")
    A(f"ds_read_b128 v[{F}:{F+3}], v{t1} offset:{L_FIN}"); A(f"ds_read_b128 v[{F+4}:{F+7}], v{t1} offset:{L_FIN + 16}")
    A(f"v_lshlrev_b32 v{t0}, 1, v{t0}"); A("s_lshl_b32 s14, s2, 5")
    A("s_waitcnt lgkmcnt(0)")
    for st in (1, 2, 4):
        for k in range(0, 8, 2 * st): A(f"v_add_f32 v{F+k}, v{F+k}, v{F+k+st}")
    A(f"v_cvt_pk_bf16_f32 v{F}, v{F}, v{F}")
    A("s_mov_b64 exec, 0xffff")
    A(f"buffer_store_short v{F}, v{t0}, s[{SO}:{SO+3}], s14 offen {ofl}")
    A("s_cmp_lg_u32 s2, 0"); A("s_cbranch_scc1 L_fin_noep")
    A("s_mov_b64 exec, 1"); A(f"v_mov_b32 v{t0}, 0"); A(f"v_mov_b32 v{t1}, s12")
    A(f"s_mov_b32 s13, {wsb}"); A(f"buffer_store_dword v{t1}, v{t0}, {WSR}, s13 offen {ofl}")
    lab("L_fin_noep")
    A("s_mov_b64 exec, -1")
    lab("L_fin_skip")
    stamp(11)
    dump_stamps()
    if diag2 is not None:
        role, kk, op = diag2
        A("s_cmp_lg_u32 s2, 0"); A("s_cbranch_scc1 L_diag_end"); A("s_cmp_lg_u32 s3, 0"); A("s_cbranch_scc1 L_diag_end")
        A("s_add_u32 s84, s88, 7000"); lab("L_diag1"); A("s_sleep 8")
        A("s_memrealtime s[90:91]"); A("s_waitcnt lgkmcnt(0)"); A("s_sub_u32 s85, s90, s84"); A("s_cmp_lt_i32 s85, 0"); A("s_cbranch_scc1 L_diag1")
        A("v_mov_b32 v10, 0"); A("v_mov_b32 v11, -1"); A("v_mov_b32 v14, 0")
        nr = 4 if role else 32
        for r in range(nr):
            if role: A(f"v_add_u32 v12, {r * 64}, v1"); A("v_mul_u32_u24 v12, 2304, v12")
            else:
                A(f"v_lshrrev_b32 v12, 3, v1"); A(f"v_add_u32 v12, {r * 8}, v12"); A("v_mul_u32_u24 v12, 9, v12"); A("v_and_b32 v13, 7, v1"); A("v_add_u32 v12, v12, v13")
                A("v_add_u32 v12, 1, v12"); A("v_lshlrev_b32 v12, 8, v12")
            A(f"s_mov_b32 s13, {WS_DBG}")
            A(f"buffer_load_dword v8, v12, {WSR}, s13 offen sc1"); A(f"buffer_load_dword v9, v12, {WSR}, s13 offen offset:{4 * kk} sc1"); A("s_waitcnt vmcnt(0)")
            A("v_subrev_u32 v8, s88, v8"); A("v_add_u32 v8, 0x1000, v8"); A("v_min_u32 v11, v11, v8")
            A("v_cmp_ne_u32 vcc, 0, v9"); A("v_subrev_u32 v9, s88, v9"); A("v_add_u32 v9, 0x1000, v9"); A("v_cndmask_b32 v9, 0, v9, vcc")
            A("v_max_u32 v10, v10, v9"); A("v_add_u32 v14, v14, v9")
        if op == "mean": A(f"v_lshrrev_b32 v10, {2 if role else 5}, v14")
        for v, o in ((10, "add" if op == "mean" else "max"), (11, "min")):
            for ctl in ("quad_perm:[1,0,3,2]", "quad_perm:[2,3,0,1]", "row_half_mirror", "row_mirror"): A(f"v_{o}_u32_dpp v{v}, v{v}, v{v} {ctl} {DPPF}")
            for sw in ("v_permlane16_swap_b32", "v_permlane32_swap_b32"):
                A(f"v_mov_b32 v12, v{v}"); A(f"{sw} v{v}, v12"); A(f"v_{o}_u32 v{v}, v{v}, v12")
        if op == "mean": A("v_lshrrev_b32 v10, 6, v10")
        A("v_sub_u32 v10, v10, v11"); A("v_readfirstlane_b32 s85, v10"); A("s_lshl_b32 s85, s85, 2")
        if kk < 0: A("s_mov_b32 s85, 0")
        A("s_min_u32 s85, s85, 40000"); A(f"s_add_u32 s84, s88, {dbase}"); A("s_add_u32 s84, s84, s85")
        lab("L_diag2")
        A("s_memrealtime s[90:91]"); A("s_waitcnt lgkmcnt(0)"); A("s_sub_u32 s85, s90, s84"); A("s_cmp_lt_i32 s85, 0"); A("s_cbranch_scc1 L_diag2")
        lab("L_diag_end")
    if diag is not None:
        A("s_cmp_lg_u32 s2, 0"); A("s_cbranch_scc1 L_diag_end"); A("s_cmp_lg_u32 s3, 0"); A("s_cbranch_scc1 L_diag_end")
        A("s_add_u32 s84, s88, 7000")
        lab("L_diag1")
        A("s_memrealtime s[90:91]"); A("s_waitcnt lgkmcnt(0)"); A("s_sub_u32 s85, s90, s84"); A("s_cmp_lt_i32 s85, 0"); A("s_cbranch_scc1 L_diag1")
        A("v_lshlrev_b32 v166, 2, v1"); A("buffer_load_dword v165, v166, s[92:95], 0 offen sc1"); A("s_waitcnt vmcnt(0)")
        A("v_readlane_b32 s84, v165, 0"); A(f"v_readlane_b32 s85, v165, {max(diag, 0)}")
        A("s_not_b32 s84, s84"); A("s_sub_u32 s85, s85, s84"); A("s_lshl_b32 s85, s85, 2")
        if diag <= 0: A("s_mov_b32 s85, 0")
        A("s_min_u32 s85, s85, 40000"); A(f"s_add_u32 s84, s88, {dbase}"); A("s_add_u32 s84, s84, s85")
        lab("L_diag2")
        A("s_memrealtime s[90:91]"); A("s_waitcnt lgkmcnt(0)"); A("s_sub_u32 s85, s90, s84"); A("s_cmp_lt_i32 s85, 0"); A("s_cbranch_scc1 L_diag2")
        lab("L_diag_end")
    A("s_endpgm")

    lab("L_service")
    A("s_setprio 3")
    vL16, vQe, vQo, vFe, vFo, vXq, vXf = 2, 3, 4, 5, 6, 7, 8
    vTr = [9, 10, 11, 12]; a_, b_, c_, d_ = 14, 15, 16, 17; vG, vOG = 20, 21
    A(f"v_mov_b32 v{a_}, 0"); A(f"v_mov_b32 v{b_}, 0"); A(f"v_mov_b32 v{c_}, 0"); A(f"v_mov_b32 v{d_}, 0")
    A(f"ds_write_b128 v{a_}, v[{a_}:{d_}] offset:{L_FLAG}")
    A(f"v_lshlrev_b32 v{vL16}, 4, v1")
    A("s_and_b32 s8, s6, 3"); A("s_lshr_b32 s9, s6, 2"); A("s_lshl_b32 s14, s4, 1"); A("s_add_u32 s9, s9, s14")
    A("s_mul_i32 s11, s2, 9363"); A("s_lshr_b32 s11, s11, 16"); A("s_mul_i32 s14, s11, 7"); A("s_sub_u32 s81, s2, s14")
    A(f"v_bfe_u32 v{a_}, v1, 4, 1"); A(f"v_lshlrev_b32 v{a_}, 1, v{a_}"); A(f"v_and_b32 v{b_}, 7, v1"); A(f"v_xor_b32 v{a_}, v{a_}, v{b_}")
    A(f"v_xor_b32 v{b_}, 4, v{a_}"); A(f"v_lshrrev_b32 v{c_}, 3, v1")
    A(f"s_mul_i32 s14, s9, {112 * 8192}"); A("s_lshl_b32 s15, s5, 9"); A("s_add_u32 s14, s14, s15"); A("s_lshl_b32 s15, s8, 7"); A("s_add_u32 s14, s14, s15")
    A(f"v_lshl_add_u32 v{d_}, v{c_}, 13, s14")
    A(f"v_lshl_add_u32 v{vQe}, v{a_}, 4, v{d_}"); A(f"v_lshl_add_u32 v{vQo}, v{b_}, 4, v{d_}")
    A(f"s_mul_i32 s14, s81, {64 * 3584}"); A("s_lshl_b32 s15, s11, 7"); A("s_add_u32 s14, s14, s15")
    A(f"v_mul_u32_u24 v{d_}, 3584, v{c_}"); A(f"v_add_u32 v{d_}, s14, v{d_}")
    A(f"v_lshl_add_u32 v{vFe}, v{a_}, 4, v{d_}"); A(f"v_lshl_add_u32 v{vFo}, v{b_}, 4, v{d_}")
    A("s_waitcnt lgkmcnt(0)")
    A(f"s_mov_b32 s13, {wsb}"); A("s_load_dword s12, s[38:39], s13")
    srd(SX, 16, 1792); srd(SWQ, 22, 3670016); srd(SG, 32, 896); srd(SW1, 28, 1605632)
    A("s_cmp_lt_u32 s2, 196"); A(f"s_cselect_b32 s{SW1+2}, s{SW1+2}, 0")
    if svc == 0:
        for d in (SX, SWQ, SG, SW1): A(f"s_mov_b32 s{d+2}, 0")
    if svc == 0.5:
        for d in (SW1,): A(f"s_mov_b32 s{d+2}, 0")
    A(f"s_mov_b32 m0, {L_X}")
    for k in range(2): A(f"buffer_load_dwordx4 v{vL16}, s[{SX}:{SX+3}], 0 offen offset:{1024 * k} lds")
    for m in range(16):
        A(f"s_mov_b32 m0, {L_W + 1024 * m}")
        A(f"s_mov_b32 s13, {m * 65536 if m < 14 else 0x7f000000}")
        A(f"buffer_load_dwordx4 v{vQo if m & 1 else vQe}, s[{SWQ}:{SWQ+3}], s13 offen {wflags} lds")
    for m in range(8):
        A(f"s_mov_b32 m0, {L_W1 + 1024 * m}"); A(f"s_mov_b32 s13, {m * 8 * 3584}")
        A(f"buffer_load_dwordx4 v{vFo if m & 1 else vFe}, s[{SW1}:{SW1+3}], s13 offen {wflags} lds")
    GW = 24
    A(f"buffer_load_dwordx4 v[{GW}:{GW+3}], v{vL16}, s[{SG}:{SG+3}], 0 offen")
    A("s_barrier")
    srd(SWS, 38, WS_SIZE)
    A(f"v_and_b32 v{a_}, 1, v1"); A(f"v_mul_u32_u24 v{b_}, 896, v{a_}"); A(f"v_lshrrev_b32 v{a_}, 4, v1"); A(f"v_lshl_add_u32 v{b_}, v{a_}, 4, v{b_}")
    A("s_mul_i32 s14, s9, 224"); A(f"v_add_u32 v{vXq}, s14, v{b_}"); A("s_lshl_b32 s14, s81, 7"); A(f"v_add_u32 v{vXf}, s14, v{b_}")
    A(f"v_lshlrev_b32 v{b_}, 10, v{a_}"); A(f"v_bfe_u32 v{c_}, v1, 2, 2"); A(f"v_lshl_add_u32 v{b_}, v{c_}, 7, v{b_}")
    A(f"v_bfe_u32 v{c_}, v1, 1, 1"); A(f"v_lshl_add_u32 v{b_}, v{c_}, 4, v{b_}"); A(f"v_and_b32 v{c_}, 1, v1"); A(f"v_lshl_add_u32 v{b_}, v{c_}, 3, v{b_}")
    A(f"v_bfe_u32 v{c_}, v1, 3, 2")
    for cg in range(4):
        A(f"v_xor_b32 v{d_}, {cg}, v{c_}"); A(f"v_lshl_add_u32 v{vTr[cg]}, v{d_}, 5, v{b_}")
    A("s_lshl_b32 s8, s8, 9"); A("s_lshl_b32 s9, s9, 11"); A("s_add_u32 s8, s8, s9"); A("s_lshl_b32 s9, s5, 13"); A("s_add_u32 s8, s8, s9")
    A(f"s_add_u32 s8, s8, {WS_Q}"); A(f"s_add_u32 s9, s8, {16 * 8192}")
    A("s_lshl_b32 s11, s11, 12"); A("s_lshl_b32 s81, s81, 9"); A("s_add_u32 s11, s11, s81"); A(f"s_add_u32 s11, s11, {WS_H}")
    A("s_mov_b32 s82, 0xffff0000"); A("s_mov_b32 s83, 0"); A("s_mov_b32 s84, 0"); A("s_mov_b32 s85, 0xffff"); A("s_mov_b32 s86, 0"); A("s_mov_b32 s87, 0xffff0000")
    if dbg: A("s_waitcnt lgkmcnt(0)"); A("v_writelane_b32 v167, s88, 0")
    A("s_waitcnt lgkmcnt(0)"); A(f"s_add_u32 s12, s12, {TAGC}")
    XA = 28; TB = 56; D = 120; UQ = 136
    A("s_waitcnt vmcnt(25)")
    for m in range(4): A(f"ds_read_b128 v[{XA+4*m}:{XA+4*m+3}], v{vXq} offset:{L_X + 64 * m}")
    for m in range(2): A(f"ds_read_b128 v[{XA+16+4*m}:{XA+16+4*m+3}], v{vXf} offset:{L_X + 64 * m}")
    def gemv(img, steps, xa, vm_after):
        for m in range(steps):
            A(f"s_waitcnt vmcnt({vm_after + 4 * (steps - 1 - m)})")
            for cg in range(4):
                r = TB + 16 * m + 4 * cg
                A(f"ds_read_b64_tr_b16 v[{r}:{r+1}], v{vTr[cg]} offset:{img + 4096 * m}")
                A(f"ds_read_b64_tr_b16 v[{r+2}:{r+3}], v{vTr[cg]} offset:{img + 4096 * m + 512}")
            if m: mf(m - 1, xa, 8)
        mf(steps - 1, xa, 0)
        for bb in range(2):
            for cg in range(1, 4): A(f"v_cndmask_b32 v{D+bb}, v{D+bb}, v{D+4*cg+bb}, s[{80+2*cg}:{81+2*cg}]")
        for bb in range(2):
            A(f"v_mov_b32 v{UQ+4*bb}, v{D+bb}"); A(f"v_mov_b32_dpp v{UQ+4*bb+2}, v{D+bb} quad_perm:[1,1,3,3] {DPPF}")
            A(f"v_mov_b32 v{UQ+4*bb+1}, s12"); A(f"v_mov_b32 v{UQ+4*bb+3}, s12")
    def mf(m, xa, lg):
        A(f"s_waitcnt lgkmcnt({lg})")
        for cg in range(4):
            r = TB + 16 * m + 4 * cg; d = D + 4 * cg; c = "0" if m == 0 else f"v[{d}:{d+3}]"
            A(f"v_mfma_f32_16x16x32_bf16 v[{d}:{d+3}], v[{xa+4*m}:{xa+4*m+3}], v[{r}:{r+3}], {c}")
    def publish(s0, s1):
        if svc < 2: return
        A("s_mov_b32 exec_lo, 0x55555555"); A("s_mov_b32 exec_hi, 0x55555555")
        A(f"buffer_store_dwordx4 v[{UQ}:{UQ+3}], v{d_}, {WSR}, {s0} offen sc1")
        A(f"buffer_store_dwordx4 v[{UQ+4}:{UQ+7}], v{d_}, {WSR}, {s1} offen sc1")
        A("s_mov_b64 exec, -1")
    A(f"v_lshlrev_b32 v{d_}, 3, v1")
    gemv(L_W, 4, XA, 9)
    publish("s8", "s9")
    stamp(1)
    gemv(L_W1, 2, XA + 16, 3)
    A("s_cmp_ge_u32 s2, 196"); A("s_cbranch_scc1 L_sv_noh")
    A(f"s_add_u32 s9, s11, {28 * 4096}")
    publish("s11", "s9")
    lab("L_sv_noh")
    stamp(2)
    QP = 56
    if NG is not None: lds_wait(L_FLAG + 12, 1, "pg1", a_, b_, sleep=4, cmp="ge")
    A("s_lshl_b32 s8, s7, 13"); A(f"s_add_u32 s8, s8, {WS_Q}"); A("s_add_u32 s9, s8, 4096")
    gather("q", [(QP + 4 * k, vL16, "s9" if k >= 4 else "s8", 1024 * (k & 3), -1, -1) for k in range(8)], psleep,
           [40, 42, 44, 46, 48, 50, 82, 84])
    for hf in range(2):
        r = QP + 4 * hf
        for e in (0, 2):
            A(f"v_add_f32 v{r+e}, v{r+e}, v{r+8+e}"); A(f"v_add_f32 v{r+16+e}, v{r+16+e}, v{r+24+e}")
        for e in (0, 2): A(f"v_add_f32 v{r+e}, v{r+e}, v{r+16+e}")
        A(f"v_cvt_pk_bf16_f32 v{r}, v{r}, v{r+2}")
    A(f"v_lshlrev_b32 v{a_}, 2, v1")
    A(f"ds_write_b32 v{a_}, v{QP} offset:{L_Q}"); A(f"ds_write_b32 v{a_}, v{QP+4} offset:{L_Q + 256}")
    A(f"v_mov_b32 v{a_}, 0"); A(f"v_mov_b32 v{b_}, s12"); A(f"v_mov_b32 v{c_}, 1")
    A(f"ds_write_b32 v{a_}, v{b_} offset:{L_G + 16}")
    A(f"ds_write_b32 v{a_}, v{c_} offset:{L_FLAG}")
    stamp(3)
    XG = 28
    A("s_mul_i32 s14, s4, 896"); A(f"v_add_u32 v{a_}, s14, v{vL16}")
    A(f"ds_read_b128 v[{XG}:{XG+3}], v{a_} offset:{L_X}")
    A("s_waitcnt lgkmcnt(0)")
    A(f"v_mov_b32 v{vG}, 0")
    for k in range(4):
        A(f"v_lshlrev_b32 v{a_}, 16, v{XG+k}"); A(f"v_and_b32 v{b_}, 0xffff0000, v{XG+k}")
        A(f"v_lshlrev_b32 v{c_}, 16, v{GW+k}"); A(f"v_and_b32 v{d_}, 0xffff0000, v{GW+k}")
        A(f"v_mul_f32 v{a_}, v{a_}, v{c_}"); A(f"v_mul_f32 v{b_}, v{b_}, v{d_}")
        A(f"v_cvt_pk_bf16_f32 v{a_}, v{a_}, v{b_}")
        A(f"v_lshlrev_b32 v{b_}, 16, v{a_}"); A(f"v_and_b32 v{a_}, 0xffff0000, v{a_}")
        A(f"v_add_f32 v{vG}, v{vG}, v{b_}"); A(f"v_add_f32 v{vG}, v{vG}, v{a_}")
    A("v_cmp_gt_u32 vcc, 56, v1"); A(f"v_cndmask_b32 v{vG}, 0, v{vG}, vcc")
    wave_reduce(A, "add", vG, a_)
    A(f"v_cvt_pk_bf16_f32 v{vG}, v{vG}, v{vG}"); A(f"v_lshlrev_b32 v{vG}, 16, v{vG}")
    A(f"v_mul_f32 v{vG}, 0xbfb8aa3b, v{vG}"); A(f"v_exp_f32 v{vG}, v{vG}"); A(f"v_add_f32 v{vG}, 1.0, v{vG}"); A(f"v_rcp_f32 v{vG}, v{vG}")
    A(f"v_cvt_pk_bf16_f32 v{vG}, v{vG}, v{vG}"); A(f"v_lshlrev_b32 v{vG}, 16, v{vG}")
    A(f"v_sub_f32 v{vOG}, 1.0, v{vG}"); A(f"v_cvt_pk_bf16_f32 v{vOG}, v{vOG}, v{vOG}"); A(f"v_lshlrev_b32 v{vOG}, 16, v{vOG}")
    lds_wait(L_FLAG + 8, 8, "cnt", a_, b_, sleep=2)
    ST = 32
    def combine(m, l):
        A(f"v_mov_b32 v{a_}, v{m}")
        for ctl in ("quad_perm:[1,0,3,2]", "quad_perm:[2,3,0,1]", "row_half_mirror"): A(f"v_max_f32_dpp v{a_}, v{a_}, v{a_} {ctl} {DPPF}")
        A(f"v_sub_f32 v{b_}, v{m}, v{a_}"); A(f"v_exp_f32 v{b_}, v{b_}"); A(f"v_mul_f32 v{b_}, v{b_}, v{l}")
        for ctl in ("quad_perm:[1,0,3,2]", "quad_perm:[2,3,0,1]", "row_half_mirror"): A(f"v_add_f32_dpp v{b_}, v{b_}, v{b_} {ctl} {DPPF}")
    A(f"v_and_b32 v{c_}, 7, v1"); A(f"v_lshlrev_b32 v{c_}, 3, v{c_}")
    A(f"ds_read_b64 v[{ST+4}:{ST+5}], v{c_} offset:{L_WST}"); A("s_waitcnt lgkmcnt(0)")
    combine(ST + 4, ST + 5)
    A(f"v_mov_b32 v{ST}, v{a_}"); A(f"v_mov_b32 v{ST+1}, s12"); A(f"v_mov_b32 v{ST+2}, v{b_}"); A(f"v_mov_b32 v{ST+3}, s12")
    A("s_lshl_b32 s11, s7, 10"); A(f"s_add_u32 s11, s11, {WS_ST}"); A("s_lshl_b32 s9, s6, 7"); A("s_add_u32 s9, s9, s11")
    A("s_mov_b64 exec, 0xff"); A(f"buffer_store_dwordx4 v[{ST}:{ST+3}], v{vL16}, {WSR}, s9 offen sc1"); A("s_mov_b64 exec, -1")
    if NS is not None: lds_wait(L_FLAG + 12, 2, "pg2", a_, b_, sleep=8, cmp="ge")
    HP = 28
    A(f"v_mov_b32 v{HP}, 0"); A(f"v_mov_b32 v{HP+2}, 0")
    A("s_cmp_ge_u32 s10, 112"); A("s_cbranch_scc1 L_sv_hz")
    A(f"v_lshrrev_b32 v{a_}, 3, v1"); A(f"v_lshlrev_b32 v{a_}, 9, v{a_}"); A(f"v_and_b32 v{b_}, 7, v1"); A(f"v_lshl_add_u32 v{a_}, v{b_}, 4, v{a_}")
    A("s_lshr_b32 s8, s10, 2"); A("s_mul_i32 s9, s4, 28"); A("s_add_u32 s8, s8, s9"); A("s_lshl_b32 s8, s8, 12")
    A("s_and_b32 s9, s10, 3"); A("s_lshl_b32 s9, s9, 7"); A("s_add_u32 s8, s8, s9"); A(f"s_add_u32 s8, s8, {WS_H}")
    gather("h", [(HP, a_, "s8", 0, -1, "0x00ffffff")], psleep, [82])
    lab("L_sv_hz")
    for k in (0, 2): A(f"v_add_f32_dpp v{HP+k}, v{HP+k}, v{HP+k} row_ror:8 {DPPF}")
    for sw in ("v_permlane16_swap_b32", "v_permlane32_swap_b32"):
        for k in (0, 2): A(f"v_mov_b32 v{HP+k+1}, v{HP+k}")
        for k in (0, 2): A(f"{sw} v{HP+k}, v{HP+k+1}")
        for k in (0, 2): A(f"v_add_f32 v{HP+k}, v{HP+k}, v{HP+k+1}")
    for k in (0, 2): A(f"v_max_f32 v{HP+k}, 0, v{HP+k}")
    A(f"v_cvt_pk_bf16_f32 v{HP}, v{HP}, v{HP}"); A(f"v_cvt_pk_bf16_f32 v{HP+1}, v{HP+2}, v{HP+2}")
    A(f"v_lshlrev_b32 v{a_}, 3, v1")
    A("s_mov_b64 exec, 0xff"); A(f"ds_write_b64 v{a_}, v[{HP}:{HP+1}] offset:{L_H}"); A("s_mov_b64 exec, -1")
    stamp(4)
    A(f"v_lshlrev_b32 v{c_}, 7, v1")
    gather("st", [(ST + 4, c_, "s11", 0, "0xff", 0)], 8, [82])
    combine(ST + 4, ST + 6)
    A(f"v_sub_f32 v{vG+2}, 0, v{a_}"); A(f"v_rcp_f32 v{vG+3}, v{b_}"); A(f"v_mul_f32 v{vG+3}, v{vG+3}, v{vG}")
    A(f"v_mov_b32 v{a_}, 0"); A(f"v_mov_b32 v{b_}, 1")
    A("s_mov_b64 exec, 1")
    A(f"ds_write_b128 v{a_}, v[{vG}:{vG+3}] offset:{L_G}")
    A(f"ds_write_b32 v{a_}, v{b_} offset:{L_FLAG + 4}")
    A("s_mov_b64 exec, -1")
    A("s_waitcnt lgkmcnt(0)")
    stamp(5)
    dump_stamps(True)
    lab("L_end")
    A("s_endpgm")

    body = pad_hazards(L)
    out = [HEADER.rstrip("\n"),
           "; Single fused launch: 256 workgroups (one per CU) x 9 waves (wave 0 = service, waves 1-8 stream K/V).",
           f"; @launch grid=(256,1,1) block=(576,1,1) lds={lds or LDS_MIN}",
           '.amdgcn_target "amdgcn-amd-amdhsa--gfx950"', ".text", f".globl {NAME}", ".p2align 8", f".type {NAME},@function", f"{NAME}:"]
    out += body
    out += ['.section .rodata,"a"', ".p2align 6", f".amdhsa_kernel {NAME}",
            "  .amdhsa_next_free_vgpr 168", "  .amdhsa_next_free_sgpr 96", "  .amdhsa_accum_offset 168",
            "  .amdhsa_group_segment_fixed_size 0", "  .amdhsa_kernarg_size 96", "  .amdhsa_user_sgpr_count 2",
            "  .amdhsa_user_sgpr_kernarg_segment_ptr 1", "  .amdhsa_system_sgpr_workgroup_id_x 1", ".end_amdhsa_kernel"]
    return "\n".join(out) + "\n"

def masks(A, M, t0, t1):
    A(f"v_and_b32 v{t0}, 1, v1"); A(f"v_lshlrev_b32 v{t0}, 4, v{t0}"); A(f"v_mov_b32 v{t1}, 0xffff"); A(f"v_lshlrev_b32 v{t1}, v{t0}, v{t1}")
    A(f"v_bfe_u32 v{t0}, v1, 1, 2")
    for r in range(4): A(f"v_cmp_eq_u32 s[{80+2*r}:{81+2*r}], {r}, v{t0}")
    for r in range(4): A(f"v_cndmask_b32 v{M[r]}, 0, v{t1}, s[{80+2*r}:{81+2*r}]")

def mask_prime(A, M, t0, t1):
    A(f"v_lshrrev_b32 v{t0}, 1, v1"); A(f"v_xor_b32 v{t0}, v{t0}, v1"); A(f"v_bfe_u32 v{t0}, v{t0}, 3, 1")
    A(f"v_add_u32 v{t0}, -1, v{t0}")
    for r in range(4): A(f"v_and_b32 v{M[r]}, v{M[r]}, v{t0}")

def red2_lane(A, d, t0):
    A(f"v_and_b32 v{t0}, 15, v1"); A(f"v_lshlrev_b32 v{d}, 5, v{t0}")
    A(f"v_lshrrev_b32 v{t0}, 5, v1"); A(f"v_lshl_add_u32 v{d}, v{t0}, 9, v{d}")
    A(f"v_bfe_u32 v{t0}, v1, 4, 1"); A(f"v_lshl_add_u32 v{d}, v{t0}, 4, v{d}")

def wave_reduce(A, op, v, t):
    for ctl in ("quad_perm:[1,0,3,2]", "quad_perm:[2,3,0,1]", "row_half_mirror", "row_mirror"):
        A(f"v_{op}_f32_dpp v{v}, v{v}, v{v} {ctl} {DPPF}")
    for sw in ("v_permlane16_swap_b32", "v_permlane32_swap_b32"):
        A(f"v_mov_b32 v{t}, v{v}"); A(f"{sw} v{v}, v{t}"); A(f"v_{op}_f32 v{v}, v{v}, v{t}")

if __name__ == "__main__":
    kw = eval("dict(%s)" % (sys.argv[2] if len(sys.argv) > 2 else ""))
    open(sys.argv[1], "w").write(gen(**kw))
```

```python
import sys
sys.path.insert(0, "dev")
from asmlib import pad_hazards

NAME = "gated_mix__mha_block_cached__dense_activation_relu__decode_kernel"
HEADER = open("gated_mix__mha_block_cached__dense_activation_relu__decode.s.ref").read().split("; Override launch")[0]

WS_ST = 0x1F0000
WS_H = 0x8000
WS_Q = 0x40000
WS_O = 0x80000
WS_Y = 0x100000
WS_DBG = 0x400000
WS_SIZE = 268435456
L_W = 0x0000
L_W1 = 0x4000
L_RED1 = 0x0000
L_X = 0x6000
L_Q = 0x6800
L_H = 0x6A00
L_G = 0x6A40
L_FLAG = 0x6A80
L_WST = 0x6AC0
L_FIN = 0x6C00
L_OL = 0x6B00
L_PW = 0x7000
L_RED2 = 0x8000
LDS_MIN = L_RED2 + 8 * 2048
TAGC = 0x9E3779B9
SPIN_MAX = 1 << 18
DPPF = "row_mask:0xf bank_mask:0xf"
CEXP = "0x3db8aa3b"

def gen(LIM=2, LIMV=None, NQ=24, CQ=3, CP=3, R=33, NF=62, dbg=False, hdbg=False, diag=None,
        psleep=2, osleep=0, fsleep=0, svc=9, kflags="nt", wflags="nt", lds=None, LE=None, NG=12, NS=46, rot=None, early=False, dbase=10000, pp=1, pgap=8, wsb=0, diag2=None, xmap=0, spread=0, LP=None, kmap=0, ofl='', pat='tp w0 w1 w2 b0 b1 b2 s0 s1 s2', touch='', codepf=False):
    if LIMV is None: LIMV = LIM
    WS_ST, WS_H, WS_Q, WS_O, WS_Y = (x + wsb for x in (0x1F0000, 0x8000, 0x40000, 0x80000, 0x100000))
    L = []
    A = lambda s: L.append("  " + s)
    lab = lambda s: L.append(s + ":")
    def srd(d, p, nbytes):
        A(f"s_mov_b32 s{d}, s{p}"); A(f"s_mov_b32 s{d+1}, s{p+1}"); A(f"s_mov_b32 s{d+2}, {nbytes}"); A(f"s_mov_b32 s{d+3}, 0x20000")
    SK, SV, SWO, SWS, SWQ, SW1, SW2, SX, SG, SO = 40, 44, 48, 52, 56, 60, 64, 68, 72, 76
    WSR = f"s[{SWS}:{SWS+3}]"
    if diag is not None: hdbg = True
    if diag2 is not None: dbg = True
    if hdbg: dbg = True
    def stamp(idx):
        if dbg:
            A("s_memrealtime s[90:91]"); A("s_waitcnt lgkmcnt(0)"); A(f"v_writelane_b32 v167, s90, {idx}")
    def dump_stamps(service=False):
        if hdbg:
            A("s_mov_b32 s92, s36"); A("s_mov_b32 s93, s37"); A("s_mov_b32 s94, 256"); A("s_mov_b32 s95, 0x20000")
            A("v_not_b32 v165, v167"); A("v_cmp_eq_u32 vcc, 0, v1"); A("v_cndmask_b32 v167, v167, v165, vcc")
            A("v_lshlrev_b32 v166, 2, v1")
            if service: A("v_add_u32 v166, 64, v166"); A("s_mov_b64 exec, 0x3e")
            else: A("s_mov_b64 exec, 0xffff")
            A("buffer_atomic_umax v167, v166, s[92:95], 0 offen"); A("s_mov_b64 exec, -1")
        elif dbg:
            if diag2 is not None and not service:
                tg = "s" if service else "m"
                A("s_add_u32 s84, s88, 4500"); lab(f"L_dd_{tg}"); A("s_sleep 8")
                A("s_memrealtime s[90:91]"); A("s_waitcnt lgkmcnt(0)"); A("s_sub_u32 s85, s90, s84"); A("s_cmp_lt_i32 s85, 0"); A(f"s_cbranch_scc1 L_dd_{tg}")
            A("s_mul_i32 s92, s2, 9"); A("s_add_u32 s92, s92, s93"); A("s_lshl_b32 s92, s92, 8"); A(f"s_add_u32 s92, s92, {WS_DBG}")
            A("v_lshlrev_b32 v166, 2, v1"); A(f"buffer_store_dword v167, v166, {WSR}, s92 offen sc1")
    if dbg: R = min(R, 32)
    def spin_tail(label, sleep):
        if sleep: A(f"s_sleep {sleep}")
        A("s_sub_u32 s80, s80, 1"); A("s_cmp_lg_u32 s80, 0"); A(f"s_cbranch_scc1 {label}")
    def lds_wait(off, val, tag, ta, tb, sleep=1, cmp="eq"):
        A(f"v_mov_b32 v{ta}, 0"); A(f"s_mov_b32 s80, {SPIN_MAX}")
        lab(f"L_wait_{tag}")
        A(f"ds_read_b32 v{tb}, v{ta} offset:{off}"); A("s_waitcnt lgkmcnt(0)"); A(f"v_readfirstlane_b32 s81, v{tb}")
        A(f"s_cmp_{cmp}_u32 s81, {val}"); A(f"s_cbranch_scc1 L_got_{tag}")
        spin_tail(f"L_wait_{tag}", sleep)
        lab(f"L_got_{tag}")
    def gather(tag, items, sleep, pool):
        if svc < {"q": 3, "h": 4, "st": 5}.get(tag, 0):
            A("s_waitcnt vmcnt(0)"); return
        assert len(pool) >= len(items)
        for (reg, va, so, imm, lo, hi), ms in zip(items, pool): A(f"s_mov_b32 s{ms}, {lo}"); A(f"s_mov_b32 s{ms+1}, {hi}")
        A(f"s_mov_b32 s80, {SPIN_MAX}")
        lab(f"L_g_{tag}")
        for k, ((reg, va, so, imm, lo, hi), ms) in enumerate(zip(items, pool)):
            A(f"s_mov_b64 exec, s[{ms}:{ms+1}]")
            if len(items) > 1: A(f"s_cbranch_execz L_g_{tag}_s{k}")
            A(f"buffer_load_dwordx4 v[{reg}:{reg+3}], v{va}, {WSR}, {so} offen offset:{imm} sc1")
            if len(items) > 1: lab(f"L_g_{tag}_s{k}")
        A("s_waitcnt vmcnt(0)")
        for k, ((reg, va, so, imm, lo, hi), ms) in enumerate(zip(items, pool)):
            if len(items) > 1: A(f"s_mov_b64 exec, s[{ms}:{ms+1}]")
            A(f"v_cmp_ne_u32 vcc, s12, v{reg+1}"); A(f"v_cmp_ne_u32 s[{ms}:{ms+1}], s12, v{reg+3}")
            A(f"s_or_b64 s[{ms}:{ms+1}], s[{ms}:{ms+1}], vcc")
            if k == 0: A(f"s_mov_b64 s[14:15], s[{ms}:{ms+1}]")
            else: A(f"s_or_b64 s[14:15], s[14:15], s[{ms}:{ms+1}]")
        A("s_cmp_eq_u64 s[14:15], 0"); A(f"s_cbranch_scc1 L_g_{tag}_ok")
        spin_tail(f"L_g_{tag}", sleep)
        lab(f"L_g_{tag}_ok")
        A("s_mov_b64 exec, -1")

    def poll_issue(sets, k, items):
        for j, (va, so, imm) in enumerate(items):
            r = sets[k] + 4 * j
            A(f"buffer_load_dwordx4 v[{r}:{r+3}], v{va}, {WSR}, {so} offen offset:{imm} sc1")
    def poll_loop(tag, sets, items, first):
        n = len(sets); ni = len(items)
        for k in range(1, n):
            if pgap: A(f"s_sleep {pgap}")
            poll_issue(sets, k, items)
        A(f"s_mov_b32 s80, {SPIN_MAX}")
        lab(f"L_p_{tag}")
        for k in range(n):
            A(f"s_waitcnt vmcnt({(n - 1) * ni})")
            for j in range(ni):
                r = sets[k] + 4 * j
                A(f"v_cmp_ne_u32 {'vcc' if j == 0 else 's[84:85]'}, s12, v{r+1}"); A(f"v_cmp_ne_u32 s[{82 + 4 * j}:{83 + 4 * j}], s12, v{r+3}")
            if ni == 2: A("s_or_b64 vcc, vcc, s[84:85]"); A("s_or_b64 vcc, vcc, s[86:87]")
            A("s_or_b64 vcc, vcc, s[82:83]")
            A(f"s_cbranch_scc0 L_p_{tag}_ok{k}")
            poll_issue(sets, k, items)
        A("s_sub_u32 s80, s80, 1"); A("s_cmp_lg_u32 s80, 0"); A(f"s_cbranch_scc1 L_p_{tag}")
        A("s_waitcnt vmcnt(0)")
        for k in range(n):
            lab(f"L_p_{tag}_ok{k}")
            first(sets[k])
            if k < n - 1: A(f"s_branch L_p_{tag}_done")
        lab(f"L_p_{tag}_done")
        A("s_nop 1")

    if dbg and early: A("s_memrealtime s[88:89]")
    A("s_cmp_ge_u32 s2, 256"); A("s_cbranch_scc1 L_end")
    A("s_load_dwordx16 s[16:31], s[0:1], 0")
    A("s_load_dwordx8 s[32:39], s[0:1], 64")
    A("v_lshrrev_b32 v2, 6, v0"); A("v_and_b32 v1, 63, v0")
    A("v_readfirstlane_b32 s3, v2")
    A("s_and_b32 s14, s2, 7"); A("s_lshr_b32 s15, s2, 3")
    if xmap: A(f"s_xor_b32 s14, s14, {xmap}")
    if spread:
        mk = (1 << spread) - 1
        sh = 3 - spread
        A(f"s_lshr_b32 s4, s14, {sh}"); A(f"s_and_b32 s5, s15, {mk}"); A("s_xor_b32 s6, s4, s5")
        A("s_xor_b32 s15, s15, s6"); A(f"s_lshl_b32 s6, s6, {sh}"); A("s_xor_b32 s14, s14, s6")
    A("s_lshr_b32 s4, s15, 4")
    A("s_bfe_u32 s5, s15, 0x10003"); A("s_lshl_b32 s14, s14, 1"); A("s_add_u32 s5, s5, s14")
    A("s_and_b32 s6, s15, 7")
    A("s_lshl_b32 s7, s4, 4"); A("s_add_u32 s7, s7, s5")
    A("s_lshl_b32 s10, s5, 3"); A("s_add_u32 s10, s10, s6")
    if dbg:
        A("s_mov_b32 s93, s3"); A("v_mov_b32 v167, 0")
        if not early: A("s_memrealtime s[88:89]")
    A("s_cmp_eq_u32 s3, 0"); A("s_cbranch_scc1 L_service")

    A("s_sub_u32 s3, s3, 1")
    vK, vV, vWo, vW2, t0, t1 = 2, 3, 4, 5, 6, 7
    M = [8, 9, 10, 11]; Q = [12, 16]; DB = [20, 24]; AB = [20, 24]; SG_ = [28, 29, 30, 31]; ACC = 32
    vMW = 12; vE = [13, 14, 15, 16]; vLW = 17
    RING = 36
    A(f"v_bfe_u32 v{t0}, v1, 2, 2"); A(f"v_lshlrev_b32 v{vK}, 9, v{t0}")
    A(f"v_lshrrev_b32 v{t0}, 4, v1"); A(f"v_lshl_add_u32 v{vK}, v{t0}, 6, v{vK}")
    A(f"v_and_b32 v{t0}, 3, v1"); A(f"v_lshl_add_u32 v{vK}, v{t0}, 4, v{vK}")
    PB = {t: 11 + k for k, t in enumerate(pat.split())}
    A("s_lshl_b32 s8, s7, 21")
    for reg, nm in (("s3", "w"), ("s6", "s")):
        k = 0
        while k < 3:
            e = k
            while e < 2 and PB[f"{nm}{e+1}"] == PB[f"{nm}{e}"] + 1: e += 1
            A(f"s_bfe_u32 s14, {reg}, {hex(((e - k + 1) << 16) + k)}"); A(f"s_lshl_b32 s14, s14, {PB[f'{nm}{k}']}"); A("s_add_u32 s8, s8, s14")
            k = e + 1
    def toff(beta, tp):
        o = (tp << PB["tp"]) | ((beta & 1) << PB["b0"]) | (((beta >> 1) & 1) << PB["b1"]) | ((beta >> 2) << PB["b2"])
        return o & ~0xfff, o & 0xfff
    A(f"v_add_u32 v{vK}, s8, v{vK}")
    A("s_waitcnt lgkmcnt(0)")
    srd(SK, 18, 0x4000000)

    loads = [("K", beta, tp, jh) for beta in range(8) for tp in range(2) for jh in range(2)]
    loads += [("V", beta, tp, kp) for beta in range(8) for tp in range(2) for kp in range(2)]
    loads += [("F", cb) for cb in range(2)] + [("W", r, cb) for r in range(2) for cb in range(2)]
    free = list(range(R)); slot = {}
    nissued = [0]; landed = [-1]; cur_soff = [None]
    if rot:
        A(f"s_mul_i32 s11, s2, {rot}"); A("s_lshr_b32 s14, s2, 3"); A("s_add_u32 s11, s11, s14"); A("s_and_b32 s11, s11, 7"); A("s_lshl_b32 s11, s11, 15")
    def soff(val):
        if val == 0 and not rot: return "0"
        if cur_soff[0] != val:
            if rot: A(f"s_add_u32 s13, s11, {val}"); A("s_and_b32 s13, s13, 0x3ffff")
            else: A(f"s_mov_b32 s13, {val}")
            cur_soff[0] = val
        return "s13"
    def wait_landed(n):
        if n <= landed[0]: return
        A(f"s_waitcnt vmcnt({nissued[0] - 1 - n})"); landed[0] = n
    def issue(n):
        ld = loads[n]; sl = free.pop(0); slot[n] = sl; r = RING + 4 * sl
        if ld[0] == "K":
            A(f"buffer_load_dwordx4 v[{r}:{r+3}], v{vK}, s[{SK}:{SK+3}], {soff(toff(ld[1], ld[2])[0])} offen offset:{toff(ld[1], ld[2])[1] + ld[3] * 256} {kflags}")
        elif ld[0] == "V":
            A(f"buffer_load_dwordx4 v[{r}:{r+3}], v{vV}, s[{SV}:{SV+3}], {soff(toff(ld[1], ld[2])[0])} offen offset:{toff(ld[1], ld[2])[1] + ld[3] * 1024} {kflags}")
        elif ld[0] == "W":
            A(f"buffer_load_dwordx4 v[{r}:{r+3}], v{vWo}, s[{SWO}:{SWO+3}], 0 offen offset:{ld[1] * 896 + ld[2] * 512} {wflags}")
        else:
            A(f"buffer_load_dwordx4 v[{r}:{r+3}], v{vW2}, s[{SW2}:{SW2+3}], 0 offen offset:{ld[1] * 512} {wflags}")
        nissued[0] += 1
    sreg = lambda n: RING + 4 * slot[n]
    qk_next = [0]; qk_post = [None]; pv_next = [0]; pslot = {}
    def qk_dpp(tau):
        beta, tp = tau >> 1, tau & 1; G = beta >> 1; t = 2 * (beta & 1) + tp; d = DB[tau & 1]
        A(f"v_mov_b32_dpp v{t0}, v{d} quad_perm:[0,0,0,0] {DPPF}")
        A(f"v_add_f32_dpp v{t0}, v{d+1}, v{t0} quad_perm:[1,1,1,1] {DPPF}")
        A(f"v_add_f32_dpp v{t0}, v{d+2}, v{t0} quad_perm:[2,2,2,2] {DPPF}")
        A(f"v_add_f32_dpp v{SG_[G]}, v{d+3}, v{t0} quad_perm:[3,3,3,3] row_mask:0xf bank_mask:{hex(1 << t)}")
    def qk_tile(tau):
        d = DB[tau & 1]; a0 = sreg(2 * tau); a1 = sreg(2 * tau + 1)
        A(f"v_mfma_f32_16x16x32_bf16 v[{d}:{d+3}], v[{a0}:{a0+3}], v[{Q[0]}:{Q[0]+3}], 0")
        A(f"v_mfma_f32_16x16x32_bf16 v[{d}:{d+3}], v[{a1}:{a1+3}], v[{Q[1]}:{Q[1]+3}], v[{d}:{d+3}]")
        free.extend([slot[2 * tau], slot[2 * tau + 1]])
        if qk_post[0] is not None: qk_dpp(qk_post[0])
        qk_post[0] = tau
    def red_hi(op, v, t):
        for ctl in ("row_ror:4", "row_ror:8"): A(f"v_{op}_f32_dpp v{v}, v{v}, v{v} {ctl} {DPPF}")
        for sw in ("v_permlane16_swap_b32", "v_permlane32_swap_b32"):
            A(f"v_mov_b32 v{t}, v{v}"); A(f"{sw} v{v}, v{t}"); A(f"v_{op}_f32 v{v}, v{v}, v{t}")
    def sm_a():
        qk_dpp(qk_post[0]); qk_post[0] = None
        S = SG_
        A(f"v_cvt_pk_bf16_f32 v{t0}, v{S[0]}, v{S[1]}"); A(f"v_cvt_pk_bf16_f32 v{t1}, v{S[2]}, v{S[3]}")
        A(f"v_lshlrev_b32 v{S[0]}, 16, v{t0}"); A(f"v_and_b32 v{S[1]}, 0xffff0000, v{t0}")
        A(f"v_lshlrev_b32 v{S[2]}, 16, v{t1}"); A(f"v_and_b32 v{S[3]}, 0xffff0000, v{t1}")
        A(f"v_max3_f32 v{vMW}, v{S[0]}, v{S[1]}, v{S[2]}"); A(f"v_max_f32 v{vMW}, v{vMW}, v{S[3]}")
        red_hi("max", vMW, t0)
    def sm_b():
        S = SG_
        A(f"s_mov_b32 s81, {CEXP}"); A(f"v_mul_f32 v{vMW}, s81, v{vMW}")
        for k in range(4): A(f"v_fma_f32 v{vE[k]}, v{S[k]}, s81, -v{vMW}")
        for k in range(4): A(f"v_exp_f32 v{vE[k]}, v{vE[k]}")
        A("s_lshl_b32 s14, s3, 8"); A(f"v_lshl_add_u32 v{t1}, v1, 2, s14")
        for k in range(4): A(f"v_cvt_pk_bf16_f32 v{S[k]}, v{vE[k]}, v{vE[k]}")
        A("s_mov_b32 exec_lo, 0x11111111"); A("s_mov_b32 exec_hi, 0x11111111")
        A(f"ds_write_b128 v{t1}, v[{S[0]}:{S[3]}] offset:{L_PW}")
        A("s_mov_b64 exec, -1")
        A(f"v_lshrrev_b32 v{t1}, 5, v1"); A(f"v_lshl_add_u32 v{t1}, v{t1}, 6, s14")
        for t in range(4):
            for kp in range(2):
                sl = free.pop(0); pslot[(t, kp)] = sl; r = RING + 4 * sl
                A(f"ds_read_b128 v[{r}:{r+3}], v{t1} offset:{L_PW + (8 * kp + t) * 16}")
        A(f"v_add_f32 v{vLW}, v{vE[0]}, v{vE[1]}"); A(f"v_add_f32 v{t0}, v{vE[2]}, v{vE[3]}"); A(f"v_add_f32 v{vLW}, v{vLW}, v{t0}")
    def sm_c():
        red_hi("add", vLW, t0)
        A(f"v_mov_b32 v{vMW+1}, v{vLW}")
        A("s_lshl_b32 s14, s3, 3"); A(f"v_mov_b32 v{t0}, s14"); A(f"v_mov_b32 v{t1}, 1"); A(f"v_mov_b32 v{vE[2]}, 0")
        A("s_mov_b64 exec, 1")
        A(f"ds_write_b64 v{t0}, v[{vMW}:{vMW+1}] offset:{L_WST}")
        A(f"ds_add_u32 v{vE[2]}, v{t1} offset:{L_FLAG + 8}")
        A("s_mov_b64 exec, -1")
        A("s_waitcnt lgkmcnt(0)")
        stamp(3)
    def pv_tile(m):
        beta, tp, kp = m >> 2, (m >> 1) & 1, m & 1; G = beta >> 1; t = 2 * (beta & 1) + tp
        a = AB[m & 1]; p = RING + 4 * pslot[(t, kp)] + G; bv = sreg(32 + m)
        for r in range(4): A(f"v_and_b32 v{a+r}, v{p}, v{M[r]}")
        c = "0" if m == 0 else f"v[{ACC}:{ACC+3}]"
        A(f"v_mfma_f32_16x16x32_bf16 v[{ACC}:{ACC+3}], v[{a}:{a+3}], v[{bv}:{bv+3}], {c}")
        free.append(slot[32 + m])
    vFS = 18; vHP = 19
    GG = 14
    def fetch_stats():
        stamp(4); lds_wait(L_FLAG + 4, 1, "st", t0, t1); stamp(5)
        A(f"ds_read_b128 v[14:17], v{t0} offset:{L_G}")
        A(f"v_lshrrev_b32 v{t1}, 5, v1"); A("s_lshl_b32 s14, s3, 3"); A(f"v_lshl_add_u32 v{t1}, v{t1}, 2, s14")
        A(f"ds_read_b32 v{vHP}, v{t1} offset:{L_H}")
        A("s_waitcnt lgkmcnt(0)")
        A(f"v_add_f32 v{vFS}, v{vMW}, v16"); A(f"v_exp_f32 v{vFS}, v{vFS}"); A(f"v_mul_f32 v{vFS}, v{vFS}, v17")

    N = len(loads); chunks = [sm_a, sm_b, sm_c]; sm_done = False
    for n in range(N):
        if n < 64:
            lim = LIM if n < 32 else LIMV
            if LP: lim = LP[n % len(LP)]
            if LE and n >= LE[0]: lim = LE[1]
            if n > max(lim, LIM): wait_landed(n - lim - 1)
        if n in (LIM + 1, 8, 16, 48): stamp({LIM + 1: 12, 8: 13, 16: 14, 48: 15}[n])
        if n == NQ:
            stamp(1)
            lds_wait(L_FLAG, 1, "q", t0, t1)
            A(f"v_lshrrev_b32 v{t0}, 4, v1"); A(f"v_and_b32 v{t1}, 3, v1"); A(f"v_lshl_add_u32 v{t0}, v{t0}, 2, v{t1}"); A(f"v_lshlrev_b32 v{t0}, 4, v{t0}")
            A(f"ds_read_b128 v[{Q[0]}:{Q[0]+3}], v{t0} offset:{L_Q}")
            A(f"ds_read_b128 v[{Q[1]}:{Q[1]+3}], v{t0} offset:{L_Q + 256}")
            A(f"v_mov_b32 v{t0}, 0"); A(f"ds_read_b32 v{t1}, v{t0} offset:{L_G + 16}")
            A("s_waitcnt lgkmcnt(0)"); A(f"v_readfirstlane_b32 s12, v{t1}")
            stamp(2)
        assert free, f"no free slot at load {n}"
        issue(n)
        if n == LIM:
            srd(SV, 20, 0x4000000); srd(SWO, 24, 3670016); srd(SW2, 30, 1605632); srd(SWS, 38, WS_SIZE)
            A("s_barrier")
            A(f"v_lshl_add_u32 v{vV}, v1, 4, s8")
            A(f"v_and_b32 v{t0}, 31, v1"); A(f"v_lshlrev_b32 v{t0}, 4, v{t0}"); A(f"v_lshrrev_b32 v{t1}, 5, v1")
            A(f"v_mul_u32_u24 v{vWo}, 1792, v{t1}"); A(f"v_add_u32 v{vWo}, v{vWo}, v{t0}")
            A(f"v_mul_u32_u24 v{vW2}, 896, v{t1}"); A(f"v_add_u32 v{vW2}, v{vW2}, v{t0}")
            A("s_lshl_b32 s14, s10, 5"); A("s_lshl_b32 s15, s3, 2"); A("s_add_u32 s14, s14, s15"); A("s_mul_i32 s14, s14, 896")
            A(f"v_add_u32 v{vWo}, s14, v{vWo}")
            A("s_lshl_b32 s14, s10, 4"); A("s_lshl_b32 s15, s3, 1"); A("s_add_u32 s14, s14, s15"); A("s_mul_i32 s14, s14, 896")
            A(f"v_add_u32 v{vW2}, s14, v{vW2}")
            masks(A, M, t0, t1); mask_prime(A, M, t0, t1)
            if dbg: A("s_waitcnt lgkmcnt(0)"); A("v_writelane_b32 v167, s88, 0")
        if n >= NQ and not sm_done:
            c = 0
            while qk_next[0] < 16 and c < CQ and 2 * qk_next[0] + 1 <= landed[0]:
                qk_tile(qk_next[0]); qk_next[0] += 1; c += 1
            if qk_next[0] == 16:
                chunks.pop(0)()
                sm_done = not chunks
        elif sm_done:
            c = 0
            while pv_next[0] < 32 and c < CP and 32 + pv_next[0] <= landed[0]:
                pv_tile(pv_next[0]); pv_next[0] += 1; c += 1
        if n == NF: fetch_stats()
        if n in (NG, NS):
            A(f"v_mov_b32 v{t0}, 0"); A(f"v_mov_b32 v{t1}, {1 if n == NG else 2}")
            A("s_mov_b64 exec, 1"); A(f"ds_max_u32 v{t0}, v{t1} offset:{L_FLAG + 12}"); A("s_mov_b64 exec, -1")
    assert sm_done
    vRw, vO, vY = vK, vV, vWo
    red2_lane(A, vRw, t0)
    A("s_lshl_b32 s14, s3, 10"); A(f"v_add_u32 v{vW2}, s14, v{vRw}")
    A("s_lshl_b32 s14, s3, 11"); A(f"s_add_u32 s14, s14, {L_RED2}"); A(f"v_add_u32 v{vRw}, s14, v{vRw}")
    A("s_lshl_b32 s14, s3, 6"); A(f"v_add_u32 v{vY}, s14, v1")
    A(f"v_lshrrev_b32 v{t0}, 4, v{vY}"); A(f"v_lshlrev_b32 v{vO}, 11, v{t0}"); A(f"v_and_b32 v{t0}, 15, v1"); A(f"v_lshl_add_u32 v{vO}, v{t0}, 4, v{vO}")
    A("s_lshl_b32 s9, s7, 14"); A(f"s_add_u32 s9, s9, {WS_O}"); A("s_lshl_b32 s14, s6, 8"); A("s_add_u32 s11, s9, s14")
    A("s_lshl_b32 s14, s6, 11"); A("s_add_u32 s9, s9, s14")
    while pv_next[0] < 32:
        wait_landed(32 + pv_next[0]); pv_tile(pv_next[0]); pv_next[0] += 1
    lab("L_tail")
    stamp(6)
    A(f"v_lshlrev_b32 v{t0}, 3, v{vY}")
    for k in range(4): A(f"v_mul_f32 v{ACC+k}, v{vFS}, v{ACC+k}")
    A(f"ds_write_b128 v{vW2}, v[{ACC}:{ACC+3}] offset:{L_RED1}")
    A("s_waitcnt lgkmcnt(0)"); A("s_barrier")
    fr = [RING + 4 * s_ for s_ in sorted(free + list(pslot.values()))]
    run = [r for r in fr if all(r + 4 * k in fr for k in range(4))][0]
    rest = [r for r in fr if not run <= r < run + 16]
    FS = []
    for _ in range(pp):
        r = [r for r in rest if r + 4 in rest][0]; FS.append(r); rest.remove(r); rest.remove(r + 4)
    PS = rest[:pp]; assert len(PS) == pp
    Y = run; U = 20
    A("s_cmp_ge_u32 s3, 2"); A("s_cbranch_scc1 L_odone")
    for k in range(8): A(f"ds_read_b64 v[{Y+2*k}:{Y+2*k+1}], v{t0} offset:{L_RED1 + 1024 * k}")
    A(f"v_mov_b32 v{U+1}, s12"); A(f"v_mov_b32 v{U+3}, s12")
    A("s_waitcnt lgkmcnt(0)")
    for st in (1, 2):
        for k in range(0, 8, 2 * st):
            for c_ in range(2): A(f"v_add_f32 v{Y+2*k+c_}, v{Y+2*k+c_}, v{Y+2*(k+st)+c_}")
    A(f"v_add_f32 v{U}, v{Y}, v{Y+8}"); A(f"v_add_f32 v{U+2}, v{Y+1}, v{Y+9}")
    A(f"buffer_store_dwordx4 v[{U}:{U+3}], v{vO}, {WSR}, s11 offen sc1")
    lab("L_odone")
    stamp(7)
    OG = 28; DA, DBb = Y, Y + 4
    for q in range(4): A(f"v_and_b32 v{ACC+q}, v{vHP}, v{M[q]}")
    A(f"v_add_u32 v{t0}, {L_RED2}, v{t0}")
    A(f"v_lshrrev_b32 v{t1}, 5, v1"); A("s_lshl_b32 s14, s3, 4"); A(f"v_lshl_add_u32 v{t1}, v{t1}, 3, s14")
    A("s_waitcnt vmcnt(4)")
    for cb, d in ((0, DA), (1, DBb)):
        bw = sreg(64 + cb); A(f"v_mfma_f32_16x16x32_bf16 v[{d}:{d+3}], v[{ACC}:{ACC+3}], v[{bw}:{bw+3}], 0")
    for k in range(8): A(f"v_mul_f32 v{DA+k}, v15, v{DA+k}")
    A("s_cmp_lg_u32 s3, 2"); A("s_cbranch_scc1 L_onopoll")
    P0, P1 = FS[0], FS[0] + 4
    A(f"v_and_b32 v{ACC}, 15, v1"); A(f"v_bfe_u32 v{vO}, v1, 4, 1"); A(f"v_lshl_add_u32 v{ACC}, v{ACC}, 1, v{vO}"); A(f"v_lshlrev_b32 v{ACC}, 2, v{ACC}")
    A(f"v_lshlrev_b32 v{vO}, 4, v1")
    gather("o", [(P0, vO, "s9", 0, -1, -1), (P1, vO, "s9", 1024, -1, -1)], osleep, [82, 84])
    A(f"v_add_f32 v{P0}, v{P0}, v{P1}"); A(f"v_add_f32 v{P0+2}, v{P0+2}, v{P1+2}")
    A(f"v_permlane16_swap_b32 v{P0}, v{P0+2}"); A(f"v_add_f32 v{P0}, v{P0}, v{P0+2}")
    A(f"v_mov_b32 v{P0+2}, v{P0}"); A(f"v_permlane32_swap_b32 v{P0}, v{P0+2}"); A(f"v_add_f32 v{P0}, v{P0}, v{P0+2}")
    A(f"v_cvt_pk_bf16_f32 v{P0}, v{P0}, v{P0}")
    A(f"ds_write_b32 v{ACC}, v{P0} offset:{L_OL}")
    lab("L_onopoll")
    A("s_cmp_lt_u32 s3, 2"); A("s_cbranch_scc1 L_ow1"); A("s_waitcnt vmcnt(0)"); lab("L_ow1"); A("s_waitcnt vmcnt(1) lgkmcnt(0)")
    A("s_barrier")
    A(f"ds_read_b64 v[{OG}:{OG+1}], v{t1} offset:{L_OL}")
    stamp(8)
    A("s_waitcnt lgkmcnt(0)")
    for r in range(2):
        for q in range(4): A(f"v_and_b32 v{AB[r]+q}, v{OG+r}, v{M[q]}")
    for r in range(2):
        for cb, d in ((0, DA), (1, DBb)):
            bw = sreg(66 + 2 * r + cb)
            A(f"v_mfma_f32_16x16x32_bf16 v[{d}:{d+3}], v[{AB[r]}:{AB[r]+3}], v[{bw}:{bw+3}], v[{d}:{d+3}]")
    A(f"ds_write_b128 v{vRw}, v[{DA}:{DA+3}]"); A(f"ds_write_b128 v{vRw}, v[{DBb}:{DBb+3}] offset:1024")
    A("s_waitcnt lgkmcnt(0)"); A("s_barrier")
    A("s_cmp_ge_u32 s3, 4"); A("s_cbranch_scc1 L_ydone")
    for k in range(8): A(f"ds_read_b64 v[{Y+2*k}:{Y+2*k+1}], v{t0} offset:{2048 * k}")
    A(f"v_cmp_gt_u32 vcc, 224, v{vY}")
    A(f"v_lshrrev_b32 v{t1}, 3, v{vY}"); A(f"v_lshlrev_b32 v{vO}, 14, v{t1}")
    A(f"v_and_b32 v{t1}, 7, v1"); A(f"v_lshl_add_u32 v{vO}, v{t1}, 4, v{vO}")
    A(f"s_mul_i32 s14, s4, {28 * 16384}"); A("s_lshl_b32 s15, s10, 7"); A("s_add_u32 s14, s14, s15"); A(f"s_add_u32 s14, s14, {WS_Y}")
    A(f"v_mov_b32 v{U+1}, s12"); A(f"v_mov_b32 v{U+3}, s12")
    A("s_waitcnt lgkmcnt(0)")
    for st in (1, 2):
        for k in range(0, 8, 2 * st):
            for c_ in range(2): A(f"v_add_f32 v{Y+2*k+c_}, v{Y+2*k+c_}, v{Y+2*(k+st)+c_}")
    A(f"v_add_f32 v{U}, v{Y}, v{Y+8}"); A(f"v_add_f32 v{U+2}, v{Y+1}, v{Y+9}")
    A("s_and_saveexec_b64 s[82:83], vcc")
    A(f"buffer_store_dwordx4 v[{U}:{U+3}], v{vO}, {WSR}, s14 offen sc1")
    A("s_mov_b64 exec, s[82:83]")
    lab("L_ydone")
    stamp(9)
    A("s_cmp_ge_u32 s2, 56"); A("s_cbranch_scc1 L_fin_skip")
    A("s_lshl_b32 s13, s2, 14"); A("s_lshl_b32 s15, s3, 11"); A("s_add_u32 s13, s13, s15"); A(f"s_add_u32 s13, s13, {WS_Y}")
    A(f"v_lshlrev_b32 v{t0}, 4, v1")
    F = 24
    gather("fin", [(F, t0, "s13", 0, -1, -1), (F + 4, t0, "s13", 1024, -1, -1)], fsleep, [82, 84])
    srd(SO, 34, 1792)
    A(f"v_add_f32 v{F}, v{F}, v{F+4}"); A(f"v_add_f32 v{F+2}, v{F+2}, v{F+6}")
    stamp(10)
    A(f"v_add_f32_dpp v{F}, v{F}, v{F} row_ror:8 {DPPF}"); A(f"v_add_f32_dpp v{F+2}, v{F+2}, v{F+2} row_ror:8 {DPPF}")
    A(f"v_permlane16_swap_b32 v{F}, v{F+2}"); A(f"v_add_f32 v{F}, v{F}, v{F+2}")
    A(f"v_mov_b32 v{F+2}, v{F}"); A(f"v_permlane32_swap_b32 v{F}, v{F+2}"); A(f"v_add_f32 v{F}, v{F}, v{F+2}")
    A(f"v_and_b32 v{t0}, 7, v1"); A(f"v_bfe_u32 v{t1}, v1, 4, 1"); A(f"v_lshl_add_u32 v{t0}, v{t0}, 1, v{t1}")
    A(f"v_lshlrev_b32 v{t0}, 5, v{t0}"); A("s_lshl_b32 s14, s3, 2"); A(f"v_add_u32 v{t0}, s14, v{t0}")
    A("s_mov_b32 exec_lo, 0x00ff00ff"); A("s_mov_b32 exec_hi, 0")
    A(f"ds_write_b32 v{t0}, v{F} offset:{L_FIN}")
    A("s_mov_b64 exec, -1")
    A("s_waitcnt lgkmcnt(0)"); A("s_barrier")
    A("s_cmp_lg_u32 s3, 0"); A("s_cbranch_scc1 L_fin_skip")
    A(f"v_and_b32 v{t0}, 15, v1"); A(f"v_lshlrev_b32 v{t1}, 5, v{t0}")
    A(f"ds_read_b128 v[{F}:{F+3}], v{t1} offset:{L_FIN}"); A(f"ds_read_b128 v[{F+4}:{F+7}], v{t1} offset:{L_FIN + 16}")
    A(f"v_lshlrev_b32 v{t0}, 1, v{t0}"); A("s_lshl_b32 s14, s2, 5")
    A("s_waitcnt lgkmcnt(0)")
    for st in (1, 2, 4):
        for k in range(0, 8, 2 * st): A(f"v_add_f32 v{F+k}, v{F+k}, v{F+k+st}")
    A(f"v_cvt_pk_bf16_f32 v{F}, v{F}, v{F}")
    A("s_mov_b64 exec, 0xffff")
    A(f"buffer_store_short v{F}, v{t0}, s[{SO}:{SO+3}], s14 offen {ofl}")
    A("s_cmp_lg_u32 s2, 0"); A("s_cbranch_scc1 L_fin_noep")
    A("s_mov_b64 exec, 1"); A(f"v_mov_b32 v{t0}, 0"); A(f"v_mov_b32 v{t1}, s12")
    A(f"s_mov_b32 s13, {wsb}"); A(f"buffer_store_dword v{t1}, v{t0}, {WSR}, s13 offen {ofl}")
    lab("L_fin_noep")
    A("s_mov_b64 exec, -1")
    lab("L_fin_skip")
    stamp(11)
    dump_stamps()
    if diag2 is not None:
        role, kk, op = diag2
        A("s_cmp_lg_u32 s2, 0"); A("s_cbranch_scc1 L_diag_end"); A("s_cmp_lg_u32 s3, 0"); A("s_cbranch_scc1 L_diag_end")
        A("s_add_u32 s84, s88, 7000"); lab("L_diag1"); A("s_sleep 8")
        A("s_memrealtime s[90:91]"); A("s_waitcnt lgkmcnt(0)"); A("s_sub_u32 s85, s90, s84"); A("s_cmp_lt_i32 s85, 0"); A("s_cbranch_scc1 L_diag1")
        A("v_mov_b32 v10, 0"); A("v_mov_b32 v11, -1"); A("v_mov_b32 v14, 0")
        nr = 4 if role else 32
        for r in range(nr):
            if role: A(f"v_add_u32 v12, {r * 64}, v1"); A("v_mul_u32_u24 v12, 2304, v12")
            else:
                A(f"v_lshrrev_b32 v12, 3, v1"); A(f"v_add_u32 v12, {r * 8}, v12"); A("v_mul_u32_u24 v12, 9, v12"); A("v_and_b32 v13, 7, v1"); A("v_add_u32 v12, v12, v13")
                A("v_add_u32 v12, 1, v12"); A("v_lshlrev_b32 v12, 8, v12")
            A(f"s_mov_b32 s13, {WS_DBG}")
            A(f"buffer_load_dword v8, v12, {WSR}, s13 offen sc1"); A(f"buffer_load_dword v9, v12, {WSR}, s13 offen offset:{4 * kk} sc1"); A("s_waitcnt vmcnt(0)")
            A("v_subrev_u32 v8, s88, v8"); A("v_add_u32 v8, 0x1000, v8"); A("v_min_u32 v11, v11, v8")
            A("v_cmp_ne_u32 vcc, 0, v9"); A("v_subrev_u32 v9, s88, v9"); A("v_add_u32 v9, 0x1000, v9"); A("v_cndmask_b32 v9, 0, v9, vcc")
            A("v_max_u32 v10, v10, v9"); A("v_add_u32 v14, v14, v9")
        if op == "mean": A(f"v_lshrrev_b32 v10, {2 if role else 5}, v14")
        for v, o in ((10, "add" if op == "mean" else "max"), (11, "min")):
            for ctl in ("quad_perm:[1,0,3,2]", "quad_perm:[2,3,0,1]", "row_half_mirror", "row_mirror"): A(f"v_{o}_u32_dpp v{v}, v{v}, v{v} {ctl} {DPPF}")
            for sw in ("v_permlane16_swap_b32", "v_permlane32_swap_b32"):
                A(f"v_mov_b32 v12, v{v}"); A(f"{sw} v{v}, v12"); A(f"v_{o}_u32 v{v}, v{v}, v12")
        if op == "mean": A("v_lshrrev_b32 v10, 6, v10")
        A("v_sub_u32 v10, v10, v11"); A("v_readfirstlane_b32 s85, v10"); A("s_lshl_b32 s85, s85, 2")
        if kk < 0: A("s_mov_b32 s85, 0")
        A("s_min_u32 s85, s85, 40000"); A(f"s_add_u32 s84, s88, {dbase}"); A("s_add_u32 s84, s84, s85")
        lab("L_diag2")
        A("s_memrealtime s[90:91]"); A("s_waitcnt lgkmcnt(0)"); A("s_sub_u32 s85, s90, s84"); A("s_cmp_lt_i32 s85, 0"); A("s_cbranch_scc1 L_diag2")
        lab("L_diag_end")
    if diag is not None:
        A("s_cmp_lg_u32 s2, 0"); A("s_cbranch_scc1 L_diag_end"); A("s_cmp_lg_u32 s3, 0"); A("s_cbranch_scc1 L_diag_end")
        A("s_add_u32 s84, s88, 7000")
        lab("L_diag1")
        A("s_memrealtime s[90:91]"); A("s_waitcnt lgkmcnt(0)"); A("s_sub_u32 s85, s90, s84"); A("s_cmp_lt_i32 s85, 0"); A("s_cbranch_scc1 L_diag1")
        A("v_lshlrev_b32 v166, 2, v1"); A("buffer_load_dword v165, v166, s[92:95], 0 offen sc1"); A("s_waitcnt vmcnt(0)")
        A("v_readlane_b32 s84, v165, 0"); A(f"v_readlane_b32 s85, v165, {max(diag, 0)}")
        A("s_not_b32 s84, s84"); A("s_sub_u32 s85, s85, s84"); A("s_lshl_b32 s85, s85, 2")
        if diag <= 0: A("s_mov_b32 s85, 0")
        A("s_min_u32 s85, s85, 40000"); A(f"s_add_u32 s84, s88, {dbase}"); A("s_add_u32 s84, s84, s85")
        lab("L_diag2")
        A("s_memrealtime s[90:91]"); A("s_waitcnt lgkmcnt(0)"); A("s_sub_u32 s85, s90, s84"); A("s_cmp_lt_i32 s85, 0"); A("s_cbranch_scc1 L_diag2")
        lab("L_diag_end")
    A("s_endpgm")

    lab("L_service")
    A("s_setprio 3")
    vL16, vQe, vQo, vFe, vFo, vXq, vXf = 2, 3, 4, 5, 6, 7, 8
    vTr = [9, 10, 11, 12]; a_, b_, c_, d_ = 14, 15, 16, 17; vG, vOG = 20, 21
    A(f"v_mov_b32 v{a_}, 0"); A(f"v_mov_b32 v{b_}, 0"); A(f"v_mov_b32 v{c_}, 0"); A(f"v_mov_b32 v{d_}, 0")
    A(f"ds_write_b128 v{a_}, v[{a_}:{d_}] offset:{L_FLAG}")
    A(f"v_lshlrev_b32 v{vL16}, 4, v1")
    A("s_and_b32 s8, s6, 3"); A("s_lshr_b32 s9, s6, 2"); A("s_lshl_b32 s14, s4, 1"); A("s_add_u32 s9, s9, s14")
    A("s_mul_i32 s11, s2, 9363"); A("s_lshr_b32 s11, s11, 16"); A("s_mul_i32 s14, s11, 7"); A("s_sub_u32 s81, s2, s14")
    A(f"v_bfe_u32 v{a_}, v1, 4, 1"); A(f"v_lshlrev_b32 v{a_}, 1, v{a_}"); A(f"v_and_b32 v{b_}, 7, v1"); A(f"v_xor_b32 v{a_}, v{a_}, v{b_}")
    A(f"v_xor_b32 v{b_}, 4, v{a_}"); A(f"v_lshrrev_b32 v{c_}, 3, v1")
    A(f"s_mul_i32 s14, s9, {112 * 8192}"); A("s_lshl_b32 s15, s5, 9"); A("s_add_u32 s14, s14, s15"); A("s_lshl_b32 s15, s8, 7"); A("s_add_u32 s14, s14, s15")
    A(f"v_lshl_add_u32 v{d_}, v{c_}, 13, s14")
    A(f"v_lshl_add_u32 v{vQe}, v{a_}, 4, v{d_}"); A(f"v_lshl_add_u32 v{vQo}, v{b_}, 4, v{d_}")
    A(f"s_mul_i32 s14, s81, {64 * 3584}"); A("s_lshl_b32 s15, s11, 7"); A("s_add_u32 s14, s14, s15")
    A(f"v_mul_u32_u24 v{d_}, 3584, v{c_}"); A(f"v_add_u32 v{d_}, s14, v{d_}")
    A(f"v_lshl_add_u32 v{vFe}, v{a_}, 4, v{d_}"); A(f"v_lshl_add_u32 v{vFo}, v{b_}, 4, v{d_}")
    A("s_waitcnt lgkmcnt(0)")
    A(f"s_mov_b32 s13, {wsb}"); A("s_load_dword s12, s[38:39], s13")
    srd(SX, 16, 1792); srd(SWQ, 22, 3670016); srd(SG, 32, 896); srd(SW1, 28, 1605632)
    A("s_cmp_lt_u32 s2, 196"); A(f"s_cselect_b32 s{SW1+2}, s{SW1+2}, 0")
    if svc == 0:
        for d in (SX, SWQ, SG, SW1): A(f"s_mov_b32 s{d+2}, 0")
    if svc == 0.5:
        for d in (SW1,): A(f"s_mov_b32 s{d+2}, 0")
    A(f"s_mov_b32 m0, {L_X}")
    for k in range(2): A(f"buffer_load_dwordx4 v{vL16}, s[{SX}:{SX+3}], 0 offen offset:{1024 * k} lds")
    for m in range(16):
        A(f"s_mov_b32 m0, {L_W + 1024 * m}")
        A(f"s_mov_b32 s13, {m * 65536 if m < 14 else 0x7f000000}")
        A(f"buffer_load_dwordx4 v{vQo if m & 1 else vQe}, s[{SWQ}:{SWQ+3}], s13 offen {wflags} lds")
    for m in range(8):
        A(f"s_mov_b32 m0, {L_W1 + 1024 * m}"); A(f"s_mov_b32 s13, {m * 8 * 3584}")
        A(f"buffer_load_dwordx4 v{vFo if m & 1 else vFe}, s[{SW1}:{SW1+3}], s13 offen {wflags} lds")
    GW = 24
    A(f"buffer_load_dwordx4 v[{GW}:{GW+3}], v{vL16}, s[{SG}:{SG+3}], 0 offen")
    A("s_barrier")
    srd(SWS, 38, WS_SIZE)
    A(f"v_and_b32 v{a_}, 1, v1"); A(f"v_mul_u32_u24 v{b_}, 896, v{a_}"); A(f"v_lshrrev_b32 v{a_}, 4, v1"); A(f"v_lshl_add_u32 v{b_}, v{a_}, 4, v{b_}")
    A("s_mul_i32 s14, s9, 224"); A(f"v_add_u32 v{vXq}, s14, v{b_}"); A("s_lshl_b32 s14, s81, 7"); A(f"v_add_u32 v{vXf}, s14, v{b_}")
    A(f"v_lshlrev_b32 v{b_}, 10, v{a_}"); A(f"v_bfe_u32 v{c_}, v1, 2, 2"); A(f"v_lshl_add_u32 v{b_}, v{c_}, 7, v{b_}")
    A(f"v_bfe_u32 v{c_}, v1, 1, 1"); A(f"v_lshl_add_u32 v{b_}, v{c_}, 4, v{b_}"); A(f"v_and_b32 v{c_}, 1, v1"); A(f"v_lshl_add_u32 v{b_}, v{c_}, 3, v{b_}")
    A(f"v_bfe_u32 v{c_}, v1, 3, 2")
    for cg in range(4):
        A(f"v_xor_b32 v{d_}, {cg}, v{c_}"); A(f"v_lshl_add_u32 v{vTr[cg]}, v{d_}, 5, v{b_}")
    A("s_lshl_b32 s8, s8, 9"); A("s_lshl_b32 s9, s9, 11"); A("s_add_u32 s8, s8, s9"); A("s_lshl_b32 s9, s5, 13"); A("s_add_u32 s8, s8, s9")
    A(f"s_add_u32 s8, s8, {WS_Q}"); A(f"s_add_u32 s9, s8, {16 * 8192}")
    A("s_lshl_b32 s11, s11, 12"); A("s_lshl_b32 s81, s81, 9"); A("s_add_u32 s11, s11, s81"); A(f"s_add_u32 s11, s11, {WS_H}")
    A("s_mov_b32 s82, 0xffff0000"); A("s_mov_b32 s83, 0"); A("s_mov_b32 s84, 0"); A("s_mov_b32 s85, 0xffff"); A("s_mov_b32 s86, 0"); A("s_mov_b32 s87, 0xffff0000")
    if dbg: A("s_waitcnt lgkmcnt(0)"); A("v_writelane_b32 v167, s88, 0")
    A("s_waitcnt lgkmcnt(0)"); A(f"s_add_u32 s12, s12, {TAGC}")
    XA = 28; TB = 56; D = 120; UQ = 136
    A("s_waitcnt vmcnt(25)")
    for m in range(4): A(f"ds_read_b128 v[{XA+4*m}:{XA+4*m+3}], v{vXq} offset:{L_X + 64 * m}")
    for m in range(2): A(f"ds_read_b128 v[{XA+16+4*m}:{XA+16+4*m+3}], v{vXf} offset:{L_X + 64 * m}")
    def gemv(img, steps, xa, vm_after):
        for m in range(steps):
            A(f"s_waitcnt vmcnt({vm_after + 4 * (steps - 1 - m)})")
            for cg in range(4):
                r = TB + 16 * m + 4 * cg
                A(f"ds_read_b64_tr_b16 v[{r}:{r+1}], v{vTr[cg]} offset:{img + 4096 * m}")
                A(f"ds_read_b64_tr_b16 v[{r+2}:{r+3}], v{vTr[cg]} offset:{img + 4096 * m + 512}")
            if m: mf(m - 1, xa, 8)
        mf(steps - 1, xa, 0)
        for bb in range(2):
            for cg in range(1, 4): A(f"v_cndmask_b32 v{D+bb}, v{D+bb}, v{D+4*cg+bb}, s[{80+2*cg}:{81+2*cg}]")
        for bb in range(2):
            A(f"v_mov_b32 v{UQ+4*bb}, v{D+bb}"); A(f"v_mov_b32_dpp v{UQ+4*bb+2}, v{D+bb} quad_perm:[1,1,3,3] {DPPF}")
            A(f"v_mov_b32 v{UQ+4*bb+1}, s12"); A(f"v_mov_b32 v{UQ+4*bb+3}, s12")
    def mf(m, xa, lg):
        A(f"s_waitcnt lgkmcnt({lg})")
        for cg in range(4):
            r = TB + 16 * m + 4 * cg; d = D + 4 * cg; c = "0" if m == 0 else f"v[{d}:{d+3}]"
            A(f"v_mfma_f32_16x16x32_bf16 v[{d}:{d+3}], v[{xa+4*m}:{xa+4*m+3}], v[{r}:{r+3}], {c}")
    def publish(s0, s1):
        if svc < 2: return
        A("s_mov_b32 exec_lo, 0x55555555"); A("s_mov_b32 exec_hi, 0x55555555")
        A(f"buffer_store_dwordx4 v[{UQ}:{UQ+3}], v{d_}, {WSR}, {s0} offen sc1")
        A(f"buffer_store_dwordx4 v[{UQ+4}:{UQ+7}], v{d_}, {WSR}, {s1} offen sc1")
        A("s_mov_b64 exec, -1")
    A(f"v_lshlrev_b32 v{d_}, 3, v1")
    gemv(L_W, 4, XA, 9)
    publish("s8", "s9")
    stamp(1)
    gemv(L_W1, 2, XA + 16, 3)
    A("s_cmp_ge_u32 s2, 196"); A("s_cbranch_scc1 L_sv_noh")
    A(f"s_add_u32 s9, s11, {28 * 4096}")
    publish("s11", "s9")
    lab("L_sv_noh")
    stamp(2)
    QP = 56
    if NG is not None: lds_wait(L_FLAG + 12, 1, "pg1", a_, b_, sleep=4, cmp="ge")
    A("s_lshl_b32 s8, s7, 13"); A(f"s_add_u32 s8, s8, {WS_Q}"); A("s_add_u32 s9, s8, 4096")
    gather("q", [(QP + 4 * k, vL16, "s9" if k >= 4 else "s8", 1024 * (k & 3), -1, -1) for k in range(8)], psleep,
           [40, 42, 44, 46, 48, 50, 82, 84])
    for hf in range(2):
        r = QP + 4 * hf
        for e in (0, 2):
            A(f"v_add_f32 v{r+e}, v{r+e}, v{r+8+e}"); A(f"v_add_f32 v{r+16+e}, v{r+16+e}, v{r+24+e}")
        for e in (0, 2): A(f"v_add_f32 v{r+e}, v{r+e}, v{r+16+e}")
        A(f"v_cvt_pk_bf16_f32 v{r}, v{r}, v{r+2}")
    A(f"v_lshlrev_b32 v{a_}, 2, v1")
    A(f"ds_write_b32 v{a_}, v{QP} offset:{L_Q}"); A(f"ds_write_b32 v{a_}, v{QP+4} offset:{L_Q + 256}")
    A(f"v_mov_b32 v{a_}, 0"); A(f"v_mov_b32 v{b_}, s12"); A(f"v_mov_b32 v{c_}, 1")
    A(f"ds_write_b32 v{a_}, v{b_} offset:{L_G + 16}")
    A(f"ds_write_b32 v{a_}, v{c_} offset:{L_FLAG}")
    stamp(3)
    TW = 100
    if touch:
        A(f"v_mov_b32 v{a_}, 0"); A("s_mov_b64 exec, 1")
        if "v" in touch:
            srd(40, 20, 0x4000000); A("s_lshl_b32 s13, s7, 21"); A("s_lshl_b32 s14, s6, 18"); A("s_add_u32 s13, s13, s14")
            for k in range(4): A(f"buffer_load_dword v{TW+k}, v{a_}, s[40:43], s13 offen nt"); A("s_add_u32 s13, s13, 65536")
        if "w" in touch:
            srd(44, 24, 3670016); A(f"s_mul_i32 s13, s10, {32 * 896}"); A(f"buffer_load_dword v{TW+4}, v{a_}, s[44:47], s13 offen nt")
            srd(48, 30, 1605632); A(f"s_mul_i32 s13, s10, {16 * 896}"); A(f"buffer_load_dword v{TW+5}, v{a_}, s[48:51], s13 offen nt")
        if "o" in touch:
            srd(SO, 34, 1792); A(f"buffer_load_dword v{TW+6}, v{a_}, s[{SO}:{SO+3}], 0 offen")
        A("s_mov_b64 exec, -1")
    if codepf:
        A("s_getpc_b64 s[14:15]"); lab("L_pc")
        A("s_sub_u32 s14, s14, L_pc-L_tail"); A("s_subb_u32 s15, s15, 0")
        A(f"v_mov_b32 v{b_}, s15"); A(f"v_add_co_u32 v{a_}, vcc, s14, v{vL16}"); A(f"v_addc_co_u32 v{b_}, vcc, 0, v{b_}, vcc")
        for k in range(codepf): A(f"global_load_dwordx4 v[{TW+8+4*k}:{TW+11+4*k}], v[{a_}:{b_}], off offset:{1024 * k}")
    XG = 28
    A("s_mul_i32 s14, s4, 896"); A(f"v_add_u32 v{a_}, s14, v{vL16}")
    A(f"ds_read_b128 v[{XG}:{XG+3}], v{a_} offset:{L_X}")
    A("s_waitcnt lgkmcnt(0)")
    A(f"v_mov_b32 v{vG}, 0")
    for k in range(4):
        A(f"v_lshlrev_b32 v{a_}, 16, v{XG+k}"); A(f"v_and_b32 v{b_}, 0xffff0000, v{XG+k}")
        A(f"v_lshlrev_b32 v{c_}, 16, v{GW+k}"); A(f"v_and_b32 v{d_}, 0xffff0000, v{GW+k}")
        A(f"v_mul_f32 v{a_}, v{a_}, v{c_}"); A(f"v_mul_f32 v{b_}, v{b_}, v{d_}")
        A(f"v_cvt_pk_bf16_f32 v{a_}, v{a_}, v{b_}")
        A(f"v_lshlrev_b32 v{b_}, 16, v{a_}"); A(f"v_and_b32 v{a_}, 0xffff0000, v{a_}")
        A(f"v_add_f32 v{vG}, v{vG}, v{b_}"); A(f"v_add_f32 v{vG}, v{vG}, v{a_}")
    A("v_cmp_gt_u32 vcc, 56, v1"); A(f"v_cndmask_b32 v{vG}, 0, v{vG}, vcc")
    wave_reduce(A, "add", vG, a_)
    A(f"v_cvt_pk_bf16_f32 v{vG}, v{vG}, v{vG}"); A(f"v_lshlrev_b32 v{vG}, 16, v{vG}")
    A(f"v_mul_f32 v{vG}, 0xbfb8aa3b, v{vG}"); A(f"v_exp_f32 v{vG}, v{vG}"); A(f"v_add_f32 v{vG}, 1.0, v{vG}"); A(f"v_rcp_f32 v{vG}, v{vG}")
    A(f"v_cvt_pk_bf16_f32 v{vG}, v{vG}, v{vG}"); A(f"v_lshlrev_b32 v{vG}, 16, v{vG}")
    A(f"v_sub_f32 v{vOG}, 1.0, v{vG}"); A(f"v_cvt_pk_bf16_f32 v{vOG}, v{vOG}, v{vOG}"); A(f"v_lshlrev_b32 v{vOG}, 16, v{vOG}")
    lds_wait(L_FLAG + 8, 8, "cnt", a_, b_, sleep=2)
    ST = 32
    def combine(m, l):
        A(f"v_mov_b32 v{a_}, v{m}")
        for ctl in ("quad_perm:[1,0,3,2]", "quad_perm:[2,3,0,1]", "row_half_mirror"): A(f"v_max_f32_dpp v{a_}, v{a_}, v{a_} {ctl} {DPPF}")
        A(f"v_sub_f32 v{b_}, v{m}, v{a_}"); A(f"v_exp_f32 v{b_}, v{b_}"); A(f"v_mul_f32 v{b_}, v{b_}, v{l}")
        for ctl in ("quad_perm:[1,0,3,2]", "quad_perm:[2,3,0,1]", "row_half_mirror"): A(f"v_add_f32_dpp v{b_}, v{b_}, v{b_} {ctl} {DPPF}")
    A(f"v_and_b32 v{c_}, 7, v1"); A(f"v_lshlrev_b32 v{c_}, 3, v{c_}")
    A(f"ds_read_b64 v[{ST+4}:{ST+5}], v{c_} offset:{L_WST}"); A("s_waitcnt lgkmcnt(0)")
    combine(ST + 4, ST + 5)
    A(f"v_mov_b32 v{ST}, v{a_}"); A(f"v_mov_b32 v{ST+1}, s12"); A(f"v_mov_b32 v{ST+2}, v{b_}"); A(f"v_mov_b32 v{ST+3}, s12")
    A("s_lshl_b32 s11, s7, 10"); A(f"s_add_u32 s11, s11, {WS_ST}"); A("s_lshl_b32 s9, s6, 7"); A("s_add_u32 s9, s9, s11")
    A("s_mov_b64 exec, 0xff"); A(f"buffer_store_dwordx4 v[{ST}:{ST+3}], v{vL16}, {WSR}, s9 offen sc1"); A("s_mov_b64 exec, -1")
    if NS is not None: lds_wait(L_FLAG + 12, 2, "pg2", a_, b_, sleep=8, cmp="ge")
    HP = 28
    A(f"v_mov_b32 v{HP}, 0"); A(f"v_mov_b32 v{HP+2}, 0")
    A("s_cmp_ge_u32 s10, 112"); A("s_cbranch_scc1 L_sv_hz")
    A(f"v_lshrrev_b32 v{a_}, 3, v1"); A(f"v_lshlrev_b32 v{a_}, 9, v{a_}"); A(f"v_and_b32 v{b_}, 7, v1"); A(f"v_lshl_add_u32 v{a_}, v{b_}, 4, v{a_}")
    A("s_lshr_b32 s8, s10, 2"); A("s_mul_i32 s9, s4, 28"); A("s_add_u32 s8, s8, s9"); A("s_lshl_b32 s8, s8, 12")
    A("s_and_b32 s9, s10, 3"); A("s_lshl_b32 s9, s9, 7"); A("s_add_u32 s8, s8, s9"); A(f"s_add_u32 s8, s8, {WS_H}")
    gather("h", [(HP, a_, "s8", 0, -1, "0x00ffffff")], psleep, [82])
    lab("L_sv_hz")
    for k in (0, 2): A(f"v_add_f32_dpp v{HP+k}, v{HP+k}, v{HP+k} row_ror:8 {DPPF}")
    for sw in ("v_permlane16_swap_b32", "v_permlane32_swap_b32"):
        for k in (0, 2): A(f"v_mov_b32 v{HP+k+1}, v{HP+k}")
        for k in (0, 2): A(f"{sw} v{HP+k}, v{HP+k+1}")
        for k in (0, 2): A(f"v_add_f32 v{HP+k}, v{HP+k}, v{HP+k+1}")
    for k in (0, 2): A(f"v_max_f32 v{HP+k}, 0, v{HP+k}")
    A(f"v_cvt_pk_bf16_f32 v{HP}, v{HP}, v{HP}"); A(f"v_cvt_pk_bf16_f32 v{HP+1}, v{HP+2}, v{HP+2}")
    A(f"v_lshlrev_b32 v{a_}, 3, v1")
    A("s_mov_b64 exec, 0xff"); A(f"ds_write_b64 v{a_}, v[{HP}:{HP+1}] offset:{L_H}"); A("s_mov_b64 exec, -1")
    stamp(4)
    A(f"v_lshlrev_b32 v{c_}, 7, v1")
    gather("st", [(ST + 4, c_, "s11", 0, "0xff", 0)], 8, [82])
    combine(ST + 4, ST + 6)
    A(f"v_sub_f32 v{vG+2}, 0, v{a_}"); A(f"v_rcp_f32 v{vG+3}, v{b_}"); A(f"v_mul_f32 v{vG+3}, v{vG+3}, v{vG}")
    A(f"v_mov_b32 v{a_}, 0"); A(f"v_mov_b32 v{b_}, 1")
    A("s_mov_b64 exec, 1")
    A(f"ds_write_b128 v{a_}, v[{vG}:{vG+3}] offset:{L_G}")
    A(f"ds_write_b32 v{a_}, v{b_} offset:{L_FLAG + 4}")
    A("s_mov_b64 exec, -1")
    A("s_waitcnt lgkmcnt(0)")
    stamp(5)
    dump_stamps(True)
    lab("L_end")
    A("s_endpgm")

    body = pad_hazards(L)
    out = [HEADER.rstrip("\n"),
           "; Single fused launch: 256 workgroups (one per CU) x 9 waves (wave 0 = service, waves 1-8 stream K/V).",
           f"; @launch grid=(256,1,1) block=(576,1,1) lds={lds or LDS_MIN}",
           '.amdgcn_target "amdgcn-amd-amdhsa--gfx950"', ".text", f".globl {NAME}", ".p2align 8", f".type {NAME},@function", f"{NAME}:"]
    out += body
    out += ['.section .rodata,"a"', ".p2align 6", f".amdhsa_kernel {NAME}",
            "  .amdhsa_next_free_vgpr 168", "  .amdhsa_next_free_sgpr 96", "  .amdhsa_accum_offset 168",
            "  .amdhsa_group_segment_fixed_size 0", "  .amdhsa_kernarg_size 96", "  .amdhsa_user_sgpr_count 2",
            "  .amdhsa_user_sgpr_kernarg_segment_ptr 1", "  .amdhsa_system_sgpr_workgroup_id_x 1", ".end_amdhsa_kernel"]
    return "\n".join(out) + "\n"

def masks(A, M, t0, t1):
    A(f"v_and_b32 v{t0}, 1, v1"); A(f"v_lshlrev_b32 v{t0}, 4, v{t0}"); A(f"v_mov_b32 v{t1}, 0xffff"); A(f"v_lshlrev_b32 v{t1}, v{t0}, v{t1}")
    A(f"v_bfe_u32 v{t0}, v1, 1, 2")
    for r in range(4): A(f"v_cmp_eq_u32 s[{80+2*r}:{81+2*r}], {r}, v{t0}")
    for r in range(4): A(f"v_cndmask_b32 v{M[r]}, 0, v{t1}, s[{80+2*r}:{81+2*r}]")

def mask_prime(A, M, t0, t1):
    A(f"v_lshrrev_b32 v{t0}, 1, v1"); A(f"v_xor_b32 v{t0}, v{t0}, v1"); A(f"v_bfe_u32 v{t0}, v{t0}, 3, 1")
    A(f"v_add_u32 v{t0}, -1, v{t0}")
    for r in range(4): A(f"v_and_b32 v{M[r]}, v{M[r]}, v{t0}")

def red2_lane(A, d, t0):
    A(f"v_and_b32 v{t0}, 15, v1"); A(f"v_lshlrev_b32 v{d}, 5, v{t0}")
    A(f"v_lshrrev_b32 v{t0}, 5, v1"); A(f"v_lshl_add_u32 v{d}, v{t0}, 9, v{d}")
    A(f"v_bfe_u32 v{t0}, v1, 4, 1"); A(f"v_lshl_add_u32 v{d}, v{t0}, 4, v{d}")

def wave_reduce(A, op, v, t):
    for ctl in ("quad_perm:[1,0,3,2]", "quad_perm:[2,3,0,1]", "row_half_mirror", "row_mirror"):
        A(f"v_{op}_f32_dpp v{v}, v{v}, v{v} {ctl} {DPPF}")
    for sw in ("v_permlane16_swap_b32", "v_permlane32_swap_b32"):
        A(f"v_mov_b32 v{t}, v{v}"); A(f"{sw} v{v}, v{t}"); A(f"v_{op}_f32 v{v}, v{v}, v{t}")

if __name__ == "__main__":
    kw = eval("dict(%s)" % (sys.argv[2] if len(sys.argv) > 2 else ""))
    open(sys.argv[1], "w").write(gen(**kw))
```

```python
import sys
sys.path.insert(0, "dev")
from asmlib import pad_hazards

NAME = "gated_mix__mha_block_cached__dense_activation_relu__decode_kernel"
HEADER = open("gated_mix__mha_block_cached__dense_activation_relu__decode.s.ref").read().split("; Override launch")[0]

WS_ST = 0x1F0000
WS_H = 0x8000
WS_Q = 0x40000
WS_O = 0x80000
WS_Y = 0x100000
WS_DBG = 0x400000
WS_SIZE = 268435456
L_W = 0x0000
L_W1 = 0x4000
L_RED1 = 0x0000
L_X = 0x6000
L_Q = 0x6800
L_H = 0x6A00
L_G = 0x6A40
L_FLAG = 0x6A80
L_WST = 0x6AC0
L_FIN = 0x6C00
L_OL = 0x6B00
L_PW = 0x7000
L_RED2 = 0x8000
LDS_MIN = L_RED2 + 8 * 2048
TAGC = 0x9E3779B9
SPIN_MAX = 1 << 18
DPPF = "row_mask:0xf bank_mask:0xf"
CEXP = "0x3db8aa3b"

def gen(LIM=2, LIMV=None, NQ=24, CQ=3, CP=3, R=33, NF=62, dbg=False, hdbg=False, diag=None,
        psleep=2, osleep=0, fsleep=0, svc=9, kflags="nt", wflags="nt", lds=None, LE=None, NG=12, NS=46, rot=None, early=False, dbase=10000, pp=1, pgap=8, wsb=0, diag2=None, xmap=0, spread=0, LP=None, kmap=0, ofl='', pat='tp w0 w1 w2 b0 b1 b2 s0 s1 s2', touch='', codepf=False, late_w=False, odelay=0):
    if LIMV is None: LIMV = LIM
    WS_ST, WS_H, WS_Q, WS_O, WS_Y = (x + wsb for x in (0x1F0000, 0x8000, 0x40000, 0x80000, 0x100000))
    L = []
    A = lambda s: L.append("  " + s)
    lab = lambda s: L.append(s + ":")
    def srd(d, p, nbytes):
        A(f"s_mov_b32 s{d}, s{p}"); A(f"s_mov_b32 s{d+1}, s{p+1}"); A(f"s_mov_b32 s{d+2}, {nbytes}"); A(f"s_mov_b32 s{d+3}, 0x20000")
    SK, SV, SWO, SWS, SWQ, SW1, SW2, SX, SG, SO = 40, 44, 48, 52, 56, 60, 64, 68, 72, 76
    WSR = f"s[{SWS}:{SWS+3}]"
    if diag is not None: hdbg = True
    if diag2 is not None: dbg = True
    if hdbg: dbg = True
    def stamp(idx):
        if dbg:
            A("s_memrealtime s[90:91]"); A("s_waitcnt lgkmcnt(0)"); A(f"v_writelane_b32 v167, s90, {idx}")
    def dump_stamps(service=False):
        if hdbg:
            A("s_mov_b32 s92, s36"); A("s_mov_b32 s93, s37"); A("s_mov_b32 s94, 256"); A("s_mov_b32 s95, 0x20000")
            A("v_not_b32 v165, v167"); A("v_cmp_eq_u32 vcc, 0, v1"); A("v_cndmask_b32 v167, v167, v165, vcc")
            A("v_lshlrev_b32 v166, 2, v1")
            if service: A("v_add_u32 v166, 64, v166"); A("s_mov_b64 exec, 0x3e")
            else: A("s_mov_b64 exec, 0xffff")
            A("buffer_atomic_umax v167, v166, s[92:95], 0 offen"); A("s_mov_b64 exec, -1")
        elif dbg:
            if diag2 is not None and not service:
                tg = "s" if service else "m"
                A("s_add_u32 s84, s88, 4500"); lab(f"L_dd_{tg}"); A("s_sleep 8")
                A("s_memrealtime s[90:91]"); A("s_waitcnt lgkmcnt(0)"); A("s_sub_u32 s85, s90, s84"); A("s_cmp_lt_i32 s85, 0"); A(f"s_cbranch_scc1 L_dd_{tg}")
            A("s_mul_i32 s92, s2, 9"); A("s_add_u32 s92, s92, s93"); A("s_lshl_b32 s92, s92, 8"); A(f"s_add_u32 s92, s92, {WS_DBG}")
            A("v_lshlrev_b32 v166, 2, v1"); A(f"buffer_store_dword v167, v166, {WSR}, s92 offen sc1")
    if dbg: R = min(R, 32)
    def spin_tail(label, sleep):
        if sleep: A(f"s_sleep {sleep}")
        A("s_sub_u32 s80, s80, 1"); A("s_cmp_lg_u32 s80, 0"); A(f"s_cbranch_scc1 {label}")
    def lds_wait(off, val, tag, ta, tb, sleep=1, cmp="eq"):
        A(f"v_mov_b32 v{ta}, 0"); A(f"s_mov_b32 s80, {SPIN_MAX}")
        lab(f"L_wait_{tag}")
        A(f"ds_read_b32 v{tb}, v{ta} offset:{off}"); A("s_waitcnt lgkmcnt(0)"); A(f"v_readfirstlane_b32 s81, v{tb}")
        A(f"s_cmp_{cmp}_u32 s81, {val}"); A(f"s_cbranch_scc1 L_got_{tag}")
        spin_tail(f"L_wait_{tag}", sleep)
        lab(f"L_got_{tag}")
    def gather(tag, items, sleep, pool):
        if svc < {"q": 3, "h": 4, "st": 5}.get(tag, 0):
            A("s_waitcnt vmcnt(0)"); return
        assert len(pool) >= len(items)
        for (reg, va, so, imm, lo, hi), ms in zip(items, pool): A(f"s_mov_b32 s{ms}, {lo}"); A(f"s_mov_b32 s{ms+1}, {hi}")
        A(f"s_mov_b32 s80, {SPIN_MAX}")
        lab(f"L_g_{tag}")
        for k, ((reg, va, so, imm, lo, hi), ms) in enumerate(zip(items, pool)):
            A(f"s_mov_b64 exec, s[{ms}:{ms+1}]")
            if len(items) > 1: A(f"s_cbranch_execz L_g_{tag}_s{k}")
            A(f"buffer_load_dwordx4 v[{reg}:{reg+3}], v{va}, {WSR}, {so} offen offset:{imm} sc1")
            if len(items) > 1: lab(f"L_g_{tag}_s{k}")
        A("s_waitcnt vmcnt(0)")
        for k, ((reg, va, so, imm, lo, hi), ms) in enumerate(zip(items, pool)):
            if len(items) > 1: A(f"s_mov_b64 exec, s[{ms}:{ms+1}]")
            A(f"v_cmp_ne_u32 vcc, s12, v{reg+1}"); A(f"v_cmp_ne_u32 s[{ms}:{ms+1}], s12, v{reg+3}")
            A(f"s_or_b64 s[{ms}:{ms+1}], s[{ms}:{ms+1}], vcc")
            if k == 0: A(f"s_mov_b64 s[14:15], s[{ms}:{ms+1}]")
            else: A(f"s_or_b64 s[14:15], s[14:15], s[{ms}:{ms+1}]")
        A("s_cmp_eq_u64 s[14:15], 0"); A(f"s_cbranch_scc1 L_g_{tag}_ok")
        spin_tail(f"L_g_{tag}", sleep)
        lab(f"L_g_{tag}_ok")
        A("s_mov_b64 exec, -1")

    def poll_issue(sets, k, items):
        for j, (va, so, imm) in enumerate(items):
            r = sets[k] + 4 * j
            A(f"buffer_load_dwordx4 v[{r}:{r+3}], v{va}, {WSR}, {so} offen offset:{imm} sc1")
    def poll_loop(tag, sets, items, first):
        n = len(sets); ni = len(items)
        for k in range(1, n):
            if pgap: A(f"s_sleep {pgap}")
            poll_issue(sets, k, items)
        A(f"s_mov_b32 s80, {SPIN_MAX}")
        lab(f"L_p_{tag}")
        for k in range(n):
            A(f"s_waitcnt vmcnt({(n - 1) * ni})")
            for j in range(ni):
                r = sets[k] + 4 * j
                A(f"v_cmp_ne_u32 {'vcc' if j == 0 else 's[84:85]'}, s12, v{r+1}"); A(f"v_cmp_ne_u32 s[{82 + 4 * j}:{83 + 4 * j}], s12, v{r+3}")
            if ni == 2: A("s_or_b64 vcc, vcc, s[84:85]"); A("s_or_b64 vcc, vcc, s[86:87]")
            A("s_or_b64 vcc, vcc, s[82:83]")
            A(f"s_cbranch_scc0 L_p_{tag}_ok{k}")
            poll_issue(sets, k, items)
        A("s_sub_u32 s80, s80, 1"); A("s_cmp_lg_u32 s80, 0"); A(f"s_cbranch_scc1 L_p_{tag}")
        A("s_waitcnt vmcnt(0)")
        for k in range(n):
            lab(f"L_p_{tag}_ok{k}")
            first(sets[k])
            if k < n - 1: A(f"s_branch L_p_{tag}_done")
        lab(f"L_p_{tag}_done")
        A("s_nop 1")

    if dbg and early: A("s_memrealtime s[88:89]")
    A("s_cmp_ge_u32 s2, 256"); A("s_cbranch_scc1 L_end")
    A("s_load_dwordx16 s[16:31], s[0:1], 0")
    A("s_load_dwordx8 s[32:39], s[0:1], 64")
    A("v_lshrrev_b32 v2, 6, v0"); A("v_and_b32 v1, 63, v0")
    A("v_readfirstlane_b32 s3, v2")
    A("s_and_b32 s14, s2, 7"); A("s_lshr_b32 s15, s2, 3")
    if xmap: A(f"s_xor_b32 s14, s14, {xmap}")
    if spread:
        mk = (1 << spread) - 1
        sh = 3 - spread
        A(f"s_lshr_b32 s4, s14, {sh}"); A(f"s_and_b32 s5, s15, {mk}"); A("s_xor_b32 s6, s4, s5")
        A("s_xor_b32 s15, s15, s6"); A(f"s_lshl_b32 s6, s6, {sh}"); A("s_xor_b32 s14, s14, s6")
    A("s_lshr_b32 s4, s15, 4")
    A("s_bfe_u32 s5, s15, 0x10003"); A("s_lshl_b32 s14, s14, 1"); A("s_add_u32 s5, s5, s14")
    A("s_and_b32 s6, s15, 7")
    A("s_lshl_b32 s7, s4, 4"); A("s_add_u32 s7, s7, s5")
    A("s_lshl_b32 s10, s5, 3"); A("s_add_u32 s10, s10, s6")
    if dbg:
        A("s_mov_b32 s93, s3"); A("v_mov_b32 v167, 0")
        if not early: A("s_memrealtime s[88:89]")
    A("s_cmp_eq_u32 s3, 0"); A("s_cbranch_scc1 L_service")

    A("s_sub_u32 s3, s3, 1")
    vK, vV, vWo, vW2, t0, t1 = 2, 3, 4, 5, 6, 7
    M = [8, 9, 10, 11]; Q = [12, 16]; DB = [20, 24]; AB = [20, 24]; SG_ = [28, 29, 30, 31]; ACC = 32
    vMW = 12; vE = [13, 14, 15, 16]; vLW = 17
    RING = 36
    A(f"v_bfe_u32 v{t0}, v1, 2, 2"); A(f"v_lshlrev_b32 v{vK}, 9, v{t0}")
    A(f"v_lshrrev_b32 v{t0}, 4, v1"); A(f"v_lshl_add_u32 v{vK}, v{t0}, 6, v{vK}")
    A(f"v_and_b32 v{t0}, 3, v1"); A(f"v_lshl_add_u32 v{vK}, v{t0}, 4, v{vK}")
    PB = {t: 11 + k for k, t in enumerate(pat.split())}
    A("s_lshl_b32 s8, s7, 21")
    for reg, nm in (("s3", "w"), ("s6", "s")):
        k = 0
        while k < 3:
            e = k
            while e < 2 and PB[f"{nm}{e+1}"] == PB[f"{nm}{e}"] + 1: e += 1
            A(f"s_bfe_u32 s14, {reg}, {hex(((e - k + 1) << 16) + k)}"); A(f"s_lshl_b32 s14, s14, {PB[f'{nm}{k}']}"); A("s_add_u32 s8, s8, s14")
            k = e + 1
    def toff(beta, tp):
        o = (tp << PB["tp"]) | ((beta & 1) << PB["b0"]) | (((beta >> 1) & 1) << PB["b1"]) | ((beta >> 2) << PB["b2"])
        return o & ~0xfff, o & 0xfff
    A(f"v_add_u32 v{vK}, s8, v{vK}")
    A("s_waitcnt lgkmcnt(0)")
    srd(SK, 18, 0x4000000)

    loads = [("K", beta, tp, jh) for beta in range(8) for tp in range(2) for jh in range(2)]
    loads += [("V", beta, tp, kp) for beta in range(8) for tp in range(2) for kp in range(2)]
    loads += [("F", cb) for cb in range(2)] + [("W", r, cb) for r in range(2) for cb in range(2)]
    free = list(range(R)); slot = {}
    nissued = [0]; landed = [-1]; cur_soff = [None]
    if rot:
        A(f"s_mul_i32 s11, s2, {rot}"); A("s_lshr_b32 s14, s2, 3"); A("s_add_u32 s11, s11, s14"); A("s_and_b32 s11, s11, 7"); A("s_lshl_b32 s11, s11, 15")
    def soff(val):
        if val == 0 and not rot: return "0"
        if cur_soff[0] != val:
            if rot: A(f"s_add_u32 s13, s11, {val}"); A("s_and_b32 s13, s13, 0x3ffff")
            else: A(f"s_mov_b32 s13, {val}")
            cur_soff[0] = val
        return "s13"
    def wait_landed(n):
        if n <= landed[0]: return
        A(f"s_waitcnt vmcnt({nissued[0] - 1 - n})"); landed[0] = n
    def issue(n):
        ld = loads[n]; sl = free.pop(0); slot[n] = sl; r = RING + 4 * sl
        if ld[0] == "K":
            A(f"buffer_load_dwordx4 v[{r}:{r+3}], v{vK}, s[{SK}:{SK+3}], {soff(toff(ld[1], ld[2])[0])} offen offset:{toff(ld[1], ld[2])[1] + ld[3] * 256} {kflags}")
        elif ld[0] == "V":
            A(f"buffer_load_dwordx4 v[{r}:{r+3}], v{vV}, s[{SV}:{SV+3}], {soff(toff(ld[1], ld[2])[0])} offen offset:{toff(ld[1], ld[2])[1] + ld[3] * 1024} {kflags}")
        elif ld[0] == "W":
            A(f"buffer_load_dwordx4 v[{r}:{r+3}], v{vWo}, s[{SWO}:{SWO+3}], 0 offen offset:{ld[1] * 896 + ld[2] * 512} {wflags}")
        else:
            A(f"buffer_load_dwordx4 v[{r}:{r+3}], v{vW2}, s[{SW2}:{SW2+3}], 0 offen offset:{ld[1] * 512} {wflags}")
        nissued[0] += 1
    sreg = lambda n: RING + 4 * slot[n]
    qk_next = [0]; qk_post = [None]; pv_next = [0]; pslot = {}
    def qk_dpp(tau):
        beta, tp = tau >> 1, tau & 1; G = beta >> 1; t = 2 * (beta & 1) + tp; d = DB[tau & 1]
        A(f"v_mov_b32_dpp v{t0}, v{d} quad_perm:[0,0,0,0] {DPPF}")
        A(f"v_add_f32_dpp v{t0}, v{d+1}, v{t0} quad_perm:[1,1,1,1] {DPPF}")
        A(f"v_add_f32_dpp v{t0}, v{d+2}, v{t0} quad_perm:[2,2,2,2] {DPPF}")
        A(f"v_add_f32_dpp v{SG_[G]}, v{d+3}, v{t0} quad_perm:[3,3,3,3] row_mask:0xf bank_mask:{hex(1 << t)}")
    def qk_tile(tau):
        d = DB[tau & 1]; a0 = sreg(2 * tau); a1 = sreg(2 * tau + 1)
        A(f"v_mfma_f32_16x16x32_bf16 v[{d}:{d+3}], v[{a0}:{a0+3}], v[{Q[0]}:{Q[0]+3}], 0")
        A(f"v_mfma_f32_16x16x32_bf16 v[{d}:{d+3}], v[{a1}:{a1+3}], v[{Q[1]}:{Q[1]+3}], v[{d}:{d+3}]")
        free.extend([slot[2 * tau], slot[2 * tau + 1]])
        if qk_post[0] is not None: qk_dpp(qk_post[0])
        qk_post[0] = tau
    def red_hi(op, v, t):
        for ctl in ("row_ror:4", "row_ror:8"): A(f"v_{op}_f32_dpp v{v}, v{v}, v{v} {ctl} {DPPF}")
        for sw in ("v_permlane16_swap_b32", "v_permlane32_swap_b32"):
            A(f"v_mov_b32 v{t}, v{v}"); A(f"{sw} v{v}, v{t}"); A(f"v_{op}_f32 v{v}, v{v}, v{t}")
    def sm_a():
        qk_dpp(qk_post[0]); qk_post[0] = None
        S = SG_
        A(f"v_cvt_pk_bf16_f32 v{t0}, v{S[0]}, v{S[1]}"); A(f"v_cvt_pk_bf16_f32 v{t1}, v{S[2]}, v{S[3]}")
        A(f"v_lshlrev_b32 v{S[0]}, 16, v{t0}"); A(f"v_and_b32 v{S[1]}, 0xffff0000, v{t0}")
        A(f"v_lshlrev_b32 v{S[2]}, 16, v{t1}"); A(f"v_and_b32 v{S[3]}, 0xffff0000, v{t1}")
        A(f"v_max3_f32 v{vMW}, v{S[0]}, v{S[1]}, v{S[2]}"); A(f"v_max_f32 v{vMW}, v{vMW}, v{S[3]}")
        red_hi("max", vMW, t0)
    def sm_b():
        S = SG_
        A(f"s_mov_b32 s81, {CEXP}"); A(f"v_mul_f32 v{vMW}, s81, v{vMW}")
        for k in range(4): A(f"v_fma_f32 v{vE[k]}, v{S[k]}, s81, -v{vMW}")
        for k in range(4): A(f"v_exp_f32 v{vE[k]}, v{vE[k]}")
        A("s_lshl_b32 s14, s3, 8"); A(f"v_lshl_add_u32 v{t1}, v1, 2, s14")
        for k in range(4): A(f"v_cvt_pk_bf16_f32 v{S[k]}, v{vE[k]}, v{vE[k]}")
        A("s_mov_b32 exec_lo, 0x11111111"); A("s_mov_b32 exec_hi, 0x11111111")
        A(f"ds_write_b128 v{t1}, v[{S[0]}:{S[3]}] offset:{L_PW}")
        A("s_mov_b64 exec, -1")
        A(f"v_lshrrev_b32 v{t1}, 5, v1"); A(f"v_lshl_add_u32 v{t1}, v{t1}, 6, s14")
        for t in range(4):
            for kp in range(2):
                sl = free.pop(0); pslot[(t, kp)] = sl; r = RING + 4 * sl
                A(f"ds_read_b128 v[{r}:{r+3}], v{t1} offset:{L_PW + (8 * kp + t) * 16}")
        A(f"v_add_f32 v{vLW}, v{vE[0]}, v{vE[1]}"); A(f"v_add_f32 v{t0}, v{vE[2]}, v{vE[3]}"); A(f"v_add_f32 v{vLW}, v{vLW}, v{t0}")
    def sm_c():
        red_hi("add", vLW, t0)
        A(f"v_mov_b32 v{vMW+1}, v{vLW}")
        A("s_lshl_b32 s14, s3, 3"); A(f"v_mov_b32 v{t0}, s14"); A(f"v_mov_b32 v{t1}, 1"); A(f"v_mov_b32 v{vE[2]}, 0")
        A("s_mov_b64 exec, 1")
        A(f"ds_write_b64 v{t0}, v[{vMW}:{vMW+1}] offset:{L_WST}")
        A(f"ds_add_u32 v{vE[2]}, v{t1} offset:{L_FLAG + 8}")
        A("s_mov_b64 exec, -1")
        A("s_waitcnt lgkmcnt(0)")
        stamp(3)
    def pv_tile(m):
        beta, tp, kp = m >> 2, (m >> 1) & 1, m & 1; G = beta >> 1; t = 2 * (beta & 1) + tp
        a = AB[m & 1]; p = RING + 4 * pslot[(t, kp)] + G; bv = sreg(32 + m)
        for r in range(4): A(f"v_and_b32 v{a+r}, v{p}, v{M[r]}")
        c = "0" if m == 0 else f"v[{ACC}:{ACC+3}]"
        A(f"v_mfma_f32_16x16x32_bf16 v[{ACC}:{ACC+3}], v[{a}:{a+3}], v[{bv}:{bv+3}], {c}")
        free.append(slot[32 + m])
    vFS = 18; vHP = 19
    GG = 14
    def fetch_stats():
        stamp(4); lds_wait(L_FLAG + 4, 1, "st", t0, t1); stamp(5)
        A(f"ds_read_b128 v[14:17], v{t0} offset:{L_G}")
        A(f"v_lshrrev_b32 v{t1}, 5, v1"); A("s_lshl_b32 s14, s3, 3"); A(f"v_lshl_add_u32 v{t1}, v{t1}, 2, s14")
        A(f"ds_read_b32 v{vHP}, v{t1} offset:{L_H}")
        A("s_waitcnt lgkmcnt(0)")
        A(f"v_add_f32 v{vFS}, v{vMW}, v16"); A(f"v_exp_f32 v{vFS}, v{vFS}"); A(f"v_mul_f32 v{vFS}, v{vFS}, v17")

    N = len(loads); chunks = [sm_a, sm_b, sm_c]; sm_done = False
    for n in range(64 if late_w else N):
        if n < 64:
            lim = LIM if n < 32 else LIMV
            if LP: lim = LP[n % len(LP)]
            if LE and n >= LE[0]: lim = LE[1]
            if n > max(lim, LIM): wait_landed(n - lim - 1)
        if n in (LIM + 1, 8, 16, 48): stamp({LIM + 1: 12, 8: 13, 16: 14, 48: 15}[n])
        if n == NQ:
            stamp(1)
            lds_wait(L_FLAG, 1, "q", t0, t1)
            A(f"v_lshrrev_b32 v{t0}, 4, v1"); A(f"v_and_b32 v{t1}, 3, v1"); A(f"v_lshl_add_u32 v{t0}, v{t0}, 2, v{t1}"); A(f"v_lshlrev_b32 v{t0}, 4, v{t0}")
            A(f"ds_read_b128 v[{Q[0]}:{Q[0]+3}], v{t0} offset:{L_Q}")
            A(f"ds_read_b128 v[{Q[1]}:{Q[1]+3}], v{t0} offset:{L_Q + 256}")
            A(f"v_mov_b32 v{t0}, 0"); A(f"ds_read_b32 v{t1}, v{t0} offset:{L_G + 16}")
            A("s_waitcnt lgkmcnt(0)"); A(f"v_readfirstlane_b32 s12, v{t1}")
            stamp(2)
        assert free, f"no free slot at load {n}"
        issue(n)
        if n == LIM:
            srd(SV, 20, 0x4000000); srd(SWO, 24, 3670016); srd(SW2, 30, 1605632); srd(SWS, 38, WS_SIZE)
            A("s_barrier")
            A(f"v_lshl_add_u32 v{vV}, v1, 4, s8")
            A(f"v_and_b32 v{t0}, 31, v1"); A(f"v_lshlrev_b32 v{t0}, 4, v{t0}"); A(f"v_lshrrev_b32 v{t1}, 5, v1")
            A(f"v_mul_u32_u24 v{vWo}, 1792, v{t1}"); A(f"v_add_u32 v{vWo}, v{vWo}, v{t0}")
            A(f"v_mul_u32_u24 v{vW2}, 896, v{t1}"); A(f"v_add_u32 v{vW2}, v{vW2}, v{t0}")
            A("s_lshl_b32 s14, s10, 5"); A("s_lshl_b32 s15, s3, 2"); A("s_add_u32 s14, s14, s15"); A("s_mul_i32 s14, s14, 896")
            A(f"v_add_u32 v{vWo}, s14, v{vWo}")
            A("s_lshl_b32 s14, s10, 4"); A("s_lshl_b32 s15, s3, 1"); A("s_add_u32 s14, s14, s15"); A("s_mul_i32 s14, s14, 896")
            A(f"v_add_u32 v{vW2}, s14, v{vW2}")
            masks(A, M, t0, t1); mask_prime(A, M, t0, t1)
            if dbg: A("s_waitcnt lgkmcnt(0)"); A("v_writelane_b32 v167, s88, 0")
        if n >= NQ and not sm_done:
            c = 0
            while qk_next[0] < 16 and c < CQ and 2 * qk_next[0] + 1 <= landed[0]:
                qk_tile(qk_next[0]); qk_next[0] += 1; c += 1
            if qk_next[0] == 16:
                chunks.pop(0)()
                sm_done = not chunks
        elif sm_done:
            c = 0
            while pv_next[0] < 32 and c < CP and 32 + pv_next[0] <= landed[0]:
                pv_tile(pv_next[0]); pv_next[0] += 1; c += 1
        if n == NF: fetch_stats()
        if n in (NG, NS):
            A(f"v_mov_b32 v{t0}, 0"); A(f"v_mov_b32 v{t1}, {1 if n == NG else 2}")
            A("s_mov_b64 exec, 1"); A(f"ds_max_u32 v{t0}, v{t1} offset:{L_FLAG + 12}"); A("s_mov_b64 exec, -1")
    assert sm_done
    vRw, vO, vY, vR1 = vK, vV, 13, 16
    red2_lane(A, vRw, t0)
    A("s_lshl_b32 s14, s3, 10"); A(f"v_add_u32 v{vR1}, s14, v{vRw}")
    A("s_lshl_b32 s14, s3, 11"); A(f"s_add_u32 s14, s14, {L_RED2}"); A(f"v_add_u32 v{vRw}, s14, v{vRw}")
    A("s_lshl_b32 s14, s3, 6"); A(f"v_add_u32 v{vY}, s14, v1")
    A(f"v_lshrrev_b32 v{t0}, 4, v{vY}"); A(f"v_lshlrev_b32 v{vO}, 11, v{t0}"); A(f"v_and_b32 v{t0}, 15, v1"); A(f"v_lshl_add_u32 v{vO}, v{t0}, 4, v{vO}")
    A("s_lshl_b32 s9, s7, 14"); A(f"s_add_u32 s9, s9, {WS_O}"); A("s_lshl_b32 s14, s6, 8"); A("s_add_u32 s11, s9, s14")
    while pv_next[0] < 32:
        wait_landed(32 + pv_next[0]); pv_tile(pv_next[0]); pv_next[0] += 1
    lab("L_tail")
    if late_w == 3:
        for n in range(64, N): issue(n)
    stamp(6)
    A(f"v_lshlrev_b32 v{t0}, 3, v{vY}")
    for k in range(4): A(f"v_mul_f32 v{ACC+k}, v{vFS}, v{ACC+k}")
    A(f"ds_write_b128 v{vR1}, v[{ACC}:{ACC+3}] offset:{L_RED1}")
    A("s_waitcnt lgkmcnt(0)"); A("s_barrier")
    if late_w in (1, 2):
        free[:] = sorted(free + list(pslot.values())); pslot.clear()
        held = free[-6:]; del free[-6:]
    fr = [RING + 4 * s_ for s_ in sorted(free + list(pslot.values()))]
    run = [r for r in fr if all(r + 4 * k in fr for k in range(4))][0]
    rest = [r for r in fr if not run <= r < run + 16]
    FS = []
    for _ in range(pp):
        r = [r for r in rest if r + 4 in rest][0]; FS.append(r); rest.remove(r); rest.remove(r + 4)
    PS = rest[:pp]; assert len(PS) == pp
    Y = run; U = 20
    if late_w == 2:
        free[:] = held
        for n in range(64, N): issue(n)
    A("s_cmp_ge_u32 s3, 2"); A("s_cbranch_scc1 L_odone")
    for k in range(8): A(f"ds_read_b64 v[{Y+2*k}:{Y+2*k+1}], v{t0} offset:{L_RED1 + 1024 * k}")
    A(f"v_mov_b32 v{U+1}, s12"); A(f"v_mov_b32 v{U+3}, s12")
    A("s_waitcnt lgkmcnt(0)")
    for st in (1, 2):
        for k in range(0, 8, 2 * st):
            for c_ in range(2): A(f"v_add_f32 v{Y+2*k+c_}, v{Y+2*k+c_}, v{Y+2*(k+st)+c_}")
    A(f"v_add_f32 v{U}, v{Y}, v{Y+8}"); A(f"v_add_f32 v{U+2}, v{Y+1}, v{Y+9}")
    A(f"buffer_store_dwordx4 v[{U}:{U+3}], v{vO}, {WSR}, s11 offen sc1")
    lab("L_odone")
    if late_w == 1:
        free[:] = held
        for n in range(64, N): issue(n)
    stamp(7)
    OG = 28; DA, DBb = Y, Y + 4
    for q in range(4): A(f"v_and_b32 v{ACC+q}, v{vHP}, v{M[q]}")
    A(f"v_add_u32 v{t0}, {L_RED2}, v{t0}")
    A(f"v_lshrrev_b32 v{t1}, 5, v1"); A("s_lshl_b32 s14, s3, 4"); A(f"v_lshl_add_u32 v{t1}, v{t1}, 3, s14")
    A("s_waitcnt vmcnt(4)")
    for cb, d in ((0, DA), (1, DBb)):
        bw = sreg(64 + cb); A(f"v_mfma_f32_16x16x32_bf16 v[{d}:{d+3}], v[{ACC}:{ACC+3}], v[{bw}:{bw+3}], 0")
    for k in range(8): A(f"v_mul_f32 v{DA+k}, v15, v{DA+k}")
    if late_w == 1: A("s_waitcnt vmcnt(0) lgkmcnt(0)")
    else: A("s_cmp_lt_u32 s3, 2"); A("s_cbranch_scc1 L_ow1"); A("s_waitcnt vmcnt(0)"); lab("L_ow1"); A("s_waitcnt vmcnt(1) lgkmcnt(0)")
    A("s_barrier")
    A(f"ds_read_b64 v[{OG}:{OG+1}], v{t1} offset:{L_OL}")
    stamp(8)
    A("s_waitcnt lgkmcnt(0)")
    for r in range(2):
        for q in range(4): A(f"v_and_b32 v{AB[r]+q}, v{OG+r}, v{M[q]}")
    for r in range(2):
        for cb, d in ((0, DA), (1, DBb)):
            bw = sreg(66 + 2 * r + cb)
            A(f"v_mfma_f32_16x16x32_bf16 v[{d}:{d+3}], v[{AB[r]}:{AB[r]+3}], v[{bw}:{bw+3}], v[{d}:{d+3}]")
    A(f"ds_write_b128 v{vRw}, v[{DA}:{DA+3}]"); A(f"ds_write_b128 v{vRw}, v[{DBb}:{DBb+3}] offset:1024")
    A("s_waitcnt lgkmcnt(0)"); A("s_barrier")
    A("s_cmp_ge_u32 s3, 4"); A("s_cbranch_scc1 L_ydone")
    for k in range(8): A(f"ds_read_b64 v[{Y+2*k}:{Y+2*k+1}], v{t0} offset:{2048 * k}")
    A(f"v_cmp_gt_u32 vcc, 224, v{vY}")
    A(f"v_lshrrev_b32 v{t1}, 3, v{vY}"); A(f"v_lshlrev_b32 v{vO}, 14, v{t1}")
    A(f"v_and_b32 v{t1}, 7, v1"); A(f"v_lshl_add_u32 v{vO}, v{t1}, 4, v{vO}")
    A(f"s_mul_i32 s14, s4, {28 * 16384}"); A("s_lshl_b32 s15, s10, 7"); A("s_add_u32 s14, s14, s15"); A(f"s_add_u32 s14, s14, {WS_Y}")
    A(f"v_mov_b32 v{U+1}, s12"); A(f"v_mov_b32 v{U+3}, s12")
    A("s_waitcnt lgkmcnt(0)")
    for st in (1, 2):
        for k in range(0, 8, 2 * st):
            for c_ in range(2): A(f"v_add_f32 v{Y+2*k+c_}, v{Y+2*k+c_}, v{Y+2*(k+st)+c_}")
    A(f"v_add_f32 v{U}, v{Y}, v{Y+8}"); A(f"v_add_f32 v{U+2}, v{Y+1}, v{Y+9}")
    A("s_and_saveexec_b64 s[82:83], vcc")
    A(f"buffer_store_dwordx4 v[{U}:{U+3}], v{vO}, {WSR}, s14 offen sc1")
    A("s_mov_b64 exec, s[82:83]")
    lab("L_ydone")
    stamp(9)
    A("s_cmp_ge_u32 s2, 56"); A("s_cbranch_scc1 L_fin_skip")
    A("s_lshl_b32 s13, s2, 14"); A("s_lshl_b32 s15, s3, 11"); A("s_add_u32 s13, s13, s15"); A(f"s_add_u32 s13, s13, {WS_Y}")
    A(f"v_lshlrev_b32 v{t0}, 4, v1")
    F = 24
    gather("fin", [(F, t0, "s13", 0, -1, -1), (F + 4, t0, "s13", 1024, -1, -1)], fsleep, [82, 84])
    srd(SO, 34, 1792)
    A(f"v_add_f32 v{F}, v{F}, v{F+4}"); A(f"v_add_f32 v{F+2}, v{F+2}, v{F+6}")
    stamp(10)
    A(f"v_add_f32_dpp v{F}, v{F}, v{F} row_ror:8 {DPPF}"); A(f"v_add_f32_dpp v{F+2}, v{F+2}, v{F+2} row_ror:8 {DPPF}")
    A(f"v_permlane16_swap_b32 v{F}, v{F+2}"); A(f"v_add_f32 v{F}, v{F}, v{F+2}")
    A(f"v_mov_b32 v{F+2}, v{F}"); A(f"v_permlane32_swap_b32 v{F}, v{F+2}"); A(f"v_add_f32 v{F}, v{F}, v{F+2}")
    A(f"v_and_b32 v{t0}, 7, v1"); A(f"v_bfe_u32 v{t1}, v1, 4, 1"); A(f"v_lshl_add_u32 v{t0}, v{t0}, 1, v{t1}")
    A(f"v_lshlrev_b32 v{t0}, 5, v{t0}"); A("s_lshl_b32 s14, s3, 2"); A(f"v_add_u32 v{t0}, s14, v{t0}")
    A("s_mov_b32 exec_lo, 0x00ff00ff"); A("s_mov_b32 exec_hi, 0")
    A(f"ds_write_b32 v{t0}, v{F} offset:{L_FIN}")
    A("s_mov_b64 exec, -1")
    A("s_waitcnt lgkmcnt(0)"); A("s_barrier")
    A("s_cmp_lg_u32 s3, 0"); A("s_cbranch_scc1 L_fin_skip")
    A(f"v_and_b32 v{t0}, 15, v1"); A(f"v_lshlrev_b32 v{t1}, 5, v{t0}")
    A(f"ds_read_b128 v[{F}:{F+3}], v{t1} offset:{L_FIN}"); A(f"ds_read_b128 v[{F+4}:{F+7}], v{t1} offset:{L_FIN + 16}")
    A(f"v_lshlrev_b32 v{t0}, 1, v{t0}"); A("s_lshl_b32 s14, s2, 5")
    A("s_waitcnt lgkmcnt(0)")
    for st in (1, 2, 4):
        for k in range(0, 8, 2 * st): A(f"v_add_f32 v{F+k}, v{F+k}, v{F+k+st}")
    A(f"v_cvt_pk_bf16_f32 v{F}, v{F}, v{F}")
    A("s_mov_b64 exec, 0xffff")
    A(f"buffer_store_short v{F}, v{t0}, s[{SO}:{SO+3}], s14 offen {ofl}")
    A("s_cmp_lg_u32 s2, 0"); A("s_cbranch_scc1 L_fin_noep")
    A("s_mov_b64 exec, 1"); A(f"v_mov_b32 v{t0}, 0"); A(f"v_mov_b32 v{t1}, s12")
    A(f"s_mov_b32 s13, {wsb}"); A(f"buffer_store_dword v{t1}, v{t0}, {WSR}, s13 offen {ofl}")
    lab("L_fin_noep")
    A("s_mov_b64 exec, -1")
    lab("L_fin_skip")
    stamp(11)
    dump_stamps()
    if diag2 is not None:
        role, kk, op = diag2
        A("s_cmp_lg_u32 s2, 0"); A("s_cbranch_scc1 L_diag_end"); A("s_cmp_lg_u32 s3, 0"); A("s_cbranch_scc1 L_diag_end")
        A("s_add_u32 s84, s88, 7000"); lab("L_diag1"); A("s_sleep 8")
        A("s_memrealtime s[90:91]"); A("s_waitcnt lgkmcnt(0)"); A("s_sub_u32 s85, s90, s84"); A("s_cmp_lt_i32 s85, 0"); A("s_cbranch_scc1 L_diag1")
        A("v_mov_b32 v10, 0"); A("v_mov_b32 v11, -1"); A("v_mov_b32 v14, 0")
        nr = 4 if role else 32
        for r in range(nr):
            if role: A(f"v_add_u32 v12, {r * 64}, v1"); A("v_mul_u32_u24 v12, 2304, v12")
            else:
                A(f"v_lshrrev_b32 v12, 3, v1"); A(f"v_add_u32 v12, {r * 8}, v12"); A("v_mul_u32_u24 v12, 9, v12"); A("v_and_b32 v13, 7, v1"); A("v_add_u32 v12, v12, v13")
                A("v_add_u32 v12, 1, v12"); A("v_lshlrev_b32 v12, 8, v12")
            A(f"s_mov_b32 s13, {WS_DBG}")
            A(f"buffer_load_dword v8, v12, {WSR}, s13 offen sc1"); A(f"buffer_load_dword v9, v12, {WSR}, s13 offen offset:{4 * kk} sc1"); A("s_waitcnt vmcnt(0)")
            A("v_subrev_u32 v8, s88, v8"); A("v_add_u32 v8, 0x1000, v8"); A("v_min_u32 v11, v11, v8")
            A("v_cmp_ne_u32 vcc, 0, v9"); A("v_subrev_u32 v9, s88, v9"); A("v_add_u32 v9, 0x1000, v9"); A("v_cndmask_b32 v9, 0, v9, vcc")
            A("v_max_u32 v10, v10, v9"); A("v_add_u32 v14, v14, v9")
        if op == "mean": A(f"v_lshrrev_b32 v10, {2 if role else 5}, v14")
        for v, o in ((10, "add" if op == "mean" else "max"), (11, "min")):
            for ctl in ("quad_perm:[1,0,3,2]", "quad_perm:[2,3,0,1]", "row_half_mirror", "row_mirror"): A(f"v_{o}_u32_dpp v{v}, v{v}, v{v} {ctl} {DPPF}")
            for sw in ("v_permlane16_swap_b32", "v_permlane32_swap_b32"):
                A(f"v_mov_b32 v12, v{v}"); A(f"{sw} v{v}, v12"); A(f"v_{o}_u32 v{v}, v{v}, v12")
        if op == "mean": A("v_lshrrev_b32 v10, 6, v10")
        A("v_sub_u32 v10, v10, v11"); A("v_readfirstlane_b32 s85, v10"); A("s_lshl_b32 s85, s85, 2")
        if kk < 0: A("s_mov_b32 s85, 0")
        A("s_min_u32 s85, s85, 40000"); A(f"s_add_u32 s84, s88, {dbase}"); A("s_add_u32 s84, s84, s85")
        lab("L_diag2")
        A("s_memrealtime s[90:91]"); A("s_waitcnt lgkmcnt(0)"); A("s_sub_u32 s85, s90, s84"); A("s_cmp_lt_i32 s85, 0"); A("s_cbranch_scc1 L_diag2")
        lab("L_diag_end")
    if diag is not None:
        A("s_cmp_lg_u32 s2, 0"); A("s_cbranch_scc1 L_diag_end"); A("s_cmp_lg_u32 s3, 0"); A("s_cbranch_scc1 L_diag_end")
        A("s_add_u32 s84, s88, 7000")
        lab("L_diag1")
        A("s_memrealtime s[90:91]"); A("s_waitcnt lgkmcnt(0)"); A("s_sub_u32 s85, s90, s84"); A("s_cmp_lt_i32 s85, 0"); A("s_cbranch_scc1 L_diag1")
        A("v_lshlrev_b32 v166, 2, v1"); A("buffer_load_dword v165, v166, s[92:95], 0 offen sc1"); A("s_waitcnt vmcnt(0)")
        A("v_readlane_b32 s84, v165, 0"); A(f"v_readlane_b32 s85, v165, {max(diag, 0)}")
        A("s_not_b32 s84, s84"); A("s_sub_u32 s85, s85, s84"); A("s_lshl_b32 s85, s85, 2")
        if diag <= 0: A("s_mov_b32 s85, 0")
        A("s_min_u32 s85, s85, 40000"); A(f"s_add_u32 s84, s88, {dbase}"); A("s_add_u32 s84, s84, s85")
        lab("L_diag2")
        A("s_memrealtime s[90:91]"); A("s_waitcnt lgkmcnt(0)"); A("s_sub_u32 s85, s90, s84"); A("s_cmp_lt_i32 s85, 0"); A("s_cbranch_scc1 L_diag2")
        lab("L_diag_end")
    A("s_endpgm")

    lab("L_service")
    A("s_setprio 3")
    vL16, vQe, vQo, vFe, vFo, vXq, vXf = 2, 3, 4, 5, 6, 7, 8
    vTr = [9, 10, 11, 12]; a_, b_, c_, d_ = 14, 15, 16, 17; vG, vOG = 20, 21
    A(f"v_mov_b32 v{a_}, 0"); A(f"v_mov_b32 v{b_}, 0"); A(f"v_mov_b32 v{c_}, 0"); A(f"v_mov_b32 v{d_}, 0")
    A(f"ds_write_b128 v{a_}, v[{a_}:{d_}] offset:{L_FLAG}")
    A(f"v_lshlrev_b32 v{vL16}, 4, v1")
    A("s_and_b32 s8, s6, 3"); A("s_lshr_b32 s9, s6, 2"); A("s_lshl_b32 s14, s4, 1"); A("s_add_u32 s9, s9, s14")
    A("s_mul_i32 s11, s2, 9363"); A("s_lshr_b32 s11, s11, 16"); A("s_mul_i32 s14, s11, 7"); A("s_sub_u32 s81, s2, s14")
    A(f"v_bfe_u32 v{a_}, v1, 4, 1"); A(f"v_lshlrev_b32 v{a_}, 1, v{a_}"); A(f"v_and_b32 v{b_}, 7, v1"); A(f"v_xor_b32 v{a_}, v{a_}, v{b_}")
    A(f"v_xor_b32 v{b_}, 4, v{a_}"); A(f"v_lshrrev_b32 v{c_}, 3, v1")
    A(f"s_mul_i32 s14, s9, {112 * 8192}"); A("s_lshl_b32 s15, s5, 9"); A("s_add_u32 s14, s14, s15"); A("s_lshl_b32 s15, s8, 7"); A("s_add_u32 s14, s14, s15")
    A(f"v_lshl_add_u32 v{d_}, v{c_}, 13, s14")
    A(f"v_lshl_add_u32 v{vQe}, v{a_}, 4, v{d_}"); A(f"v_lshl_add_u32 v{vQo}, v{b_}, 4, v{d_}")
    A(f"s_mul_i32 s14, s81, {64 * 3584}"); A("s_lshl_b32 s15, s11, 7"); A("s_add_u32 s14, s14, s15")
    A(f"v_mul_u32_u24 v{d_}, 3584, v{c_}"); A(f"v_add_u32 v{d_}, s14, v{d_}")
    A(f"v_lshl_add_u32 v{vFe}, v{a_}, 4, v{d_}"); A(f"v_lshl_add_u32 v{vFo}, v{b_}, 4, v{d_}")
    A("s_waitcnt lgkmcnt(0)")
    A(f"s_mov_b32 s13, {wsb}"); A("s_load_dword s12, s[38:39], s13")
    srd(SX, 16, 1792); srd(SWQ, 22, 3670016); srd(SG, 32, 896); srd(SW1, 28, 1605632)
    A("s_cmp_lt_u32 s2, 196"); A(f"s_cselect_b32 s{SW1+2}, s{SW1+2}, 0")
    if svc == 0:
        for d in (SX, SWQ, SG, SW1): A(f"s_mov_b32 s{d+2}, 0")
    if svc == 0.5:
        for d in (SW1,): A(f"s_mov_b32 s{d+2}, 0")
    A(f"s_mov_b32 m0, {L_X}")
    for k in range(2): A(f"buffer_load_dwordx4 v{vL16}, s[{SX}:{SX+3}], 0 offen offset:{1024 * k} lds")
    for m in range(16):
        A(f"s_mov_b32 m0, {L_W + 1024 * m}")
        A(f"s_mov_b32 s13, {m * 65536 if m < 14 else 0x7f000000}")
        A(f"buffer_load_dwordx4 v{vQo if m & 1 else vQe}, s[{SWQ}:{SWQ+3}], s13 offen {wflags} lds")
    for m in range(8):
        A(f"s_mov_b32 m0, {L_W1 + 1024 * m}"); A(f"s_mov_b32 s13, {m * 8 * 3584}")
        A(f"buffer_load_dwordx4 v{vFo if m & 1 else vFe}, s[{SW1}:{SW1+3}], s13 offen {wflags} lds")
    GW = 24
    A(f"buffer_load_dwordx4 v[{GW}:{GW+3}], v{vL16}, s[{SG}:{SG+3}], 0 offen")
    A("s_barrier")
    srd(SWS, 38, WS_SIZE)
    A(f"v_and_b32 v{a_}, 1, v1"); A(f"v_mul_u32_u24 v{b_}, 896, v{a_}"); A(f"v_lshrrev_b32 v{a_}, 4, v1"); A(f"v_lshl_add_u32 v{b_}, v{a_}, 4, v{b_}")
    A("s_mul_i32 s14, s9, 224"); A(f"v_add_u32 v{vXq}, s14, v{b_}"); A("s_lshl_b32 s14, s81, 7"); A(f"v_add_u32 v{vXf}, s14, v{b_}")
    A(f"v_lshlrev_b32 v{b_}, 10, v{a_}"); A(f"v_bfe_u32 v{c_}, v1, 2, 2"); A(f"v_lshl_add_u32 v{b_}, v{c_}, 7, v{b_}")
    A(f"v_bfe_u32 v{c_}, v1, 1, 1"); A(f"v_lshl_add_u32 v{b_}, v{c_}, 4, v{b_}"); A(f"v_and_b32 v{c_}, 1, v1"); A(f"v_lshl_add_u32 v{b_}, v{c_}, 3, v{b_}")
    A(f"v_bfe_u32 v{c_}, v1, 3, 2")
    for cg in range(4):
        A(f"v_xor_b32 v{d_}, {cg}, v{c_}"); A(f"v_lshl_add_u32 v{vTr[cg]}, v{d_}, 5, v{b_}")
    A("s_lshl_b32 s8, s8, 9"); A("s_lshl_b32 s9, s9, 11"); A("s_add_u32 s8, s8, s9"); A("s_lshl_b32 s9, s5, 13"); A("s_add_u32 s8, s8, s9")
    A(f"s_add_u32 s8, s8, {WS_Q}"); A(f"s_add_u32 s9, s8, {16 * 8192}")
    A("s_lshl_b32 s11, s11, 12"); A("s_lshl_b32 s81, s81, 9"); A("s_add_u32 s11, s11, s81"); A(f"s_add_u32 s11, s11, {WS_H}")
    A("s_mov_b32 s82, 0xffff0000"); A("s_mov_b32 s83, 0"); A("s_mov_b32 s84, 0"); A("s_mov_b32 s85, 0xffff"); A("s_mov_b32 s86, 0"); A("s_mov_b32 s87, 0xffff0000")
    if dbg: A("s_waitcnt lgkmcnt(0)"); A("v_writelane_b32 v167, s88, 0")
    A("s_waitcnt lgkmcnt(0)"); A(f"s_add_u32 s12, s12, {TAGC}")
    XA = 28; TB = 56; D = 120; UQ = 136
    A("s_waitcnt vmcnt(25)")
    for m in range(4): A(f"ds_read_b128 v[{XA+4*m}:{XA+4*m+3}], v{vXq} offset:{L_X + 64 * m}")
    for m in range(2): A(f"ds_read_b128 v[{XA+16+4*m}:{XA+16+4*m+3}], v{vXf} offset:{L_X + 64 * m}")
    def gemv(img, steps, xa, vm_after):
        for m in range(steps):
            A(f"s_waitcnt vmcnt({vm_after + 4 * (steps - 1 - m)})")
            for cg in range(4):
                r = TB + 16 * m + 4 * cg
                A(f"ds_read_b64_tr_b16 v[{r}:{r+1}], v{vTr[cg]} offset:{img + 4096 * m}")
                A(f"ds_read_b64_tr_b16 v[{r+2}:{r+3}], v{vTr[cg]} offset:{img + 4096 * m + 512}")
            if m: mf(m - 1, xa, 8)
        mf(steps - 1, xa, 0)
        for bb in range(2):
            for cg in range(1, 4): A(f"v_cndmask_b32 v{D+bb}, v{D+bb}, v{D+4*cg+bb}, s[{80+2*cg}:{81+2*cg}]")
        for bb in range(2):
            A(f"v_mov_b32 v{UQ+4*bb}, v{D+bb}"); A(f"v_mov_b32_dpp v{UQ+4*bb+2}, v{D+bb} quad_perm:[1,1,3,3] {DPPF}")
            A(f"v_mov_b32 v{UQ+4*bb+1}, s12"); A(f"v_mov_b32 v{UQ+4*bb+3}, s12")
    def mf(m, xa, lg):
        A(f"s_waitcnt lgkmcnt({lg})")
        for cg in range(4):
            r = TB + 16 * m + 4 * cg; d = D + 4 * cg; c = "0" if m == 0 else f"v[{d}:{d+3}]"
            A(f"v_mfma_f32_16x16x32_bf16 v[{d}:{d+3}], v[{xa+4*m}:{xa+4*m+3}], v[{r}:{r+3}], {c}")
    def publish(s0, s1):
        if svc < 2: return
        A("s_mov_b32 exec_lo, 0x55555555"); A("s_mov_b32 exec_hi, 0x55555555")
        A(f"buffer_store_dwordx4 v[{UQ}:{UQ+3}], v{d_}, {WSR}, {s0} offen sc1")
        A(f"buffer_store_dwordx4 v[{UQ+4}:{UQ+7}], v{d_}, {WSR}, {s1} offen sc1")
        A("s_mov_b64 exec, -1")
    A(f"v_lshlrev_b32 v{d_}, 3, v1")
    gemv(L_W, 4, XA, 9)
    publish("s8", "s9")
    stamp(1)
    gemv(L_W1, 2, XA + 16, 3)
    A("s_cmp_ge_u32 s2, 196"); A("s_cbranch_scc1 L_sv_noh")
    A(f"s_add_u32 s9, s11, {28 * 4096}")
    publish("s11", "s9")
    lab("L_sv_noh")
    stamp(2)
    QP = 56
    if NG is not None: lds_wait(L_FLAG + 12, 1, "pg1", a_, b_, sleep=4, cmp="ge")
    A("s_lshl_b32 s8, s7, 13"); A(f"s_add_u32 s8, s8, {WS_Q}"); A("s_add_u32 s9, s8, 4096")
    gather("q", [(QP + 4 * k, vL16, "s9" if k >= 4 else "s8", 1024 * (k & 3), -1, -1) for k in range(8)], psleep,
           [40, 42, 44, 46, 48, 50, 82, 84])
    for hf in range(2):
        r = QP + 4 * hf
        for e in (0, 2):
            A(f"v_add_f32 v{r+e}, v{r+e}, v{r+8+e}"); A(f"v_add_f32 v{r+16+e}, v{r+16+e}, v{r+24+e}")
        for e in (0, 2): A(f"v_add_f32 v{r+e}, v{r+e}, v{r+16+e}")
        A(f"v_cvt_pk_bf16_f32 v{r}, v{r}, v{r+2}")
    A(f"v_lshlrev_b32 v{a_}, 2, v1")
    A(f"ds_write_b32 v{a_}, v{QP} offset:{L_Q}"); A(f"ds_write_b32 v{a_}, v{QP+4} offset:{L_Q + 256}")
    A(f"v_mov_b32 v{a_}, 0"); A(f"v_mov_b32 v{b_}, s12"); A(f"v_mov_b32 v{c_}, 1")
    A(f"ds_write_b32 v{a_}, v{b_} offset:{L_G + 16}")
    A(f"ds_write_b32 v{a_}, v{c_} offset:{L_FLAG}")
    stamp(3)
    TW = 100
    if touch:
        A(f"v_mov_b32 v{a_}, 0"); A("s_mov_b64 exec, 1")
        if "v" in touch:
            srd(40, 20, 0x4000000); A("s_lshl_b32 s13, s7, 21"); A("s_lshl_b32 s14, s6, 18"); A("s_add_u32 s13, s13, s14")
            for k in range(4): A(f"buffer_load_dword v{TW+k}, v{a_}, s[40:43], s13 offen nt"); A("s_add_u32 s13, s13, 65536")
        if "w" in touch:
            srd(44, 24, 3670016); A(f"s_mul_i32 s13, s10, {32 * 896}"); A(f"buffer_load_dword v{TW+4}, v{a_}, s[44:47], s13 offen nt")
            srd(48, 30, 1605632); A(f"s_mul_i32 s13, s10, {16 * 896}"); A(f"buffer_load_dword v{TW+5}, v{a_}, s[48:51], s13 offen nt")
        if "o" in touch:
            srd(SO, 34, 1792); A(f"buffer_load_dword v{TW+6}, v{a_}, s[{SO}:{SO+3}], 0 offen")
        A("s_mov_b64 exec, -1")
    if codepf:
        A("s_getpc_b64 s[14:15]"); lab("L_pc")
        A("s_sub_u32 s14, s14, L_pc-L_tail"); A("s_subb_u32 s15, s15, 0")
        A(f"v_mov_b32 v{b_}, s15"); A(f"v_add_co_u32 v{a_}, vcc, s14, v{vL16}"); A(f"v_addc_co_u32 v{b_}, vcc, 0, v{b_}, vcc")
        for k in range(codepf): A(f"global_load_dwordx4 v[{TW+8+4*k}:{TW+11+4*k}], v[{a_}:{b_}], off offset:{1024 * k}")
    XG = 28
    A("s_mul_i32 s14, s4, 896"); A(f"v_add_u32 v{a_}, s14, v{vL16}")
    A(f"ds_read_b128 v[{XG}:{XG+3}], v{a_} offset:{L_X}")
    A("s_waitcnt lgkmcnt(0)")
    A(f"v_mov_b32 v{vG}, 0")
    for k in range(4):
        A(f"v_lshlrev_b32 v{a_}, 16, v{XG+k}"); A(f"v_and_b32 v{b_}, 0xffff0000, v{XG+k}")
        A(f"v_lshlrev_b32 v{c_}, 16, v{GW+k}"); A(f"v_and_b32 v{d_}, 0xffff0000, v{GW+k}")
        A(f"v_mul_f32 v{a_}, v{a_}, v{c_}"); A(f"v_mul_f32 v{b_}, v{b_}, v{d_}")
        A(f"v_cvt_pk_bf16_f32 v{a_}, v{a_}, v{b_}")
        A(f"v_lshlrev_b32 v{b_}, 16, v{a_}"); A(f"v_and_b32 v{a_}, 0xffff0000, v{a_}")
        A(f"v_add_f32 v{vG}, v{vG}, v{b_}"); A(f"v_add_f32 v{vG}, v{vG}, v{a_}")
    A("v_cmp_gt_u32 vcc, 56, v1"); A(f"v_cndmask_b32 v{vG}, 0, v{vG}, vcc")
    wave_reduce(A, "add", vG, a_)
    A(f"v_cvt_pk_bf16_f32 v{vG}, v{vG}, v{vG}"); A(f"v_lshlrev_b32 v{vG}, 16, v{vG}")
    A(f"v_mul_f32 v{vG}, 0xbfb8aa3b, v{vG}"); A(f"v_exp_f32 v{vG}, v{vG}"); A(f"v_add_f32 v{vG}, 1.0, v{vG}"); A(f"v_rcp_f32 v{vG}, v{vG}")
    A(f"v_cvt_pk_bf16_f32 v{vG}, v{vG}, v{vG}"); A(f"v_lshlrev_b32 v{vG}, 16, v{vG}")
    A(f"v_sub_f32 v{vOG}, 1.0, v{vG}"); A(f"v_cvt_pk_bf16_f32 v{vOG}, v{vOG}, v{vOG}"); A(f"v_lshlrev_b32 v{vOG}, 16, v{vOG}")
    lds_wait(L_FLAG + 8, 8, "cnt", a_, b_, sleep=2)
    ST = 32
    def combine(m, l):
        A(f"v_mov_b32 v{a_}, v{m}")
        for ctl in ("quad_perm:[1,0,3,2]", "quad_perm:[2,3,0,1]", "row_half_mirror"): A(f"v_max_f32_dpp v{a_}, v{a_}, v{a_} {ctl} {DPPF}")
        A(f"v_sub_f32 v{b_}, v{m}, v{a_}"); A(f"v_exp_f32 v{b_}, v{b_}"); A(f"v_mul_f32 v{b_}, v{b_}, v{l}")
        for ctl in ("quad_perm:[1,0,3,2]", "quad_perm:[2,3,0,1]", "row_half_mirror"): A(f"v_add_f32_dpp v{b_}, v{b_}, v{b_} {ctl} {DPPF}")
    A(f"v_and_b32 v{c_}, 7, v1"); A(f"v_lshlrev_b32 v{c_}, 3, v{c_}")
    A(f"ds_read_b64 v[{ST+4}:{ST+5}], v{c_} offset:{L_WST}"); A("s_waitcnt lgkmcnt(0)")
    combine(ST + 4, ST + 5)
    A(f"v_mov_b32 v{ST}, v{a_}"); A(f"v_mov_b32 v{ST+1}, s12"); A(f"v_mov_b32 v{ST+2}, v{b_}"); A(f"v_mov_b32 v{ST+3}, s12")
    A("s_lshl_b32 s11, s7, 10"); A(f"s_add_u32 s11, s11, {WS_ST}"); A("s_lshl_b32 s9, s6, 7"); A("s_add_u32 s9, s9, s11")
    A("s_mov_b64 exec, 0xff"); A(f"buffer_store_dwordx4 v[{ST}:{ST+3}], v{vL16}, {WSR}, s9 offen sc1"); A("s_mov_b64 exec, -1")
    if NS is not None: lds_wait(L_FLAG + 12, 2, "pg2", a_, b_, sleep=8, cmp="ge")
    HP = 28
    A(f"v_mov_b32 v{HP}, 0"); A(f"v_mov_b32 v{HP+2}, 0")
    A("s_cmp_ge_u32 s10, 112"); A("s_cbranch_scc1 L_sv_hz")
    A(f"v_lshrrev_b32 v{a_}, 3, v1"); A(f"v_lshlrev_b32 v{a_}, 9, v{a_}"); A(f"v_and_b32 v{b_}, 7, v1"); A(f"v_lshl_add_u32 v{a_}, v{b_}, 4, v{a_}")
    A("s_lshr_b32 s8, s10, 2"); A("s_mul_i32 s9, s4, 28"); A("s_add_u32 s8, s8, s9"); A("s_lshl_b32 s8, s8, 12")
    A("s_and_b32 s9, s10, 3"); A("s_lshl_b32 s9, s9, 7"); A("s_add_u32 s8, s8, s9"); A(f"s_add_u32 s8, s8, {WS_H}")
    gather("h", [(HP, a_, "s8", 0, -1, "0x00ffffff")], psleep, [82])
    lab("L_sv_hz")
    for k in (0, 2): A(f"v_add_f32_dpp v{HP+k}, v{HP+k}, v{HP+k} row_ror:8 {DPPF}")
    for sw in ("v_permlane16_swap_b32", "v_permlane32_swap_b32"):
        for k in (0, 2): A(f"v_mov_b32 v{HP+k+1}, v{HP+k}")
        for k in (0, 2): A(f"{sw} v{HP+k}, v{HP+k+1}")
        for k in (0, 2): A(f"v_add_f32 v{HP+k}, v{HP+k}, v{HP+k+1}")
    for k in (0, 2): A(f"v_max_f32 v{HP+k}, 0, v{HP+k}")
    A(f"v_cvt_pk_bf16_f32 v{HP}, v{HP}, v{HP}"); A(f"v_cvt_pk_bf16_f32 v{HP+1}, v{HP+2}, v{HP+2}")
    A(f"v_lshlrev_b32 v{a_}, 3, v1")
    A("s_mov_b64 exec, 0xff"); A(f"ds_write_b64 v{a_}, v[{HP}:{HP+1}] offset:{L_H}"); A("s_mov_b64 exec, -1")
    stamp(4)
    A(f"v_lshlrev_b32 v{c_}, 7, v1")
    gather("st", [(ST + 4, c_, "s11", 0, "0xff", 0)], 8, [82])
    combine(ST + 4, ST + 6)
    A(f"v_sub_f32 v{vG+2}, 0, v{a_}"); A(f"v_rcp_f32 v{vG+3}, v{b_}"); A(f"v_mul_f32 v{vG+3}, v{vG+3}, v{vG}")
    A(f"v_mov_b32 v{a_}, 0"); A(f"v_mov_b32 v{b_}, 1")
    A("s_mov_b64 exec, 1")
    A(f"ds_write_b128 v{a_}, v[{vG}:{vG+3}] offset:{L_G}")
    A(f"ds_write_b32 v{a_}, v{b_} offset:{L_FLAG + 4}")
    A("s_mov_b64 exec, -1")
    stamp(5)
    P0, P1 = 40, 44
    A("s_lshl_b32 s9, s7, 14"); A(f"s_add_u32 s9, s9, {WS_O}"); A("s_lshl_b32 s14, s6, 11"); A("s_add_u32 s9, s9, s14")
    A(f"v_and_b32 v{a_}, 15, v1"); A(f"v_bfe_u32 v{b_}, v1, 4, 1"); A(f"v_lshl_add_u32 v{a_}, v{a_}, 1, v{b_}"); A(f"v_lshlrev_b32 v{a_}, 2, v{a_}")
    A("s_waitcnt lgkmcnt(0)"); A("s_barrier")
    if odelay: A(f"s_sleep {odelay}")
    gather("o", [(P0, vL16, "s9", 0, -1, -1), (P1, vL16, "s9", 1024, -1, -1)], osleep, [82, 84])
    A(f"v_add_f32 v{P0}, v{P0}, v{P1}"); A(f"v_add_f32 v{P0+2}, v{P0+2}, v{P1+2}")
    A(f"v_permlane16_swap_b32 v{P0}, v{P0+2}"); A(f"v_add_f32 v{P0}, v{P0}, v{P0+2}")
    A(f"v_mov_b32 v{P0+2}, v{P0}"); A(f"v_permlane32_swap_b32 v{P0}, v{P0+2}"); A(f"v_add_f32 v{P0}, v{P0}, v{P0+2}")
    A(f"v_cvt_pk_bf16_f32 v{P0}, v{P0}, v{P0}")
    A(f"ds_write_b32 v{a_}, v{P0} offset:{L_OL}")
    A("s_waitcnt lgkmcnt(0)"); A("s_barrier")
    stamp(6)
    dump_stamps(True)
    lab("L_end")
    A("s_endpgm")

    body = pad_hazards(L)
    out = [HEADER.rstrip("\n"),
           "; Single fused launch: 256 workgroups (one per CU) x 9 waves (wave 0 = service, waves 1-8 stream K/V).",
           f"; @launch grid=(256,1,1) block=(576,1,1) lds={lds or LDS_MIN}",
           '.amdgcn_target "amdgcn-amd-amdhsa--gfx950"', ".text", f".globl {NAME}", ".p2align 8", f".type {NAME},@function", f"{NAME}:"]
    out += body
    out += ['.section .rodata,"a"', ".p2align 6", f".amdhsa_kernel {NAME}",
            "  .amdhsa_next_free_vgpr 168", "  .amdhsa_next_free_sgpr 96", "  .amdhsa_accum_offset 168",
            "  .amdhsa_group_segment_fixed_size 0", "  .amdhsa_kernarg_size 96", "  .amdhsa_user_sgpr_count 2",
            "  .amdhsa_user_sgpr_kernarg_segment_ptr 1", "  .amdhsa_system_sgpr_workgroup_id_x 1", ".end_amdhsa_kernel"]
    return "\n".join(out) + "\n"

def masks(A, M, t0, t1):
    A(f"v_and_b32 v{t0}, 1, v1"); A(f"v_lshlrev_b32 v{t0}, 4, v{t0}"); A(f"v_mov_b32 v{t1}, 0xffff"); A(f"v_lshlrev_b32 v{t1}, v{t0}, v{t1}")
    A(f"v_bfe_u32 v{t0}, v1, 1, 2")
    for r in range(4): A(f"v_cmp_eq_u32 s[{80+2*r}:{81+2*r}], {r}, v{t0}")
    for r in range(4): A(f"v_cndmask_b32 v{M[r]}, 0, v{t1}, s[{80+2*r}:{81+2*r}]")

def mask_prime(A, M, t0, t1):
    A(f"v_lshrrev_b32 v{t0}, 1, v1"); A(f"v_xor_b32 v{t0}, v{t0}, v1"); A(f"v_bfe_u32 v{t0}, v{t0}, 3, 1")
    A(f"v_add_u32 v{t0}, -1, v{t0}")
    for r in range(4): A(f"v_and_b32 v{M[r]}, v{M[r]}, v{t0}")

def red2_lane(A, d, t0):
    A(f"v_and_b32 v{t0}, 15, v1"); A(f"v_lshlrev_b32 v{d}, 5, v{t0}")
    A(f"v_lshrrev_b32 v{t0}, 5, v1"); A(f"v_lshl_add_u32 v{d}, v{t0}, 9, v{d}")
    A(f"v_bfe_u32 v{t0}, v1, 4, 1"); A(f"v_lshl_add_u32 v{d}, v{t0}, 4, v{d}")

def wave_reduce(A, op, v, t):
    for ctl in ("quad_perm:[1,0,3,2]", "quad_perm:[2,3,0,1]", "row_half_mirror", "row_mirror"):
        A(f"v_{op}_f32_dpp v{v}, v{v}, v{v} {ctl} {DPPF}")
    for sw in ("v_permlane16_swap_b32", "v_permlane32_swap_b32"):
        A(f"v_mov_b32 v{t}, v{v}"); A(f"{sw} v{v}, v{t}"); A(f"v_{op}_f32 v{v}, v{v}, v{t}")

if __name__ == "__main__":
    kw = eval("dict(%s)" % (sys.argv[2] if len(sys.argv) > 2 else ""))
    open(sys.argv[1], "w").write(gen(**kw))
```

```python
import sys
sys.path.insert(0, "dev")
from asmlib import pad_hazards

NAME = "gated_mix__mha_block_cached__dense_activation_relu__decode_kernel"
HEADER = open("gated_mix__mha_block_cached__dense_activation_relu__decode.s.ref").read().split("; Override launch")[0]

WS_ST = 0x1F0000
WS_H = 0x8000
WS_Q = 0x40000
WS_O = 0x80000
WS_Y = 0x100000
WS_DBG = 0x400000
WS_SIZE = 268435456
L_W = 0x0000
L_W1 = 0x4000
L_RED1 = 0x0000
L_X = 0x6000
L_Q = 0x6800
L_H = 0x6A00
L_G = 0x6A40
L_FLAG = 0x6A80
L_WST = 0x6AC0
L_FIN = 0x6C00
L_OL = 0x6B00
L_PW = 0x7000
L_RED2 = 0x8000
LDS_MIN = L_RED2 + 8 * 2048
TAGC = 0x9E3779B9
SPIN_MAX = 1 << 18
DPPF = "row_mask:0xf bank_mask:0xf"
CEXP = "0x3db8aa3b"

def gen(LIM=2, LIMV=None, NQ=24, CQ=3, CP=3, R=33, NF=62, dbg=False, hdbg=False, diag=None,
        psleep=2, osleep=0, fsleep=0, svc=9, kflags="nt", wflags="nt", lds=None, LE=None, NG=12, NS=46, rot=None, early=False, dbase=10000, pp=1, pgap=8, wsb=0, diag2=None, xmap=0, spread=0, LP=None, kmap=0, ofl='', pat='tp w0 w1 w2 b0 b1 b2 s0 s1 s2', touch='', codepf=False, late_w=False, odelay=0, lite=False, endop=None, lst='sc1', bal=None, CK1=None, CK3=None):
    if LIMV is None: LIMV = LIM
    WS_ST, WS_H, WS_Q, WS_O, WS_Y = (x + wsb for x in (0x1F0000, 0x8000, 0x40000, 0x80000, 0x100000))
    L = []
    A = lambda s: L.append("  " + s)
    lab = lambda s: L.append(s + ":")
    def srd(d, p, nbytes):
        A(f"s_mov_b32 s{d}, s{p}"); A(f"s_mov_b32 s{d+1}, s{p+1}"); A(f"s_mov_b32 s{d+2}, {nbytes}"); A(f"s_mov_b32 s{d+3}, 0x20000")
    SK, SV, SWO, SWS, SWQ, SW1, SW2, SX, SG, SO = 40, 44, 48, 52, 56, 60, 64, 68, 72, 76
    WSR = f"s[{SWS}:{SWS+3}]"
    if diag is not None: hdbg = True
    if diag2 is not None: dbg = True
    if hdbg: dbg = True
    def stamp(idx):
        if dbg:
            A("s_memrealtime s[90:91]"); A("s_waitcnt lgkmcnt(0)"); A(f"v_writelane_b32 v167, s90, {idx}")
    def dump_stamps(service=False):
        if hdbg:
            A("s_mov_b32 s92, s36"); A("s_mov_b32 s93, s37"); A("s_mov_b32 s94, 256"); A("s_mov_b32 s95, 0x20000")
            A("v_not_b32 v165, v167"); A("v_cmp_eq_u32 vcc, 0, v1"); A("v_cndmask_b32 v167, v167, v165, vcc")
            A("v_lshlrev_b32 v166, 2, v1")
            if service: A("v_add_u32 v166, 64, v166"); A("s_mov_b64 exec, 0x3e")
            else: A("s_mov_b64 exec, 0xffff")
            A("buffer_atomic_umax v167, v166, s[92:95], 0 offen"); A("s_mov_b64 exec, -1")
        elif dbg:
            if diag2 is not None and not service:
                tg = "s" if service else "m"
                A("s_add_u32 s84, s88, 4500"); lab(f"L_dd_{tg}"); A("s_sleep 8")
                A("s_memrealtime s[90:91]"); A("s_waitcnt lgkmcnt(0)"); A("s_sub_u32 s85, s90, s84"); A("s_cmp_lt_i32 s85, 0"); A(f"s_cbranch_scc1 L_dd_{tg}")
            A("s_mul_i32 s92, s2, 9"); A("s_add_u32 s92, s92, s93"); A("s_lshl_b32 s92, s92, 8"); A(f"s_add_u32 s92, s92, {WS_DBG}")
            A("v_lshlrev_b32 v166, 2, v1"); A(f"buffer_store_dword v167, v166, {WSR}, s92 offen sc1")
    if dbg: R = min(R, 32)
    def spin_tail(label, sleep):
        if sleep: A(f"s_sleep {sleep}")
        A("s_sub_u32 s80, s80, 1"); A("s_cmp_lg_u32 s80, 0"); A(f"s_cbranch_scc1 {label}")
    def lds_wait(off, val, tag, ta, tb, sleep=1, cmp="eq"):
        A(f"v_mov_b32 v{ta}, 0"); A(f"s_mov_b32 s80, {SPIN_MAX}")
        lab(f"L_wait_{tag}")
        A(f"ds_read_b32 v{tb}, v{ta} offset:{off}"); A("s_waitcnt lgkmcnt(0)"); A(f"v_readfirstlane_b32 s81, v{tb}")
        A(f"s_cmp_{cmp}_u32 s81, {val}"); A(f"s_cbranch_scc1 L_got_{tag}")
        spin_tail(f"L_wait_{tag}", sleep)
        lab(f"L_got_{tag}")
    def gather(tag, items, sleep, pool):
        if svc < {"q": 3, "h": 4, "st": 5}.get(tag, 0):
            A("s_waitcnt vmcnt(0)"); return
        assert len(pool) >= len(items)
        for (reg, va, so, imm, lo, hi), ms in zip(items, pool): A(f"s_mov_b32 s{ms}, {lo}"); A(f"s_mov_b32 s{ms+1}, {hi}")
        A(f"s_mov_b32 s80, {SPIN_MAX}")
        lab(f"L_g_{tag}")
        for k, ((reg, va, so, imm, lo, hi), ms) in enumerate(zip(items, pool)):
            A(f"s_mov_b64 exec, s[{ms}:{ms+1}]")
            if len(items) > 1: A(f"s_cbranch_execz L_g_{tag}_s{k}")
            A(f"buffer_load_dwordx4 v[{reg}:{reg+3}], v{va}, {WSR}, {so} offen offset:{imm} sc1")
            if len(items) > 1: lab(f"L_g_{tag}_s{k}")
        A("s_waitcnt vmcnt(0)")
        for k, ((reg, va, so, imm, lo, hi), ms) in enumerate(zip(items, pool)):
            if len(items) > 1: A(f"s_mov_b64 exec, s[{ms}:{ms+1}]")
            A(f"v_cmp_ne_u32 vcc, s12, v{reg+1}"); A(f"v_cmp_ne_u32 s[{ms}:{ms+1}], s12, v{reg+3}")
            A(f"s_or_b64 s[{ms}:{ms+1}], s[{ms}:{ms+1}], vcc")
            if k == 0: A(f"s_mov_b64 s[14:15], s[{ms}:{ms+1}]")
            else: A(f"s_or_b64 s[14:15], s[14:15], s[{ms}:{ms+1}]")
        A("s_cmp_eq_u64 s[14:15], 0"); A(f"s_cbranch_scc1 L_g_{tag}_ok")
        spin_tail(f"L_g_{tag}", sleep)
        lab(f"L_g_{tag}_ok")
        A("s_mov_b64 exec, -1")

    def poll_issue(sets, k, items):
        for j, (va, so, imm) in enumerate(items):
            r = sets[k] + 4 * j
            A(f"buffer_load_dwordx4 v[{r}:{r+3}], v{va}, {WSR}, {so} offen offset:{imm} sc1")
    def poll_loop(tag, sets, items, first):
        n = len(sets); ni = len(items)
        for k in range(1, n):
            if pgap: A(f"s_sleep {pgap}")
            poll_issue(sets, k, items)
        A(f"s_mov_b32 s80, {SPIN_MAX}")
        lab(f"L_p_{tag}")
        for k in range(n):
            A(f"s_waitcnt vmcnt({(n - 1) * ni})")
            for j in range(ni):
                r = sets[k] + 4 * j
                A(f"v_cmp_ne_u32 {'vcc' if j == 0 else 's[84:85]'}, s12, v{r+1}"); A(f"v_cmp_ne_u32 s[{82 + 4 * j}:{83 + 4 * j}], s12, v{r+3}")
            if ni == 2: A("s_or_b64 vcc, vcc, s[84:85]"); A("s_or_b64 vcc, vcc, s[86:87]")
            A("s_or_b64 vcc, vcc, s[82:83]")
            A(f"s_cbranch_scc0 L_p_{tag}_ok{k}")
            poll_issue(sets, k, items)
        A("s_sub_u32 s80, s80, 1"); A("s_cmp_lg_u32 s80, 0"); A(f"s_cbranch_scc1 L_p_{tag}")
        A("s_waitcnt vmcnt(0)")
        for k in range(n):
            lab(f"L_p_{tag}_ok{k}")
            first(sets[k])
            if k < n - 1: A(f"s_branch L_p_{tag}_done")
        lab(f"L_p_{tag}_done")
        A("s_nop 1")

    if (dbg and early) or lite: A("s_memrealtime s[88:89]")
    A("s_cmp_ge_u32 s2, 256"); A("s_cbranch_scc1 L_end")
    A("s_load_dwordx16 s[16:31], s[0:1], 0")
    A("s_load_dwordx8 s[32:39], s[0:1], 64")
    A("v_lshrrev_b32 v2, 6, v0"); A("v_and_b32 v1, 63, v0")
    A("v_readfirstlane_b32 s3, v2")
    A("s_and_b32 s14, s2, 7"); A("s_lshr_b32 s15, s2, 3")
    if xmap: A(f"s_xor_b32 s14, s14, {xmap}")
    if spread:
        mk = (1 << spread) - 1
        sh = 3 - spread
        A(f"s_lshr_b32 s4, s14, {sh}"); A(f"s_and_b32 s5, s15, {mk}"); A("s_xor_b32 s6, s4, s5")
        A("s_xor_b32 s15, s15, s6"); A(f"s_lshl_b32 s6, s6, {sh}"); A("s_xor_b32 s14, s14, s6")
    A("s_lshr_b32 s4, s15, 4")
    A("s_bfe_u32 s5, s15, 0x10003"); A("s_lshl_b32 s14, s14, 1"); A("s_add_u32 s5, s5, s14")
    A("s_and_b32 s6, s15, 7")
    A("s_lshl_b32 s7, s4, 4"); A("s_add_u32 s7, s7, s5")
    A("s_lshl_b32 s10, s5, 3"); A("s_add_u32 s10, s10, s6")
    if dbg:
        A("s_mov_b32 s93, s3"); A("v_mov_b32 v167, 0")
        if not early: A("s_memrealtime s[88:89]")
    A("s_cmp_eq_u32 s3, 0"); A("s_cbranch_scc1 L_service")

    A("s_sub_u32 s3, s3, 1")
    vK, vV, vWo, vW2, t0, t1 = 2, 3, 4, 5, 6, 7
    M = [8, 9, 10, 11]; Q = [12, 16]; DB = [20, 24]; AB = [20, 24]; SG_ = [28, 29, 30, 31]; ACC = 32
    vMW = 12; vE = [13, 14, 15, 16]; vLW = 17
    RING = 36
    A(f"v_bfe_u32 v{t0}, v1, 2, 2"); A(f"v_lshlrev_b32 v{vK}, 9, v{t0}")
    A(f"v_lshrrev_b32 v{t0}, 4, v1"); A(f"v_lshl_add_u32 v{vK}, v{t0}, 6, v{vK}")
    A(f"v_and_b32 v{t0}, 3, v1"); A(f"v_lshl_add_u32 v{vK}, v{t0}, 4, v{vK}")
    PB = {t: 11 + k for k, t in enumerate(pat.split())}
    A("s_lshl_b32 s8, s7, 21")
    for reg, nm in (("s3", "w"), ("s6", "s")):
        k = 0
        while k < 3:
            e = k
            while e < 2 and PB[f"{nm}{e+1}"] == PB[f"{nm}{e}"] + 1: e += 1
            A(f"s_bfe_u32 s14, {reg}, {hex(((e - k + 1) << 16) + k)}"); A(f"s_lshl_b32 s14, s14, {PB[f'{nm}{k}']}"); A("s_add_u32 s8, s8, s14")
            k = e + 1
    def toff(beta, tp):
        o = (tp << PB["tp"]) | ((beta & 1) << PB["b0"]) | (((beta >> 1) & 1) << PB["b1"]) | ((beta >> 2) << PB["b2"])
        return o & ~0xfff, o & 0xfff
    A(f"v_add_u32 v{vK}, s8, v{vK}")
    A("s_waitcnt lgkmcnt(0)")
    srd(SK, 18, 0x4000000)

    loads = [("K", beta, tp, jh) for beta in range(8) for tp in range(2) for jh in range(2)]
    loads += [("V", beta, tp, kp) for beta in range(8) for tp in range(2) for kp in range(2)]
    loads += [("F", cb) for cb in range(2)] + [("W", r, cb) for r in range(2) for cb in range(2)]
    free = list(range(R)); slot = {}
    nissued = [0]; landed = [-1]; cur_soff = [None]
    if rot:
        A(f"s_mul_i32 s11, s2, {rot}"); A("s_lshr_b32 s14, s2, 3"); A("s_add_u32 s11, s11, s14"); A("s_and_b32 s11, s11, 7"); A("s_lshl_b32 s11, s11, 15")
    def soff(val):
        if val == 0 and not rot: return "0"
        if cur_soff[0] != val:
            if rot: A(f"s_add_u32 s13, s11, {val}"); A("s_and_b32 s13, s13, 0x3ffff")
            else: A(f"s_mov_b32 s13, {val}")
            cur_soff[0] = val
        return "s13"
    def wait_landed(n):
        if n <= landed[0]: return
        A(f"s_waitcnt vmcnt({nissued[0] - 1 - n})"); landed[0] = n
    def issue(n):
        ld = loads[n]; sl = free.pop(0); slot[n] = sl; r = RING + 4 * sl
        if ld[0] == "K":
            A(f"buffer_load_dwordx4 v[{r}:{r+3}], v{vK}, s[{SK}:{SK+3}], {soff(toff(ld[1], ld[2])[0])} offen offset:{toff(ld[1], ld[2])[1] + ld[3] * 256} {kflags}")
        elif ld[0] == "V":
            A(f"buffer_load_dwordx4 v[{r}:{r+3}], v{vV}, s[{SV}:{SV+3}], {soff(toff(ld[1], ld[2])[0])} offen offset:{toff(ld[1], ld[2])[1] + ld[3] * 1024} {kflags}")
        elif ld[0] == "W":
            A(f"buffer_load_dwordx4 v[{r}:{r+3}], v{vWo}, s[{SWO}:{SWO+3}], 0 offen offset:{ld[1] * 896 + ld[2] * 512} {wflags}")
        else:
            A(f"buffer_load_dwordx4 v[{r}:{r+3}], v{vW2}, s[{SW2}:{SW2+3}], 0 offen offset:{ld[1] * 512} {wflags}")
        nissued[0] += 1
    sreg = lambda n: RING + 4 * slot[n]
    qk_next = [0]; qk_post = [None]; pv_next = [0]; pslot = {}
    def qk_dpp(tau):
        beta, tp = tau >> 1, tau & 1; G = beta >> 1; t = 2 * (beta & 1) + tp; d = DB[tau & 1]
        A(f"v_mov_b32_dpp v{t0}, v{d} quad_perm:[0,0,0,0] {DPPF}")
        A(f"v_add_f32_dpp v{t0}, v{d+1}, v{t0} quad_perm:[1,1,1,1] {DPPF}")
        A(f"v_add_f32_dpp v{t0}, v{d+2}, v{t0} quad_perm:[2,2,2,2] {DPPF}")
        A(f"v_add_f32_dpp v{SG_[G]}, v{d+3}, v{t0} quad_perm:[3,3,3,3] row_mask:0xf bank_mask:{hex(1 << t)}")
    def qk_tile(tau):
        d = DB[tau & 1]; a0 = sreg(2 * tau); a1 = sreg(2 * tau + 1)
        A(f"v_mfma_f32_16x16x32_bf16 v[{d}:{d+3}], v[{a0}:{a0+3}], v[{Q[0]}:{Q[0]+3}], 0")
        A(f"v_mfma_f32_16x16x32_bf16 v[{d}:{d+3}], v[{a1}:{a1+3}], v[{Q[1]}:{Q[1]+3}], v[{d}:{d+3}]")
        free.extend([slot[2 * tau], slot[2 * tau + 1]])
        if qk_post[0] is not None: qk_dpp(qk_post[0])
        qk_post[0] = tau
    def red_hi(op, v, t):
        for ctl in ("row_ror:4", "row_ror:8"): A(f"v_{op}_f32_dpp v{v}, v{v}, v{v} {ctl} {DPPF}")
        for sw in ("v_permlane16_swap_b32", "v_permlane32_swap_b32"):
            A(f"v_mov_b32 v{t}, v{v}"); A(f"{sw} v{v}, v{t}"); A(f"v_{op}_f32 v{v}, v{v}, v{t}")
    def sm_a():
        qk_dpp(qk_post[0]); qk_post[0] = None
        S = SG_
        A(f"v_cvt_pk_bf16_f32 v{t0}, v{S[0]}, v{S[1]}"); A(f"v_cvt_pk_bf16_f32 v{t1}, v{S[2]}, v{S[3]}")
        A(f"v_lshlrev_b32 v{S[0]}, 16, v{t0}"); A(f"v_and_b32 v{S[1]}, 0xffff0000, v{t0}")
        A(f"v_lshlrev_b32 v{S[2]}, 16, v{t1}"); A(f"v_and_b32 v{S[3]}, 0xffff0000, v{t1}")
        A(f"v_max3_f32 v{vMW}, v{S[0]}, v{S[1]}, v{S[2]}"); A(f"v_max_f32 v{vMW}, v{vMW}, v{S[3]}")
        red_hi("max", vMW, t0)
    def sm_b():
        S = SG_
        A(f"s_mov_b32 s81, {CEXP}"); A(f"v_mul_f32 v{vMW}, s81, v{vMW}")
        for k in range(4): A(f"v_fma_f32 v{vE[k]}, v{S[k]}, s81, -v{vMW}")
        for k in range(4): A(f"v_exp_f32 v{vE[k]}, v{vE[k]}")
        A("s_lshl_b32 s14, s3, 8"); A(f"v_lshl_add_u32 v{t1}, v1, 2, s14")
        for k in range(4): A(f"v_cvt_pk_bf16_f32 v{S[k]}, v{vE[k]}, v{vE[k]}")
        A("s_mov_b32 exec_lo, 0x11111111"); A("s_mov_b32 exec_hi, 0x11111111")
        A(f"ds_write_b128 v{t1}, v[{S[0]}:{S[3]}] offset:{L_PW}")
        A("s_mov_b64 exec, -1")
        A(f"v_lshrrev_b32 v{t1}, 5, v1"); A(f"v_lshl_add_u32 v{t1}, v{t1}, 6, s14")
        for t in range(4):
            for kp in range(2):
                sl = free.pop(0); pslot[(t, kp)] = sl; r = RING + 4 * sl
                A(f"ds_read_b128 v[{r}:{r+3}], v{t1} offset:{L_PW + (8 * kp + t) * 16}")
        A(f"v_add_f32 v{vLW}, v{vE[0]}, v{vE[1]}"); A(f"v_add_f32 v{t0}, v{vE[2]}, v{vE[3]}"); A(f"v_add_f32 v{vLW}, v{vLW}, v{t0}")
    def sm_c():
        red_hi("add", vLW, t0)
        A(f"v_mov_b32 v{vMW+1}, v{vLW}")
        A("s_lshl_b32 s14, s3, 3"); A(f"v_mov_b32 v{t0}, s14"); A(f"v_mov_b32 v{t1}, 1"); A(f"v_mov_b32 v{vE[2]}, 0")
        A("s_mov_b64 exec, 1")
        A(f"ds_write_b64 v{t0}, v[{vMW}:{vMW+1}] offset:{L_WST}")
        A(f"ds_add_u32 v{vE[2]}, v{t1} offset:{L_FLAG + 8}")
        A("s_mov_b64 exec, -1")
        A("s_waitcnt lgkmcnt(0)")
        stamp(3)
    def pv_tile(m):
        beta, tp, kp = m >> 2, (m >> 1) & 1, m & 1; G = beta >> 1; t = 2 * (beta & 1) + tp
        a = AB[m & 1]; p = RING + 4 * pslot[(t, kp)] + G; bv = sreg(32 + m)
        for r in range(4): A(f"v_and_b32 v{a+r}, v{p}, v{M[r]}")
        c = "0" if m == 0 else f"v[{ACC}:{ACC+3}]"
        A(f"v_mfma_f32_16x16x32_bf16 v[{ACC}:{ACC+3}], v[{a}:{a+3}], v[{bv}:{bv+3}], {c}")
        free.append(slot[32 + m])
    vFS = 18; vHP = 19
    GG = 14
    def fetch_stats():
        stamp(4); lds_wait(L_FLAG + 4, 1, "st", t0, t1); stamp(5)
        A(f"ds_read_b128 v[14:17], v{t0} offset:{L_G}")
        A(f"v_lshrrev_b32 v{t1}, 5, v1"); A("s_lshl_b32 s14, s3, 3"); A(f"v_lshl_add_u32 v{t1}, v{t1}, 2, s14")
        A(f"ds_read_b32 v{vHP}, v{t1} offset:{L_H}")
        A("s_waitcnt lgkmcnt(0)")
        A(f"v_add_f32 v{vFS}, v{vMW}, v16"); A(f"v_exp_f32 v{vFS}, v{vFS}"); A(f"v_mul_f32 v{vFS}, v{vFS}, v17")

    N = len(loads); chunks = [sm_a, sm_b, sm_c]; sm_done = False
    for n in range(64 if late_w else N):
        if n < 64:
            lim = LIM if n < 32 else LIMV
            if LP: lim = LP[n % len(LP)]
            if LE and n >= LE[0]: lim = LE[1]
            if bal and n >= bal["at"][0]:
                if n in bal["at"]:
                    A(f"v_mov_b32 v{t0}, 0"); A(f"ds_read_b32 v{t1}, v{t0} offset:{L_G + 20}"); A("s_waitcnt lgkmcnt(0)"); A(f"v_readfirstlane_b32 s9, v{t1}")
                wl = bal["wl"]
                for k_, (w_, th_) in enumerate(zip(wl[:-1], bal["th"])):
                    w_ = w_[n % len(w_)] if isinstance(w_, tuple) else w_
                    A(f"s_cmp_ge_u32 s9, {th_}"); A(f"s_cbranch_scc1 L_bal{n}_{k_}"); A(f"s_waitcnt vmcnt({w_})"); lab(f"L_bal{n}_{k_}")
                wait_landed(n - wl[-1] - 1)
            elif n > max(lim, LIM): wait_landed(n - lim - 1)
        if n in (LIM + 1, 8, 16, 48): stamp({LIM + 1: 12, 8: 13, 16: 14, 48: 15}[n])
        if n == NQ:
            stamp(1)
            lds_wait(L_FLAG, 1, "q", t0, t1)
            A(f"v_lshrrev_b32 v{t0}, 4, v1"); A(f"v_and_b32 v{t1}, 3, v1"); A(f"v_lshl_add_u32 v{t0}, v{t0}, 2, v{t1}"); A(f"v_lshlrev_b32 v{t0}, 4, v{t0}")
            A(f"ds_read_b128 v[{Q[0]}:{Q[0]+3}], v{t0} offset:{L_Q}")
            A(f"ds_read_b128 v[{Q[1]}:{Q[1]+3}], v{t0} offset:{L_Q + 256}")
            A(f"v_mov_b32 v{t0}, 0"); A(f"ds_read_b32 v{t1}, v{t0} offset:{L_G + 16}")
            A("s_waitcnt lgkmcnt(0)"); A(f"v_readfirstlane_b32 s12, v{t1}")
            stamp(2)
        assert free, f"no free slot at load {n}"
        issue(n)
        if n == LIM:
            srd(SV, 20, 0x4000000); srd(SWO, 24, 3670016); srd(SW2, 30, 1605632); srd(SWS, 38, WS_SIZE)
            A("s_barrier")
            A(f"v_lshl_add_u32 v{vV}, v1, 4, s8")
            A(f"v_and_b32 v{t0}, 31, v1"); A(f"v_lshlrev_b32 v{t0}, 4, v{t0}"); A(f"v_lshrrev_b32 v{t1}, 5, v1")
            A(f"v_mul_u32_u24 v{vWo}, 1792, v{t1}"); A(f"v_add_u32 v{vWo}, v{vWo}, v{t0}")
            A(f"v_mul_u32_u24 v{vW2}, 896, v{t1}"); A(f"v_add_u32 v{vW2}, v{vW2}, v{t0}")
            A("s_lshl_b32 s14, s10, 5"); A("s_lshl_b32 s15, s3, 2"); A("s_add_u32 s14, s14, s15"); A("s_mul_i32 s14, s14, 896")
            A(f"v_add_u32 v{vWo}, s14, v{vWo}")
            A("s_lshl_b32 s14, s10, 4"); A("s_lshl_b32 s15, s3, 1"); A("s_add_u32 s14, s14, s15"); A("s_mul_i32 s14, s14, 896")
            A(f"v_add_u32 v{vW2}, s14, v{vW2}")
            masks(A, M, t0, t1); mask_prime(A, M, t0, t1)
            if dbg: A("s_waitcnt lgkmcnt(0)"); A("v_writelane_b32 v167, s88, 0")
        if n >= NQ and not sm_done:
            c = 0
            while qk_next[0] < 16 and c < CQ and 2 * qk_next[0] + 1 <= landed[0]:
                qk_tile(qk_next[0]); qk_next[0] += 1; c += 1
            if qk_next[0] == 16:
                chunks.pop(0)()
                sm_done = not chunks
        elif sm_done:
            c = 0
            while pv_next[0] < 32 and c < CP and 32 + pv_next[0] <= landed[0]:
                pv_tile(pv_next[0]); pv_next[0] += 1; c += 1
        if n == NF: fetch_stats()
        if n in (NG, NS, CK1, CK3):
            A(f"v_mov_b32 v{t0}, 0"); A(f"v_mov_b32 v{t1}, {n}")
            A("s_mov_b64 exec, 1"); A(f"ds_max_u32 v{t0}, v{t1} offset:{L_FLAG + 12}"); A("s_mov_b64 exec, -1")
    assert sm_done
    vRw, vO, vY, vR1 = vK, vV, 13, 16
    red2_lane(A, vRw, t0)
    A("s_lshl_b32 s14, s3, 10"); A(f"v_add_u32 v{vR1}, s14, v{vRw}")
    A("s_lshl_b32 s14, s3, 11"); A(f"s_add_u32 s14, s14, {L_RED2}"); A(f"v_add_u32 v{vRw}, s14, v{vRw}")
    A("s_lshl_b32 s14, s3, 6"); A(f"v_add_u32 v{vY}, s14, v1")
    A(f"v_lshrrev_b32 v{t0}, 4, v{vY}"); A(f"v_lshlrev_b32 v{vO}, 11, v{t0}"); A(f"v_and_b32 v{t0}, 15, v1"); A(f"v_lshl_add_u32 v{vO}, v{t0}, 4, v{vO}")
    A("s_lshl_b32 s9, s7, 14"); A(f"s_add_u32 s9, s9, {WS_O}"); A("s_lshl_b32 s14, s6, 8"); A("s_add_u32 s11, s9, s14")
    while pv_next[0] < 32:
        wait_landed(32 + pv_next[0]); pv_tile(pv_next[0]); pv_next[0] += 1
    lab("L_tail")
    if late_w == 3:
        for n in range(64, N): issue(n)
    stamp(6)
    A(f"v_lshlrev_b32 v{t0}, 3, v{vY}")
    for k in range(4): A(f"v_mul_f32 v{ACC+k}, v{vFS}, v{ACC+k}")
    A(f"ds_write_b128 v{vR1}, v[{ACC}:{ACC+3}] offset:{L_RED1}")
    A("s_waitcnt lgkmcnt(0)"); A("s_barrier")
    if late_w in (1, 2):
        free[:] = sorted(free + list(pslot.values())); pslot.clear()
        held = free[-6:]; del free[-6:]
    fr = [RING + 4 * s_ for s_ in sorted(free + list(pslot.values()))]
    run = [r for r in fr if all(r + 4 * k in fr for k in range(4))][0]
    rest = [r for r in fr if not run <= r < run + 16]
    FS = []
    for _ in range(pp):
        r = [r for r in rest if r + 4 in rest][0]; FS.append(r); rest.remove(r); rest.remove(r + 4)
    PS = rest[:pp]; assert len(PS) == pp
    Y = run; U = 20
    if late_w == 2:
        free[:] = held
        for n in range(64, N): issue(n)
    A("s_cmp_ge_u32 s3, 2"); A("s_cbranch_scc1 L_odone")
    for k in range(8): A(f"ds_read_b64 v[{Y+2*k}:{Y+2*k+1}], v{t0} offset:{L_RED1 + 1024 * k}")
    A(f"v_mov_b32 v{U+1}, s12"); A(f"v_mov_b32 v{U+3}, s12")
    A("s_waitcnt lgkmcnt(0)")
    for st in (1, 2):
        for k in range(0, 8, 2 * st):
            for c_ in range(2): A(f"v_add_f32 v{Y+2*k+c_}, v{Y+2*k+c_}, v{Y+2*(k+st)+c_}")
    A(f"v_add_f32 v{U}, v{Y}, v{Y+8}"); A(f"v_add_f32 v{U+2}, v{Y+1}, v{Y+9}")
    A(f"buffer_store_dwordx4 v[{U}:{U+3}], v{vO}, {WSR}, s11 offen {lst}")
    lab("L_odone")
    if late_w == 1:
        free[:] = held
        for n in range(64, N): issue(n)
    stamp(7)
    OG = 28; DA, DBb = Y, Y + 4
    for q in range(4): A(f"v_and_b32 v{ACC+q}, v{vHP}, v{M[q]}")
    A(f"v_add_u32 v{t0}, {L_RED2}, v{t0}")
    A(f"v_lshrrev_b32 v{t1}, 5, v1"); A("s_lshl_b32 s14, s3, 4"); A(f"v_lshl_add_u32 v{t1}, v{t1}, 3, s14")
    A("s_waitcnt vmcnt(4)")
    for cb, d in ((0, DA), (1, DBb)):
        bw = sreg(64 + cb); A(f"v_mfma_f32_16x16x32_bf16 v[{d}:{d+3}], v[{ACC}:{ACC+3}], v[{bw}:{bw+3}], 0")
    for k in range(8): A(f"v_mul_f32 v{DA+k}, v15, v{DA+k}")
    if late_w == 1: A("s_waitcnt vmcnt(0) lgkmcnt(0)")
    else: A("s_cmp_lt_u32 s3, 2"); A("s_cbranch_scc1 L_ow1"); A("s_waitcnt vmcnt(0)"); lab("L_ow1"); A("s_waitcnt vmcnt(1) lgkmcnt(0)")
    A("s_barrier")
    A(f"ds_read_b64 v[{OG}:{OG+1}], v{t1} offset:{L_OL}")
    stamp(8)
    A("s_waitcnt lgkmcnt(0)")
    for r in range(2):
        for q in range(4): A(f"v_and_b32 v{AB[r]+q}, v{OG+r}, v{M[q]}")
    for r in range(2):
        for cb, d in ((0, DA), (1, DBb)):
            bw = sreg(66 + 2 * r + cb)
            A(f"v_mfma_f32_16x16x32_bf16 v[{d}:{d+3}], v[{AB[r]}:{AB[r]+3}], v[{bw}:{bw+3}], v[{d}:{d+3}]")
    A(f"ds_write_b128 v{vRw}, v[{DA}:{DA+3}]"); A(f"ds_write_b128 v{vRw}, v[{DBb}:{DBb+3}] offset:1024")
    A("s_waitcnt lgkmcnt(0)"); A("s_barrier")
    A("s_cmp_ge_u32 s3, 4"); A("s_cbranch_scc1 L_ydone")
    for k in range(8): A(f"ds_read_b64 v[{Y+2*k}:{Y+2*k+1}], v{t0} offset:{2048 * k}")
    A(f"v_cmp_gt_u32 vcc, 224, v{vY}")
    A(f"v_lshrrev_b32 v{t1}, 3, v{vY}"); A(f"v_lshlrev_b32 v{vO}, 14, v{t1}")
    A(f"v_and_b32 v{t1}, 7, v1"); A(f"v_lshl_add_u32 v{vO}, v{t1}, 4, v{vO}")
    A(f"s_mul_i32 s14, s4, {28 * 16384}"); A("s_lshl_b32 s15, s10, 7"); A("s_add_u32 s14, s14, s15"); A(f"s_add_u32 s14, s14, {WS_Y}")
    A(f"v_mov_b32 v{U+1}, s12"); A(f"v_mov_b32 v{U+3}, s12")
    A("s_waitcnt lgkmcnt(0)")
    for st in (1, 2):
        for k in range(0, 8, 2 * st):
            for c_ in range(2): A(f"v_add_f32 v{Y+2*k+c_}, v{Y+2*k+c_}, v{Y+2*(k+st)+c_}")
    A(f"v_add_f32 v{U}, v{Y}, v{Y+8}"); A(f"v_add_f32 v{U+2}, v{Y+1}, v{Y+9}")
    A("s_and_saveexec_b64 s[82:83], vcc")
    A(f"buffer_store_dwordx4 v[{U}:{U+3}], v{vO}, {WSR}, s14 offen sc1")
    A("s_mov_b64 exec, s[82:83]")
    lab("L_ydone")
    stamp(9)
    A("s_cmp_ge_u32 s2, 56"); A("s_cbranch_scc1 L_fin_skip")
    A("s_lshl_b32 s13, s2, 14"); A("s_lshl_b32 s15, s3, 11"); A("s_add_u32 s13, s13, s15"); A(f"s_add_u32 s13, s13, {WS_Y}")
    A(f"v_lshlrev_b32 v{t0}, 4, v1")
    F = 24
    gather("fin", [(F, t0, "s13", 0, -1, -1), (F + 4, t0, "s13", 1024, -1, -1)], fsleep, [82, 84])
    srd(SO, 34, 1792)
    A(f"v_add_f32 v{F}, v{F}, v{F+4}"); A(f"v_add_f32 v{F+2}, v{F+2}, v{F+6}")
    stamp(10)
    A(f"v_add_f32_dpp v{F}, v{F}, v{F} row_ror:8 {DPPF}"); A(f"v_add_f32_dpp v{F+2}, v{F+2}, v{F+2} row_ror:8 {DPPF}")
    A(f"v_permlane16_swap_b32 v{F}, v{F+2}"); A(f"v_add_f32 v{F}, v{F}, v{F+2}")
    A(f"v_mov_b32 v{F+2}, v{F}"); A(f"v_permlane32_swap_b32 v{F}, v{F+2}"); A(f"v_add_f32 v{F}, v{F}, v{F+2}")
    A(f"v_and_b32 v{t0}, 7, v1"); A(f"v_bfe_u32 v{t1}, v1, 4, 1"); A(f"v_lshl_add_u32 v{t0}, v{t0}, 1, v{t1}")
    A(f"v_lshlrev_b32 v{t0}, 5, v{t0}"); A("s_lshl_b32 s14, s3, 2"); A(f"v_add_u32 v{t0}, s14, v{t0}")
    A("s_mov_b32 exec_lo, 0x00ff00ff"); A("s_mov_b32 exec_hi, 0")
    A(f"ds_write_b32 v{t0}, v{F} offset:{L_FIN}")
    A("s_mov_b64 exec, -1")
    A("s_waitcnt lgkmcnt(0)"); A("s_barrier")
    A("s_cmp_lg_u32 s3, 0"); A("s_cbranch_scc1 L_fin_skip")
    A(f"v_and_b32 v{t0}, 15, v1"); A(f"v_lshlrev_b32 v{t1}, 5, v{t0}")
    A(f"ds_read_b128 v[{F}:{F+3}], v{t1} offset:{L_FIN}"); A(f"ds_read_b128 v[{F+4}:{F+7}], v{t1} offset:{L_FIN + 16}")
    A(f"v_lshlrev_b32 v{t0}, 1, v{t0}"); A("s_lshl_b32 s14, s2, 5")
    A("s_waitcnt lgkmcnt(0)")
    for st in (1, 2, 4):
        for k in range(0, 8, 2 * st): A(f"v_add_f32 v{F+k}, v{F+k}, v{F+k+st}")
    A(f"v_cvt_pk_bf16_f32 v{F}, v{F}, v{F}")
    A("s_mov_b64 exec, 0xffff")
    A(f"buffer_store_short v{F}, v{t0}, s[{SO}:{SO+3}], s14 offen {ofl}")
    A("s_cmp_lg_u32 s2, 0"); A("s_cbranch_scc1 L_fin_noep")
    A("s_mov_b64 exec, 1"); A(f"v_mov_b32 v{t0}, 0"); A(f"v_mov_b32 v{t1}, s12")
    A(f"s_mov_b32 s13, {wsb}"); A(f"buffer_store_dword v{t1}, v{t0}, {WSR}, s13 offen {ofl}")
    if lite:
        A("s_memrealtime s[90:91]"); A("s_waitcnt lgkmcnt(0)"); A("v_mov_b32 v8, s88"); A("v_mov_b32 v9, s90")
        A("s_mov_b32 s92, s36"); A("s_mov_b32 s93, s37"); A("s_mov_b32 s94, 256"); A("s_mov_b32 s95, 0x20000")
        A(f"buffer_store_dwordx2 v[8:9], v{t0}, s[92:95], 0 offen")
    lab("L_fin_noep")
    A("s_mov_b64 exec, -1")
    lab("L_fin_skip")
    stamp(11)
    dump_stamps()
    if diag2 is not None:
        role, kk, op = diag2
        A("s_cmp_lg_u32 s2, 0"); A("s_cbranch_scc1 L_diag_end"); A("s_cmp_lg_u32 s3, 0"); A("s_cbranch_scc1 L_diag_end")
        A("s_add_u32 s84, s88, 7000"); lab("L_diag1"); A("s_sleep 8")
        A("s_memrealtime s[90:91]"); A("s_waitcnt lgkmcnt(0)"); A("s_sub_u32 s85, s90, s84"); A("s_cmp_lt_i32 s85, 0"); A("s_cbranch_scc1 L_diag1")
        A("v_mov_b32 v10, 0"); A("v_mov_b32 v11, -1"); A("v_mov_b32 v14, 0")
        nr = 4 if role else 32
        for r in range(nr):
            if role: A(f"v_add_u32 v12, {r * 64}, v1"); A("v_mul_u32_u24 v12, 2304, v12")
            else:
                A(f"v_lshrrev_b32 v12, 3, v1"); A(f"v_add_u32 v12, {r * 8}, v12"); A("v_mul_u32_u24 v12, 9, v12"); A("v_and_b32 v13, 7, v1"); A("v_add_u32 v12, v12, v13")
                A("v_add_u32 v12, 1, v12"); A("v_lshlrev_b32 v12, 8, v12")
            A(f"s_mov_b32 s13, {WS_DBG}")
            A(f"buffer_load_dword v8, v12, {WSR}, s13 offen sc1"); A(f"buffer_load_dword v9, v12, {WSR}, s13 offen offset:{4 * kk} sc1"); A("s_waitcnt vmcnt(0)")
            A("v_subrev_u32 v8, s88, v8"); A("v_add_u32 v8, 0x1000, v8"); A("v_min_u32 v11, v11, v8")
            A("v_cmp_ne_u32 vcc, 0, v9"); A("v_subrev_u32 v9, s88, v9"); A("v_add_u32 v9, 0x1000, v9"); A("v_cndmask_b32 v9, 0, v9, vcc")
            A("v_max_u32 v10, v10, v9"); A("v_add_u32 v14, v14, v9")
        if op == "mean": A(f"v_lshrrev_b32 v10, {2 if role else 5}, v14")
        for v, o in ((10, "add" if op == "mean" else "max"), (11, "min")):
            for ctl in ("quad_perm:[1,0,3,2]", "quad_perm:[2,3,0,1]", "row_half_mirror", "row_mirror"): A(f"v_{o}_u32_dpp v{v}, v{v}, v{v} {ctl} {DPPF}")
            for sw in ("v_permlane16_swap_b32", "v_permlane32_swap_b32"):
                A(f"v_mov_b32 v12, v{v}"); A(f"{sw} v{v}, v12"); A(f"v_{o}_u32 v{v}, v{v}, v12")
        if op == "mean": A("v_lshrrev_b32 v10, 6, v10")
        A("v_sub_u32 v10, v10, v11"); A("v_readfirstlane_b32 s85, v10"); A("s_lshl_b32 s85, s85, 2")
        if kk < 0: A("s_mov_b32 s85, 0")
        A("s_min_u32 s85, s85, 40000"); A(f"s_add_u32 s84, s88, {dbase}"); A("s_add_u32 s84, s84, s85")
        lab("L_diag2")
        A("s_memrealtime s[90:91]"); A("s_waitcnt lgkmcnt(0)"); A("s_sub_u32 s85, s90, s84"); A("s_cmp_lt_i32 s85, 0"); A("s_cbranch_scc1 L_diag2")
        lab("L_diag_end")
    if diag is not None:
        A("s_cmp_lg_u32 s2, 0"); A("s_cbranch_scc1 L_diag_end"); A("s_cmp_lg_u32 s3, 0"); A("s_cbranch_scc1 L_diag_end")
        A("s_add_u32 s84, s88, 7000")
        lab("L_diag1")
        A("s_memrealtime s[90:91]"); A("s_waitcnt lgkmcnt(0)"); A("s_sub_u32 s85, s90, s84"); A("s_cmp_lt_i32 s85, 0"); A("s_cbranch_scc1 L_diag1")
        A("v_lshlrev_b32 v166, 2, v1"); A("buffer_load_dword v165, v166, s[92:95], 0 offen sc1"); A("s_waitcnt vmcnt(0)")
        A("v_readlane_b32 s84, v165, 0"); A(f"v_readlane_b32 s85, v165, {max(diag, 0)}")
        A("s_not_b32 s84, s84"); A("s_sub_u32 s85, s85, s84"); A("s_lshl_b32 s85, s85, 2")
        if diag <= 0: A("s_mov_b32 s85, 0")
        A("s_min_u32 s85, s85, 40000"); A(f"s_add_u32 s84, s88, {dbase}"); A("s_add_u32 s84, s84, s85")
        lab("L_diag2")
        A("s_memrealtime s[90:91]"); A("s_waitcnt lgkmcnt(0)"); A("s_sub_u32 s85, s90, s84"); A("s_cmp_lt_i32 s85, 0"); A("s_cbranch_scc1 L_diag2")
        lab("L_diag_end")
    A("s_endpgm")

    lab("L_service")
    A("s_setprio 3")
    vL16, vQe, vQo, vFe, vFo, vXq, vXf = 2, 3, 4, 5, 6, 7, 8
    vTr = [9, 10, 11, 12]; a_, b_, c_, d_ = 14, 15, 16, 17; vG, vOG = 20, 21
    A(f"v_mov_b32 v{a_}, 0"); A(f"v_mov_b32 v{b_}, 0"); A(f"v_mov_b32 v{c_}, 0"); A(f"v_mov_b32 v{d_}, 0")
    A(f"ds_write_b128 v{a_}, v[{a_}:{d_}] offset:{L_FLAG}")
    if bal: A(f"v_mov_b32 v{vG}, {bal.get('init', 0)}"); A(f"ds_write_b32 v{a_}, v{vG} offset:{L_G + 20}")
    A(f"v_lshlrev_b32 v{vL16}, 4, v1")
    A("s_and_b32 s8, s6, 3"); A("s_lshr_b32 s9, s6, 2"); A("s_lshl_b32 s14, s4, 1"); A("s_add_u32 s9, s9, s14")
    A("s_lshl_b32 s15, s4, 4"); A("s_and_b32 s14, s10, 15"); A("s_add_u32 s15, s15, s14")
    A("s_mul_i32 s11, s15, 9363"); A("s_lshr_b32 s11, s11, 16"); A("s_mul_i32 s14, s11, 7"); A("s_sub_u32 s81, s15, s14")
    A("s_cmp_lt_u32 s15, 28"); A("s_cselect_b32 s79, 1, 0"); A("s_cmp_lt_u32 s5, 14"); A("s_cselect_b32 s79, s79, 0")
    A("s_lshr_b32 s14, s5, 1"); A("s_lshl_b32 s14, s14, 2"); A("s_add_u32 s11, s11, s14")
    A(f"v_bfe_u32 v{a_}, v1, 4, 1"); A(f"v_lshlrev_b32 v{a_}, 1, v{a_}"); A(f"v_and_b32 v{b_}, 7, v1"); A(f"v_xor_b32 v{a_}, v{a_}, v{b_}")
    A(f"v_xor_b32 v{b_}, 4, v{a_}"); A(f"v_lshrrev_b32 v{c_}, 3, v1")
    A(f"s_mul_i32 s14, s9, {112 * 8192}"); A("s_lshl_b32 s15, s5, 9"); A("s_add_u32 s14, s14, s15"); A("s_lshl_b32 s15, s8, 7"); A("s_add_u32 s14, s14, s15")
    A(f"v_lshl_add_u32 v{d_}, v{c_}, 13, s14")
    A(f"v_lshl_add_u32 v{vQe}, v{a_}, 4, v{d_}"); A(f"v_lshl_add_u32 v{vQo}, v{b_}, 4, v{d_}")
    A(f"s_mul_i32 s14, s81, {64 * 3584}"); A("s_lshl_b32 s15, s11, 7"); A("s_add_u32 s14, s14, s15")
    A(f"v_mul_u32_u24 v{d_}, 3584, v{c_}"); A(f"v_add_u32 v{d_}, s14, v{d_}")
    A(f"v_lshl_add_u32 v{vFe}, v{a_}, 4, v{d_}"); A(f"v_lshl_add_u32 v{vFo}, v{b_}, 4, v{d_}")
    A("s_waitcnt lgkmcnt(0)")
    A(f"s_mov_b32 s13, {wsb}"); A("s_load_dword s12, s[38:39], s13")
    srd(SX, 16, 1792); srd(SWQ, 22, 3670016); srd(SG, 32, 896); srd(SW1, 28, 1605632)
    A("s_cmp_eq_u32 s79, 1"); A(f"s_cselect_b32 s{SW1+2}, s{SW1+2}, 0")
    if svc == 0:
        for d in (SX, SWQ, SG, SW1): A(f"s_mov_b32 s{d+2}, 0")
    if svc == 0.5:
        for d in (SW1,): A(f"s_mov_b32 s{d+2}, 0")
    A(f"s_mov_b32 m0, {L_X}")
    for k in range(2): A(f"buffer_load_dwordx4 v{vL16}, s[{SX}:{SX+3}], 0 offen offset:{1024 * k} lds")
    for m in range(16):
        A(f"s_mov_b32 m0, {L_W + 1024 * m}")
        A(f"s_mov_b32 s13, {m * 65536 if m < 14 else 0x7f000000}")
        A(f"buffer_load_dwordx4 v{vQo if m & 1 else vQe}, s[{SWQ}:{SWQ+3}], s13 offen {wflags} lds")
    for m in range(8):
        A(f"s_mov_b32 m0, {L_W1 + 1024 * m}"); A(f"s_mov_b32 s13, {m * 8 * 3584}")
        A(f"buffer_load_dwordx4 v{vFo if m & 1 else vFe}, s[{SW1}:{SW1+3}], s13 offen {wflags} lds")
    GW = 24
    A(f"buffer_load_dwordx4 v[{GW}:{GW+3}], v{vL16}, s[{SG}:{SG+3}], 0 offen")
    A("s_barrier")
    srd(SWS, 38, WS_SIZE)
    A(f"v_and_b32 v{a_}, 1, v1"); A(f"v_mul_u32_u24 v{b_}, 896, v{a_}"); A(f"v_lshrrev_b32 v{a_}, 4, v1"); A(f"v_lshl_add_u32 v{b_}, v{a_}, 4, v{b_}")
    A("s_mul_i32 s14, s9, 224"); A(f"v_add_u32 v{vXq}, s14, v{b_}"); A("s_lshl_b32 s14, s81, 7"); A(f"v_add_u32 v{vXf}, s14, v{b_}")
    A(f"v_lshlrev_b32 v{b_}, 10, v{a_}"); A(f"v_bfe_u32 v{c_}, v1, 2, 2"); A(f"v_lshl_add_u32 v{b_}, v{c_}, 7, v{b_}")
    A(f"v_bfe_u32 v{c_}, v1, 1, 1"); A(f"v_lshl_add_u32 v{b_}, v{c_}, 4, v{b_}"); A(f"v_and_b32 v{c_}, 1, v1"); A(f"v_lshl_add_u32 v{b_}, v{c_}, 3, v{b_}")
    A(f"v_bfe_u32 v{c_}, v1, 3, 2")
    for cg in range(4):
        A(f"v_xor_b32 v{d_}, {cg}, v{c_}"); A(f"v_lshl_add_u32 v{vTr[cg]}, v{d_}, 5, v{b_}")
    A("s_lshl_b32 s8, s8, 9"); A("s_lshl_b32 s9, s9, 11"); A("s_add_u32 s8, s8, s9"); A("s_lshl_b32 s9, s5, 13"); A("s_add_u32 s8, s8, s9")
    A(f"s_add_u32 s8, s8, {WS_Q}"); A(f"s_add_u32 s9, s8, {16 * 8192}")
    A("s_lshl_b32 s11, s11, 12"); A("s_lshl_b32 s81, s81, 9"); A("s_add_u32 s11, s11, s81"); A(f"s_add_u32 s11, s11, {WS_H}")
    A("s_mov_b32 s82, 0xffff0000"); A("s_mov_b32 s83, 0"); A("s_mov_b32 s84, 0"); A("s_mov_b32 s85, 0xffff"); A("s_mov_b32 s86, 0"); A("s_mov_b32 s87, 0xffff0000")
    if dbg: A("s_waitcnt lgkmcnt(0)"); A("v_writelane_b32 v167, s88, 0")
    A("s_waitcnt lgkmcnt(0)"); A(f"s_add_u32 s12, s12, {TAGC}")
    XA = 28; TB = 56; D = 120; UQ = 136
    A("s_waitcnt vmcnt(25)")
    for m in range(4): A(f"ds_read_b128 v[{XA+4*m}:{XA+4*m+3}], v{vXq} offset:{L_X + 64 * m}")
    for m in range(2): A(f"ds_read_b128 v[{XA+16+4*m}:{XA+16+4*m+3}], v{vXf} offset:{L_X + 64 * m}")
    def gemv(img, steps, xa, vm_after):
        for m in range(steps):
            A(f"s_waitcnt vmcnt({vm_after + 4 * (steps - 1 - m)})")
            for cg in range(4):
                r = TB + 16 * m + 4 * cg
                A(f"ds_read_b64_tr_b16 v[{r}:{r+1}], v{vTr[cg]} offset:{img + 4096 * m}")
                A(f"ds_read_b64_tr_b16 v[{r+2}:{r+3}], v{vTr[cg]} offset:{img + 4096 * m + 512}")
            if m: mf(m - 1, xa, 8)
        mf(steps - 1, xa, 0)
        for bb in range(2):
            for cg in range(1, 4): A(f"v_cndmask_b32 v{D+bb}, v{D+bb}, v{D+4*cg+bb}, s[{80+2*cg}:{81+2*cg}]")
        for bb in range(2):
            A(f"v_mov_b32 v{UQ+4*bb}, v{D+bb}"); A(f"v_mov_b32_dpp v{UQ+4*bb+2}, v{D+bb} quad_perm:[1,1,3,3] {DPPF}")
            A(f"v_mov_b32 v{UQ+4*bb+1}, s12"); A(f"v_mov_b32 v{UQ+4*bb+3}, s12")
    def mf(m, xa, lg):
        A(f"s_waitcnt lgkmcnt({lg})")
        for cg in range(4):
            r = TB + 16 * m + 4 * cg; d = D + 4 * cg; c = "0" if m == 0 else f"v[{d}:{d+3}]"
            A(f"v_mfma_f32_16x16x32_bf16 v[{d}:{d+3}], v[{xa+4*m}:{xa+4*m+3}], v[{r}:{r+3}], {c}")
    def publish(s0, s1):
        if svc < 2: return
        A("s_mov_b32 exec_lo, 0x55555555"); A("s_mov_b32 exec_hi, 0x55555555")
        A(f"buffer_store_dwordx4 v[{UQ}:{UQ+3}], v{d_}, {WSR}, {s0} offen {lst}")
        A(f"buffer_store_dwordx4 v[{UQ+4}:{UQ+7}], v{d_}, {WSR}, {s1} offen {lst}")
        A("s_mov_b64 exec, -1")
    A(f"v_lshlrev_b32 v{d_}, 3, v1")
    gemv(L_W, 4, XA, 9)
    publish("s8", "s9")
    stamp(1)
    gemv(L_W1, 2, XA + 16, 3)
    A("s_cmp_eq_u32 s79, 0"); A("s_cbranch_scc1 L_sv_noh")
    A(f"s_add_u32 s9, s11, {28 * 4096}")
    publish("s11", "s9")
    lab("L_sv_noh")
    stamp(2)
    QP = 56
    if NG is not None: lds_wait(L_FLAG + 12, NG, "pg1", a_, b_, sleep=4, cmp="ge")
    A("s_lshl_b32 s8, s7, 13"); A(f"s_add_u32 s8, s8, {WS_Q}"); A("s_add_u32 s9, s8, 4096")
    gather("q", [(QP + 4 * k, vL16, "s9" if k >= 4 else "s8", 1024 * (k & 3), -1, -1) for k in range(8)], psleep,
           [40, 42, 44, 46, 48, 50, 82, 84])
    for hf in range(2):
        r = QP + 4 * hf
        for e in (0, 2):
            A(f"v_add_f32 v{r+e}, v{r+e}, v{r+8+e}"); A(f"v_add_f32 v{r+16+e}, v{r+16+e}, v{r+24+e}")
        for e in (0, 2): A(f"v_add_f32 v{r+e}, v{r+e}, v{r+16+e}")
        A(f"v_cvt_pk_bf16_f32 v{r}, v{r}, v{r+2}")
    A(f"v_lshlrev_b32 v{a_}, 2, v1")
    A(f"ds_write_b32 v{a_}, v{QP} offset:{L_Q}"); A(f"ds_write_b32 v{a_}, v{QP+4} offset:{L_Q + 256}")
    A(f"v_mov_b32 v{a_}, 0"); A(f"v_mov_b32 v{b_}, s12"); A(f"v_mov_b32 v{c_}, 1")
    A(f"ds_write_b32 v{a_}, v{b_} offset:{L_G + 16}")
    A(f"ds_write_b32 v{a_}, v{c_} offset:{L_FLAG}")
    stamp(3)
    TW = 100
    if touch:
        A(f"v_mov_b32 v{a_}, 0"); A("s_mov_b64 exec, 1")
        if "v" in touch:
            srd(40, 20, 0x4000000); A("s_lshl_b32 s13, s7, 21"); A("s_lshl_b32 s14, s6, 18"); A("s_add_u32 s13, s13, s14")
            for k in range(4): A(f"buffer_load_dword v{TW+k}, v{a_}, s[40:43], s13 offen nt"); A("s_add_u32 s13, s13, 65536")
        if "w" in touch:
            srd(44, 24, 3670016); A(f"s_mul_i32 s13, s10, {32 * 896}"); A(f"buffer_load_dword v{TW+4}, v{a_}, s[44:47], s13 offen nt")
            srd(48, 30, 1605632); A(f"s_mul_i32 s13, s10, {16 * 896}"); A(f"buffer_load_dword v{TW+5}, v{a_}, s[48:51], s13 offen nt")
        if "o" in touch:
            srd(SO, 34, 1792); A(f"buffer_load_dword v{TW+6}, v{a_}, s[{SO}:{SO+3}], 0 offen")
        A("s_mov_b64 exec, -1")
    if codepf:
        A("s_getpc_b64 s[14:15]"); lab("L_pc")
        A("s_sub_u32 s14, s14, L_pc-L_tail"); A("s_subb_u32 s15, s15, 0")
        A(f"v_mov_b32 v{b_}, s15"); A(f"v_add_co_u32 v{a_}, vcc, s14, v{vL16}"); A(f"v_addc_co_u32 v{b_}, vcc, 0, v{b_}, vcc")
        for k in range(codepf): A(f"global_load_dwordx4 v[{TW+8+4*k}:{TW+11+4*k}], v[{a_}:{b_}], off offset:{1024 * k}")
    XG = 28
    A("s_mul_i32 s14, s4, 896"); A(f"v_add_u32 v{a_}, s14, v{vL16}")
    A(f"ds_read_b128 v[{XG}:{XG+3}], v{a_} offset:{L_X}")
    A("s_waitcnt lgkmcnt(0)")
    A(f"v_mov_b32 v{vG}, 0")
    for k in range(4):
        A(f"v_lshlrev_b32 v{a_}, 16, v{XG+k}"); A(f"v_and_b32 v{b_}, 0xffff0000, v{XG+k}")
        A(f"v_lshlrev_b32 v{c_}, 16, v{GW+k}"); A(f"v_and_b32 v{d_}, 0xffff0000, v{GW+k}")
        A(f"v_mul_f32 v{a_}, v{a_}, v{c_}"); A(f"v_mul_f32 v{b_}, v{b_}, v{d_}")
        A(f"v_cvt_pk_bf16_f32 v{a_}, v{a_}, v{b_}")
        A(f"v_lshlrev_b32 v{b_}, 16, v{a_}"); A(f"v_and_b32 v{a_}, 0xffff0000, v{a_}")
        A(f"v_add_f32 v{vG}, v{vG}, v{b_}"); A(f"v_add_f32 v{vG}, v{vG}, v{a_}")
    A("v_cmp_gt_u32 vcc, 56, v1"); A(f"v_cndmask_b32 v{vG}, 0, v{vG}, vcc")
    wave_reduce(A, "add", vG, a_)
    A(f"v_cvt_pk_bf16_f32 v{vG}, v{vG}, v{vG}"); A(f"v_lshlrev_b32 v{vG}, 16, v{vG}")
    A(f"v_mul_f32 v{vG}, 0xbfb8aa3b, v{vG}"); A(f"v_exp_f32 v{vG}, v{vG}"); A(f"v_add_f32 v{vG}, 1.0, v{vG}"); A(f"v_rcp_f32 v{vG}, v{vG}")
    A(f"v_cvt_pk_bf16_f32 v{vG}, v{vG}, v{vG}"); A(f"v_lshlrev_b32 v{vG}, 16, v{vG}")
    A(f"v_sub_f32 v{vOG}, 1.0, v{vG}"); A(f"v_cvt_pk_bf16_f32 v{vOG}, v{vOG}, v{vOG}"); A(f"v_lshlrev_b32 v{vOG}, 16, v{vOG}")
    def checkpoint(step, region, tag):
        lds_wait(L_FLAG + 12, step, tag, a_, b_, sleep=4, cmp="ge")
        A("s_lshl_b32 s9, s10, 7"); A("s_lshl_b32 s14, s4, 14"); A("s_add_u32 s9, s9, s14"); A(f"s_add_u32 s9, s9, {region}")
        A("s_and_b32 s14, s9, 0xffffc7ff"); A(f"v_lshlrev_b32 v{c_}, 11, v1")
        for k in range(4): A(f"v_mov_b32 v{32+k}, s12")
        A("s_mov_b64 exec, 0xff"); A(f"buffer_load_dwordx4 v[40:43], v{c_}, {WSR}, s14 offen sc1")
        A(f"buffer_store_dwordx4 v[32:35], v{vL16}, {WSR}, s9 offen sc1")
        A("s_waitcnt vmcnt(1)"); A("v_cmp_eq_u32 vcc, s12, v41"); A("s_bcnt1_i32_b64 s14, vcc")
        A(f"v_mov_b32 v{a_}, 0"); A(f"v_mov_b32 v{b_}, s14"); A(f"ds_write_b32 v{a_}, v{b_} offset:{L_G + 20}")
        A("s_mov_b64 exec, -1")
    if CK1: checkpoint(CK1, wsb + 0x1E0000, "ck1")
    lds_wait(L_FLAG + 8, 8, "cnt", a_, b_, sleep=2)
    ST = 32
    def combine(m, l):
        A(f"v_mov_b32 v{a_}, v{m}")
        for ctl in ("quad_perm:[1,0,3,2]", "quad_perm:[2,3,0,1]", "row_half_mirror"): A(f"v_max_f32_dpp v{a_}, v{a_}, v{a_} {ctl} {DPPF}")
        A(f"v_sub_f32 v{b_}, v{m}, v{a_}"); A(f"v_exp_f32 v{b_}, v{b_}"); A(f"v_mul_f32 v{b_}, v{b_}, v{l}")
        for ctl in ("quad_perm:[1,0,3,2]", "quad_perm:[2,3,0,1]", "row_half_mirror"): A(f"v_add_f32_dpp v{b_}, v{b_}, v{b_} {ctl} {DPPF}")
    A(f"v_and_b32 v{c_}, 7, v1"); A(f"v_lshlrev_b32 v{c_}, 3, v{c_}")
    A(f"ds_read_b64 v[{ST+4}:{ST+5}], v{c_} offset:{L_WST}"); A("s_waitcnt lgkmcnt(0)")
    combine(ST + 4, ST + 5)
    A(f"v_mov_b32 v{ST}, v{a_}"); A(f"v_mov_b32 v{ST+1}, s12"); A(f"v_mov_b32 v{ST+2}, v{b_}"); A(f"v_mov_b32 v{ST+3}, s12")
    A("s_lshl_b32 s11, s7, 10"); A(f"s_add_u32 s11, s11, {WS_ST}"); A("s_lshl_b32 s9, s6, 7"); A("s_add_u32 s9, s9, s11")
    if bal:
        A("s_and_b32 s14, s9, 0xffffc7ff"); A(f"v_lshlrev_b32 v{c_}, 11, v1")
        A("s_mov_b64 exec, 0xff"); A(f"buffer_load_dwordx4 v[{ST+8}:{ST+11}], v{c_}, {WSR}, s14 offen sc1")
    A("s_mov_b64 exec, 0xff"); A(f"buffer_store_dwordx4 v[{ST}:{ST+3}], v{vL16}, {WSR}, s9 offen {'sc1' if bal else lst}")
    if bal:
        A("s_waitcnt vmcnt(1)"); A(f"v_cmp_eq_u32 vcc, s12, v{ST+9}"); A("s_bcnt1_i32_b64 s14, vcc")
        A(f"v_mov_b32 v{a_}, 0"); A(f"v_mov_b32 v{b_}, s14"); A(f"ds_write_b32 v{a_}, v{b_} offset:{L_G + 20}")
    A("s_mov_b64 exec, -1")
    if NS is not None: lds_wait(L_FLAG + 12, NS, "pg2", a_, b_, sleep=8, cmp="ge")
    HP = 28
    A(f"v_mov_b32 v{HP}, 0"); A(f"v_mov_b32 v{HP+2}, 0")
    A("s_cmp_ge_u32 s10, 112"); A("s_cbranch_scc1 L_sv_hz")
    A(f"v_lshrrev_b32 v{a_}, 3, v1"); A(f"v_lshlrev_b32 v{a_}, 9, v{a_}"); A(f"v_and_b32 v{b_}, 7, v1"); A(f"v_lshl_add_u32 v{a_}, v{b_}, 4, v{a_}")
    A("s_lshr_b32 s8, s10, 2"); A("s_mul_i32 s9, s4, 28"); A("s_add_u32 s8, s8, s9"); A("s_lshl_b32 s8, s8, 12")
    A("s_and_b32 s9, s10, 3"); A("s_lshl_b32 s9, s9, 7"); A("s_add_u32 s8, s8, s9"); A(f"s_add_u32 s8, s8, {WS_H}")
    gather("h", [(HP, a_, "s8", 0, -1, "0x00ffffff")], psleep, [82])
    lab("L_sv_hz")
    for k in (0, 2): A(f"v_add_f32_dpp v{HP+k}, v{HP+k}, v{HP+k} row_ror:8 {DPPF}")
    for sw in ("v_permlane16_swap_b32", "v_permlane32_swap_b32"):
        for k in (0, 2): A(f"v_mov_b32 v{HP+k+1}, v{HP+k}")
        for k in (0, 2): A(f"{sw} v{HP+k}, v{HP+k+1}")
        for k in (0, 2): A(f"v_add_f32 v{HP+k}, v{HP+k}, v{HP+k+1}")
    for k in (0, 2): A(f"v_max_f32 v{HP+k}, 0, v{HP+k}")
    A(f"v_cvt_pk_bf16_f32 v{HP}, v{HP}, v{HP}"); A(f"v_cvt_pk_bf16_f32 v{HP+1}, v{HP+2}, v{HP+2}")
    A(f"v_lshlrev_b32 v{a_}, 3, v1")
    A("s_mov_b64 exec, 0xff"); A(f"ds_write_b64 v{a_}, v[{HP}:{HP+1}] offset:{L_H}"); A("s_mov_b64 exec, -1")
    stamp(4)
    A(f"v_lshlrev_b32 v{c_}, 7, v1")
    gather("st", [(ST + 4, c_, "s11", 0, "0xff", 0)], 8, [82])
    combine(ST + 4, ST + 6)
    A(f"v_sub_f32 v{vG+2}, 0, v{a_}"); A(f"v_rcp_f32 v{vG+3}, v{b_}"); A(f"v_mul_f32 v{vG+3}, v{vG+3}, v{vG}")
    A(f"v_mov_b32 v{a_}, 0"); A(f"v_mov_b32 v{b_}, 1")
    A("s_mov_b64 exec, 1")
    A(f"ds_write_b128 v{a_}, v[{vG}:{vG+3}] offset:{L_G}")
    A(f"ds_write_b32 v{a_}, v{b_} offset:{L_FLAG + 4}")
    A("s_mov_b64 exec, -1")
    stamp(5)
    if CK3: checkpoint(CK3, wsb + 0x1E8000, "ck3")
    P0, P1 = 40, 44
    A("s_lshl_b32 s9, s7, 14"); A(f"s_add_u32 s9, s9, {WS_O}"); A("s_lshl_b32 s14, s6, 11"); A("s_add_u32 s9, s9, s14")
    A(f"v_and_b32 v{a_}, 15, v1"); A(f"v_bfe_u32 v{b_}, v1, 4, 1"); A(f"v_lshl_add_u32 v{a_}, v{a_}, 1, v{b_}"); A(f"v_lshlrev_b32 v{a_}, 2, v{a_}")
    A("s_waitcnt lgkmcnt(0)"); A("s_barrier")
    if odelay: A(f"s_sleep {odelay}")
    gather("o", [(P0, vL16, "s9", 0, -1, -1), (P1, vL16, "s9", 1024, -1, -1)], osleep, [82, 84])
    A(f"v_add_f32 v{P0}, v{P0}, v{P1}"); A(f"v_add_f32 v{P0+2}, v{P0+2}, v{P1+2}")
    A(f"v_permlane16_swap_b32 v{P0}, v{P0+2}"); A(f"v_add_f32 v{P0}, v{P0}, v{P0+2}")
    A(f"v_mov_b32 v{P0+2}, v{P0}"); A(f"v_permlane32_swap_b32 v{P0}, v{P0+2}"); A(f"v_add_f32 v{P0}, v{P0}, v{P0+2}")
    A(f"v_cvt_pk_bf16_f32 v{P0}, v{P0}, v{P0}")
    A(f"ds_write_b32 v{a_}, v{P0} offset:{L_OL}")
    A("s_waitcnt lgkmcnt(0)"); A("s_barrier")
    stamp(6)
    dump_stamps(True)
    lab("L_end")
    A("s_endpgm")

    body = pad_hazards(L)
    out = [HEADER.rstrip("\n"),
           "; Single fused launch: 256 workgroups (one per CU) x 9 waves (wave 0 = service, waves 1-8 stream K/V).",
           f"; @launch grid=(256,1,1) block=(576,1,1) lds={lds or LDS_MIN}",
           '.amdgcn_target "amdgcn-amd-amdhsa--gfx950"', ".text", f".globl {NAME}", ".p2align 8", f".type {NAME},@function", f"{NAME}:"]
    out += body
    out += ['.section .rodata,"a"', ".p2align 6", f".amdhsa_kernel {NAME}",
            "  .amdhsa_next_free_vgpr 168", "  .amdhsa_next_free_sgpr 96", "  .amdhsa_accum_offset 168",
            "  .amdhsa_group_segment_fixed_size 0", "  .amdhsa_kernarg_size 96", "  .amdhsa_user_sgpr_count 2",
            "  .amdhsa_user_sgpr_kernarg_segment_ptr 1", "  .amdhsa_system_sgpr_workgroup_id_x 1", ".end_amdhsa_kernel"]
    return "\n".join(out) + "\n"

def masks(A, M, t0, t1):
    A(f"v_and_b32 v{t0}, 1, v1"); A(f"v_lshlrev_b32 v{t0}, 4, v{t0}"); A(f"v_mov_b32 v{t1}, 0xffff"); A(f"v_lshlrev_b32 v{t1}, v{t0}, v{t1}")
    A(f"v_bfe_u32 v{t0}, v1, 1, 2")
    for r in range(4): A(f"v_cmp_eq_u32 s[{80+2*r}:{81+2*r}], {r}, v{t0}")
    for r in range(4): A(f"v_cndmask_b32 v{M[r]}, 0, v{t1}, s[{80+2*r}:{81+2*r}]")

def mask_prime(A, M, t0, t1):
    A(f"v_lshrrev_b32 v{t0}, 1, v1"); A(f"v_xor_b32 v{t0}, v{t0}, v1"); A(f"v_bfe_u32 v{t0}, v{t0}, 3, 1")
    A(f"v_add_u32 v{t0}, -1, v{t0}")
    for r in range(4): A(f"v_and_b32 v{M[r]}, v{M[r]}, v{t0}")

def red2_lane(A, d, t0):
    A(f"v_and_b32 v{t0}, 15, v1"); A(f"v_lshlrev_b32 v{d}, 5, v{t0}")
    A(f"v_lshrrev_b32 v{t0}, 5, v1"); A(f"v_lshl_add_u32 v{d}, v{t0}, 9, v{d}")
    A(f"v_bfe_u32 v{t0}, v1, 4, 1"); A(f"v_lshl_add_u32 v{d}, v{t0}, 4, v{d}")

def wave_reduce(A, op, v, t):
    for ctl in ("quad_perm:[1,0,3,2]", "quad_perm:[2,3,0,1]", "row_half_mirror", "row_mirror"):
        A(f"v_{op}_f32_dpp v{v}, v{v}, v{v} {ctl} {DPPF}")
    for sw in ("v_permlane16_swap_b32", "v_permlane32_swap_b32"):
        A(f"v_mov_b32 v{t}, v{v}"); A(f"{sw} v{v}, v{t}"); A(f"v_{op}_f32 v{v}, v{v}, v{t}")

if __name__ == "__main__":
    kw = eval("dict(%s)" % (sys.argv[2] if len(sys.argv) > 2 else ""))
    open(sys.argv[1], "w").write(gen(**kw))
```

```python
import sys
sys.path.insert(0, "dev")
from asmlib import pad_hazards

NAME = "gated_mix__mha_block_cached__dense_activation_relu__decode_kernel"
HEADER = open("gated_mix__mha_block_cached__dense_activation_relu__decode.s.ref").read().split("; Override launch")[0]

WS_ST = 0x1F0000
WS_H = 0x8000
WS_Q = 0x40000
WS_O = 0x80000
WS_Y = 0x100000
WS_DBG = 0x400000
WS_SIZE = 268435456
L_W = 0x0000
L_W1 = 0x4000
L_RED1 = 0x0000
L_X = 0x6000
L_Q = 0x6800
L_H = 0x6A00
L_G = 0x6A40
L_FLAG = 0x6A80
L_WST = 0x6AC0
L_FIN = 0x6C00
L_OL = 0x6B00
L_PW = 0x7000
L_RED2 = 0x8000
LDS_MIN = L_RED2 + 8 * 2048
TAGC = 0x9E3779B9
SPIN_MAX = 1 << 18
DPPF = "row_mask:0xf bank_mask:0xf"
CEXP = "0x3db8aa3b"

def gen(LIM=2, LIMV=None, NQ=24, CQ=3, CP=3, R=33, NF=62, dbg=False, hdbg=False, diag=None,
        psleep=2, osleep=0, fsleep=0, svc=9, kflags="nt", wflags="nt", lds=None, LE=None, NG=12, NS=46, rot=None, early=False, dbase=10000, pp=1, pgap=8, wsb=0, diag2=None, xmap=0, spread=0, LP=None, kmap=0, ofl='', pat='tp w0 w1 w2 b0 b1 b2 s0 s1 s2', touch='', codepf=False, late_w=False, odelay=0, lite=False, endop=None, lst='sc1', bal=None, CK1=None, CK3=None):
    if LIMV is None: LIMV = LIM
    WS_ST, WS_H, WS_Q, WS_O, WS_Y = (x + wsb for x in (0x1F0000, 0x8000, 0x40000, 0x80000, 0x100000))
    L = []
    A = lambda s: L.append("  " + s)
    lab = lambda s: L.append(s + ":")
    def srd(d, p, nbytes):
        A(f"s_mov_b32 s{d}, s{p}"); A(f"s_mov_b32 s{d+1}, s{p+1}"); A(f"s_mov_b32 s{d+2}, {nbytes}"); A(f"s_mov_b32 s{d+3}, 0x20000")
    SK, SV, SWO, SWS, SWQ, SW1, SW2, SX, SG, SO = 40, 44, 48, 52, 56, 60, 64, 68, 72, 76
    WSR = f"s[{SWS}:{SWS+3}]"
    if diag is not None: hdbg = True
    if diag2 is not None: dbg = True
    if hdbg: dbg = True
    def stamp(idx):
        if dbg:
            A("s_memrealtime s[90:91]"); A("s_waitcnt lgkmcnt(0)"); A(f"v_writelane_b32 v167, s90, {idx}")
    def dump_stamps(service=False):
        if hdbg:
            A("s_mov_b32 s92, s36"); A("s_mov_b32 s93, s37"); A("s_mov_b32 s94, 256"); A("s_mov_b32 s95, 0x20000")
            A("v_not_b32 v165, v167"); A("v_cmp_eq_u32 vcc, 0, v1"); A("v_cndmask_b32 v167, v167, v165, vcc")
            A("v_lshlrev_b32 v166, 2, v1")
            if service: A("v_add_u32 v166, 64, v166"); A("s_mov_b64 exec, 0x3e")
            else: A("s_mov_b64 exec, 0xffff")
            A("buffer_atomic_umax v167, v166, s[92:95], 0 offen"); A("s_mov_b64 exec, -1")
        elif dbg:
            if diag2 is not None and not service:
                tg = "s" if service else "m"
                A("s_add_u32 s84, s88, 4500"); lab(f"L_dd_{tg}"); A("s_sleep 8")
                A("s_memrealtime s[90:91]"); A("s_waitcnt lgkmcnt(0)"); A("s_sub_u32 s85, s90, s84"); A("s_cmp_lt_i32 s85, 0"); A(f"s_cbranch_scc1 L_dd_{tg}")
            A("s_mul_i32 s92, s2, 9"); A("s_add_u32 s92, s92, s93"); A("s_lshl_b32 s92, s92, 8"); A(f"s_add_u32 s92, s92, {WS_DBG}")
            A("v_lshlrev_b32 v166, 2, v1"); A(f"buffer_store_dword v167, v166, {WSR}, s92 offen sc1")
    if dbg: R = min(R, 32)
    def spin_tail(label, sleep):
        if sleep: A(f"s_sleep {sleep}")
        A("s_sub_u32 s80, s80, 1"); A("s_cmp_lg_u32 s80, 0"); A(f"s_cbranch_scc1 {label}")
    def lds_wait(off, val, tag, ta, tb, sleep=1, cmp="eq"):
        A(f"v_mov_b32 v{ta}, 0"); A(f"s_mov_b32 s80, {SPIN_MAX}")
        lab(f"L_wait_{tag}")
        A(f"ds_read_b32 v{tb}, v{ta} offset:{off}"); A("s_waitcnt lgkmcnt(0)"); A(f"v_readfirstlane_b32 s81, v{tb}")
        A(f"s_cmp_{cmp}_u32 s81, {val}"); A(f"s_cbranch_scc1 L_got_{tag}")
        spin_tail(f"L_wait_{tag}", sleep)
        lab(f"L_got_{tag}")
    def gather(tag, items, sleep, pool):
        if svc < {"q": 3, "h": 4, "st": 5}.get(tag, 0):
            A("s_waitcnt vmcnt(0)"); return
        assert len(pool) >= len(items)
        for (reg, va, so, imm, lo, hi), ms in zip(items, pool): A(f"s_mov_b32 s{ms}, {lo}"); A(f"s_mov_b32 s{ms+1}, {hi}")
        A(f"s_mov_b32 s80, {SPIN_MAX}")
        lab(f"L_g_{tag}")
        for k, ((reg, va, so, imm, lo, hi), ms) in enumerate(zip(items, pool)):
            A(f"s_mov_b64 exec, s[{ms}:{ms+1}]")
            if len(items) > 1: A(f"s_cbranch_execz L_g_{tag}_s{k}")
            A(f"buffer_load_dwordx4 v[{reg}:{reg+3}], v{va}, {WSR}, {so} offen offset:{imm} sc1")
            if len(items) > 1: lab(f"L_g_{tag}_s{k}")
        A("s_waitcnt vmcnt(0)")
        for k, ((reg, va, so, imm, lo, hi), ms) in enumerate(zip(items, pool)):
            if len(items) > 1: A(f"s_mov_b64 exec, s[{ms}:{ms+1}]")
            A(f"v_cmp_ne_u32 vcc, s12, v{reg+1}"); A(f"v_cmp_ne_u32 s[{ms}:{ms+1}], s12, v{reg+3}")
            A(f"s_or_b64 s[{ms}:{ms+1}], s[{ms}:{ms+1}], vcc")
            if k == 0: A(f"s_mov_b64 s[14:15], s[{ms}:{ms+1}]")
            else: A(f"s_or_b64 s[14:15], s[14:15], s[{ms}:{ms+1}]")
        A("s_cmp_eq_u64 s[14:15], 0"); A(f"s_cbranch_scc1 L_g_{tag}_ok")
        spin_tail(f"L_g_{tag}", sleep)
        lab(f"L_g_{tag}_ok")
        A("s_mov_b64 exec, -1")

    def poll_issue(sets, k, items):
        for j, (va, so, imm) in enumerate(items):
            r = sets[k] + 4 * j
            A(f"buffer_load_dwordx4 v[{r}:{r+3}], v{va}, {WSR}, {so} offen offset:{imm} sc1")
    def poll_loop(tag, sets, items, first):
        n = len(sets); ni = len(items)
        for k in range(1, n):
            if pgap: A(f"s_sleep {pgap}")
            poll_issue(sets, k, items)
        A(f"s_mov_b32 s80, {SPIN_MAX}")
        lab(f"L_p_{tag}")
        for k in range(n):
            A(f"s_waitcnt vmcnt({(n - 1) * ni})")
            for j in range(ni):
                r = sets[k] + 4 * j
                A(f"v_cmp_ne_u32 {'vcc' if j == 0 else 's[84:85]'}, s12, v{r+1}"); A(f"v_cmp_ne_u32 s[{82 + 4 * j}:{83 + 4 * j}], s12, v{r+3}")
            if ni == 2: A("s_or_b64 vcc, vcc, s[84:85]"); A("s_or_b64 vcc, vcc, s[86:87]")
            A("s_or_b64 vcc, vcc, s[82:83]")
            A(f"s_cbranch_scc0 L_p_{tag}_ok{k}")
            poll_issue(sets, k, items)
        A("s_sub_u32 s80, s80, 1"); A("s_cmp_lg_u32 s80, 0"); A(f"s_cbranch_scc1 L_p_{tag}")
        A("s_waitcnt vmcnt(0)")
        for k in range(n):
            lab(f"L_p_{tag}_ok{k}")
            first(sets[k])
            if k < n - 1: A(f"s_branch L_p_{tag}_done")
        lab(f"L_p_{tag}_done")
        A("s_nop 1")

    if (dbg and early) or lite: A("s_memrealtime s[88:89]")
    A("s_cmp_ge_u32 s2, 256"); A("s_cbranch_scc1 L_end")
    A("s_load_dwordx16 s[16:31], s[0:1], 0")
    A("s_load_dwordx8 s[32:39], s[0:1], 64")
    A("v_lshrrev_b32 v2, 6, v0"); A("v_and_b32 v1, 63, v0")
    A("v_readfirstlane_b32 s3, v2")
    A("s_and_b32 s14, s2, 7"); A("s_lshr_b32 s15, s2, 3")
    if xmap: A(f"s_xor_b32 s14, s14, {xmap}")
    if spread:
        mk = (1 << spread) - 1
        sh = 3 - spread
        A(f"s_lshr_b32 s4, s14, {sh}"); A(f"s_and_b32 s5, s15, {mk}"); A("s_xor_b32 s6, s4, s5")
        A("s_xor_b32 s15, s15, s6"); A(f"s_lshl_b32 s6, s6, {sh}"); A("s_xor_b32 s14, s14, s6")
    A("s_lshr_b32 s4, s15, 4")
    A("s_bfe_u32 s5, s15, 0x10003"); A("s_lshl_b32 s14, s14, 1"); A("s_add_u32 s5, s5, s14")
    A("s_and_b32 s6, s15, 7")
    A("s_lshl_b32 s7, s4, 4"); A("s_add_u32 s7, s7, s5")
    A("s_lshl_b32 s10, s5, 3"); A("s_add_u32 s10, s10, s6")
    if dbg:
        A("s_mov_b32 s93, s3"); A("v_mov_b32 v167, 0")
        if not early: A("s_memrealtime s[88:89]")
    A("s_cmp_eq_u32 s3, 0"); A("s_cbranch_scc1 L_service")

    A("s_sub_u32 s3, s3, 1")
    vK, vV, vWo, vW2, t0, t1 = 2, 3, 4, 5, 6, 7
    M = [8, 9, 10, 11]; Q = [12, 16]; DB = [20, 24]; AB = [20, 24]; SG_ = [28, 29, 30, 31]; ACC = 32
    vMW = 12; vE = [13, 14, 15, 16]; vLW = 17
    RING = 36
    A(f"v_bfe_u32 v{t0}, v1, 2, 2"); A(f"v_lshlrev_b32 v{vK}, 9, v{t0}")
    A(f"v_lshrrev_b32 v{t0}, 4, v1"); A(f"v_lshl_add_u32 v{vK}, v{t0}, 6, v{vK}")
    A(f"v_and_b32 v{t0}, 3, v1"); A(f"v_lshl_add_u32 v{vK}, v{t0}, 4, v{vK}")
    PB = {t: 11 + k for k, t in enumerate(pat.split())}
    A("s_lshl_b32 s8, s7, 21")
    for reg, nm in (("s3", "w"), ("s6", "s")):
        k = 0
        while k < 3:
            e = k
            while e < 2 and PB[f"{nm}{e+1}"] == PB[f"{nm}{e}"] + 1: e += 1
            A(f"s_bfe_u32 s14, {reg}, {hex(((e - k + 1) << 16) + k)}"); A(f"s_lshl_b32 s14, s14, {PB[f'{nm}{k}']}"); A("s_add_u32 s8, s8, s14")
            k = e + 1
    def toff(beta, tp):
        o = (tp << PB["tp"]) | ((beta & 1) << PB["b0"]) | (((beta >> 1) & 1) << PB["b1"]) | ((beta >> 2) << PB["b2"])
        return o & ~0xfff, o & 0xfff
    A(f"v_add_u32 v{vK}, s8, v{vK}")
    A("s_waitcnt lgkmcnt(0)")
    srd(SK, 18, 0x4000000)

    loads = [("K", beta, tp, jh) for beta in range(8) for tp in range(2) for jh in range(2)]
    loads += [("V", beta, tp, kp) for beta in range(8) for tp in range(2) for kp in range(2)]
    loads += [("F", cb) for cb in range(2)] + [("W", r, cb) for r in range(2) for cb in range(2)]
    free = list(range(R)); slot = {}
    nissued = [0]; landed = [-1]; cur_soff = [None]
    if rot:
        A(f"s_mul_i32 s11, s2, {rot}"); A("s_lshr_b32 s14, s2, 3"); A("s_add_u32 s11, s11, s14"); A("s_and_b32 s11, s11, 7"); A("s_lshl_b32 s11, s11, 15")
    def soff(val):
        if val == 0 and not rot: return "0"
        if cur_soff[0] != val:
            if rot: A(f"s_add_u32 s13, s11, {val}"); A("s_and_b32 s13, s13, 0x3ffff")
            else: A(f"s_mov_b32 s13, {val}")
            cur_soff[0] = val
        return "s13"
    def wait_landed(n):
        if n <= landed[0]: return
        A(f"s_waitcnt vmcnt({nissued[0] - 1 - n})"); landed[0] = n
    def issue(n):
        ld = loads[n]; sl = free.pop(0); slot[n] = sl; r = RING + 4 * sl
        if ld[0] == "K":
            A(f"buffer_load_dwordx4 v[{r}:{r+3}], v{vK}, s[{SK}:{SK+3}], {soff(toff(ld[1], ld[2])[0])} offen offset:{toff(ld[1], ld[2])[1] + ld[3] * 256} {kflags}")
        elif ld[0] == "V":
            A(f"buffer_load_dwordx4 v[{r}:{r+3}], v{vV}, s[{SV}:{SV+3}], {soff(toff(ld[1], ld[2])[0])} offen offset:{toff(ld[1], ld[2])[1] + ld[3] * 1024} {kflags}")
        elif ld[0] == "W":
            A(f"buffer_load_dwordx4 v[{r}:{r+3}], v{vWo}, s[{SWO}:{SWO+3}], 0 offen offset:{ld[1] * 896 + ld[2] * 512} {wflags}")
        else:
            A(f"buffer_load_dwordx4 v[{r}:{r+3}], v{vW2}, s[{SW2}:{SW2+3}], 0 offen offset:{ld[1] * 512} {wflags}")
        nissued[0] += 1
    sreg = lambda n: RING + 4 * slot[n]
    qk_next = [0]; qk_post = [None]; pv_next = [0]; pslot = {}
    def qk_dpp(tau):
        beta, tp = tau >> 1, tau & 1; G = beta >> 1; t = 2 * (beta & 1) + tp; d = DB[tau & 1]
        A(f"v_mov_b32_dpp v{t0}, v{d} quad_perm:[0,0,0,0] {DPPF}")
        A(f"v_add_f32_dpp v{t0}, v{d+1}, v{t0} quad_perm:[1,1,1,1] {DPPF}")
        A(f"v_add_f32_dpp v{t0}, v{d+2}, v{t0} quad_perm:[2,2,2,2] {DPPF}")
        A(f"v_add_f32_dpp v{SG_[G]}, v{d+3}, v{t0} quad_perm:[3,3,3,3] row_mask:0xf bank_mask:{hex(1 << t)}")
    def qk_tile(tau):
        d = DB[tau & 1]; a0 = sreg(2 * tau); a1 = sreg(2 * tau + 1)
        A(f"v_mfma_f32_16x16x32_bf16 v[{d}:{d+3}], v[{a0}:{a0+3}], v[{Q[0]}:{Q[0]+3}], 0")
        A(f"v_mfma_f32_16x16x32_bf16 v[{d}:{d+3}], v[{a1}:{a1+3}], v[{Q[1]}:{Q[1]+3}], v[{d}:{d+3}]")
        free.extend([slot[2 * tau], slot[2 * tau + 1]])
        if qk_post[0] is not None: qk_dpp(qk_post[0])
        qk_post[0] = tau
    def red_hi(op, v, t):
        for ctl in ("row_ror:4", "row_ror:8"): A(f"v_{op}_f32_dpp v{v}, v{v}, v{v} {ctl} {DPPF}")
        for sw in ("v_permlane16_swap_b32", "v_permlane32_swap_b32"):
            A(f"v_mov_b32 v{t}, v{v}"); A(f"{sw} v{v}, v{t}"); A(f"v_{op}_f32 v{v}, v{v}, v{t}")
    def sm_a():
        qk_dpp(qk_post[0]); qk_post[0] = None
        S = SG_
        A(f"v_cvt_pk_bf16_f32 v{t0}, v{S[0]}, v{S[1]}"); A(f"v_cvt_pk_bf16_f32 v{t1}, v{S[2]}, v{S[3]}")
        A(f"v_lshlrev_b32 v{S[0]}, 16, v{t0}"); A(f"v_and_b32 v{S[1]}, 0xffff0000, v{t0}")
        A(f"v_lshlrev_b32 v{S[2]}, 16, v{t1}"); A(f"v_and_b32 v{S[3]}, 0xffff0000, v{t1}")
        A(f"v_max3_f32 v{vMW}, v{S[0]}, v{S[1]}, v{S[2]}"); A(f"v_max_f32 v{vMW}, v{vMW}, v{S[3]}")
        red_hi("max", vMW, t0)
    def sm_b():
        S = SG_
        A(f"s_mov_b32 s81, {CEXP}"); A(f"v_mul_f32 v{vMW}, s81, v{vMW}")
        for k in range(4): A(f"v_fma_f32 v{vE[k]}, v{S[k]}, s81, -v{vMW}")
        for k in range(4): A(f"v_exp_f32 v{vE[k]}, v{vE[k]}")
        A("s_lshl_b32 s14, s3, 8"); A(f"v_lshl_add_u32 v{t1}, v1, 2, s14")
        for k in range(4): A(f"v_cvt_pk_bf16_f32 v{S[k]}, v{vE[k]}, v{vE[k]}")
        A("s_mov_b32 exec_lo, 0x11111111"); A("s_mov_b32 exec_hi, 0x11111111")
        A(f"ds_write_b128 v{t1}, v[{S[0]}:{S[3]}] offset:{L_PW}")
        A("s_mov_b64 exec, -1")
        A(f"v_lshrrev_b32 v{t1}, 5, v1"); A(f"v_lshl_add_u32 v{t1}, v{t1}, 6, s14")
        for t in range(4):
            for kp in range(2):
                sl = free.pop(0); pslot[(t, kp)] = sl; r = RING + 4 * sl
                A(f"ds_read_b128 v[{r}:{r+3}], v{t1} offset:{L_PW + (8 * kp + t) * 16}")
        A(f"v_add_f32 v{vLW}, v{vE[0]}, v{vE[1]}"); A(f"v_add_f32 v{t0}, v{vE[2]}, v{vE[3]}"); A(f"v_add_f32 v{vLW}, v{vLW}, v{t0}")
    def sm_c():
        red_hi("add", vLW, t0)
        A(f"v_mov_b32 v{vMW+1}, v{vLW}")
        A("s_lshl_b32 s14, s3, 3"); A(f"v_mov_b32 v{t0}, s14"); A(f"v_mov_b32 v{t1}, 1"); A(f"v_mov_b32 v{vE[2]}, 0")
        A("s_mov_b64 exec, 1")
        A(f"ds_write_b64 v{t0}, v[{vMW}:{vMW+1}] offset:{L_WST}")
        A(f"ds_add_u32 v{vE[2]}, v{t1} offset:{L_FLAG + 8}")
        A("s_mov_b64 exec, -1")
        A("s_waitcnt lgkmcnt(0)")
        stamp(3)
    def pv_tile(m):
        beta, tp, kp = m >> 2, (m >> 1) & 1, m & 1; G = beta >> 1; t = 2 * (beta & 1) + tp
        a = AB[m & 1]; p = RING + 4 * pslot[(t, kp)] + G; bv = sreg(32 + m)
        for r in range(4): A(f"v_and_b32 v{a+r}, v{p}, v{M[r]}")
        c = "0" if m == 0 else f"v[{ACC}:{ACC+3}]"
        A(f"v_mfma_f32_16x16x32_bf16 v[{ACC}:{ACC+3}], v[{a}:{a+3}], v[{bv}:{bv+3}], {c}")
        free.append(slot[32 + m])
    vFS = 18; vHP = 19
    GG = 14
    def fetch_stats():
        stamp(4); lds_wait(L_FLAG + 4, 1, "st", t0, t1); stamp(5)
        A(f"ds_read_b128 v[14:17], v{t0} offset:{L_G}")
        A(f"v_lshrrev_b32 v{t1}, 5, v1"); A("s_lshl_b32 s14, s3, 3"); A(f"v_lshl_add_u32 v{t1}, v{t1}, 2, s14")
        A(f"ds_read_b32 v{vHP}, v{t1} offset:{L_H}")
        A("s_waitcnt lgkmcnt(0)")
        A(f"v_add_f32 v{vFS}, v{vMW}, v16"); A(f"v_exp_f32 v{vFS}, v{vFS}"); A(f"v_mul_f32 v{vFS}, v{vFS}, v17")

    N = len(loads); chunks = [sm_a, sm_b, sm_c]; sm_done = False
    for n in range(64 if late_w else N):
        if n < 64:
            lim = LIM if n < 32 else LIMV
            if LP: lim = LP[n % len(LP)]
            if LE and n >= LE[0]: lim = LE[1]
            if bal and n >= bal["at"][0]:
                if n in bal["at"]:
                    A(f"v_mov_b32 v{t0}, 0"); A(f"ds_read_b32 v{t1}, v{t0} offset:{L_G + 20}"); A("s_waitcnt lgkmcnt(0)"); A(f"v_readfirstlane_b32 s9, v{t1}")
                wl = bal["wl"]
                for k_, (w_, th_) in enumerate(zip(wl[:-1], bal["th"])):
                    w_ = w_[n % len(w_)] if isinstance(w_, tuple) else w_
                    A(f"s_cmp_ge_u32 s9, {th_}"); A(f"s_cbranch_scc1 L_bal{n}_{k_}"); A(f"s_waitcnt vmcnt({w_})"); lab(f"L_bal{n}_{k_}")
                wait_landed(n - wl[-1] - 1)
            elif n > max(lim, LIM): wait_landed(n - lim - 1)
        if n in (LIM + 1, 8, 16, 48): stamp({LIM + 1: 12, 8: 13, 16: 14, 48: 15}[n])
        if n == NQ:
            stamp(1)
            lds_wait(L_FLAG, 1, "q", t0, t1)
            A(f"v_lshrrev_b32 v{t0}, 4, v1"); A(f"v_and_b32 v{t1}, 3, v1"); A(f"v_lshl_add_u32 v{t0}, v{t0}, 2, v{t1}"); A(f"v_lshlrev_b32 v{t0}, 4, v{t0}")
            A(f"ds_read_b128 v[{Q[0]}:{Q[0]+3}], v{t0} offset:{L_Q}")
            A(f"ds_read_b128 v[{Q[1]}:{Q[1]+3}], v{t0} offset:{L_Q + 256}")
            A(f"v_mov_b32 v{t0}, 0"); A(f"ds_read_b32 v{t1}, v{t0} offset:{L_G + 16}")
            A("s_waitcnt lgkmcnt(0)"); A(f"v_readfirstlane_b32 s12, v{t1}")
            stamp(2)
        assert free, f"no free slot at load {n}"
        issue(n)
        if n == LIM:
            srd(SV, 20, 0x4000000); srd(SWO, 24, 3670016); srd(SW2, 30, 1605632); srd(SWS, 38, WS_SIZE)
            A("s_barrier")
            A(f"v_lshl_add_u32 v{vV}, v1, 4, s8")
            A(f"v_and_b32 v{t0}, 31, v1"); A(f"v_lshlrev_b32 v{t0}, 4, v{t0}"); A(f"v_lshrrev_b32 v{t1}, 5, v1")
            A(f"v_mul_u32_u24 v{vWo}, 1792, v{t1}"); A(f"v_add_u32 v{vWo}, v{vWo}, v{t0}")
            A(f"v_mul_u32_u24 v{vW2}, 896, v{t1}"); A(f"v_add_u32 v{vW2}, v{vW2}, v{t0}")
            A("s_lshl_b32 s14, s10, 5"); A("s_lshl_b32 s15, s3, 2"); A("s_add_u32 s14, s14, s15"); A("s_mul_i32 s14, s14, 896")
            A(f"v_add_u32 v{vWo}, s14, v{vWo}")
            A("s_lshl_b32 s14, s10, 4"); A("s_lshl_b32 s15, s3, 1"); A("s_add_u32 s14, s14, s15"); A("s_mul_i32 s14, s14, 896")
            A(f"v_add_u32 v{vW2}, s14, v{vW2}")
            masks(A, M, t0, t1); mask_prime(A, M, t0, t1)
            if dbg: A("s_waitcnt lgkmcnt(0)"); A("v_writelane_b32 v167, s88, 0")
            if diag2 is not None:
                A("s_getreg_b32 s14, hwreg(HW_REG_XCC_ID)"); A("s_and_b32 s14, s14, 15"); A("s_and_b32 s15, s2, 7"); A("s_cmp_eq_u32 s14, s15")
                A("s_cselect_b32 s14, 1000, 1"); A("s_add_u32 s14, s14, s88"); A("v_writelane_b32 v167, s14, 16")
        if n >= NQ and not sm_done:
            c = 0
            while qk_next[0] < 16 and c < CQ and 2 * qk_next[0] + 1 <= landed[0]:
                qk_tile(qk_next[0]); qk_next[0] += 1; c += 1
            if qk_next[0] == 16:
                chunks.pop(0)()
                sm_done = not chunks
        elif sm_done:
            c = 0
            while pv_next[0] < 32 and c < CP and 32 + pv_next[0] <= landed[0]:
                pv_tile(pv_next[0]); pv_next[0] += 1; c += 1
        if n == NF: fetch_stats()
        if n in (NG, NS, CK1, CK3):
            A(f"v_mov_b32 v{t0}, 0"); A(f"v_mov_b32 v{t1}, {n}")
            A("s_mov_b64 exec, 1"); A(f"ds_max_u32 v{t0}, v{t1} offset:{L_FLAG + 12}"); A("s_mov_b64 exec, -1")
    assert sm_done
    vRw, vO, vY, vR1 = vK, vV, 13, 16
    red2_lane(A, vRw, t0)
    A("s_lshl_b32 s14, s3, 10"); A(f"v_add_u32 v{vR1}, s14, v{vRw}")
    A("s_lshl_b32 s14, s3, 11"); A(f"s_add_u32 s14, s14, {L_RED2}"); A(f"v_add_u32 v{vRw}, s14, v{vRw}")
    A("s_lshl_b32 s14, s3, 6"); A(f"v_add_u32 v{vY}, s14, v1")
    A(f"v_lshrrev_b32 v{t0}, 4, v{vY}"); A(f"v_lshlrev_b32 v{vO}, 11, v{t0}"); A(f"v_and_b32 v{t0}, 15, v1"); A(f"v_lshl_add_u32 v{vO}, v{t0}, 4, v{vO}")
    A("s_lshl_b32 s9, s7, 14"); A(f"s_add_u32 s9, s9, {WS_O}"); A("s_lshl_b32 s14, s6, 8"); A("s_add_u32 s11, s9, s14")
    while pv_next[0] < 32:
        wait_landed(32 + pv_next[0]); pv_tile(pv_next[0]); pv_next[0] += 1
    lab("L_tail")
    if late_w == 3:
        for n in range(64, N): issue(n)
    stamp(6)
    A(f"v_lshlrev_b32 v{t0}, 3, v{vY}")
    for k in range(4): A(f"v_mul_f32 v{ACC+k}, v{vFS}, v{ACC+k}")
    A(f"ds_write_b128 v{vR1}, v[{ACC}:{ACC+3}] offset:{L_RED1}")
    A("s_waitcnt lgkmcnt(0)"); A("s_barrier")
    if late_w in (1, 2):
        free[:] = sorted(free + list(pslot.values())); pslot.clear()
        held = free[-6:]; del free[-6:]
    fr = [RING + 4 * s_ for s_ in sorted(free + list(pslot.values()))]
    run = [r for r in fr if all(r + 4 * k in fr for k in range(4))][0]
    rest = [r for r in fr if not run <= r < run + 16]
    FS = []
    for _ in range(pp):
        r = [r for r in rest if r + 4 in rest][0]; FS.append(r); rest.remove(r); rest.remove(r + 4)
    PS = rest[:pp]; assert len(PS) == pp
    Y = run; U = 20
    if late_w == 2:
        free[:] = held
        for n in range(64, N): issue(n)
    A("s_cmp_ge_u32 s3, 2"); A("s_cbranch_scc1 L_odone")
    for k in range(8): A(f"ds_read_b64 v[{Y+2*k}:{Y+2*k+1}], v{t0} offset:{L_RED1 + 1024 * k}")
    A(f"v_mov_b32 v{U+1}, s12"); A(f"v_mov_b32 v{U+3}, s12")
    A("s_waitcnt lgkmcnt(0)")
    for st in (1, 2):
        for k in range(0, 8, 2 * st):
            for c_ in range(2): A(f"v_add_f32 v{Y+2*k+c_}, v{Y+2*k+c_}, v{Y+2*(k+st)+c_}")
    A(f"v_add_f32 v{U}, v{Y}, v{Y+8}"); A(f"v_add_f32 v{U+2}, v{Y+1}, v{Y+9}")
    A(f"buffer_store_dwordx4 v[{U}:{U+3}], v{vO}, {WSR}, s11 offen {lst}")
    lab("L_odone")
    if late_w == 1:
        free[:] = held
        for n in range(64, N): issue(n)
    stamp(7)
    OG = 28; DA, DBb = Y, Y + 4
    for q in range(4): A(f"v_and_b32 v{ACC+q}, v{vHP}, v{M[q]}")
    A(f"v_add_u32 v{t0}, {L_RED2}, v{t0}")
    A(f"v_lshrrev_b32 v{t1}, 5, v1"); A("s_lshl_b32 s14, s3, 4"); A(f"v_lshl_add_u32 v{t1}, v{t1}, 3, s14")
    A("s_waitcnt vmcnt(4)")
    for cb, d in ((0, DA), (1, DBb)):
        bw = sreg(64 + cb); A(f"v_mfma_f32_16x16x32_bf16 v[{d}:{d+3}], v[{ACC}:{ACC+3}], v[{bw}:{bw+3}], 0")
    for k in range(8): A(f"v_mul_f32 v{DA+k}, v15, v{DA+k}")
    if late_w == 1: A("s_waitcnt vmcnt(0) lgkmcnt(0)")
    else: A("s_cmp_lt_u32 s3, 2"); A("s_cbranch_scc1 L_ow1"); A("s_waitcnt vmcnt(0)"); lab("L_ow1"); A("s_waitcnt vmcnt(1) lgkmcnt(0)")
    A("s_barrier")
    A(f"ds_read_b64 v[{OG}:{OG+1}], v{t1} offset:{L_OL}")
    stamp(8)
    A("s_waitcnt lgkmcnt(0)")
    for r in range(2):
        for q in range(4): A(f"v_and_b32 v{AB[r]+q}, v{OG+r}, v{M[q]}")
    for r in range(2):
        for cb, d in ((0, DA), (1, DBb)):
            bw = sreg(66 + 2 * r + cb)
            A(f"v_mfma_f32_16x16x32_bf16 v[{d}:{d+3}], v[{AB[r]}:{AB[r]+3}], v[{bw}:{bw+3}], v[{d}:{d+3}]")
    A(f"ds_write_b128 v{vRw}, v[{DA}:{DA+3}]"); A(f"ds_write_b128 v{vRw}, v[{DBb}:{DBb+3}] offset:1024")
    A("s_waitcnt lgkmcnt(0)"); A("s_barrier")
    A("s_cmp_ge_u32 s3, 4"); A("s_cbranch_scc1 L_ydone")
    for k in range(8): A(f"ds_read_b64 v[{Y+2*k}:{Y+2*k+1}], v{t0} offset:{2048 * k}")
    A(f"v_cmp_gt_u32 vcc, 224, v{vY}")
    A(f"v_lshrrev_b32 v{t1}, 3, v{vY}"); A(f"v_lshlrev_b32 v{vO}, 14, v{t1}")
    A(f"v_and_b32 v{t1}, 7, v1"); A(f"v_lshl_add_u32 v{vO}, v{t1}, 4, v{vO}")
    A(f"s_mul_i32 s14, s4, {28 * 16384}"); A("s_lshl_b32 s15, s10, 7"); A("s_add_u32 s14, s14, s15"); A(f"s_add_u32 s14, s14, {WS_Y}")
    A(f"v_mov_b32 v{U+1}, s12"); A(f"v_mov_b32 v{U+3}, s12")
    A("s_waitcnt lgkmcnt(0)")
    for st in (1, 2):
        for k in range(0, 8, 2 * st):
            for c_ in range(2): A(f"v_add_f32 v{Y+2*k+c_}, v{Y+2*k+c_}, v{Y+2*(k+st)+c_}")
    A(f"v_add_f32 v{U}, v{Y}, v{Y+8}"); A(f"v_add_f32 v{U+2}, v{Y+1}, v{Y+9}")
    A("s_and_saveexec_b64 s[82:83], vcc")
    A(f"buffer_store_dwordx4 v[{U}:{U+3}], v{vO}, {WSR}, s14 offen sc1")
    A("s_mov_b64 exec, s[82:83]")
    lab("L_ydone")
    stamp(9)
    A("s_cmp_ge_u32 s2, 56"); A("s_cbranch_scc1 L_fin_skip")
    A("s_lshl_b32 s13, s2, 14"); A("s_lshl_b32 s15, s3, 11"); A("s_add_u32 s13, s13, s15"); A(f"s_add_u32 s13, s13, {WS_Y}")
    A(f"v_lshlrev_b32 v{t0}, 4, v1")
    F = 24
    gather("fin", [(F, t0, "s13", 0, -1, -1), (F + 4, t0, "s13", 1024, -1, -1)], fsleep, [82, 84])
    srd(SO, 34, 1792)
    A(f"v_add_f32 v{F}, v{F}, v{F+4}"); A(f"v_add_f32 v{F+2}, v{F+2}, v{F+6}")
    stamp(10)
    A(f"v_add_f32_dpp v{F}, v{F}, v{F} row_ror:8 {DPPF}"); A(f"v_add_f32_dpp v{F+2}, v{F+2}, v{F+2} row_ror:8 {DPPF}")
    A(f"v_permlane16_swap_b32 v{F}, v{F+2}"); A(f"v_add_f32 v{F}, v{F}, v{F+2}")
    A(f"v_mov_b32 v{F+2}, v{F}"); A(f"v_permlane32_swap_b32 v{F}, v{F+2}"); A(f"v_add_f32 v{F}, v{F}, v{F+2}")
    A(f"v_and_b32 v{t0}, 7, v1"); A(f"v_bfe_u32 v{t1}, v1, 4, 1"); A(f"v_lshl_add_u32 v{t0}, v{t0}, 1, v{t1}")
    A(f"v_lshlrev_b32 v{t0}, 5, v{t0}"); A("s_lshl_b32 s14, s3, 2"); A(f"v_add_u32 v{t0}, s14, v{t0}")
    A("s_mov_b32 exec_lo, 0x00ff00ff"); A("s_mov_b32 exec_hi, 0")
    A(f"ds_write_b32 v{t0}, v{F} offset:{L_FIN}")
    A("s_mov_b64 exec, -1")
    A("s_waitcnt lgkmcnt(0)"); A("s_barrier")
    A("s_cmp_lg_u32 s3, 0"); A("s_cbranch_scc1 L_fin_skip")
    A(f"v_and_b32 v{t0}, 15, v1"); A(f"v_lshlrev_b32 v{t1}, 5, v{t0}")
    A(f"ds_read_b128 v[{F}:{F+3}], v{t1} offset:{L_FIN}"); A(f"ds_read_b128 v[{F+4}:{F+7}], v{t1} offset:{L_FIN + 16}")
    A(f"v_lshlrev_b32 v{t0}, 1, v{t0}"); A("s_lshl_b32 s14, s2, 5")
    A("s_waitcnt lgkmcnt(0)")
    for st in (1, 2, 4):
        for k in range(0, 8, 2 * st): A(f"v_add_f32 v{F+k}, v{F+k}, v{F+k+st}")
    A(f"v_cvt_pk_bf16_f32 v{F}, v{F}, v{F}")
    A("s_mov_b64 exec, 0xffff")
    A(f"buffer_store_short v{F}, v{t0}, s[{SO}:{SO+3}], s14 offen {ofl}")
    A("s_cmp_lg_u32 s2, 0"); A("s_cbranch_scc1 L_fin_noep")
    A("s_mov_b64 exec, 1"); A(f"v_mov_b32 v{t0}, 0"); A(f"v_mov_b32 v{t1}, s12")
    A(f"s_mov_b32 s13, {wsb}"); A(f"buffer_store_dword v{t1}, v{t0}, {WSR}, s13 offen {ofl}")
    if lite:
        A("s_memrealtime s[90:91]"); A("s_waitcnt lgkmcnt(0)"); A("v_mov_b32 v8, s88"); A("v_mov_b32 v9, s90")
        A("s_mov_b32 s92, s36"); A("s_mov_b32 s93, s37"); A("s_mov_b32 s94, 256"); A("s_mov_b32 s95, 0x20000")
        A(f"buffer_store_dwordx2 v[8:9], v{t0}, s[92:95], 0 offen")
    lab("L_fin_noep")
    A("s_mov_b64 exec, -1")
    lab("L_fin_skip")
    stamp(11)
    dump_stamps()
    if diag2 is not None:
        role, kk, op = diag2[:3]; xf = diag2[3] if len(diag2) > 3 else None
        A("s_cmp_lg_u32 s2, 0"); A("s_cbranch_scc1 L_diag_end"); A("s_cmp_lg_u32 s3, 0"); A("s_cbranch_scc1 L_diag_end")
        A("s_add_u32 s84, s88, 7000"); lab("L_diag1"); A("s_sleep 8")
        A("s_memrealtime s[90:91]"); A("s_waitcnt lgkmcnt(0)"); A("s_sub_u32 s85, s90, s84"); A("s_cmp_lt_i32 s85, 0"); A("s_cbranch_scc1 L_diag1")
        A("v_mov_b32 v10, 0"); A("v_mov_b32 v11, -1"); A("v_mov_b32 v14, 0")
        nr = 4 if role else 32
        for r in range(nr):
            if role: A(f"v_add_u32 v12, {r * 64}, v1"); A("v_mul_u32_u24 v12, 2304, v12")
            else:
                A(f"v_lshrrev_b32 v12, 3, v1"); A(f"v_add_u32 v12, {r * 8}, v12"); A("v_mul_u32_u24 v12, 9, v12"); A("v_and_b32 v13, 7, v1"); A("v_add_u32 v12, v12, v13")
                A("v_add_u32 v12, 1, v12"); A("v_lshlrev_b32 v12, 8, v12")
            A(f"s_mov_b32 s13, {WS_DBG}")
            A(f"buffer_load_dword v8, v12, {WSR}, s13 offen sc1"); A(f"buffer_load_dword v9, v12, {WSR}, s13 offen offset:{4 * kk} sc1"); A("s_waitcnt vmcnt(0)")
            A("v_subrev_u32 v8, s88, v8"); A("v_add_u32 v8, 0x1000, v8"); A("v_min_u32 v11, v11, v8")
            A("v_cmp_ne_u32 vcc, 0, v9"); A("v_subrev_u32 v9, s88, v9"); A("v_add_u32 v9, 0x1000, v9"); A("v_cndmask_b32 v9, 0, v9, vcc")
            if xf is not None:
                A("v_lshrrev_b32 v13, 3, v1"); A(f"v_cmp_eq_u32 vcc, {xf}, v13"); A("v_cndmask_b32 v9, 0, v9, vcc")
            A("v_max_u32 v10, v10, v9"); A("v_add_u32 v14, v14, v9")
        if op == "mean": A(f"v_lshrrev_b32 v10, {2 if role else 5}, v14")
        for v, o in ((10, "add" if op == "mean" else "max"), (11, "min")):
            for ctl in ("quad_perm:[1,0,3,2]", "quad_perm:[2,3,0,1]", "row_half_mirror", "row_mirror"): A(f"v_{o}_u32_dpp v{v}, v{v}, v{v} {ctl} {DPPF}")
            for sw in ("v_permlane16_swap_b32", "v_permlane32_swap_b32"):
                A(f"v_mov_b32 v12, v{v}"); A(f"{sw} v{v}, v12"); A(f"v_{o}_u32 v{v}, v{v}, v12")
        if op == "mean": A(f"v_lshrrev_b32 v10, {6 if xf is None else 3}, v10")
        A("v_sub_u32 v10, v10, v11"); A("v_readfirstlane_b32 s85, v10"); A("s_lshl_b32 s85, s85, 2")
        if kk < 0: A("s_mov_b32 s85, 0")
        A("s_min_u32 s85, s85, 40000"); A(f"s_add_u32 s84, s88, {dbase}"); A("s_add_u32 s84, s84, s85")
        lab("L_diag2")
        A("s_memrealtime s[90:91]"); A("s_waitcnt lgkmcnt(0)"); A("s_sub_u32 s85, s90, s84"); A("s_cmp_lt_i32 s85, 0"); A("s_cbranch_scc1 L_diag2")
        lab("L_diag_end")
    if diag is not None:
        A("s_cmp_lg_u32 s2, 0"); A("s_cbranch_scc1 L_diag_end"); A("s_cmp_lg_u32 s3, 0"); A("s_cbranch_scc1 L_diag_end")
        A("s_add_u32 s84, s88, 7000")
        lab("L_diag1")
        A("s_memrealtime s[90:91]"); A("s_waitcnt lgkmcnt(0)"); A("s_sub_u32 s85, s90, s84"); A("s_cmp_lt_i32 s85, 0"); A("s_cbranch_scc1 L_diag1")
        A("v_lshlrev_b32 v166, 2, v1"); A("buffer_load_dword v165, v166, s[92:95], 0 offen sc1"); A("s_waitcnt vmcnt(0)")
        A("v_readlane_b32 s84, v165, 0"); A(f"v_readlane_b32 s85, v165, {max(diag, 0)}")
        A("s_not_b32 s84, s84"); A("s_sub_u32 s85, s85, s84"); A("s_lshl_b32 s85, s85, 2")
        if diag <= 0: A("s_mov_b32 s85, 0")
        A("s_min_u32 s85, s85, 40000"); A(f"s_add_u32 s84, s88, {dbase}"); A("s_add_u32 s84, s84, s85")
        lab("L_diag2")
        A("s_memrealtime s[90:91]"); A("s_waitcnt lgkmcnt(0)"); A("s_sub_u32 s85, s90, s84"); A("s_cmp_lt_i32 s85, 0"); A("s_cbranch_scc1 L_diag2")
        lab("L_diag_end")
    A("s_endpgm")

    lab("L_service")
    A("s_setprio 3")
    vL16, vQe, vQo, vFe, vFo, vXq, vXf = 2, 3, 4, 5, 6, 7, 8
    vTr = [9, 10, 11, 12]; a_, b_, c_, d_ = 14, 15, 16, 17; vG, vOG = 20, 21
    A(f"v_mov_b32 v{a_}, 0"); A(f"v_mov_b32 v{b_}, 0"); A(f"v_mov_b32 v{c_}, 0"); A(f"v_mov_b32 v{d_}, 0")
    A(f"ds_write_b128 v{a_}, v[{a_}:{d_}] offset:{L_FLAG}")
    if bal: A(f"v_mov_b32 v{vG}, {bal.get('init', 0)}"); A(f"ds_write_b32 v{a_}, v{vG} offset:{L_G + 20}")
    A(f"v_lshlrev_b32 v{vL16}, 4, v1")
    A("s_and_b32 s8, s6, 3"); A("s_lshr_b32 s9, s6, 2"); A("s_lshl_b32 s14, s4, 1"); A("s_add_u32 s9, s9, s14")
    A("s_lshl_b32 s15, s4, 4"); A("s_and_b32 s14, s10, 15"); A("s_add_u32 s15, s15, s14")
    A("s_mul_i32 s11, s15, 9363"); A("s_lshr_b32 s11, s11, 16"); A("s_mul_i32 s14, s11, 7"); A("s_sub_u32 s81, s15, s14")
    A("s_cmp_lt_u32 s15, 28"); A("s_cselect_b32 s79, 1, 0"); A("s_cmp_lt_u32 s5, 14"); A("s_cselect_b32 s79, s79, 0")
    A("s_lshr_b32 s14, s5, 1"); A("s_lshl_b32 s14, s14, 2"); A("s_add_u32 s11, s11, s14")
    A(f"v_bfe_u32 v{a_}, v1, 4, 1"); A(f"v_lshlrev_b32 v{a_}, 1, v{a_}"); A(f"v_and_b32 v{b_}, 7, v1"); A(f"v_xor_b32 v{a_}, v{a_}, v{b_}")
    A(f"v_xor_b32 v{b_}, 4, v{a_}"); A(f"v_lshrrev_b32 v{c_}, 3, v1")
    A(f"s_mul_i32 s14, s9, {112 * 8192}"); A("s_lshl_b32 s15, s5, 9"); A("s_add_u32 s14, s14, s15"); A("s_lshl_b32 s15, s8, 7"); A("s_add_u32 s14, s14, s15")
    A(f"v_lshl_add_u32 v{d_}, v{c_}, 13, s14")
    A(f"v_lshl_add_u32 v{vQe}, v{a_}, 4, v{d_}"); A(f"v_lshl_add_u32 v{vQo}, v{b_}, 4, v{d_}")
    A(f"s_mul_i32 s14, s81, {64 * 3584}"); A("s_lshl_b32 s15, s11, 7"); A("s_add_u32 s14, s14, s15")
    A(f"v_mul_u32_u24 v{d_}, 3584, v{c_}"); A(f"v_add_u32 v{d_}, s14, v{d_}")
    A(f"v_lshl_add_u32 v{vFe}, v{a_}, 4, v{d_}"); A(f"v_lshl_add_u32 v{vFo}, v{b_}, 4, v{d_}")
    A("s_waitcnt lgkmcnt(0)")
    A(f"s_mov_b32 s13, {wsb}"); A("s_load_dword s12, s[38:39], s13")
    srd(SX, 16, 1792); srd(SWQ, 22, 3670016); srd(SG, 32, 896); srd(SW1, 28, 1605632)
    A("s_cmp_eq_u32 s79, 1"); A(f"s_cselect_b32 s{SW1+2}, s{SW1+2}, 0")
    if svc == 0:
        for d in (SX, SWQ, SG, SW1): A(f"s_mov_b32 s{d+2}, 0")
    if svc == 0.5:
        for d in (SW1,): A(f"s_mov_b32 s{d+2}, 0")
    A(f"s_mov_b32 m0, {L_X}")
    for k in range(2): A(f"buffer_load_dwordx4 v{vL16}, s[{SX}:{SX+3}], 0 offen offset:{1024 * k} lds")
    for m in range(16):
        A(f"s_mov_b32 m0, {L_W + 1024 * m}")
        A(f"s_mov_b32 s13, {m * 65536 if m < 14 else 0x7f000000}")
        A(f"buffer_load_dwordx4 v{vQo if m & 1 else vQe}, s[{SWQ}:{SWQ+3}], s13 offen {wflags} lds")
    for m in range(8):
        A(f"s_mov_b32 m0, {L_W1 + 1024 * m}"); A(f"s_mov_b32 s13, {m * 8 * 3584}")
        A(f"buffer_load_dwordx4 v{vFo if m & 1 else vFe}, s[{SW1}:{SW1+3}], s13 offen {wflags} lds")
    GW = 24
    A(f"buffer_load_dwordx4 v[{GW}:{GW+3}], v{vL16}, s[{SG}:{SG+3}], 0 offen")
    A("s_barrier")
    srd(SWS, 38, WS_SIZE)
    A(f"v_and_b32 v{a_}, 1, v1"); A(f"v_mul_u32_u24 v{b_}, 896, v{a_}"); A(f"v_lshrrev_b32 v{a_}, 4, v1"); A(f"v_lshl_add_u32 v{b_}, v{a_}, 4, v{b_}")
    A("s_mul_i32 s14, s9, 224"); A(f"v_add_u32 v{vXq}, s14, v{b_}"); A("s_lshl_b32 s14, s81, 7"); A(f"v_add_u32 v{vXf}, s14, v{b_}")
    A(f"v_lshlrev_b32 v{b_}, 10, v{a_}"); A(f"v_bfe_u32 v{c_}, v1, 2, 2"); A(f"v_lshl_add_u32 v{b_}, v{c_}, 7, v{b_}")
    A(f"v_bfe_u32 v{c_}, v1, 1, 1"); A(f"v_lshl_add_u32 v{b_}, v{c_}, 4, v{b_}"); A(f"v_and_b32 v{c_}, 1, v1"); A(f"v_lshl_add_u32 v{b_}, v{c_}, 3, v{b_}")
    A(f"v_bfe_u32 v{c_}, v1, 3, 2")
    for cg in range(4):
        A(f"v_xor_b32 v{d_}, {cg}, v{c_}"); A(f"v_lshl_add_u32 v{vTr[cg]}, v{d_}, 5, v{b_}")
    A("s_lshl_b32 s8, s8, 9"); A("s_lshl_b32 s9, s9, 11"); A("s_add_u32 s8, s8, s9"); A("s_lshl_b32 s9, s5, 13"); A("s_add_u32 s8, s8, s9")
    A(f"s_add_u32 s8, s8, {WS_Q}"); A(f"s_add_u32 s9, s8, {16 * 8192}")
    A("s_lshl_b32 s11, s11, 12"); A("s_lshl_b32 s81, s81, 9"); A("s_add_u32 s11, s11, s81"); A(f"s_add_u32 s11, s11, {WS_H}")
    A("s_mov_b32 s82, 0xffff0000"); A("s_mov_b32 s83, 0"); A("s_mov_b32 s84, 0"); A("s_mov_b32 s85, 0xffff"); A("s_mov_b32 s86, 0"); A("s_mov_b32 s87, 0xffff0000")
    if dbg: A("s_waitcnt lgkmcnt(0)"); A("v_writelane_b32 v167, s88, 0")
    A("s_waitcnt lgkmcnt(0)"); A(f"s_add_u32 s12, s12, {TAGC}")
    XA = 28; TB = 56; D = 120; UQ = 136
    A("s_waitcnt vmcnt(25)")
    for m in range(4): A(f"ds_read_b128 v[{XA+4*m}:{XA+4*m+3}], v{vXq} offset:{L_X + 64 * m}")
    for m in range(2): A(f"ds_read_b128 v[{XA+16+4*m}:{XA+16+4*m+3}], v{vXf} offset:{L_X + 64 * m}")
    def gemv(img, steps, xa, vm_after):
        for m in range(steps):
            A(f"s_waitcnt vmcnt({vm_after + 4 * (steps - 1 - m)})")
            for cg in range(4):
                r = TB + 16 * m + 4 * cg
                A(f"ds_read_b64_tr_b16 v[{r}:{r+1}], v{vTr[cg]} offset:{img + 4096 * m}")
                A(f"ds_read_b64_tr_b16 v[{r+2}:{r+3}], v{vTr[cg]} offset:{img + 4096 * m + 512}")
            if m: mf(m - 1, xa, 8)
        mf(steps - 1, xa, 0)
        for bb in range(2):
            for cg in range(1, 4): A(f"v_cndmask_b32 v{D+bb}, v{D+bb}, v{D+4*cg+bb}, s[{80+2*cg}:{81+2*cg}]")
        for bb in range(2):
            A(f"v_mov_b32 v{UQ+4*bb}, v{D+bb}"); A(f"v_mov_b32_dpp v{UQ+4*bb+2}, v{D+bb} quad_perm:[1,1,3,3] {DPPF}")
            A(f"v_mov_b32 v{UQ+4*bb+1}, s12"); A(f"v_mov_b32 v{UQ+4*bb+3}, s12")
    def mf(m, xa, lg):
        A(f"s_waitcnt lgkmcnt({lg})")
        for cg in range(4):
            r = TB + 16 * m + 4 * cg; d = D + 4 * cg; c = "0" if m == 0 else f"v[{d}:{d+3}]"
            A(f"v_mfma_f32_16x16x32_bf16 v[{d}:{d+3}], v[{xa+4*m}:{xa+4*m+3}], v[{r}:{r+3}], {c}")
    def publish(s0, s1):
        if svc < 2: return
        A("s_mov_b32 exec_lo, 0x55555555"); A("s_mov_b32 exec_hi, 0x55555555")
        A(f"buffer_store_dwordx4 v[{UQ}:{UQ+3}], v{d_}, {WSR}, {s0} offen {lst}")
        A(f"buffer_store_dwordx4 v[{UQ+4}:{UQ+7}], v{d_}, {WSR}, {s1} offen {lst}")
        A("s_mov_b64 exec, -1")
    A(f"v_lshlrev_b32 v{d_}, 3, v1")
    gemv(L_W, 4, XA, 9)
    publish("s8", "s9")
    stamp(1)
    gemv(L_W1, 2, XA + 16, 3)
    A("s_cmp_eq_u32 s79, 0"); A("s_cbranch_scc1 L_sv_noh")
    A(f"s_add_u32 s9, s11, {28 * 4096}")
    publish("s11", "s9")
    lab("L_sv_noh")
    stamp(2)
    QP = 56
    if NG is not None: lds_wait(L_FLAG + 12, NG, "pg1", a_, b_, sleep=4, cmp="ge")
    A("s_lshl_b32 s8, s7, 13"); A(f"s_add_u32 s8, s8, {WS_Q}"); A("s_add_u32 s9, s8, 4096")
    gather("q", [(QP + 4 * k, vL16, "s9" if k >= 4 else "s8", 1024 * (k & 3), -1, -1) for k in range(8)], psleep,
           [40, 42, 44, 46, 48, 50, 82, 84])
    for hf in range(2):
        r = QP + 4 * hf
        for e in (0, 2):
            A(f"v_add_f32 v{r+e}, v{r+e}, v{r+8+e}"); A(f"v_add_f32 v{r+16+e}, v{r+16+e}, v{r+24+e}")
        for e in (0, 2): A(f"v_add_f32 v{r+e}, v{r+e}, v{r+16+e}")
        A(f"v_cvt_pk_bf16_f32 v{r}, v{r}, v{r+2}")
    A(f"v_lshlrev_b32 v{a_}, 2, v1")
    A(f"ds_write_b32 v{a_}, v{QP} offset:{L_Q}"); A(f"ds_write_b32 v{a_}, v{QP+4} offset:{L_Q + 256}")
    A(f"v_mov_b32 v{a_}, 0"); A(f"v_mov_b32 v{b_}, s12"); A(f"v_mov_b32 v{c_}, 1")
    A(f"ds_write_b32 v{a_}, v{b_} offset:{L_G + 16}")
    A(f"ds_write_b32 v{a_}, v{c_} offset:{L_FLAG}")
    stamp(3)
    TW = 100
    if touch:
        A(f"v_mov_b32 v{a_}, 0"); A("s_mov_b64 exec, 1")
        if "v" in touch:
            srd(40, 20, 0x4000000); A("s_lshl_b32 s13, s7, 21"); A("s_lshl_b32 s14, s6, 18"); A("s_add_u32 s13, s13, s14")
            for k in range(4): A(f"buffer_load_dword v{TW+k}, v{a_}, s[40:43], s13 offen nt"); A("s_add_u32 s13, s13, 65536")
        if "w" in touch:
            srd(44, 24, 3670016); A(f"s_mul_i32 s13, s10, {32 * 896}"); A(f"buffer_load_dword v{TW+4}, v{a_}, s[44:47], s13 offen nt")
            srd(48, 30, 1605632); A(f"s_mul_i32 s13, s10, {16 * 896}"); A(f"buffer_load_dword v{TW+5}, v{a_}, s[48:51], s13 offen nt")
        if "o" in touch:
            srd(SO, 34, 1792); A(f"buffer_load_dword v{TW+6}, v{a_}, s[{SO}:{SO+3}], 0 offen")
        A("s_mov_b64 exec, -1")
    if codepf:
        A("s_getpc_b64 s[14:15]"); lab("L_pc")
        A("s_sub_u32 s14, s14, L_pc-L_tail"); A("s_subb_u32 s15, s15, 0")
        A(f"v_mov_b32 v{b_}, s15"); A(f"v_add_co_u32 v{a_}, vcc, s14, v{vL16}"); A(f"v_addc_co_u32 v{b_}, vcc, 0, v{b_}, vcc")
        for k in range(codepf): A(f"global_load_dwordx4 v[{TW+8+4*k}:{TW+11+4*k}], v[{a_}:{b_}], off offset:{1024 * k}")
    XG = 28
    A("s_mul_i32 s14, s4, 896"); A(f"v_add_u32 v{a_}, s14, v{vL16}")
    A(f"ds_read_b128 v[{XG}:{XG+3}], v{a_} offset:{L_X}")
    A("s_waitcnt lgkmcnt(0)")
    A(f"v_mov_b32 v{vG}, 0")
    for k in range(4):
        A(f"v_lshlrev_b32 v{a_}, 16, v{XG+k}"); A(f"v_and_b32 v{b_}, 0xffff0000, v{XG+k}")
        A(f"v_lshlrev_b32 v{c_}, 16, v{GW+k}"); A(f"v_and_b32 v{d_}, 0xffff0000, v{GW+k}")
        A(f"v_mul_f32 v{a_}, v{a_}, v{c_}"); A(f"v_mul_f32 v{b_}, v{b_}, v{d_}")
        A(f"v_cvt_pk_bf16_f32 v{a_}, v{a_}, v{b_}")
        A(f"v_lshlrev_b32 v{b_}, 16, v{a_}"); A(f"v_and_b32 v{a_}, 0xffff0000, v{a_}")
        A(f"v_add_f32 v{vG}, v{vG}, v{b_}"); A(f"v_add_f32 v{vG}, v{vG}, v{a_}")
    A("v_cmp_gt_u32 vcc, 56, v1"); A(f"v_cndmask_b32 v{vG}, 0, v{vG}, vcc")
    wave_reduce(A, "add", vG, a_)
    A(f"v_cvt_pk_bf16_f32 v{vG}, v{vG}, v{vG}"); A(f"v_lshlrev_b32 v{vG}, 16, v{vG}")
    A(f"v_mul_f32 v{vG}, 0xbfb8aa3b, v{vG}"); A(f"v_exp_f32 v{vG}, v{vG}"); A(f"v_add_f32 v{vG}, 1.0, v{vG}"); A(f"v_rcp_f32 v{vG}, v{vG}")
    A(f"v_cvt_pk_bf16_f32 v{vG}, v{vG}, v{vG}"); A(f"v_lshlrev_b32 v{vG}, 16, v{vG}")
    A(f"v_sub_f32 v{vOG}, 1.0, v{vG}"); A(f"v_cvt_pk_bf16_f32 v{vOG}, v{vOG}, v{vOG}"); A(f"v_lshlrev_b32 v{vOG}, 16, v{vOG}")
    def checkpoint(step, region, tag):
        lds_wait(L_FLAG + 12, step, tag, a_, b_, sleep=4, cmp="ge")
        A("s_lshl_b32 s9, s10, 7"); A("s_lshl_b32 s14, s4, 14"); A("s_add_u32 s9, s9, s14"); A(f"s_add_u32 s9, s9, {region}")
        A("s_and_b32 s14, s9, 0xffffc7ff"); A(f"v_lshlrev_b32 v{c_}, 11, v1")
        for k in range(4): A(f"v_mov_b32 v{32+k}, s12")
        A("s_mov_b64 exec, 0xff"); A(f"buffer_load_dwordx4 v[40:43], v{c_}, {WSR}, s14 offen sc1")
        A(f"buffer_store_dwordx4 v[32:35], v{vL16}, {WSR}, s9 offen sc1")
        A("s_waitcnt vmcnt(1)"); A("v_cmp_eq_u32 vcc, s12, v41"); A("s_bcnt1_i32_b64 s14, vcc")
        A(f"v_mov_b32 v{a_}, 0"); A(f"v_mov_b32 v{b_}, s14"); A(f"ds_write_b32 v{a_}, v{b_} offset:{L_G + 20}")
        A("s_mov_b64 exec, -1")
    if CK1: checkpoint(CK1, wsb + 0x1E0000, "ck1")
    lds_wait(L_FLAG + 8, 8, "cnt", a_, b_, sleep=2)
    ST = 32
    def combine(m, l):
        A(f"v_mov_b32 v{a_}, v{m}")
        for ctl in ("quad_perm:[1,0,3,2]", "quad_perm:[2,3,0,1]", "row_half_mirror"): A(f"v_max_f32_dpp v{a_}, v{a_}, v{a_} {ctl} {DPPF}")
        A(f"v_sub_f32 v{b_}, v{m}, v{a_}"); A(f"v_exp_f32 v{b_}, v{b_}"); A(f"v_mul_f32 v{b_}, v{b_}, v{l}")
        for ctl in ("quad_perm:[1,0,3,2]", "quad_perm:[2,3,0,1]", "row_half_mirror"): A(f"v_add_f32_dpp v{b_}, v{b_}, v{b_} {ctl} {DPPF}")
    A(f"v_and_b32 v{c_}, 7, v1"); A(f"v_lshlrev_b32 v{c_}, 3, v{c_}")
    A(f"ds_read_b64 v[{ST+4}:{ST+5}], v{c_} offset:{L_WST}"); A("s_waitcnt lgkmcnt(0)")
    combine(ST + 4, ST + 5)
    A(f"v_mov_b32 v{ST}, v{a_}"); A(f"v_mov_b32 v{ST+1}, s12"); A(f"v_mov_b32 v{ST+2}, v{b_}"); A(f"v_mov_b32 v{ST+3}, s12")
    A("s_lshl_b32 s11, s7, 10"); A(f"s_add_u32 s11, s11, {WS_ST}"); A("s_lshl_b32 s9, s6, 7"); A("s_add_u32 s9, s9, s11")
    if bal:
        A("s_and_b32 s14, s9, 0xffffc7ff"); A(f"v_lshlrev_b32 v{c_}, 11, v1")
        A("s_mov_b64 exec, 0xff"); A(f"buffer_load_dwordx4 v[{ST+8}:{ST+11}], v{c_}, {WSR}, s14 offen sc1")
    A("s_mov_b64 exec, 0xff"); A(f"buffer_store_dwordx4 v[{ST}:{ST+3}], v{vL16}, {WSR}, s9 offen {'sc1' if bal else lst}")
    if bal:
        A("s_waitcnt vmcnt(1)"); A(f"v_cmp_eq_u32 vcc, s12, v{ST+9}"); A("s_bcnt1_i32_b64 s14, vcc")
        A(f"v_mov_b32 v{a_}, 0"); A(f"v_mov_b32 v{b_}, s14"); A(f"ds_write_b32 v{a_}, v{b_} offset:{L_G + 20}")
    A("s_mov_b64 exec, -1")
    if NS is not None: lds_wait(L_FLAG + 12, NS, "pg2", a_, b_, sleep=8, cmp="ge")
    HP = 28
    A(f"v_mov_b32 v{HP}, 0"); A(f"v_mov_b32 v{HP+2}, 0")
    A("s_cmp_ge_u32 s10, 112"); A("s_cbranch_scc1 L_sv_hz")
    A(f"v_lshrrev_b32 v{a_}, 3, v1"); A(f"v_lshlrev_b32 v{a_}, 9, v{a_}"); A(f"v_and_b32 v{b_}, 7, v1"); A(f"v_lshl_add_u32 v{a_}, v{b_}, 4, v{a_}")
    A("s_lshr_b32 s8, s10, 2"); A("s_mul_i32 s9, s4, 28"); A("s_add_u32 s8, s8, s9"); A("s_lshl_b32 s8, s8, 12")
    A("s_and_b32 s9, s10, 3"); A("s_lshl_b32 s9, s9, 7"); A("s_add_u32 s8, s8, s9"); A(f"s_add_u32 s8, s8, {WS_H}")
    gather("h", [(HP, a_, "s8", 0, -1, "0x00ffffff")], psleep, [82])
    lab("L_sv_hz")
    for k in (0, 2): A(f"v_add_f32_dpp v{HP+k}, v{HP+k}, v{HP+k} row_ror:8 {DPPF}")
    for sw in ("v_permlane16_swap_b32", "v_permlane32_swap_b32"):
        for k in (0, 2): A(f"v_mov_b32 v{HP+k+1}, v{HP+k}")
        for k in (0, 2): A(f"{sw} v{HP+k}, v{HP+k+1}")
        for k in (0, 2): A(f"v_add_f32 v{HP+k}, v{HP+k}, v{HP+k+1}")
    for k in (0, 2): A(f"v_max_f32 v{HP+k}, 0, v{HP+k}")
    A(f"v_cvt_pk_bf16_f32 v{HP}, v{HP}, v{HP}"); A(f"v_cvt_pk_bf16_f32 v{HP+1}, v{HP+2}, v{HP+2}")
    A(f"v_lshlrev_b32 v{a_}, 3, v1")
    A("s_mov_b64 exec, 0xff"); A(f"ds_write_b64 v{a_}, v[{HP}:{HP+1}] offset:{L_H}"); A("s_mov_b64 exec, -1")
    stamp(4)
    A(f"v_lshlrev_b32 v{c_}, 7, v1")
    gather("st", [(ST + 4, c_, "s11", 0, "0xff", 0)], 8, [82])
    combine(ST + 4, ST + 6)
    A(f"v_sub_f32 v{vG+2}, 0, v{a_}"); A(f"v_rcp_f32 v{vG+3}, v{b_}"); A(f"v_mul_f32 v{vG+3}, v{vG+3}, v{vG}")
    A(f"v_mov_b32 v{a_}, 0"); A(f"v_mov_b32 v{b_}, 1")
    A("s_mov_b64 exec, 1")
    A(f"ds_write_b128 v{a_}, v[{vG}:{vG+3}] offset:{L_G}")
    A(f"ds_write_b32 v{a_}, v{b_} offset:{L_FLAG + 4}")
    A("s_mov_b64 exec, -1")
    stamp(5)
    if CK3: checkpoint(CK3, wsb + 0x1E8000, "ck3")
    P0, P1 = 40, 44
    A("s_lshl_b32 s9, s7, 14"); A(f"s_add_u32 s9, s9, {WS_O}"); A("s_lshl_b32 s14, s6, 11"); A("s_add_u32 s9, s9, s14")
    A(f"v_and_b32 v{a_}, 15, v1"); A(f"v_bfe_u32 v{b_}, v1, 4, 1"); A(f"v_lshl_add_u32 v{a_}, v{a_}, 1, v{b_}"); A(f"v_lshlrev_b32 v{a_}, 2, v{a_}")
    A("s_waitcnt lgkmcnt(0)"); A("s_barrier")
    if odelay: A(f"s_sleep {odelay}")
    gather("o", [(P0, vL16, "s9", 0, -1, -1), (P1, vL16, "s9", 1024, -1, -1)], osleep, [82, 84])
    A(f"v_add_f32 v{P0}, v{P0}, v{P1}"); A(f"v_add_f32 v{P0+2}, v{P0+2}, v{P1+2}")
    A(f"v_permlane16_swap_b32 v{P0}, v{P0+2}"); A(f"v_add_f32 v{P0}, v{P0}, v{P0+2}")
    A(f"v_mov_b32 v{P0+2}, v{P0}"); A(f"v_permlane32_swap_b32 v{P0}, v{P0+2}"); A(f"v_add_f32 v{P0}, v{P0}, v{P0+2}")
    A(f"v_cvt_pk_bf16_f32 v{P0}, v{P0}, v{P0}")
    A(f"ds_write_b32 v{a_}, v{P0} offset:{L_OL}")
    A("s_waitcnt lgkmcnt(0)"); A("s_barrier")
    stamp(6)
    dump_stamps(True)
    lab("L_end")
    A("s_endpgm")

    body = pad_hazards(L)
    out = [HEADER.rstrip("\n"),
           "; Single fused launch: 256 workgroups (one per CU) x 9 waves (wave 0 = service, waves 1-8 stream K/V).",
           f"; @launch grid=(256,1,1) block=(576,1,1) lds={lds or LDS_MIN}",
           '.amdgcn_target "amdgcn-amd-amdhsa--gfx950"', ".text", f".globl {NAME}", ".p2align 8", f".type {NAME},@function", f"{NAME}:"]
    out += body
    out += ['.section .rodata,"a"', ".p2align 6", f".amdhsa_kernel {NAME}",
            "  .amdhsa_next_free_vgpr 168", "  .amdhsa_next_free_sgpr 96", "  .amdhsa_accum_offset 168",
            "  .amdhsa_group_segment_fixed_size 0", "  .amdhsa_kernarg_size 96", "  .amdhsa_user_sgpr_count 2",
            "  .amdhsa_user_sgpr_kernarg_segment_ptr 1", "  .amdhsa_system_sgpr_workgroup_id_x 1", ".end_amdhsa_kernel"]
    return "\n".join(out) + "\n"

def masks(A, M, t0, t1):
    A(f"v_and_b32 v{t0}, 1, v1"); A(f"v_lshlrev_b32 v{t0}, 4, v{t0}"); A(f"v_mov_b32 v{t1}, 0xffff"); A(f"v_lshlrev_b32 v{t1}, v{t0}, v{t1}")
    A(f"v_bfe_u32 v{t0}, v1, 1, 2")
    for r in range(4): A(f"v_cmp_eq_u32 s[{80+2*r}:{81+2*r}], {r}, v{t0}")
    for r in range(4): A(f"v_cndmask_b32 v{M[r]}, 0, v{t1}, s[{80+2*r}:{81+2*r}]")

def mask_prime(A, M, t0, t1):
    A(f"v_lshrrev_b32 v{t0}, 1, v1"); A(f"v_xor_b32 v{t0}, v{t0}, v1"); A(f"v_bfe_u32 v{t0}, v{t0}, 3, 1")
    A(f"v_add_u32 v{t0}, -1, v{t0}")
    for r in range(4): A(f"v_and_b32 v{M[r]}, v{M[r]}, v{t0}")

def red2_lane(A, d, t0):
    A(f"v_and_b32 v{t0}, 15, v1"); A(f"v_lshlrev_b32 v{d}, 5, v{t0}")
    A(f"v_lshrrev_b32 v{t0}, 5, v1"); A(f"v_lshl_add_u32 v{d}, v{t0}, 9, v{d}")
    A(f"v_bfe_u32 v{t0}, v1, 4, 1"); A(f"v_lshl_add_u32 v{d}, v{t0}, 4, v{d}")

def wave_reduce(A, op, v, t):
    for ctl in ("quad_perm:[1,0,3,2]", "quad_perm:[2,3,0,1]", "row_half_mirror", "row_mirror"):
        A(f"v_{op}_f32_dpp v{v}, v{v}, v{v} {ctl} {DPPF}")
    for sw in ("v_permlane16_swap_b32", "v_permlane32_swap_b32"):
        A(f"v_mov_b32 v{t}, v{v}"); A(f"{sw} v{v}, v{t}"); A(f"v_{op}_f32 v{v}, v{v}, v{t}")

if __name__ == "__main__":
    kw = eval("dict(%s)" % (sys.argv[2] if len(sys.argv) > 2 else ""))
    open(sys.argv[1], "w").write(gen(**kw))
```

```python
import sys
sys.path.insert(0, "dev")
from asmlib import pad_hazards

NAME = "gated_mix__mha_block_cached__dense_activation_relu__decode_kernel"
HEADER = open("gated_mix__mha_block_cached__dense_activation_relu__decode.s.ref").read().split("; Override launch")[0]

WS_ST = 0x1F0000
WS_H = 0x8000
WS_Q = 0x40000
WS_O = 0x80000
WS_Y = 0x100000
WS_DBG = 0x400000
WS_SIZE = 268435456
L_W = 0x0000
L_W1 = 0x4000
L_RED1 = 0x0000
L_X = 0x6000
L_Q = 0x6800
L_H = 0x6A00
L_G = 0x6A40
L_FLAG = 0x6A80
L_WST = 0x6AC0
L_FIN = 0x6C00
L_OL = 0x6B00
L_PW = 0x7000
L_RED2 = 0x8000
LDS_MIN = L_RED2 + 8 * 2048
TAGC = 0x9E3779B9
SPIN_MAX = 1 << 18
DPPF = "row_mask:0xf bank_mask:0xf"
CEXP = "0x3db8aa3b"

def gen(LIM=2, LIMV=None, NQ=24, CQ=3, CP=3, R=33, NF=62, dbg=False, hdbg=False, diag=None,
        psleep=2, osleep=0, fsleep=0, svc=9, kflags="nt", wflags="nt", lds=None, LE=None, NG=12, NS=46, rot=None, early=False, dbase=10000, pp=1, pgap=8, wsb=0, diag2=None, xmap=0, spread=0, LP=None, kmap=0, ofl='', pat='tp w0 w1 w2 b0 b1 b2 s0 s1 s2', touch='', codepf=False, late_w=False, odelay=0, lite=False, endop=None, lst='sc1', bal=None, CK1=None, CK3=None, loc=False, kfirst=False, lretry=3, anlate=False):
    if LIMV is None: LIMV = LIM
    WS_ST, WS_H, WS_Q, WS_O, WS_Y, WS_A = (x + wsb for x in (0x1F0000, 0x8000, 0x40000, 0x80000, 0x100000, 0x1F8000))
    L = []
    A = lambda s: L.append("  " + s)
    lab = lambda s: L.append(s + ":")
    def srd(d, p, nbytes):
        A(f"s_mov_b32 s{d}, s{p}"); A(f"s_mov_b32 s{d+1}, s{p+1}"); A(f"s_mov_b32 s{d+2}, {nbytes}"); A(f"s_mov_b32 s{d+3}, 0x20000")
    SK, SV, SWO, SWS, SWQ, SW1, SW2, SX, SG, SO = 40, 44, 48, 52, 56, 60, 64, 68, 72, 76
    WSR = f"s[{SWS}:{SWS+3}]"
    if diag is not None: hdbg = True
    if diag2 is not None: dbg = True
    if hdbg: dbg = True
    def stamp(idx):
        if dbg:
            A("s_memrealtime s[90:91]"); A("s_waitcnt lgkmcnt(0)"); A(f"v_writelane_b32 v167, s90, {idx}")
    def dump_stamps(service=False):
        if hdbg:
            A("s_mov_b32 s92, s36"); A("s_mov_b32 s93, s37"); A("s_mov_b32 s94, 256"); A("s_mov_b32 s95, 0x20000")
            A("v_not_b32 v165, v167"); A("v_cmp_eq_u32 vcc, 0, v1"); A("v_cndmask_b32 v167, v167, v165, vcc")
            A("v_lshlrev_b32 v166, 2, v1")
            if service: A("v_add_u32 v166, 64, v166"); A("s_mov_b64 exec, 0x3e")
            else: A("s_mov_b64 exec, 0xffff")
            A("buffer_atomic_umax v167, v166, s[92:95], 0 offen"); A("s_mov_b64 exec, -1")
        elif dbg:
            if diag2 is not None and not service:
                tg = "s" if service else "m"
                A("s_add_u32 s84, s88, 4500"); lab(f"L_dd_{tg}"); A("s_sleep 8")
                A("s_memrealtime s[90:91]"); A("s_waitcnt lgkmcnt(0)"); A("s_sub_u32 s85, s90, s84"); A("s_cmp_lt_i32 s85, 0"); A(f"s_cbranch_scc1 L_dd_{tg}")
            A("s_mul_i32 s92, s2, 9"); A("s_add_u32 s92, s92, s93"); A("s_lshl_b32 s92, s92, 8"); A(f"s_add_u32 s92, s92, {WS_DBG}")
            A("v_lshlrev_b32 v166, 2, v1"); A(f"buffer_store_dword v167, v166, {WSR}, s92 offen sc1")
    if dbg: R = min(R, 32)
    def spin_tail(label, sleep):
        if sleep: A(f"s_sleep {sleep}")
        A("s_sub_u32 s80, s80, 1"); A("s_cmp_lg_u32 s80, 0"); A(f"s_cbranch_scc1 {label}")
    def lds_wait(off, val, tag, ta, tb, sleep=1, cmp="eq"):
        A(f"v_mov_b32 v{ta}, 0"); A(f"s_mov_b32 s80, {SPIN_MAX}")
        lab(f"L_wait_{tag}")
        A(f"ds_read_b32 v{tb}, v{ta} offset:{off}"); A("s_waitcnt lgkmcnt(0)"); A(f"v_readfirstlane_b32 s81, v{tb}")
        A(f"s_cmp_{cmp}_u32 s81, {val}"); A(f"s_cbranch_scc1 L_got_{tag}")
        spin_tail(f"L_wait_{tag}", sleep)
        lab(f"L_got_{tag}")
    def gather(tag, items, sleep, pool):
        if svc < {"q": 3, "h": 4, "st": 5}.get(tag, 0):
            A("s_waitcnt vmcnt(0)"); return
        assert len(pool) >= len(items)
        for (reg, va, so, imm, lo, hi), ms in zip(items, pool): A(f"s_mov_b32 s{ms}, {lo}"); A(f"s_mov_b32 s{ms+1}, {hi}")
        A(f"s_mov_b32 s80, {SPIN_MAX}")
        lab(f"L_g_{tag}")
        for k, ((reg, va, so, imm, lo, hi), ms) in enumerate(zip(items, pool)):
            A(f"s_mov_b64 exec, s[{ms}:{ms+1}]")
            if len(items) > 1: A(f"s_cbranch_execz L_g_{tag}_s{k}")
            A(f"buffer_load_dwordx4 v[{reg}:{reg+3}], v{va}, {WSR}, {so} offen offset:{imm} sc1")
            if len(items) > 1: lab(f"L_g_{tag}_s{k}")
        A("s_waitcnt vmcnt(0)")
        for k, ((reg, va, so, imm, lo, hi), ms) in enumerate(zip(items, pool)):
            if len(items) > 1: A(f"s_mov_b64 exec, s[{ms}:{ms+1}]")
            A(f"v_cmp_ne_u32 vcc, s12, v{reg+1}"); A(f"v_cmp_ne_u32 s[{ms}:{ms+1}], s12, v{reg+3}")
            A(f"s_or_b64 s[{ms}:{ms+1}], s[{ms}:{ms+1}], vcc")
            if k == 0: A(f"s_mov_b64 s[14:15], s[{ms}:{ms+1}]")
            else: A(f"s_or_b64 s[14:15], s[14:15], s[{ms}:{ms+1}]")
        A("s_cmp_eq_u64 s[14:15], 0"); A(f"s_cbranch_scc1 L_g_{tag}_ok")
        spin_tail(f"L_g_{tag}", sleep)
        lab(f"L_g_{tag}_ok")
        A("s_mov_b64 exec, -1")

    nst = [0]
    def xstore(stores):
        if not loc:
            for st_ in stores: A(st_ + " " + lst)
            return
        nst[0] += 1
        A("s_cmp_eq_u32 s78, 1"); A(f"s_cbranch_scc1 L_xl{nst[0]}")
        for st_ in stores: A(st_ + " sc1")
        A(f"s_branch L_xd{nst[0]}"); lab(f"L_xl{nst[0]}")
        for st_ in stores: A(st_)
        lab(f"L_xd{nst[0]}")
    def poll_issue(sets, k, items):
        for j, (va, so, imm) in enumerate(items):
            r = sets[k] + 4 * j
            A(f"buffer_load_dwordx4 v[{r}:{r+3}], v{va}, {WSR}, {so} offen offset:{imm} sc1")
    def poll_loop(tag, sets, items, first):
        n = len(sets); ni = len(items)
        for k in range(1, n):
            if pgap: A(f"s_sleep {pgap}")
            poll_issue(sets, k, items)
        A(f"s_mov_b32 s80, {SPIN_MAX}")
        lab(f"L_p_{tag}")
        for k in range(n):
            A(f"s_waitcnt vmcnt({(n - 1) * ni})")
            for j in range(ni):
                r = sets[k] + 4 * j
                A(f"v_cmp_ne_u32 {'vcc' if j == 0 else 's[84:85]'}, s12, v{r+1}"); A(f"v_cmp_ne_u32 s[{82 + 4 * j}:{83 + 4 * j}], s12, v{r+3}")
            if ni == 2: A("s_or_b64 vcc, vcc, s[84:85]"); A("s_or_b64 vcc, vcc, s[86:87]")
            A("s_or_b64 vcc, vcc, s[82:83]")
            A(f"s_cbranch_scc0 L_p_{tag}_ok{k}")
            poll_issue(sets, k, items)
        A("s_sub_u32 s80, s80, 1"); A("s_cmp_lg_u32 s80, 0"); A(f"s_cbranch_scc1 L_p_{tag}")
        A("s_waitcnt vmcnt(0)")
        for k in range(n):
            lab(f"L_p_{tag}_ok{k}")
            first(sets[k])
            if k < n - 1: A(f"s_branch L_p_{tag}_done")
        lab(f"L_p_{tag}_done")
        A("s_nop 1")

    if (dbg and early) or lite: A("s_memrealtime s[88:89]")
    A("s_cmp_ge_u32 s2, 256"); A("s_cbranch_scc1 L_end")
    A("s_load_dwordx16 s[16:31], s[0:1], 0")
    A("s_load_dwordx8 s[32:39], s[0:1], 64")
    A("v_lshrrev_b32 v2, 6, v0"); A("v_and_b32 v1, 63, v0")
    A("v_readfirstlane_b32 s3, v2")
    A("s_and_b32 s14, s2, 7"); A("s_lshr_b32 s15, s2, 3")
    if xmap: A(f"s_xor_b32 s14, s14, {xmap}")
    if spread:
        mk = (1 << spread) - 1
        sh = 3 - spread
        A(f"s_lshr_b32 s4, s14, {sh}"); A(f"s_and_b32 s5, s15, {mk}"); A("s_xor_b32 s6, s4, s5")
        A("s_xor_b32 s15, s15, s6"); A(f"s_lshl_b32 s6, s6, {sh}"); A("s_xor_b32 s14, s14, s6")
    A("s_lshr_b32 s4, s15, 4")
    A("s_bfe_u32 s5, s15, 0x10003"); A("s_lshl_b32 s14, s14, 1"); A("s_add_u32 s5, s5, s14")
    A("s_and_b32 s6, s15, 7")
    A("s_lshl_b32 s7, s4, 4"); A("s_add_u32 s7, s7, s5")
    A("s_lshl_b32 s10, s5, 3"); A("s_add_u32 s10, s10, s6")
    if dbg:
        A("s_mov_b32 s93, s3"); A("v_mov_b32 v167, 0")
        if not early: A("s_memrealtime s[88:89]")
    A("s_cmp_eq_u32 s3, 0"); A("s_cbranch_scc1 L_service")

    A("s_sub_u32 s3, s3, 1")
    vK, vV, vWo, vW2, t0, t1 = 2, 3, 4, 5, 6, 7
    M = [8, 9, 10, 11]; Q = [12, 16]; DB = [20, 24]; AB = [20, 24]; SG_ = [28, 29, 30, 31]; ACC = 32
    vMW = 12; vE = [13, 14, 15, 16]; vLW = 17
    RING = 36
    A(f"v_bfe_u32 v{t0}, v1, 2, 2"); A(f"v_lshlrev_b32 v{vK}, 9, v{t0}")
    A(f"v_lshrrev_b32 v{t0}, 4, v1"); A(f"v_lshl_add_u32 v{vK}, v{t0}, 6, v{vK}")
    A(f"v_and_b32 v{t0}, 3, v1"); A(f"v_lshl_add_u32 v{vK}, v{t0}, 4, v{vK}")
    PB = {t: 11 + k for k, t in enumerate(pat.split())}
    A("s_lshl_b32 s8, s7, 21")
    for reg, nm in (("s3", "w"), ("s6", "s")):
        k = 0
        while k < 3:
            e = k
            while e < 2 and PB[f"{nm}{e+1}"] == PB[f"{nm}{e}"] + 1: e += 1
            A(f"s_bfe_u32 s14, {reg}, {hex(((e - k + 1) << 16) + k)}"); A(f"s_lshl_b32 s14, s14, {PB[f'{nm}{k}']}"); A("s_add_u32 s8, s8, s14")
            k = e + 1
    def toff(beta, tp):
        o = (tp << PB["tp"]) | ((beta & 1) << PB["b0"]) | (((beta >> 1) & 1) << PB["b1"]) | ((beta >> 2) << PB["b2"])
        return o & ~0xfff, o & 0xfff
    A(f"v_add_u32 v{vK}, s8, v{vK}")
    A("s_waitcnt lgkmcnt(0)")
    srd(SK, 18, 0x4000000)

    loads = [("K", beta, tp, jh) for beta in range(8) for tp in range(2) for jh in range(2)]
    loads += [("V", beta, tp, kp) for beta in range(8) for tp in range(2) for kp in range(2)]
    loads += [("F", cb) for cb in range(2)] + [("W", r, cb) for r in range(2) for cb in range(2)]
    free = list(range(R)); slot = {}
    nissued = [0]; landed = [-1]; cur_soff = [None]
    if rot:
        A(f"s_mul_i32 s11, s2, {rot}"); A("s_lshr_b32 s14, s2, 3"); A("s_add_u32 s11, s11, s14"); A("s_and_b32 s11, s11, 7"); A("s_lshl_b32 s11, s11, 15")
    def soff(val):
        if val == 0 and not rot: return "0"
        if cur_soff[0] != val:
            if rot: A(f"s_add_u32 s13, s11, {val}"); A("s_and_b32 s13, s13, 0x3ffff")
            else: A(f"s_mov_b32 s13, {val}")
            cur_soff[0] = val
        return "s13"
    def wait_landed(n):
        if n <= landed[0]: return
        A(f"s_waitcnt vmcnt({nissued[0] - 1 - n})"); landed[0] = n
    def issue(n):
        ld = loads[n]; sl = free.pop(0); slot[n] = sl; r = RING + 4 * sl
        if ld[0] == "K":
            A(f"buffer_load_dwordx4 v[{r}:{r+3}], v{vK}, s[{SK}:{SK+3}], {soff(toff(ld[1], ld[2])[0])} offen offset:{toff(ld[1], ld[2])[1] + ld[3] * 256} {kflags}")
        elif ld[0] == "V":
            A(f"buffer_load_dwordx4 v[{r}:{r+3}], v{vV}, s[{SV}:{SV+3}], {soff(toff(ld[1], ld[2])[0])} offen offset:{toff(ld[1], ld[2])[1] + ld[3] * 1024} {kflags}")
        elif ld[0] == "W":
            A(f"buffer_load_dwordx4 v[{r}:{r+3}], v{vWo}, s[{SWO}:{SWO+3}], 0 offen offset:{ld[1] * 896 + ld[2] * 512} {wflags}")
        else:
            A(f"buffer_load_dwordx4 v[{r}:{r+3}], v{vW2}, s[{SW2}:{SW2+3}], 0 offen offset:{ld[1] * 512} {wflags}")
        nissued[0] += 1
    sreg = lambda n: RING + 4 * slot[n]
    qk_next = [0]; qk_post = [None]; pv_next = [0]; pslot = {}
    def qk_dpp(tau):
        beta, tp = tau >> 1, tau & 1; G = beta >> 1; t = 2 * (beta & 1) + tp; d = DB[tau & 1]
        A(f"v_mov_b32_dpp v{t0}, v{d} quad_perm:[0,0,0,0] {DPPF}")
        A(f"v_add_f32_dpp v{t0}, v{d+1}, v{t0} quad_perm:[1,1,1,1] {DPPF}")
        A(f"v_add_f32_dpp v{t0}, v{d+2}, v{t0} quad_perm:[2,2,2,2] {DPPF}")
        A(f"v_add_f32_dpp v{SG_[G]}, v{d+3}, v{t0} quad_perm:[3,3,3,3] row_mask:0xf bank_mask:{hex(1 << t)}")
    def qk_tile(tau):
        d = DB[tau & 1]; a0 = sreg(2 * tau); a1 = sreg(2 * tau + 1)
        A(f"v_mfma_f32_16x16x32_bf16 v[{d}:{d+3}], v[{a0}:{a0+3}], v[{Q[0]}:{Q[0]+3}], 0")
        A(f"v_mfma_f32_16x16x32_bf16 v[{d}:{d+3}], v[{a1}:{a1+3}], v[{Q[1]}:{Q[1]+3}], v[{d}:{d+3}]")
        free.extend([slot[2 * tau], slot[2 * tau + 1]])
        if qk_post[0] is not None: qk_dpp(qk_post[0])
        qk_post[0] = tau
    def red_hi(op, v, t):
        for ctl in ("row_ror:4", "row_ror:8"): A(f"v_{op}_f32_dpp v{v}, v{v}, v{v} {ctl} {DPPF}")
        for sw in ("v_permlane16_swap_b32", "v_permlane32_swap_b32"):
            A(f"v_mov_b32 v{t}, v{v}"); A(f"{sw} v{v}, v{t}"); A(f"v_{op}_f32 v{v}, v{v}, v{t}")
    def sm_a():
        qk_dpp(qk_post[0]); qk_post[0] = None
        S = SG_
        A(f"v_cvt_pk_bf16_f32 v{t0}, v{S[0]}, v{S[1]}"); A(f"v_cvt_pk_bf16_f32 v{t1}, v{S[2]}, v{S[3]}")
        A(f"v_lshlrev_b32 v{S[0]}, 16, v{t0}"); A(f"v_and_b32 v{S[1]}, 0xffff0000, v{t0}")
        A(f"v_lshlrev_b32 v{S[2]}, 16, v{t1}"); A(f"v_and_b32 v{S[3]}, 0xffff0000, v{t1}")
        A(f"v_max3_f32 v{vMW}, v{S[0]}, v{S[1]}, v{S[2]}"); A(f"v_max_f32 v{vMW}, v{vMW}, v{S[3]}")
        red_hi("max", vMW, t0)
    def sm_b():
        S = SG_
        A(f"s_mov_b32 s81, {CEXP}"); A(f"v_mul_f32 v{vMW}, s81, v{vMW}")
        for k in range(4): A(f"v_fma_f32 v{vE[k]}, v{S[k]}, s81, -v{vMW}")
        for k in range(4): A(f"v_exp_f32 v{vE[k]}, v{vE[k]}")
        A("s_lshl_b32 s14, s3, 8"); A(f"v_lshl_add_u32 v{t1}, v1, 2, s14")
        for k in range(4): A(f"v_cvt_pk_bf16_f32 v{S[k]}, v{vE[k]}, v{vE[k]}")
        A("s_mov_b32 exec_lo, 0x11111111"); A("s_mov_b32 exec_hi, 0x11111111")
        A(f"ds_write_b128 v{t1}, v[{S[0]}:{S[3]}] offset:{L_PW}")
        A("s_mov_b64 exec, -1")
        A(f"v_lshrrev_b32 v{t1}, 5, v1"); A(f"v_lshl_add_u32 v{t1}, v{t1}, 6, s14")
        for t in range(4):
            for kp in range(2):
                sl = free.pop(0); pslot[(t, kp)] = sl; r = RING + 4 * sl
                A(f"ds_read_b128 v[{r}:{r+3}], v{t1} offset:{L_PW + (8 * kp + t) * 16}")
        A(f"v_add_f32 v{vLW}, v{vE[0]}, v{vE[1]}"); A(f"v_add_f32 v{t0}, v{vE[2]}, v{vE[3]}"); A(f"v_add_f32 v{vLW}, v{vLW}, v{t0}")
    def sm_c():
        red_hi("add", vLW, t0)
        A(f"v_mov_b32 v{vMW+1}, v{vLW}")
        A("s_lshl_b32 s14, s3, 3"); A(f"v_mov_b32 v{t0}, s14"); A(f"v_mov_b32 v{t1}, 1"); A(f"v_mov_b32 v{vE[2]}, 0")
        A("s_mov_b64 exec, 1")
        A(f"ds_write_b64 v{t0}, v[{vMW}:{vMW+1}] offset:{L_WST}")
        A(f"ds_add_u32 v{vE[2]}, v{t1} offset:{L_FLAG + 8}")
        A("s_mov_b64 exec, -1")
        A("s_waitcnt lgkmcnt(0)")
        stamp(3)
    def pv_tile(m):
        beta, tp, kp = m >> 2, (m >> 1) & 1, m & 1; G = beta >> 1; t = 2 * (beta & 1) + tp
        a = AB[m & 1]; p = RING + 4 * pslot[(t, kp)] + G; bv = sreg(32 + m)
        for r in range(4): A(f"v_and_b32 v{a+r}, v{p}, v{M[r]}")
        c = "0" if m == 0 else f"v[{ACC}:{ACC+3}]"
        A(f"v_mfma_f32_16x16x32_bf16 v[{ACC}:{ACC+3}], v[{a}:{a+3}], v[{bv}:{bv+3}], {c}")
        free.append(slot[32 + m])
    vFS = 18; vHP = 19
    GG = 14
    def fetch_stats():
        stamp(4); lds_wait(L_FLAG + 4, 1, "st", t0, t1); stamp(5)
        A(f"ds_read_b128 v[14:17], v{t0} offset:{L_G}")
        A(f"v_lshrrev_b32 v{t1}, 5, v1"); A("s_lshl_b32 s14, s3, 3"); A(f"v_lshl_add_u32 v{t1}, v{t1}, 2, s14")
        A(f"ds_read_b32 v{vHP}, v{t1} offset:{L_H}")
        A("s_waitcnt lgkmcnt(0)")
        if loc: A("v_readfirstlane_b32 s78, v14")
        A(f"v_add_f32 v{vFS}, v{vMW}, v16"); A(f"v_exp_f32 v{vFS}, v{vFS}"); A(f"v_mul_f32 v{vFS}, v{vFS}, v17")

    N = len(loads); chunks = [sm_a, sm_b, sm_c]; sm_done = False
    for n in range(64 if late_w else N):
        if n < 64:
            lim = LIM if n < 32 else LIMV
            if LP: lim = LP[n % len(LP)]
            if LE and n >= LE[0]: lim = LE[1]
            if bal and n >= bal["at"][0]:
                if n in bal["at"]:
                    A(f"v_mov_b32 v{t0}, 0"); A(f"ds_read_b32 v{t1}, v{t0} offset:{L_G + 20}"); A("s_waitcnt lgkmcnt(0)"); A(f"v_readfirstlane_b32 s9, v{t1}")
                wl = bal["wl"]
                for k_, (w_, th_) in enumerate(zip(wl[:-1], bal["th"])):
                    w_ = w_[n % len(w_)] if isinstance(w_, tuple) else w_
                    A(f"s_cmp_ge_u32 s9, {th_}"); A(f"s_cbranch_scc1 L_bal{n}_{k_}"); A(f"s_waitcnt vmcnt({w_})"); lab(f"L_bal{n}_{k_}")
                wait_landed(n - wl[-1] - 1)
            elif n > max(lim, LIM): wait_landed(n - lim - 1)
        if n in (LIM + 1, 8, 16, 48): stamp({LIM + 1: 12, 8: 13, 16: 14, 48: 15}[n])
        if n == NQ:
            stamp(1)
            lds_wait(L_FLAG, 1, "q", t0, t1)
            A(f"v_lshrrev_b32 v{t0}, 4, v1"); A(f"v_and_b32 v{t1}, 3, v1"); A(f"v_lshl_add_u32 v{t0}, v{t0}, 2, v{t1}"); A(f"v_lshlrev_b32 v{t0}, 4, v{t0}")
            A(f"ds_read_b128 v[{Q[0]}:{Q[0]+3}], v{t0} offset:{L_Q}")
            A(f"ds_read_b128 v[{Q[1]}:{Q[1]+3}], v{t0} offset:{L_Q + 256}")
            A(f"v_mov_b32 v{t0}, 0"); A(f"ds_read_b32 v{t1}, v{t0} offset:{L_G + 16}")
            A("s_waitcnt lgkmcnt(0)"); A(f"v_readfirstlane_b32 s12, v{t1}")
            stamp(2)
        assert free, f"no free slot at load {n}"
        issue(n)
        if n == LIM:
            srd(SV, 20, 0x4000000); srd(SWO, 24, 3670016); srd(SW2, 30, 1605632); srd(SWS, 38, WS_SIZE)
            A("s_barrier")
            A(f"v_lshl_add_u32 v{vV}, v1, 4, s8")
            A(f"v_and_b32 v{t0}, 31, v1"); A(f"v_lshlrev_b32 v{t0}, 4, v{t0}"); A(f"v_lshrrev_b32 v{t1}, 5, v1")
            A(f"v_mul_u32_u24 v{vWo}, 1792, v{t1}"); A(f"v_add_u32 v{vWo}, v{vWo}, v{t0}")
            A(f"v_mul_u32_u24 v{vW2}, 896, v{t1}"); A(f"v_add_u32 v{vW2}, v{vW2}, v{t0}")
            A("s_lshl_b32 s14, s10, 5"); A("s_lshl_b32 s15, s3, 2"); A("s_add_u32 s14, s14, s15"); A("s_mul_i32 s14, s14, 896")
            A(f"v_add_u32 v{vWo}, s14, v{vWo}")
            A("s_lshl_b32 s14, s10, 4"); A("s_lshl_b32 s15, s3, 1"); A("s_add_u32 s14, s14, s15"); A("s_mul_i32 s14, s14, 896")
            A(f"v_add_u32 v{vW2}, s14, v{vW2}")
            masks(A, M, t0, t1); mask_prime(A, M, t0, t1)
            if dbg: A("s_waitcnt lgkmcnt(0)"); A("v_writelane_b32 v167, s88, 0")
            if diag2 is not None:
                A("s_getreg_b32 s14, hwreg(HW_REG_XCC_ID)"); A("s_and_b32 s14, s14, 15"); A("s_and_b32 s15, s2, 7"); A("s_cmp_eq_u32 s14, s15")
                A("s_cselect_b32 s14, 1000, 1"); A("s_add_u32 s14, s14, s88"); A("v_writelane_b32 v167, s14, 16")
        if n >= NQ and not sm_done:
            c = 0
            while qk_next[0] < 16 and c < CQ and 2 * qk_next[0] + 1 <= landed[0]:
                qk_tile(qk_next[0]); qk_next[0] += 1; c += 1
            if qk_next[0] == 16:
                chunks.pop(0)()
                sm_done = not chunks
        elif sm_done:
            c = 0
            while pv_next[0] < 32 and c < CP and 32 + pv_next[0] <= landed[0]:
                pv_tile(pv_next[0]); pv_next[0] += 1; c += 1
        if n == NF: fetch_stats()
        if n in (NG, NS, CK1, CK3):
            A(f"v_mov_b32 v{t0}, 0"); A(f"v_mov_b32 v{t1}, {n}")
            A("s_mov_b64 exec, 1"); A(f"ds_max_u32 v{t0}, v{t1} offset:{L_FLAG + 12}"); A("s_mov_b64 exec, -1")
    assert sm_done
    vRw, vO, vY, vR1 = vK, vV, 13, 16
    red2_lane(A, vRw, t0)
    A("s_lshl_b32 s14, s3, 10"); A(f"v_add_u32 v{vR1}, s14, v{vRw}")
    A("s_lshl_b32 s14, s3, 11"); A(f"s_add_u32 s14, s14, {L_RED2}"); A(f"v_add_u32 v{vRw}, s14, v{vRw}")
    A("s_lshl_b32 s14, s3, 6"); A(f"v_add_u32 v{vY}, s14, v1")
    A(f"v_lshrrev_b32 v{t0}, 4, v{vY}"); A(f"v_lshlrev_b32 v{vO}, 11, v{t0}"); A(f"v_and_b32 v{t0}, 15, v1"); A(f"v_lshl_add_u32 v{vO}, v{t0}, 4, v{vO}")
    A("s_lshl_b32 s9, s7, 14"); A(f"s_add_u32 s9, s9, {WS_O}"); A("s_lshl_b32 s14, s6, 8"); A("s_add_u32 s11, s9, s14")
    while pv_next[0] < 32:
        wait_landed(32 + pv_next[0]); pv_tile(pv_next[0]); pv_next[0] += 1
    lab("L_tail")
    if late_w == 3:
        for n in range(64, N): issue(n)
    stamp(6)
    A(f"v_lshlrev_b32 v{t0}, 3, v{vY}")
    for k in range(4): A(f"v_mul_f32 v{ACC+k}, v{vFS}, v{ACC+k}")
    A(f"ds_write_b128 v{vR1}, v[{ACC}:{ACC+3}] offset:{L_RED1}")
    A("s_waitcnt lgkmcnt(0)"); A("s_barrier")
    if late_w in (1, 2):
        free[:] = sorted(free + list(pslot.values())); pslot.clear()
        held = free[-6:]; del free[-6:]
    fr = [RING + 4 * s_ for s_ in sorted(free + list(pslot.values()))]
    run = [r for r in fr if all(r + 4 * k in fr for k in range(4))][0]
    rest = [r for r in fr if not run <= r < run + 16]
    FS = []
    for _ in range(pp):
        r = [r for r in rest if r + 4 in rest][0]; FS.append(r); rest.remove(r); rest.remove(r + 4)
    PS = rest[:pp]; assert len(PS) == pp
    Y = run; U = 20
    if late_w == 2:
        free[:] = held
        for n in range(64, N): issue(n)
    A("s_cmp_ge_u32 s3, 2"); A("s_cbranch_scc1 L_odone")
    for k in range(8): A(f"ds_read_b64 v[{Y+2*k}:{Y+2*k+1}], v{t0} offset:{L_RED1 + 1024 * k}")
    A(f"v_mov_b32 v{U+1}, s12"); A(f"v_mov_b32 v{U+3}, s12")
    A("s_waitcnt lgkmcnt(0)")
    for st in (1, 2):
        for k in range(0, 8, 2 * st):
            for c_ in range(2): A(f"v_add_f32 v{Y+2*k+c_}, v{Y+2*k+c_}, v{Y+2*(k+st)+c_}")
    A(f"v_add_f32 v{U}, v{Y}, v{Y+8}"); A(f"v_add_f32 v{U+2}, v{Y+1}, v{Y+9}")
    xstore([f"buffer_store_dwordx4 v[{U}:{U+3}], v{vO}, {WSR}, s11 offen"])
    lab("L_odone")
    if late_w == 1:
        free[:] = held
        for n in range(64, N): issue(n)
    stamp(7)
    OG = 28; DA, DBb = Y, Y + 4
    for q in range(4): A(f"v_and_b32 v{ACC+q}, v{vHP}, v{M[q]}")
    A(f"v_add_u32 v{t0}, {L_RED2}, v{t0}")
    A(f"v_lshrrev_b32 v{t1}, 5, v1"); A("s_lshl_b32 s14, s3, 4"); A(f"v_lshl_add_u32 v{t1}, v{t1}, 3, s14")
    A("s_waitcnt vmcnt(4)")
    for cb, d in ((0, DA), (1, DBb)):
        bw = sreg(64 + cb); A(f"v_mfma_f32_16x16x32_bf16 v[{d}:{d+3}], v[{ACC}:{ACC+3}], v[{bw}:{bw+3}], 0")
    for k in range(8): A(f"v_mul_f32 v{DA+k}, v15, v{DA+k}")
    if late_w == 1: A("s_waitcnt vmcnt(0) lgkmcnt(0)")
    else: A("s_cmp_lt_u32 s3, 2"); A("s_cbranch_scc1 L_ow1"); A("s_waitcnt vmcnt(0)"); lab("L_ow1"); A("s_waitcnt vmcnt(1) lgkmcnt(0)")
    A("s_barrier")
    A(f"ds_read_b64 v[{OG}:{OG+1}], v{t1} offset:{L_OL}")
    stamp(8)
    A("s_waitcnt lgkmcnt(0)")
    for r in range(2):
        for q in range(4): A(f"v_and_b32 v{AB[r]+q}, v{OG+r}, v{M[q]}")
    for r in range(2):
        for cb, d in ((0, DA), (1, DBb)):
            bw = sreg(66 + 2 * r + cb)
            A(f"v_mfma_f32_16x16x32_bf16 v[{d}:{d+3}], v[{AB[r]}:{AB[r]+3}], v[{bw}:{bw+3}], v[{d}:{d+3}]")
    A(f"ds_write_b128 v{vRw}, v[{DA}:{DA+3}]"); A(f"ds_write_b128 v{vRw}, v[{DBb}:{DBb+3}] offset:1024")
    A("s_waitcnt lgkmcnt(0)"); A("s_barrier")
    A("s_cmp_ge_u32 s3, 4"); A("s_cbranch_scc1 L_ydone")
    for k in range(8): A(f"ds_read_b64 v[{Y+2*k}:{Y+2*k+1}], v{t0} offset:{2048 * k}")
    A(f"v_cmp_gt_u32 vcc, 224, v{vY}")
    A(f"v_lshrrev_b32 v{t1}, 3, v{vY}"); A(f"v_lshlrev_b32 v{vO}, 14, v{t1}")
    A(f"v_and_b32 v{t1}, 7, v1"); A(f"v_lshl_add_u32 v{vO}, v{t1}, 4, v{vO}")
    A(f"s_mul_i32 s14, s4, {28 * 16384}"); A("s_lshl_b32 s15, s10, 7"); A("s_add_u32 s14, s14, s15"); A(f"s_add_u32 s14, s14, {WS_Y}")
    A(f"v_mov_b32 v{U+1}, s12"); A(f"v_mov_b32 v{U+3}, s12")
    A("s_waitcnt lgkmcnt(0)")
    for st in (1, 2):
        for k in range(0, 8, 2 * st):
            for c_ in range(2): A(f"v_add_f32 v{Y+2*k+c_}, v{Y+2*k+c_}, v{Y+2*(k+st)+c_}")
    A(f"v_add_f32 v{U}, v{Y}, v{Y+8}"); A(f"v_add_f32 v{U+2}, v{Y+1}, v{Y+9}")
    A("s_and_saveexec_b64 s[82:83], vcc")
    A(f"buffer_store_dwordx4 v[{U}:{U+3}], v{vO}, {WSR}, s14 offen sc1")
    A("s_mov_b64 exec, s[82:83]")
    lab("L_ydone")
    stamp(9)
    A("s_cmp_ge_u32 s2, 56"); A("s_cbranch_scc1 L_fin_skip")
    A("s_lshl_b32 s13, s2, 14"); A("s_lshl_b32 s15, s3, 11"); A("s_add_u32 s13, s13, s15"); A(f"s_add_u32 s13, s13, {WS_Y}")
    A(f"v_lshlrev_b32 v{t0}, 4, v1")
    F = 24
    gather("fin", [(F, t0, "s13", 0, -1, -1), (F + 4, t0, "s13", 1024, -1, -1)], fsleep, [82, 84])
    srd(SO, 34, 1792)
    A(f"v_add_f32 v{F}, v{F}, v{F+4}"); A(f"v_add_f32 v{F+2}, v{F+2}, v{F+6}")
    stamp(10)
    A(f"v_add_f32_dpp v{F}, v{F}, v{F} row_ror:8 {DPPF}"); A(f"v_add_f32_dpp v{F+2}, v{F+2}, v{F+2} row_ror:8 {DPPF}")
    A(f"v_permlane16_swap_b32 v{F}, v{F+2}"); A(f"v_add_f32 v{F}, v{F}, v{F+2}")
    A(f"v_mov_b32 v{F+2}, v{F}"); A(f"v_permlane32_swap_b32 v{F}, v{F+2}"); A(f"v_add_f32 v{F}, v{F}, v{F+2}")
    A(f"v_and_b32 v{t0}, 7, v1"); A(f"v_bfe_u32 v{t1}, v1, 4, 1"); A(f"v_lshl_add_u32 v{t0}, v{t0}, 1, v{t1}")
    A(f"v_lshlrev_b32 v{t0}, 5, v{t0}"); A("s_lshl_b32 s14, s3, 2"); A(f"v_add_u32 v{t0}, s14, v{t0}")
    A("s_mov_b32 exec_lo, 0x00ff00ff"); A("s_mov_b32 exec_hi, 0")
    A(f"ds_write_b32 v{t0}, v{F} offset:{L_FIN}")
    A("s_mov_b64 exec, -1")
    A("s_waitcnt lgkmcnt(0)"); A("s_barrier")
    A("s_cmp_lg_u32 s3, 0"); A("s_cbranch_scc1 L_fin_skip")
    A(f"v_and_b32 v{t0}, 15, v1"); A(f"v_lshlrev_b32 v{t1}, 5, v{t0}")
    A(f"ds_read_b128 v[{F}:{F+3}], v{t1} offset:{L_FIN}"); A(f"ds_read_b128 v[{F+4}:{F+7}], v{t1} offset:{L_FIN + 16}")
    A(f"v_lshlrev_b32 v{t0}, 1, v{t0}"); A("s_lshl_b32 s14, s2, 5")
    A("s_waitcnt lgkmcnt(0)")
    for st in (1, 2, 4):
        for k in range(0, 8, 2 * st): A(f"v_add_f32 v{F+k}, v{F+k}, v{F+k+st}")
    A(f"v_cvt_pk_bf16_f32 v{F}, v{F}, v{F}")
    A("s_mov_b64 exec, 0xffff")
    A(f"buffer_store_short v{F}, v{t0}, s[{SO}:{SO+3}], s14 offen {ofl}")
    A("s_cmp_lg_u32 s2, 0"); A("s_cbranch_scc1 L_fin_noep")
    A("s_mov_b64 exec, 1"); A(f"v_mov_b32 v{t0}, 0"); A(f"v_mov_b32 v{t1}, s12")
    A(f"s_mov_b32 s13, {wsb}"); A(f"buffer_store_dword v{t1}, v{t0}, {WSR}, s13 offen {ofl}")
    if lite:
        A("s_memrealtime s[90:91]"); A("s_waitcnt lgkmcnt(0)"); A("v_mov_b32 v8, s88"); A("v_mov_b32 v9, s90")
        A("s_mov_b32 s92, s36"); A("s_mov_b32 s93, s37"); A("s_mov_b32 s94, 256"); A("s_mov_b32 s95, 0x20000")
        A(f"buffer_store_dwordx2 v[8:9], v{t0}, s[92:95], 0 offen")
    lab("L_fin_noep")
    A("s_mov_b64 exec, -1")
    lab("L_fin_skip")
    stamp(11)
    dump_stamps()
    if diag2 is not None:
        role, kk, op = diag2[:3]; xf = diag2[3] if len(diag2) > 3 else None
        A("s_cmp_lg_u32 s2, 0"); A("s_cbranch_scc1 L_diag_end"); A("s_cmp_lg_u32 s3, 0"); A("s_cbranch_scc1 L_diag_end")
        A("s_add_u32 s84, s88, 7000"); lab("L_diag1"); A("s_sleep 8")
        A("s_memrealtime s[90:91]"); A("s_waitcnt lgkmcnt(0)"); A("s_sub_u32 s85, s90, s84"); A("s_cmp_lt_i32 s85, 0"); A("s_cbranch_scc1 L_diag1")
        A("v_mov_b32 v10, 0"); A("v_mov_b32 v11, -1"); A("v_mov_b32 v14, 0")
        nr = 4 if role else 32
        for r in range(nr):
            if role: A(f"v_add_u32 v12, {r * 64}, v1"); A("v_mul_u32_u24 v12, 2304, v12")
            else:
                A(f"v_lshrrev_b32 v12, 3, v1"); A(f"v_add_u32 v12, {r * 8}, v12"); A("v_mul_u32_u24 v12, 9, v12"); A("v_and_b32 v13, 7, v1"); A("v_add_u32 v12, v12, v13")
                A("v_add_u32 v12, 1, v12"); A("v_lshlrev_b32 v12, 8, v12")
            A(f"s_mov_b32 s13, {WS_DBG}")
            A(f"buffer_load_dword v8, v12, {WSR}, s13 offen sc1"); A(f"buffer_load_dword v9, v12, {WSR}, s13 offen offset:{4 * kk} sc1"); A("s_waitcnt vmcnt(0)")
            A("v_subrev_u32 v8, s88, v8"); A("v_add_u32 v8, 0x1000, v8"); A("v_min_u32 v11, v11, v8")
            A("v_cmp_ne_u32 vcc, 0, v9"); A("v_subrev_u32 v9, s88, v9"); A("v_add_u32 v9, 0x1000, v9"); A("v_cndmask_b32 v9, 0, v9, vcc")
            if xf is not None:
                A("v_lshrrev_b32 v13, 3, v1"); A(f"v_cmp_eq_u32 vcc, {xf}, v13"); A("v_cndmask_b32 v9, 0, v9, vcc")
            A("v_max_u32 v10, v10, v9"); A("v_add_u32 v14, v14, v9")
        if op == "mean": A(f"v_lshrrev_b32 v10, {2 if role else 5}, v14")
        for v, o in ((10, "add" if op == "mean" else "max"), (11, "min")):
            for ctl in ("quad_perm:[1,0,3,2]", "quad_perm:[2,3,0,1]", "row_half_mirror", "row_mirror"): A(f"v_{o}_u32_dpp v{v}, v{v}, v{v} {ctl} {DPPF}")
            for sw in ("v_permlane16_swap_b32", "v_permlane32_swap_b32"):
                A(f"v_mov_b32 v12, v{v}"); A(f"{sw} v{v}, v12"); A(f"v_{o}_u32 v{v}, v{v}, v12")
        if op == "mean": A(f"v_lshrrev_b32 v10, {6 if xf is None else 3}, v10")
        A("v_sub_u32 v10, v10, v11"); A("v_readfirstlane_b32 s85, v10"); A("s_lshl_b32 s85, s85, 2")
        if kk < 0: A("s_mov_b32 s85, 0")
        A("s_min_u32 s85, s85, 40000"); A(f"s_add_u32 s84, s88, {dbase}"); A("s_add_u32 s84, s84, s85")
        lab("L_diag2")
        A("s_memrealtime s[90:91]"); A("s_waitcnt lgkmcnt(0)"); A("s_sub_u32 s85, s90, s84"); A("s_cmp_lt_i32 s85, 0"); A("s_cbranch_scc1 L_diag2")
        lab("L_diag_end")
    if diag is not None:
        A("s_cmp_lg_u32 s2, 0"); A("s_cbranch_scc1 L_diag_end"); A("s_cmp_lg_u32 s3, 0"); A("s_cbranch_scc1 L_diag_end")
        A("s_add_u32 s84, s88, 7000")
        lab("L_diag1")
        A("s_memrealtime s[90:91]"); A("s_waitcnt lgkmcnt(0)"); A("s_sub_u32 s85, s90, s84"); A("s_cmp_lt_i32 s85, 0"); A("s_cbranch_scc1 L_diag1")
        A("v_lshlrev_b32 v166, 2, v1"); A("buffer_load_dword v165, v166, s[92:95], 0 offen sc1"); A("s_waitcnt vmcnt(0)")
        A("v_readlane_b32 s84, v165, 0"); A(f"v_readlane_b32 s85, v165, {max(diag, 0)}")
        A("s_not_b32 s84, s84"); A("s_sub_u32 s85, s85, s84"); A("s_lshl_b32 s85, s85, 2")
        if diag <= 0: A("s_mov_b32 s85, 0")
        A("s_min_u32 s85, s85, 40000"); A(f"s_add_u32 s84, s88, {dbase}"); A("s_add_u32 s84, s84, s85")
        lab("L_diag2")
        A("s_memrealtime s[90:91]"); A("s_waitcnt lgkmcnt(0)"); A("s_sub_u32 s85, s90, s84"); A("s_cmp_lt_i32 s85, 0"); A("s_cbranch_scc1 L_diag2")
        lab("L_diag_end")
    A("s_endpgm")

    lab("L_service")
    A("s_setprio 3")
    vL16, vQe, vQo, vFe, vFo, vXq, vXf = 2, 3, 4, 5, 6, 7, 8
    vTr = [9, 10, 11, 12]; a_, b_, c_, d_ = 14, 15, 16, 17; vG, vOG = 20, 21
    A(f"v_mov_b32 v{a_}, 0"); A(f"v_mov_b32 v{b_}, 0"); A(f"v_mov_b32 v{c_}, 0"); A(f"v_mov_b32 v{d_}, 0")
    A(f"ds_write_b128 v{a_}, v[{a_}:{d_}] offset:{L_FLAG}")
    if bal: A(f"v_mov_b32 v{vG}, {bal.get('init', 0)}"); A(f"ds_write_b32 v{a_}, v{vG} offset:{L_G + 20}")
    A(f"v_lshlrev_b32 v{vL16}, 4, v1")
    A("s_and_b32 s8, s6, 3"); A("s_lshr_b32 s9, s6, 2"); A("s_lshl_b32 s14, s4, 1"); A("s_add_u32 s9, s9, s14")
    A("s_lshl_b32 s15, s4, 3"); A("s_add_u32 s15, s15, s6")
    A("s_cmp_ge_u32 s15, 7"); A("s_cselect_b32 s11, 1, 0"); A("s_mul_i32 s14, s11, 7"); A("s_sub_u32 s81, s15, s14")
    A("s_cmp_lt_u32 s15, 14"); A("s_cselect_b32 s79, 1, 0"); A("s_cmp_lt_u32 s5, 14"); A("s_cselect_b32 s79, s79, 0")
    A("s_lshl_b32 s14, s5, 1"); A("s_add_u32 s11, s11, s14")
    A(f"v_bfe_u32 v{a_}, v1, 4, 1"); A(f"v_lshlrev_b32 v{a_}, 1, v{a_}"); A(f"v_and_b32 v{b_}, 7, v1"); A(f"v_xor_b32 v{a_}, v{a_}, v{b_}")
    A(f"v_xor_b32 v{b_}, 4, v{a_}"); A(f"v_lshrrev_b32 v{c_}, 3, v1")
    A(f"s_mul_i32 s14, s9, {112 * 8192}"); A("s_lshl_b32 s15, s5, 9"); A("s_add_u32 s14, s14, s15"); A("s_lshl_b32 s15, s8, 7"); A("s_add_u32 s14, s14, s15")
    A(f"v_lshl_add_u32 v{d_}, v{c_}, 13, s14")
    A(f"v_lshl_add_u32 v{vQe}, v{a_}, 4, v{d_}"); A(f"v_lshl_add_u32 v{vQo}, v{b_}, 4, v{d_}")
    A(f"s_mul_i32 s14, s81, {64 * 3584}"); A("s_lshl_b32 s15, s11, 7"); A("s_add_u32 s14, s14, s15")
    A(f"v_mul_u32_u24 v{d_}, 3584, v{c_}"); A(f"v_add_u32 v{d_}, s14, v{d_}")
    A(f"v_lshl_add_u32 v{vFe}, v{a_}, 4, v{d_}"); A(f"v_lshl_add_u32 v{vFo}, v{b_}, 4, v{d_}")
    A("s_waitcnt lgkmcnt(0)")
    A(f"s_mov_b32 s13, {wsb}"); A("s_load_dword s12, s[38:39], s13")
    srd(SX, 16, 1792); srd(SWQ, 22, 3670016); srd(SG, 32, 896); srd(SW1, 28, 1605632)
    A("s_cmp_eq_u32 s79, 1"); A(f"s_cselect_b32 s{SW1+2}, s{SW1+2}, 0")
    if svc == 0:
        for d in (SX, SWQ, SG, SW1): A(f"s_mov_b32 s{d+2}, 0")
    if svc == 0.5:
        for d in (SW1,): A(f"s_mov_b32 s{d+2}, 0")
    A(f"s_mov_b32 m0, {L_X}")
    for k in range(2): A(f"buffer_load_dwordx4 v{vL16}, s[{SX}:{SX+3}], 0 offen offset:{1024 * k} lds")
    for m in range(16):
        A(f"s_mov_b32 m0, {L_W + 1024 * m}")
        A(f"s_mov_b32 s13, {m * 65536 if m < 14 else 0x7f000000}")
        A(f"buffer_load_dwordx4 v{vQo if m & 1 else vQe}, s[{SWQ}:{SWQ+3}], s13 offen {wflags} lds")
    for m in range(8):
        A(f"s_mov_b32 m0, {L_W1 + 1024 * m}"); A(f"s_mov_b32 s13, {m * 8 * 3584}")
        A(f"buffer_load_dwordx4 v{vFo if m & 1 else vFe}, s[{SW1}:{SW1+3}], s13 offen {wflags} lds")
    GW = 24
    A(f"buffer_load_dwordx4 v[{GW}:{GW+3}], v{vL16}, s[{SG}:{SG+3}], 0 offen")
    A("s_barrier")
    srd(SWS, 38, WS_SIZE)
    A(f"v_and_b32 v{a_}, 1, v1"); A(f"v_mul_u32_u24 v{b_}, 896, v{a_}"); A(f"v_lshrrev_b32 v{a_}, 4, v1"); A(f"v_lshl_add_u32 v{b_}, v{a_}, 4, v{b_}")
    A("s_mul_i32 s14, s9, 224"); A(f"v_add_u32 v{vXq}, s14, v{b_}"); A("s_lshl_b32 s14, s81, 7"); A(f"v_add_u32 v{vXf}, s14, v{b_}")
    A(f"v_lshlrev_b32 v{b_}, 10, v{a_}"); A(f"v_bfe_u32 v{c_}, v1, 2, 2"); A(f"v_lshl_add_u32 v{b_}, v{c_}, 7, v{b_}")
    A(f"v_bfe_u32 v{c_}, v1, 1, 1"); A(f"v_lshl_add_u32 v{b_}, v{c_}, 4, v{b_}"); A(f"v_and_b32 v{c_}, 1, v1"); A(f"v_lshl_add_u32 v{b_}, v{c_}, 3, v{b_}")
    A(f"v_bfe_u32 v{c_}, v1, 3, 2")
    for cg in range(4):
        A(f"v_xor_b32 v{d_}, {cg}, v{c_}"); A(f"v_lshl_add_u32 v{vTr[cg]}, v{d_}, 5, v{b_}")
    A("s_lshl_b32 s8, s8, 9"); A("s_lshl_b32 s9, s9, 11"); A("s_add_u32 s8, s8, s9"); A("s_lshl_b32 s9, s5, 13"); A("s_add_u32 s8, s8, s9")
    A(f"s_add_u32 s8, s8, {WS_Q}"); A(f"s_add_u32 s9, s8, {16 * 8192}")
    A("s_lshl_b32 s11, s11, 12"); A("s_lshl_b32 s81, s81, 9"); A("s_add_u32 s11, s11, s81"); A(f"s_add_u32 s11, s11, {WS_H}")
    A("s_mov_b32 s82, 0xffff0000"); A("s_mov_b32 s83, 0"); A("s_mov_b32 s84, 0"); A("s_mov_b32 s85, 0xffff"); A("s_mov_b32 s86, 0"); A("s_mov_b32 s87, 0xffff0000")
    if dbg: A("s_waitcnt lgkmcnt(0)"); A("v_writelane_b32 v167, s88, 0")
    A("s_waitcnt lgkmcnt(0)"); A(f"s_add_u32 s12, s12, {TAGC}")
    XA = 28; TB = 56; D = 120; UQ = 136; UH = 144; AN = 152
    ex = 0
    if loc:
        ex = 1
        A("s_getreg_b32 s78, hwreg(HW_REG_XCC_ID)"); A("s_and_b32 s78, s78, 15")
        A(f"v_mov_b32 v{AN}, s78"); A(f"v_mov_b32 v{AN+1}, s12"); A(f"v_mov_b32 v{AN+2}, s78"); A(f"v_mov_b32 v{AN+3}, s12")
        A("s_lshl_b32 s13, s10, 7"); A("s_lshl_b32 s14, s4, 14"); A("s_add_u32 s13, s13, s14"); A(f"s_add_u32 s13, s13, {WS_A}")
        A("s_mov_b64 exec, 0xff"); A(f"buffer_store_dwordx4 v[{AN}:{AN+3}], v{vL16}, {WSR}, s13 offen"); A("s_mov_b64 exec, -1")
    A(f"s_waitcnt vmcnt({25 + ex})")
    for m in range(4): A(f"ds_read_b128 v[{XA+4*m}:{XA+4*m+3}], v{vXq} offset:{L_X + 64 * m}")
    for m in range(2): A(f"ds_read_b128 v[{XA+16+4*m}:{XA+16+4*m+3}], v{vXf} offset:{L_X + 64 * m}")
    def gemv(img, steps, xa, vm_after, U_):
        for m in range(steps):
            A(f"s_waitcnt vmcnt({vm_after + 4 * (steps - 1 - m)})")
            for cg in range(4):
                r = TB + 16 * m + 4 * cg
                A(f"ds_read_b64_tr_b16 v[{r}:{r+1}], v{vTr[cg]} offset:{img + 4096 * m}")
                A(f"ds_read_b64_tr_b16 v[{r+2}:{r+3}], v{vTr[cg]} offset:{img + 4096 * m + 512}")
            if m: mf(m - 1, xa, 8)
        mf(steps - 1, xa, 0)
        for bb in range(2):
            for cg in range(1, 4): A(f"v_cndmask_b32 v{D+bb}, v{D+bb}, v{D+4*cg+bb}, s[{80+2*cg}:{81+2*cg}]")
        for bb in range(2):
            A(f"v_mov_b32 v{U_+4*bb}, v{D+bb}"); A(f"v_mov_b32_dpp v{U_+4*bb+2}, v{D+bb} quad_perm:[1,1,3,3] {DPPF}")
            A(f"v_mov_b32 v{U_+4*bb+1}, s12"); A(f"v_mov_b32 v{U_+4*bb+3}, s12")
    def mf(m, xa, lg):
        A(f"s_waitcnt lgkmcnt({lg})")
        for cg in range(4):
            r = TB + 16 * m + 4 * cg; d = D + 4 * cg; c = "0" if m == 0 else f"v[{d}:{d+3}]"
            A(f"v_mfma_f32_16x16x32_bf16 v[{d}:{d+3}], v[{xa+4*m}:{xa+4*m+3}], v[{r}:{r+3}], {c}")
    def publish(s0, s1, U_):
        if svc < 2: return
        A("s_mov_b32 exec_lo, 0x55555555"); A("s_mov_b32 exec_hi, 0x55555555")
        xstore([f"buffer_store_dwordx4 v[{U_}:{U_+3}], v{d_}, {WSR}, {s0} offen", f"buffer_store_dwordx4 v[{U_+4}:{U_+7}], v{d_}, {WSR}, {s1} offen"])
        A("s_mov_b64 exec, -1")
    A(f"v_lshlrev_b32 v{d_}, 3, v1")
    gemv(L_W, 4, XA, 9 + ex, UQ)
    if loc:
        A(f"v_lshrrev_b32 v{a_}, 3, v1"); A(f"v_lshlrev_b32 v{a_}, 14, v{a_}"); A(f"v_and_b32 v{b_}, 7, v1"); A(f"v_lshl_add_u32 v{a_}, v{b_}, 7, v{a_}")
        A("s_lshl_b32 s13, s5, 10"); A(f"s_add_u32 s13, s13, {WS_A}")
        if not anlate: A("s_mov_b64 exec, 0xffff"); A(f"buffer_load_dwordx4 v[{AN+4}:{AN+7}], v{a_}, {WSR}, s13 offen sc1"); A("s_mov_b64 exec, -1")
    else: publish("s8", "s9", UQ)
    stamp(1)
    gemv(L_W1, 2, XA + 16, 2 if loc and anlate else 3, UH)
    if loc and anlate:
        A("s_waitcnt vmcnt(0)")
        A("s_mov_b64 exec, 0xffff"); A(f"buffer_load_dwordx4 v[{AN+4}:{AN+7}], v{a_}, {WSR}, s13 offen sc1"); A("s_mov_b64 exec, -1")
    if loc:
        A(f"s_mov_b32 s77, {lretry}"); A("s_mov_b64 exec, 0xffff")
        lab("L_an")
        A("s_waitcnt vmcnt(0)")
        for k, r_ in enumerate(("s78", "s12", "s78", "s12")): A(f"v_cmp_eq_u32 s[{80+2*k}:{81+2*k}], {r_}, v{AN+4+k}")
        A("s_and_b64 s[80:81], s[80:81], s[82:83]"); A("s_and_b64 s[84:85], s[84:85], s[86:87]"); A("s_and_b64 s[80:81], s[80:81], s[84:85]")
        A("s_cmp_eq_u32 s80, 0xffff"); A("s_cbranch_scc1 L_an_done")
        A("s_sub_u32 s77, s77, 1"); A("s_cbranch_scc1 L_an_fail")
        A(f"buffer_load_dwordx4 v[{AN+4}:{AN+7}], v{a_}, {WSR}, s13 offen sc1"); A("s_branch L_an")
        lab("L_an_fail")
        A("s_cmp_eq_u32 s80, 0xffff")
        lab("L_an_done")
        A("s_cselect_b32 s78, 1, 0"); A("s_mov_b64 exec, -1")
        if dbg: A("s_mul_i32 s14, s78, 1000"); A("s_add_u32 s14, s14, s88"); A("v_writelane_b32 v167, s14, 7"); A("s_add_u32 s14, s77, 1"); A("s_mul_i32 s14, s14, 100"); A("s_add_u32 s14, s14, s88"); A("v_writelane_b32 v167, s14, 8")
        if loc == "off": A("s_mov_b32 s78, 0")
        publish("s8", "s9", UQ)
    A("s_cmp_eq_u32 s79, 0"); A("s_cbranch_scc1 L_sv_noh")
    A(f"s_add_u32 s9, s11, {28 * 4096}")
    publish("s11", "s9", UH)
    lab("L_sv_noh")
    stamp(2)
    QP = 56
    if NG is not None: lds_wait(L_FLAG + 12, NG, "pg1", a_, b_, sleep=4, cmp="ge")
    A("s_lshl_b32 s8, s7, 13"); A(f"s_add_u32 s8, s8, {WS_Q}"); A("s_add_u32 s9, s8, 4096")
    gather("q", [(QP + 4 * k, vL16, "s9" if k >= 4 else "s8", 1024 * (k & 3), -1, -1) for k in range(8)], psleep,
           [40, 42, 44, 46, 48, 50, 82, 84])
    for hf in range(2):
        r = QP + 4 * hf
        for e in (0, 2):
            A(f"v_add_f32 v{r+e}, v{r+e}, v{r+8+e}"); A(f"v_add_f32 v{r+16+e}, v{r+16+e}, v{r+24+e}")
        for e in (0, 2): A(f"v_add_f32 v{r+e}, v{r+e}, v{r+16+e}")
        A(f"v_cvt_pk_bf16_f32 v{r}, v{r}, v{r+2}")
    A(f"v_lshlrev_b32 v{a_}, 2, v1")
    A(f"ds_write_b32 v{a_}, v{QP} offset:{L_Q}"); A(f"ds_write_b32 v{a_}, v{QP+4} offset:{L_Q + 256}")
    A(f"v_mov_b32 v{a_}, 0"); A(f"v_mov_b32 v{b_}, s12"); A(f"v_mov_b32 v{c_}, 1")
    A(f"ds_write_b32 v{a_}, v{b_} offset:{L_G + 16}")
    A(f"ds_write_b32 v{a_}, v{c_} offset:{L_FLAG}")
    stamp(3)
    TW = 100
    if touch:
        A(f"v_mov_b32 v{a_}, 0"); A("s_mov_b64 exec, 1")
        if "v" in touch:
            srd(40, 20, 0x4000000); A("s_lshl_b32 s13, s7, 21"); A("s_lshl_b32 s14, s6, 18"); A("s_add_u32 s13, s13, s14")
            for k in range(4): A(f"buffer_load_dword v{TW+k}, v{a_}, s[40:43], s13 offen nt"); A("s_add_u32 s13, s13, 65536")
        if "w" in touch:
            srd(44, 24, 3670016); A(f"s_mul_i32 s13, s10, {32 * 896}"); A(f"buffer_load_dword v{TW+4}, v{a_}, s[44:47], s13 offen nt")
            srd(48, 30, 1605632); A(f"s_mul_i32 s13, s10, {16 * 896}"); A(f"buffer_load_dword v{TW+5}, v{a_}, s[48:51], s13 offen nt")
        if "o" in touch:
            srd(SO, 34, 1792); A(f"buffer_load_dword v{TW+6}, v{a_}, s[{SO}:{SO+3}], 0 offen")
        A("s_mov_b64 exec, -1")
    if codepf:
        A("s_getpc_b64 s[14:15]"); lab("L_pc")
        A("s_sub_u32 s14, s14, L_pc-L_tail"); A("s_subb_u32 s15, s15, 0")
        A(f"v_mov_b32 v{b_}, s15"); A(f"v_add_co_u32 v{a_}, vcc, s14, v{vL16}"); A(f"v_addc_co_u32 v{b_}, vcc, 0, v{b_}, vcc")
        for k in range(codepf): A(f"global_load_dwordx4 v[{TW+8+4*k}:{TW+11+4*k}], v[{a_}:{b_}], off offset:{1024 * k}")
    XG = 28
    A("s_mul_i32 s14, s4, 896"); A(f"v_add_u32 v{a_}, s14, v{vL16}")
    A(f"ds_read_b128 v[{XG}:{XG+3}], v{a_} offset:{L_X}")
    A("s_waitcnt lgkmcnt(0)")
    A(f"v_mov_b32 v{vG}, 0")
    for k in range(4):
        A(f"v_lshlrev_b32 v{a_}, 16, v{XG+k}"); A(f"v_and_b32 v{b_}, 0xffff0000, v{XG+k}")
        A(f"v_lshlrev_b32 v{c_}, 16, v{GW+k}"); A(f"v_and_b32 v{d_}, 0xffff0000, v{GW+k}")
        A(f"v_mul_f32 v{a_}, v{a_}, v{c_}"); A(f"v_mul_f32 v{b_}, v{b_}, v{d_}")
        A(f"v_cvt_pk_bf16_f32 v{a_}, v{a_}, v{b_}")
        A(f"v_lshlrev_b32 v{b_}, 16, v{a_}"); A(f"v_and_b32 v{a_}, 0xffff0000, v{a_}")
        A(f"v_add_f32 v{vG}, v{vG}, v{b_}"); A(f"v_add_f32 v{vG}, v{vG}, v{a_}")
    A("v_cmp_gt_u32 vcc, 56, v1"); A(f"v_cndmask_b32 v{vG}, 0, v{vG}, vcc")
    wave_reduce(A, "add", vG, a_)
    A(f"v_cvt_pk_bf16_f32 v{vG}, v{vG}, v{vG}"); A(f"v_lshlrev_b32 v{vG}, 16, v{vG}")
    A(f"v_mul_f32 v{vG}, 0xbfb8aa3b, v{vG}"); A(f"v_exp_f32 v{vG}, v{vG}"); A(f"v_add_f32 v{vG}, 1.0, v{vG}"); A(f"v_rcp_f32 v{vG}, v{vG}")
    A(f"v_cvt_pk_bf16_f32 v{vG}, v{vG}, v{vG}"); A(f"v_lshlrev_b32 v{vG}, 16, v{vG}")
    A(f"v_sub_f32 v{vOG}, 1.0, v{vG}"); A(f"v_cvt_pk_bf16_f32 v{vOG}, v{vOG}, v{vOG}"); A(f"v_lshlrev_b32 v{vOG}, 16, v{vOG}")
    def checkpoint(step, region, tag):
        lds_wait(L_FLAG + 12, step, tag, a_, b_, sleep=4, cmp="ge")
        A("s_lshl_b32 s9, s10, 7"); A("s_lshl_b32 s14, s4, 14"); A("s_add_u32 s9, s9, s14"); A(f"s_add_u32 s9, s9, {region}")
        A("s_and_b32 s14, s9, 0xffffc7ff"); A(f"v_lshlrev_b32 v{c_}, 11, v1")
        for k in range(4): A(f"v_mov_b32 v{32+k}, s12")
        A("s_mov_b64 exec, 0xff"); A(f"buffer_load_dwordx4 v[40:43], v{c_}, {WSR}, s14 offen sc1")
        A(f"buffer_store_dwordx4 v[32:35], v{vL16}, {WSR}, s9 offen sc1")
        A("s_waitcnt vmcnt(1)"); A("v_cmp_eq_u32 vcc, s12, v41"); A("s_bcnt1_i32_b64 s14, vcc")
        A(f"v_mov_b32 v{a_}, 0"); A(f"v_mov_b32 v{b_}, s14"); A(f"ds_write_b32 v{a_}, v{b_} offset:{L_G + 20}")
        A("s_mov_b64 exec, -1")
    if CK1: checkpoint(CK1, wsb + 0x1E0000, "ck1")
    lds_wait(L_FLAG + 8, 8, "cnt", a_, b_, sleep=2)
    ST = 32
    def combine(m, l):
        A(f"v_mov_b32 v{a_}, v{m}")
        for ctl in ("quad_perm:[1,0,3,2]", "quad_perm:[2,3,0,1]", "row_half_mirror"): A(f"v_max_f32_dpp v{a_}, v{a_}, v{a_} {ctl} {DPPF}")
        A(f"v_sub_f32 v{b_}, v{m}, v{a_}"); A(f"v_exp_f32 v{b_}, v{b_}"); A(f"v_mul_f32 v{b_}, v{b_}, v{l}")
        for ctl in ("quad_perm:[1,0,3,2]", "quad_perm:[2,3,0,1]", "row_half_mirror"): A(f"v_add_f32_dpp v{b_}, v{b_}, v{b_} {ctl} {DPPF}")
    A(f"v_and_b32 v{c_}, 7, v1"); A(f"v_lshlrev_b32 v{c_}, 3, v{c_}")
    A(f"ds_read_b64 v[{ST+4}:{ST+5}], v{c_} offset:{L_WST}"); A("s_waitcnt lgkmcnt(0)")
    combine(ST + 4, ST + 5)
    A(f"v_mov_b32 v{ST}, v{a_}"); A(f"v_mov_b32 v{ST+1}, s12"); A(f"v_mov_b32 v{ST+2}, v{b_}"); A(f"v_mov_b32 v{ST+3}, s12")
    A("s_lshl_b32 s11, s7, 10"); A(f"s_add_u32 s11, s11, {WS_ST}"); A("s_lshl_b32 s9, s6, 7"); A("s_add_u32 s9, s9, s11")
    if bal:
        A("s_and_b32 s14, s9, 0xffffc7ff"); A(f"v_lshlrev_b32 v{c_}, 11, v1")
        A("s_mov_b64 exec, 0xff"); A(f"buffer_load_dwordx4 v[{ST+8}:{ST+11}], v{c_}, {WSR}, s14 offen sc1")
    A("s_mov_b64 exec, 0xff"); xstore([f"buffer_store_dwordx4 v[{ST}:{ST+3}], v{vL16}, {WSR}, s9 offen"])
    if bal:
        A("s_waitcnt vmcnt(1)"); A(f"v_cmp_eq_u32 vcc, s12, v{ST+9}"); A("s_bcnt1_i32_b64 s14, vcc")
        A(f"v_mov_b32 v{a_}, 0"); A(f"v_mov_b32 v{b_}, s14"); A(f"ds_write_b32 v{a_}, v{b_} offset:{L_G + 20}")
    A("s_mov_b64 exec, -1")
    if NS is not None: lds_wait(L_FLAG + 12, NS, "pg2", a_, b_, sleep=8, cmp="ge")
    HP = 28
    A(f"v_mov_b32 v{HP}, 0"); A(f"v_mov_b32 v{HP+2}, 0")
    A("s_cmp_ge_u32 s10, 112"); A("s_cbranch_scc1 L_sv_hz")
    A(f"v_lshrrev_b32 v{a_}, 3, v1"); A(f"v_lshlrev_b32 v{a_}, 9, v{a_}"); A(f"v_and_b32 v{b_}, 7, v1"); A(f"v_lshl_add_u32 v{a_}, v{b_}, 4, v{a_}")
    A("s_lshr_b32 s8, s10, 2"); A("s_mul_i32 s9, s4, 28"); A("s_add_u32 s8, s8, s9"); A("s_lshl_b32 s8, s8, 12")
    A("s_and_b32 s9, s10, 3"); A("s_lshl_b32 s9, s9, 7"); A("s_add_u32 s8, s8, s9"); A(f"s_add_u32 s8, s8, {WS_H}")
    gather("h", [(HP, a_, "s8", 0, -1, "0x00ffffff")], psleep, [82])
    lab("L_sv_hz")
    for k in (0, 2): A(f"v_add_f32_dpp v{HP+k}, v{HP+k}, v{HP+k} row_ror:8 {DPPF}")
    for sw in ("v_permlane16_swap_b32", "v_permlane32_swap_b32"):
        for k in (0, 2): A(f"v_mov_b32 v{HP+k+1}, v{HP+k}")
        for k in (0, 2): A(f"{sw} v{HP+k}, v{HP+k+1}")
        for k in (0, 2): A(f"v_add_f32 v{HP+k}, v{HP+k}, v{HP+k+1}")
    for k in (0, 2): A(f"v_max_f32 v{HP+k}, 0, v{HP+k}")
    A(f"v_cvt_pk_bf16_f32 v{HP}, v{HP}, v{HP}"); A(f"v_cvt_pk_bf16_f32 v{HP+1}, v{HP+2}, v{HP+2}")
    A(f"v_lshlrev_b32 v{a_}, 3, v1")
    A("s_mov_b64 exec, 0xff"); A(f"ds_write_b64 v{a_}, v[{HP}:{HP+1}] offset:{L_H}"); A("s_mov_b64 exec, -1")
    stamp(4)
    A(f"v_lshlrev_b32 v{c_}, 7, v1")
    gather("st", [(ST + 4, c_, "s11", 0, "0xff", 0)], 8, [82])
    combine(ST + 4, ST + 6)
    A(f"v_sub_f32 v{vG+2}, 0, v{a_}"); A(f"v_rcp_f32 v{vG+3}, v{b_}"); A(f"v_mul_f32 v{vG+3}, v{vG+3}, v{vG}")
    if loc: A(f"v_mov_b32 v{vG}, s78")
    A(f"v_mov_b32 v{a_}, 0"); A(f"v_mov_b32 v{b_}, 1")
    A("s_mov_b64 exec, 1")
    A(f"ds_write_b128 v{a_}, v[{vG}:{vG+3}] offset:{L_G}")
    A(f"ds_write_b32 v{a_}, v{b_} offset:{L_FLAG + 4}")
    A("s_mov_b64 exec, -1")
    stamp(5)
    if CK3: checkpoint(CK3, wsb + 0x1E8000, "ck3")
    P0, P1 = 40, 44
    A("s_lshl_b32 s9, s7, 14"); A(f"s_add_u32 s9, s9, {WS_O}"); A("s_lshl_b32 s14, s6, 11"); A("s_add_u32 s9, s9, s14")
    A(f"v_and_b32 v{a_}, 15, v1"); A(f"v_bfe_u32 v{b_}, v1, 4, 1"); A(f"v_lshl_add_u32 v{a_}, v{a_}, 1, v{b_}"); A(f"v_lshlrev_b32 v{a_}, 2, v{a_}")
    A("s_waitcnt lgkmcnt(0)"); A("s_barrier")
    if odelay: A(f"s_sleep {odelay}")
    gather("o", [(P0, vL16, "s9", 0, -1, -1), (P1, vL16, "s9", 1024, -1, -1)], osleep, [82, 84])
    A(f"v_add_f32 v{P0}, v{P0}, v{P1}"); A(f"v_add_f32 v{P0+2}, v{P0+2}, v{P1+2}")
    A(f"v_permlane16_swap_b32 v{P0}, v{P0+2}"); A(f"v_add_f32 v{P0}, v{P0}, v{P0+2}")
    A(f"v_mov_b32 v{P0+2}, v{P0}"); A(f"v_permlane32_swap_b32 v{P0}, v{P0+2}"); A(f"v_add_f32 v{P0}, v{P0}, v{P0+2}")
    A(f"v_cvt_pk_bf16_f32 v{P0}, v{P0}, v{P0}")
    A(f"ds_write_b32 v{a_}, v{P0} offset:{L_OL}")
    A("s_waitcnt lgkmcnt(0)"); A("s_barrier")
    stamp(6)
    dump_stamps(True)
    lab("L_end")
    A("s_endpgm")

    body = pad_hazards(L)
    out = [HEADER.rstrip("\n"),
           "; Single fused launch: 256 workgroups (one per CU) x 9 waves (wave 0 = service, waves 1-8 stream K/V).",
           f"; @launch grid=(256,1,1) block=(576,1,1) lds={lds or LDS_MIN}",
           '.amdgcn_target "amdgcn-amd-amdhsa--gfx950"', ".text", f".globl {NAME}", ".p2align 8", f".type {NAME},@function", f"{NAME}:"]
    out += body
    out += ['.section .rodata,"a"', ".p2align 6", f".amdhsa_kernel {NAME}",
            "  .amdhsa_next_free_vgpr 168", "  .amdhsa_next_free_sgpr 96", "  .amdhsa_accum_offset 168",
            "  .amdhsa_group_segment_fixed_size 0", "  .amdhsa_kernarg_size 96", "  .amdhsa_user_sgpr_count 2",
            "  .amdhsa_user_sgpr_kernarg_segment_ptr 1", "  .amdhsa_system_sgpr_workgroup_id_x 1", ".end_amdhsa_kernel"]
    return "\n".join(out) + "\n"

def masks(A, M, t0, t1):
    A(f"v_and_b32 v{t0}, 1, v1"); A(f"v_lshlrev_b32 v{t0}, 4, v{t0}"); A(f"v_mov_b32 v{t1}, 0xffff"); A(f"v_lshlrev_b32 v{t1}, v{t0}, v{t1}")
    A(f"v_bfe_u32 v{t0}, v1, 1, 2")
    for r in range(4): A(f"v_cmp_eq_u32 s[{80+2*r}:{81+2*r}], {r}, v{t0}")
    for r in range(4): A(f"v_cndmask_b32 v{M[r]}, 0, v{t1}, s[{80+2*r}:{81+2*r}]")

def mask_prime(A, M, t0, t1):
    A(f"v_lshrrev_b32 v{t0}, 1, v1"); A(f"v_xor_b32 v{t0}, v{t0}, v1"); A(f"v_bfe_u32 v{t0}, v{t0}, 3, 1")
    A(f"v_add_u32 v{t0}, -1, v{t0}")
    for r in range(4): A(f"v_and_b32 v{M[r]}, v{M[r]}, v{t0}")

def red2_lane(A, d, t0):
    A(f"v_and_b32 v{t0}, 15, v1"); A(f"v_lshlrev_b32 v{d}, 5, v{t0}")
    A(f"v_lshrrev_b32 v{t0}, 5, v1"); A(f"v_lshl_add_u32 v{d}, v{t0}, 9, v{d}")
    A(f"v_bfe_u32 v{t0}, v1, 4, 1"); A(f"v_lshl_add_u32 v{d}, v{t0}, 4, v{d}")

def wave_reduce(A, op, v, t):
    for ctl in ("quad_perm:[1,0,3,2]", "quad_perm:[2,3,0,1]", "row_half_mirror", "row_mirror"):
        A(f"v_{op}_f32_dpp v{v}, v{v}, v{v} {ctl} {DPPF}")
    for sw in ("v_permlane16_swap_b32", "v_permlane32_swap_b32"):
        A(f"v_mov_b32 v{t}, v{v}"); A(f"{sw} v{v}, v{t}"); A(f"v_{op}_f32 v{v}, v{v}, v{t}")

if __name__ == "__main__":
    kw = eval("dict(%s)" % (sys.argv[2] if len(sys.argv) > 2 else ""))
    open(sys.argv[1], "w").write(gen(**kw))
```

```python
import sys
sys.path.insert(0, "dev")
from asmlib import pad_hazards

NAME = "gated_mix__mha_block_cached__dense_activation_relu__decode_kernel"
HEADER = open("gated_mix__mha_block_cached__dense_activation_relu__decode.s.ref").read().split("; Override launch")[0]

WS_ST = 0x1F0000
WS_H = 0x8000
WS_Q = 0x40000
WS_O = 0x80000
WS_Y = 0x100000
WS_DBG = 0x400000
WS_SIZE = 268435456
L_W = 0x0000
L_W1 = 0x4000
L_RED1 = 0x0000
L_X = 0x6000
L_Q = 0x6800
L_H = 0x6A00
L_G = 0x6A40
L_FLAG = 0x6A80
L_WST = 0x6AC0
L_FIN = 0x6C00
L_OL = 0x6B00
L_PW = 0x7000
L_RED2 = 0x8000
LDS_MIN = L_RED2 + 8 * 2048
TAGC = 0x9E3779B9
SPIN_MAX = 1 << 18
DPPF = "row_mask:0xf bank_mask:0xf"
CEXP = "0x3db8aa3b"

def gen(LIM=2, LIMV=None, NQ=26, CQ=3, CP=3, R=33, NF=62, dbg=False, hdbg=False, diag=None,
        psleep=2, osleep=0, fsleep=0, svc=9, kflags="nt", wflags="nt", lds=None, LE=None, NG=16, NS=46, rot=None, early=False, dbase=10000, pp=1, pgap=8, wsb=0, diag2=None, xmap=0, spread=0, LP=None, kmap=0, ofl='', pat='tp w0 w1 w2 b0 b1 b2 s0 s1 s2', touch='', codepf=False, late_w=False, odelay=0, lite=False, endop=None, lst='sc1', bal=None, CK1=None, CK3=None, loc=True, kfirst=False, lretry=3, anlate=True, two=False, yb=False, prefin=False, swz=0, lightfin=False, direct=False):
    if LIMV is None: LIMV = LIM
    WS_ST, WS_H, WS_Q, WS_O, WS_Y, WS_A = (x + wsb for x in (0x1F0000, 0x8000, 0x40000, 0x80000, 0x100000, 0x1F8000))
    HSTR = 4096
    if two: WS_H = wsb + 0x1000; HSTR = 3584
    WS_Y2 = (wsb + 0x32000, wsb + 0x1E0000)
    L = []
    A = lambda s: L.append("  " + s)
    lab = lambda s: L.append(s + ":")
    def srd(d, p, nbytes):
        A(f"s_mov_b32 s{d}, s{p}"); A(f"s_mov_b32 s{d+1}, s{p+1}"); A(f"s_mov_b32 s{d+2}, {nbytes}"); A(f"s_mov_b32 s{d+3}, 0x20000")
    SK, SV, SWO, SWS, SWQ, SW1, SW2, SX, SG, SO = 40, 44, 48, 52, 56, 60, 64, 68, 72, 76
    WSR = f"s[{SWS}:{SWS+3}]"
    if diag is not None: hdbg = True
    if diag2 is not None: dbg = True
    if hdbg: dbg = True
    def stamp(idx):
        if dbg:
            A("s_memrealtime s[90:91]"); A("s_waitcnt lgkmcnt(0)"); A(f"v_writelane_b32 v167, s90, {idx}")
    def dump_stamps(service=False):
        if hdbg:
            A("s_mov_b32 s92, s36"); A("s_mov_b32 s93, s37"); A("s_mov_b32 s94, 256"); A("s_mov_b32 s95, 0x20000")
            A("v_not_b32 v165, v167"); A("v_cmp_eq_u32 vcc, 0, v1"); A("v_cndmask_b32 v167, v167, v165, vcc")
            A("v_lshlrev_b32 v166, 2, v1")
            if service: A("v_add_u32 v166, 64, v166"); A("s_mov_b64 exec, 0x3e")
            else: A("s_mov_b64 exec, 0xffff")
            A("buffer_atomic_umax v167, v166, s[92:95], 0 offen"); A("s_mov_b64 exec, -1")
        elif dbg:
            if diag2 is not None and not service:
                tg = "s" if service else "m"
                A("s_add_u32 s84, s88, 4500"); lab(f"L_dd_{tg}"); A("s_sleep 8")
                A("s_memrealtime s[90:91]"); A("s_waitcnt lgkmcnt(0)"); A("s_sub_u32 s85, s90, s84"); A("s_cmp_lt_i32 s85, 0"); A(f"s_cbranch_scc1 L_dd_{tg}")
            A("s_mul_i32 s92, s2, 9"); A("s_add_u32 s92, s92, s93"); A("s_lshl_b32 s92, s92, 8"); A(f"s_add_u32 s92, s92, {WS_DBG}")
            A("v_lshlrev_b32 v166, 2, v1"); A(f"buffer_store_dword v167, v166, {WSR}, s92 offen sc1")
    if dbg: R = min(R, 32)
    def spin_tail(label, sleep):
        if sleep: A(f"s_sleep {sleep}")
        A("s_sub_u32 s80, s80, 1"); A("s_cmp_lg_u32 s80, 0"); A(f"s_cbranch_scc1 {label}")
    def lds_wait(off, val, tag, ta, tb, sleep=1, cmp="eq"):
        A(f"v_mov_b32 v{ta}, 0"); A(f"s_mov_b32 s80, {SPIN_MAX}")
        lab(f"L_wait_{tag}")
        A(f"ds_read_b32 v{tb}, v{ta} offset:{off}"); A("s_waitcnt lgkmcnt(0)"); A(f"v_readfirstlane_b32 s81, v{tb}")
        A(f"s_cmp_{cmp}_u32 s81, {val}"); A(f"s_cbranch_scc1 L_got_{tag}")
        spin_tail(f"L_wait_{tag}", sleep)
        lab(f"L_got_{tag}")
    def gather(tag, items, sleep, pool, pre=False):
        if svc < {"q": 3, "h": 4, "st": 5}.get(tag, 0):
            A("s_waitcnt vmcnt(0)"); return
        assert len(pool) >= len(items)
        for (reg, va, so, imm, lo, hi), ms in zip(items, pool): A(f"s_mov_b32 s{ms}, {lo}"); A(f"s_mov_b32 s{ms+1}, {hi}")
        A(f"s_mov_b32 s80, {SPIN_MAX}")
        if pre: A(f"s_branch L_g_{tag}_chk")
        lab(f"L_g_{tag}")
        for k, ((reg, va, so, imm, lo, hi), ms) in enumerate(zip(items, pool)):
            A(f"s_mov_b64 exec, s[{ms}:{ms+1}]")
            if len(items) > 1: A(f"s_cbranch_execz L_g_{tag}_s{k}")
            A(f"buffer_load_dwordx4 v[{reg}:{reg+3}], v{va}, {WSR}, {so} offen offset:{imm} sc1")
            if len(items) > 1: lab(f"L_g_{tag}_s{k}")
        A("s_waitcnt vmcnt(0)")
        if pre: lab(f"L_g_{tag}_chk")
        for k, ((reg, va, so, imm, lo, hi), ms) in enumerate(zip(items, pool)):
            if len(items) > 1: A(f"s_mov_b64 exec, s[{ms}:{ms+1}]")
            A(f"v_cmp_ne_u32 vcc, s12, v{reg+1}"); A(f"v_cmp_ne_u32 s[{ms}:{ms+1}], s12, v{reg+3}")
            A(f"s_or_b64 s[{ms}:{ms+1}], s[{ms}:{ms+1}], vcc")
            if k == 0: A(f"s_mov_b64 s[14:15], s[{ms}:{ms+1}]")
            else: A(f"s_or_b64 s[14:15], s[14:15], s[{ms}:{ms+1}]")
        A("s_cmp_eq_u64 s[14:15], 0"); A(f"s_cbranch_scc1 L_g_{tag}_ok")
        spin_tail(f"L_g_{tag}", sleep)
        lab(f"L_g_{tag}_ok")
        A("s_mov_b64 exec, -1")

    nst = [0]
    def xstore(stores):
        if not loc:
            for st_ in stores: A(st_ + " " + lst)
            return
        nst[0] += 1
        A("s_cmp_eq_u32 s78, 1"); A(f"s_cbranch_scc1 L_xl{nst[0]}")
        for st_ in stores: A(st_ + " sc1")
        A(f"s_branch L_xd{nst[0]}"); lab(f"L_xl{nst[0]}")
        for st_ in stores: A(st_)
        lab(f"L_xd{nst[0]}")
    def poll_issue(sets, k, items):
        for j, (va, so, imm) in enumerate(items):
            r = sets[k] + 4 * j
            A(f"buffer_load_dwordx4 v[{r}:{r+3}], v{va}, {WSR}, {so} offen offset:{imm} sc1")
    def poll_loop(tag, sets, items, first):
        n = len(sets); ni = len(items)
        for k in range(1, n):
            if pgap: A(f"s_sleep {pgap}")
            poll_issue(sets, k, items)
        A(f"s_mov_b32 s80, {SPIN_MAX}")
        lab(f"L_p_{tag}")
        for k in range(n):
            A(f"s_waitcnt vmcnt({(n - 1) * ni})")
            for j in range(ni):
                r = sets[k] + 4 * j
                A(f"v_cmp_ne_u32 {'vcc' if j == 0 else 's[84:85]'}, s12, v{r+1}"); A(f"v_cmp_ne_u32 s[{82 + 4 * j}:{83 + 4 * j}], s12, v{r+3}")
            if ni == 2: A("s_or_b64 vcc, vcc, s[84:85]"); A("s_or_b64 vcc, vcc, s[86:87]")
            A("s_or_b64 vcc, vcc, s[82:83]")
            A(f"s_cbranch_scc0 L_p_{tag}_ok{k}")
            poll_issue(sets, k, items)
        A("s_sub_u32 s80, s80, 1"); A("s_cmp_lg_u32 s80, 0"); A(f"s_cbranch_scc1 L_p_{tag}")
        A("s_waitcnt vmcnt(0)")
        for k in range(n):
            lab(f"L_p_{tag}_ok{k}")
            first(sets[k])
            if k < n - 1: A(f"s_branch L_p_{tag}_done")
        lab(f"L_p_{tag}_done")
        A("s_nop 1")

    if (dbg and early) or lite: A("s_memrealtime s[88:89]")
    A("s_cmp_ge_u32 s2, 256"); A("s_cbranch_scc1 L_end")
    if kfirst: A(f"s_load_dwordx2 s[{SK}:{SK+1}], s[0:1], 8")
    else:
        A("s_load_dwordx16 s[16:31], s[0:1], 0")
        A("s_load_dwordx8 s[32:39], s[0:1], 64")
    A("v_lshrrev_b32 v2, 6, v0"); A("v_and_b32 v1, 63, v0")
    A("v_readfirstlane_b32 s3, v2")
    A("s_and_b32 s14, s2, 7"); A("s_lshr_b32 s15, s2, 3")
    if xmap: A(f"s_xor_b32 s14, s14, {xmap}")
    if spread:
        mk = (1 << spread) - 1
        sh = 3 - spread
        A(f"s_lshr_b32 s4, s14, {sh}"); A(f"s_and_b32 s5, s15, {mk}"); A("s_xor_b32 s6, s4, s5")
        A("s_xor_b32 s15, s15, s6"); A(f"s_lshl_b32 s6, s6, {sh}"); A("s_xor_b32 s14, s14, s6")
    A("s_lshr_b32 s4, s15, 4")
    A("s_bfe_u32 s5, s15, 0x10003"); A("s_lshl_b32 s14, s14, 1"); A("s_add_u32 s5, s5, s14")
    A("s_and_b32 s6, s15, 7")
    A("s_lshl_b32 s7, s4, 4"); A("s_add_u32 s7, s7, s5")
    A("s_lshl_b32 s10, s5, 3"); A("s_add_u32 s10, s10, s6")
    if dbg:
        A("s_mov_b32 s93, s3"); A("v_mov_b32 v167, 0")
        if not early: A("s_memrealtime s[88:89]")
    A("s_cmp_eq_u32 s3, 0"); A("s_cbranch_scc1 L_service")

    A("s_sub_u32 s3, s3, 1")
    vK, vV, vWo, vW2, t0, t1 = 2, 3, 4, 5, 6, 7
    M = [8, 9, 10, 11]; Q = [12, 16]; DB = [20, 24]; AB = [20, 24]; SG_ = [28, 29, 30, 31]; ACC = 32
    vMW = 12; vE = [13, 14, 15, 16]; vLW = 17
    RING = 36
    A(f"v_bfe_u32 v{t0}, v1, 2, 2"); A(f"v_lshlrev_b32 v{vK}, 9, v{t0}")
    A(f"v_lshrrev_b32 v{t0}, 4, v1"); A(f"v_lshl_add_u32 v{vK}, v{t0}, 6, v{vK}")
    A(f"v_and_b32 v{t0}, 3, v1"); A(f"v_lshl_add_u32 v{vK}, v{t0}, 4, v{vK}")
    PB = {t: 11 + k for k, t in enumerate(pat.split())}
    A("s_lshl_b32 s8, s7, 21")
    for reg, nm in (("s3", "w"), ("s6", "s")):
        k = 0
        while k < 3:
            e = k
            while e < 2 and PB[f"{nm}{e+1}"] == PB[f"{nm}{e}"] + 1: e += 1
            A(f"s_bfe_u32 s14, {reg}, {hex(((e - k + 1) << 16) + k)}"); A(f"s_lshl_b32 s14, s14, {PB[f'{nm}{k}']}"); A("s_add_u32 s8, s8, s14")
            k = e + 1
    def toff(beta, tp):
        o = (tp << PB["tp"]) | ((beta & 1) << PB["b0"]) | (((beta >> 1) & 1) << PB["b1"]) | ((beta >> 2) << PB["b2"])
        return o & ~0xfff, o & 0xfff
    A(f"v_add_u32 v{vK}, s8, v{vK}")
    if kfirst:
        A(f"s_mov_b32 s{SK+2}, 0x4000000"); A(f"s_mov_b32 s{SK+3}, 0x20000"); A("s_waitcnt lgkmcnt(0)")
    else:
        A("s_waitcnt lgkmcnt(0)")
        srd(SK, 18, 0x4000000)

    loads = [("K", beta, tp, jh) for beta in range(8) for tp in range(2) for jh in range(2)]
    loads += [("V", beta, tp, kp) for beta in range(8) for tp in range(2) for kp in range(2)]
    loads += [("F", cb) for cb in range(2)] + [("W", r, cb) for r in range(2) for cb in range(2)]
    free = list(range(R)); slot = {}
    nissued = [0]; landed = [-1]; cur_soff = [None]
    if rot:
        A(f"s_mul_i32 s11, s2, {rot}"); A("s_lshr_b32 s14, s2, 3"); A("s_add_u32 s11, s11, s14"); A("s_and_b32 s11, s11, 7"); A("s_lshl_b32 s11, s11, 15")
    def soff(val):
        if val == 0 and not rot: return "0"
        if cur_soff[0] != val:
            if rot: A(f"s_add_u32 s13, s11, {val}"); A("s_and_b32 s13, s13, 0x3ffff")
            else: A(f"s_mov_b32 s13, {val}")
            cur_soff[0] = val
        return "s13"
    def wait_landed(n):
        if n <= landed[0]: return
        A(f"s_waitcnt vmcnt({nissued[0] - 1 - n})"); landed[0] = n
    def issue(n):
        ld = loads[n]; sl = free.pop(0); slot[n] = sl; r = RING + 4 * sl
        if ld[0] == "K":
            A(f"buffer_load_dwordx4 v[{r}:{r+3}], v{vK}, s[{SK}:{SK+3}], {soff(toff(ld[1], ld[2])[0])} offen offset:{toff(ld[1], ld[2])[1] + ld[3] * 256} {kflags}")
        elif ld[0] == "V":
            A(f"buffer_load_dwordx4 v[{r}:{r+3}], v{vV}, s[{SV}:{SV+3}], {soff(toff(ld[1], ld[2])[0])} offen offset:{toff(ld[1], ld[2])[1] + ld[3] * 1024} {kflags}")
        elif ld[0] == "W":
            A(f"buffer_load_dwordx4 v[{r}:{r+3}], v{vWo}, s[{SWO}:{SWO+3}], 0 offen offset:{ld[1] * 896 + ld[2] * 512} {wflags}")
        else:
            A(f"buffer_load_dwordx4 v[{r}:{r+3}], v{vW2}, s[{SW2}:{SW2+3}], 0 offen offset:{ld[1] * 512} {wflags}")
        nissued[0] += 1
    sreg = lambda n: RING + 4 * slot[n]
    qk_next = [0]; qk_post = [None]; pv_next = [0]; pslot = {}
    def qk_dpp(tau):
        beta, tp = tau >> 1, tau & 1; G = beta >> 1; t = 2 * (beta & 1) + tp; d = DB[tau & 1]
        A(f"v_mov_b32_dpp v{t0}, v{d} quad_perm:[0,0,0,0] {DPPF}")
        A(f"v_add_f32_dpp v{t0}, v{d+1}, v{t0} quad_perm:[1,1,1,1] {DPPF}")
        A(f"v_add_f32_dpp v{t0}, v{d+2}, v{t0} quad_perm:[2,2,2,2] {DPPF}")
        A(f"v_add_f32_dpp v{SG_[G]}, v{d+3}, v{t0} quad_perm:[3,3,3,3] row_mask:0xf bank_mask:{hex(1 << t)}")
    def qk_tile(tau):
        d = DB[tau & 1]; a0 = sreg(2 * tau); a1 = sreg(2 * tau + 1)
        A(f"v_mfma_f32_16x16x32_bf16 v[{d}:{d+3}], v[{a0}:{a0+3}], v[{Q[0]}:{Q[0]+3}], 0")
        A(f"v_mfma_f32_16x16x32_bf16 v[{d}:{d+3}], v[{a1}:{a1+3}], v[{Q[1]}:{Q[1]+3}], v[{d}:{d+3}]")
        free.extend([slot[2 * tau], slot[2 * tau + 1]])
        if qk_post[0] is not None: qk_dpp(qk_post[0])
        qk_post[0] = tau
    def red_hi(op, v, t):
        for ctl in ("row_ror:4", "row_ror:8"): A(f"v_{op}_f32_dpp v{v}, v{v}, v{v} {ctl} {DPPF}")
        for sw in ("v_permlane16_swap_b32", "v_permlane32_swap_b32"):
            A(f"v_mov_b32 v{t}, v{v}"); A(f"{sw} v{v}, v{t}"); A(f"v_{op}_f32 v{v}, v{v}, v{t}")
    def sm_a():
        qk_dpp(qk_post[0]); qk_post[0] = None
        S = SG_
        A(f"v_cvt_pk_bf16_f32 v{t0}, v{S[0]}, v{S[1]}"); A(f"v_cvt_pk_bf16_f32 v{t1}, v{S[2]}, v{S[3]}")
        A(f"v_lshlrev_b32 v{S[0]}, 16, v{t0}"); A(f"v_and_b32 v{S[1]}, 0xffff0000, v{t0}")
        A(f"v_lshlrev_b32 v{S[2]}, 16, v{t1}"); A(f"v_and_b32 v{S[3]}, 0xffff0000, v{t1}")
        A(f"v_max3_f32 v{vMW}, v{S[0]}, v{S[1]}, v{S[2]}"); A(f"v_max_f32 v{vMW}, v{vMW}, v{S[3]}")
        red_hi("max", vMW, t0)
    def sm_b():
        S = SG_
        A(f"s_mov_b32 s81, {CEXP}"); A(f"v_mul_f32 v{vMW}, s81, v{vMW}")
        for k in range(4): A(f"v_fma_f32 v{vE[k]}, v{S[k]}, s81, -v{vMW}")
        for k in range(4): A(f"v_exp_f32 v{vE[k]}, v{vE[k]}")
        A("s_lshl_b32 s14, s3, 8"); A(f"v_lshl_add_u32 v{t1}, v1, 2, s14")
        for k in range(4): A(f"v_cvt_pk_bf16_f32 v{S[k]}, v{vE[k]}, v{vE[k]}")
        A("s_mov_b32 exec_lo, 0x11111111"); A("s_mov_b32 exec_hi, 0x11111111")
        A(f"ds_write_b128 v{t1}, v[{S[0]}:{S[3]}] offset:{L_PW}")
        A("s_mov_b64 exec, -1")
        A(f"v_lshrrev_b32 v{t1}, 5, v1"); A(f"v_lshl_add_u32 v{t1}, v{t1}, 6, s14")
        for t in range(4):
            for kp in range(2):
                sl = free.pop(0); pslot[(t, kp)] = sl; r = RING + 4 * sl
                A(f"ds_read_b128 v[{r}:{r+3}], v{t1} offset:{L_PW + (8 * kp + t) * 16}")
        A(f"v_add_f32 v{vLW}, v{vE[0]}, v{vE[1]}"); A(f"v_add_f32 v{t0}, v{vE[2]}, v{vE[3]}"); A(f"v_add_f32 v{vLW}, v{vLW}, v{t0}")
    def sm_c():
        red_hi("add", vLW, t0)
        A(f"v_mov_b32 v{vMW+1}, v{vLW}")
        A("s_lshl_b32 s14, s3, 3"); A(f"v_mov_b32 v{t0}, s14"); A(f"v_mov_b32 v{t1}, 1"); A(f"v_mov_b32 v{vE[2]}, 0")
        A("s_mov_b64 exec, 1")
        A(f"ds_write_b64 v{t0}, v[{vMW}:{vMW+1}] offset:{L_WST}")
        A(f"ds_add_u32 v{vE[2]}, v{t1} offset:{L_FLAG + 8}")
        A("s_mov_b64 exec, -1")
        A("s_waitcnt lgkmcnt(0)")
        stamp(3)
    def pv_tile(m):
        beta, tp, kp = m >> 2, (m >> 1) & 1, m & 1; G = beta >> 1; t = 2 * (beta & 1) + tp
        a = AB[m & 1]; p = RING + 4 * pslot[(t, kp)] + G; bv = sreg(32 + m)
        for r in range(4): A(f"v_and_b32 v{a+r}, v{p}, v{M[r]}")
        c = "0" if m == 0 else f"v[{ACC}:{ACC+3}]"
        A(f"v_mfma_f32_16x16x32_bf16 v[{ACC}:{ACC+3}], v[{a}:{a+3}], v[{bv}:{bv+3}], {c}")
        free.append(slot[32 + m])
    vFS = 18; vHP = 19
    GG = 14
    def fetch_stats():
        stamp(4); lds_wait(L_FLAG + 4, 1, "st", t0, t1); stamp(5)
        A(f"ds_read_b128 v[14:17], v{t0} offset:{L_G}")
        A(f"v_lshrrev_b32 v{t1}, 5, v1"); A("s_lshl_b32 s14, s3, 3"); A(f"v_lshl_add_u32 v{t1}, v{t1}, 2, s14")
        A(f"ds_read_b32 v{vHP}, v{t1} offset:{L_H}")
        A("s_waitcnt lgkmcnt(0)")
        if loc: A("v_readfirstlane_b32 s78, v14")
        A(f"v_add_f32 v{vFS}, v{vMW}, v16"); A(f"v_exp_f32 v{vFS}, v{vFS}"); A(f"v_mul_f32 v{vFS}, v{vFS}, v17")

    N = len(loads); chunks = [sm_a, sm_b, sm_c]; sm_done = False
    for n in range(64 if late_w else N):
        if n < 64:
            lim = LIM if n < 32 else LIMV
            if LP: lim = LP[n % len(LP)]
            if LE and n >= LE[0]: lim = LE[1]
            if bal and n >= bal["at"][0]:
                if n in bal["at"]:
                    A(f"v_mov_b32 v{t0}, 0"); A(f"ds_read_b32 v{t1}, v{t0} offset:{L_G + 20}"); A("s_waitcnt lgkmcnt(0)"); A(f"v_readfirstlane_b32 s9, v{t1}")
                wl = bal["wl"]
                for k_, (w_, th_) in enumerate(zip(wl[:-1], bal["th"])):
                    w_ = w_[n % len(w_)] if isinstance(w_, tuple) else w_
                    A(f"s_cmp_ge_u32 s9, {th_}"); A(f"s_cbranch_scc1 L_bal{n}_{k_}"); A(f"s_waitcnt vmcnt({w_})"); lab(f"L_bal{n}_{k_}")
                wait_landed(n - wl[-1] - 1)
            elif n > max(lim, LIM): wait_landed(n - lim - 1)
        if n in (LIM + 1, 8, 16, 48): stamp({LIM + 1: 12, 8: 13, 16: 14, 48: 15}[n])
        if n == NQ:
            stamp(1)
            lds_wait(L_FLAG, 1, "q", t0, t1)
            A(f"v_lshrrev_b32 v{t0}, 4, v1"); A(f"v_and_b32 v{t1}, 3, v1"); A(f"v_lshl_add_u32 v{t0}, v{t0}, 2, v{t1}"); A(f"v_lshlrev_b32 v{t0}, 4, v{t0}")
            A(f"ds_read_b128 v[{Q[0]}:{Q[0]+3}], v{t0} offset:{L_Q}")
            A(f"ds_read_b128 v[{Q[1]}:{Q[1]+3}], v{t0} offset:{L_Q + 256}")
            A(f"v_mov_b32 v{t0}, 0"); A(f"ds_read_b32 v{t1}, v{t0} offset:{L_G + 16}")
            A("s_waitcnt lgkmcnt(0)"); A(f"v_readfirstlane_b32 s12, v{t1}")
            stamp(2)
        assert free, f"no free slot at load {n}"
        issue(n)
        if n == LIM:
            if kfirst:
                A("s_load_dwordx16 s[16:31], s[0:1], 0"); A("s_load_dwordx8 s[32:39], s[0:1], 64"); A("s_waitcnt lgkmcnt(0)")
            srd(SV, 20, 0x4000000); srd(SWO, 24, 3670016); srd(SW2, 30, 1605632); srd(SWS, 38, WS_SIZE)
            A("s_barrier")
            A(f"v_lshl_add_u32 v{vV}, v1, 4, s8")
            A(f"v_and_b32 v{t0}, 31, v1"); A(f"v_lshlrev_b32 v{t0}, 4, v{t0}"); A(f"v_lshrrev_b32 v{t1}, 5, v1")
            A(f"v_mul_u32_u24 v{vWo}, 1792, v{t1}"); A(f"v_add_u32 v{vWo}, v{vWo}, v{t0}")
            A(f"v_mul_u32_u24 v{vW2}, 896, v{t1}"); A(f"v_add_u32 v{vW2}, v{vW2}, v{t0}")
            A("s_lshl_b32 s14, s10, 5"); A("s_lshl_b32 s15, s3, 2"); A("s_add_u32 s14, s14, s15"); A("s_mul_i32 s14, s14, 896")
            A(f"v_add_u32 v{vWo}, s14, v{vWo}")
            A("s_lshl_b32 s14, s10, 4"); A("s_lshl_b32 s15, s3, 1"); A("s_add_u32 s14, s14, s15"); A("s_mul_i32 s14, s14, 896")
            A(f"v_add_u32 v{vW2}, s14, v{vW2}")
            masks(A, M, t0, t1); mask_prime(A, M, t0, t1)
            if dbg: A("s_waitcnt lgkmcnt(0)"); A("v_writelane_b32 v167, s88, 0")
            if diag2 is not None:
                A("s_getreg_b32 s14, hwreg(HW_REG_XCC_ID)"); A("s_and_b32 s14, s14, 15"); A("s_and_b32 s15, s2, 7"); A("s_cmp_eq_u32 s14, s15")
                A("s_cselect_b32 s14, 1000, 1"); A("s_add_u32 s14, s14, s88"); A("v_writelane_b32 v167, s14, 16")
        if n >= NQ and not sm_done:
            c = 0
            while qk_next[0] < 16 and c < CQ and 2 * qk_next[0] + 1 <= landed[0]:
                qk_tile(qk_next[0]); qk_next[0] += 1; c += 1
            if qk_next[0] == 16:
                chunks.pop(0)()
                sm_done = not chunks
        elif sm_done:
            c = 0
            while pv_next[0] < 32 and c < CP and 32 + pv_next[0] <= landed[0]:
                pv_tile(pv_next[0]); pv_next[0] += 1; c += 1
        if n == NF: fetch_stats()
        if n in (NG, NS, CK1, CK3):
            A(f"v_mov_b32 v{t0}, 0"); A(f"v_mov_b32 v{t1}, {n}")
            A("s_mov_b64 exec, 1"); A(f"ds_max_u32 v{t0}, v{t1} offset:{L_FLAG + 12}"); A("s_mov_b64 exec, -1")
    assert sm_done
    vRw, vO, vY, vR1 = vK, vV, 13, 16
    red2_lane(A, vRw, t0)
    A("s_lshl_b32 s14, s3, 10"); A(f"v_add_u32 v{vR1}, s14, v{vRw}")
    A("s_lshl_b32 s14, s3, 11"); A(f"s_add_u32 s14, s14, {L_RED2}"); A(f"v_add_u32 v{vRw}, s14, v{vRw}")
    A("s_lshl_b32 s14, s3, 6"); A(f"v_add_u32 v{vY}, s14, v1")
    A(f"v_lshrrev_b32 v{t0}, 4, v{vY}"); A(f"v_lshlrev_b32 v{vO}, 11, v{t0}"); A(f"v_and_b32 v{t0}, 15, v1"); A(f"v_lshl_add_u32 v{vO}, v{t0}, 4, v{vO}")
    if swz:
        A(f"v_lshrrev_b32 v{t0}, 4, v{vY}"); A(f"v_add_u32 v{t0}, s6, v{t0}"); A(f"v_and_b32 v{t0}, 7, v{t0}"); A(f"v_lshl_add_u32 v{vO}, v{t0}, 8, v{vO}")
        A("s_lshl_b32 s11, s7, 14"); A(f"s_add_u32 s11, s11, {WS_O}")
    else:
        A("s_lshl_b32 s9, s7, 14"); A(f"s_add_u32 s9, s9, {WS_O}"); A("s_lshl_b32 s14, s6, 8"); A("s_add_u32 s11, s9, s14")
    while pv_next[0] < 32:
        wait_landed(32 + pv_next[0]); pv_tile(pv_next[0]); pv_next[0] += 1
    lab("L_tail")
    if late_w == 3:
        for n in range(64, N): issue(n)
    stamp(6)
    A(f"v_lshlrev_b32 v{t0}, 3, v{vY}")
    for k in range(4): A(f"v_mul_f32 v{ACC+k}, v{vFS}, v{ACC+k}")
    A(f"ds_write_b128 v{vR1}, v[{ACC}:{ACC+3}] offset:{L_RED1}")
    A("s_waitcnt lgkmcnt(0)"); A("s_barrier")
    if late_w in (1, 2):
        free[:] = sorted(free + list(pslot.values())); pslot.clear()
        held = free[-6:]; del free[-6:]
    fr = [RING + 4 * s_ for s_ in sorted(free + list(pslot.values()))]
    run = [r for r in fr if all(r + 4 * k in fr for k in range(4))][0]
    rest = [r for r in fr if not run <= r < run + 16]
    FS = []
    for _ in range(pp):
        r = [r for r in rest if r + 4 in rest][0]; FS.append(r); rest.remove(r); rest.remove(r + 4)
    PS = rest[:pp]; assert len(PS) == pp
    Y = run; U = 20
    if late_w == 2:
        free[:] = held
        for n in range(64, N): issue(n)
    A("s_cmp_ge_u32 s3, 2"); A("s_cbranch_scc1 L_odone")
    for k in range(8): A(f"ds_read_b64 v[{Y+2*k}:{Y+2*k+1}], v{t0} offset:{L_RED1 + 1024 * k}")
    A(f"v_mov_b32 v{U+1}, s12"); A(f"v_mov_b32 v{U+3}, s12")
    A("s_waitcnt lgkmcnt(0)")
    for st in (1, 2):
        for k in range(0, 8, 2 * st):
            for c_ in range(2): A(f"v_add_f32 v{Y+2*k+c_}, v{Y+2*k+c_}, v{Y+2*(k+st)+c_}")
    A(f"v_add_f32 v{U}, v{Y}, v{Y+8}"); A(f"v_add_f32 v{U+2}, v{Y+1}, v{Y+9}")
    xstore([f"buffer_store_dwordx4 v[{U}:{U+3}], v{vO}, {WSR}, s11 offen"])
    lab("L_odone")
    if late_w == 1:
        free[:] = held
        for n in range(64, N): issue(n)
    stamp(7)
    OG = 28; DA, DBb = Y, Y + 4
    for q in range(4): A(f"v_and_b32 v{ACC+q}, v{vHP}, v{M[q]}")
    A(f"v_add_u32 v{t0}, {L_RED2}, v{t0}")
    A(f"v_lshrrev_b32 v{t1}, 5, v1"); A("s_lshl_b32 s14, s3, 4"); A(f"v_lshl_add_u32 v{t1}, v{t1}, 3, s14")
    if two:
        A("s_lshl_b32 s9, s4, 3"); A("s_add_u32 s9, s9, s6"); A("s_lshl_b32 s9, s9, 2"); A("s_add_u32 s9, s9, s3"); A("s_sub_u32 s9, s9, 4")
        A("s_cmp_ge_u32 s9, 28"); A("s_cselect_b32 s14, 28, 0"); A("s_cselect_b32 s15, 16, 0")
        A(f"s_mov_b32 s13, {WS_Y2[0]}"); A(f"s_cselect_b32 s13, {WS_Y2[1]}, s13")
        A("s_sub_u32 s14, s9, s14"); A("s_add_u32 s15, s15, s5"); A("s_mul_i32 s11, s15, 28672"); A("s_lshl_b32 s15, s14, 10")
        A("s_add_u32 s11, s11, s15"); A(f"s_add_u32 s11, s11, {WS_Y}")
        A("s_lshl_b32 s14, s14, 11"); A("s_add_u32 s13, s13, s14"); A("s_lshl_b32 s14, s5, 7"); A("s_add_u32 s13, s13, s14")
        A(f"v_lshlrev_b32 v{vR1}, 4, v1")
    FID = "s2"
    if lightfin:
        FID = "s8"
        A("s_lshl_b32 s14, s4, 3"); A("s_add_u32 s14, s14, s6")
        A("s_lshl_b32 s15, s5, 4"); A("s_add_u32 s15, s15, s14"); A("s_sub_u32 s15, s15, 224")
        A("s_cmp_lt_u32 s15, 28"); A("s_cselect_b32 s8, s15, 99")
        A("s_lshl_b32 s15, s5, 1"); A("s_add_u32 s15, s15, s14"); A("s_add_u32 s15, s15, 14")
        A("s_cmp_ge_u32 s14, 14"); A("s_cselect_b32 s15, s15, 99"); A("s_cmp_lt_u32 s5, 14"); A("s_cselect_b32 s8, s15, s8")
    A("s_waitcnt vmcnt(4)")
    for cb, d in ((0, DA), (1, DBb)):
        bw = sreg(64 + cb); A(f"v_mfma_f32_16x16x32_bf16 v[{d}:{d+3}], v[{ACC}:{ACC+3}], v[{bw}:{bw+3}], 0")
    for k in range(8): A(f"v_mul_f32 v{DA+k}, v15, v{DA+k}")
    if prefin:
        A("s_cmp_ge_u32 s2, 56"); A("s_cbranch_scc1 L_pf_no")
        A("s_lshl_b32 s13, s2, 14"); A("s_lshl_b32 s15, s3, 11"); A("s_add_u32 s13, s13, s15"); A(f"s_add_u32 s13, s13, {WS_Y}")
        A(f"v_lshlrev_b32 v{vR1}, 4, v1")
        for k in range(2): A(f"buffer_load_dwordx4 v[{FS[0]+4*k}:{FS[0]+4*k+3}], v{vR1}, {WSR}, s13 offen offset:{1024 * k} sc1")
        A("s_cmp_lt_u32 s3, 2"); A("s_cbranch_scc1 L_pf_3"); A("s_waitcnt vmcnt(2)"); lab("L_pf_3"); A("s_waitcnt vmcnt(3)"); A("s_branch L_pf_done")
        lab("L_pf_no")
        A("s_cmp_lt_u32 s3, 2"); A("s_cbranch_scc1 L_ow1"); A("s_waitcnt vmcnt(0)"); lab("L_ow1"); A("s_waitcnt vmcnt(1)")
        lab("L_pf_done")
    elif direct: pass
    elif late_w == 1: A("s_waitcnt vmcnt(0) lgkmcnt(0)")
    else: A("s_cmp_lt_u32 s3, 2"); A("s_cbranch_scc1 L_ow1"); A("s_waitcnt vmcnt(0)"); lab("L_ow1"); A("s_waitcnt vmcnt(1) lgkmcnt(0)")
    if direct:
        A(f"v_and_b32 v{t1}, 7, v1"); A(f"v_lshlrev_b32 v{vO}, 8, v{t1}"); A(f"v_lshrrev_b32 v{t1}, 5, v1"); A(f"v_lshl_add_u32 v{vO}, v{t1}, 4, v{vO}")
        A("s_lshl_b32 s9, s7, 14"); A(f"s_add_u32 s9, s9, {WS_O}"); A("s_lshl_b32 s14, s6, 11"); A("s_add_u32 s9, s9, s14"); A("s_lshl_b32 s14, s3, 5"); A("s_add_u32 s9, s9, s14")
        gather("od", [(OG, vO, "s9", 0, -1, -1)], osleep, [82])
        stamp(8)
        for ctl in ("quad_perm:[1,0,3,2]", "quad_perm:[2,3,0,1]", "row_half_mirror"):
            for k in (0, 2): A(f"v_add_f32_dpp v{OG+k}, v{OG+k}, v{OG+k} {ctl} {DPPF}")
        A(f"v_cvt_pk_bf16_f32 v{OG}, v{OG}, v{OG}"); A(f"v_cvt_pk_bf16_f32 v{OG+1}, v{OG+2}, v{OG+2}")
    else:
        A("s_barrier")
        A(f"ds_read_b64 v[{OG}:{OG+1}], v{t1} offset:{L_OL}")
        stamp(8)
        A("s_waitcnt lgkmcnt(0)")
    for r in range(2):
        for q in range(4): A(f"v_and_b32 v{AB[r]+q}, v{OG+r}, v{M[q]}")
    for r in range(2):
        for cb, d in ((0, DA), (1, DBb)):
            bw = sreg(66 + 2 * r + cb)
            A(f"v_mfma_f32_16x16x32_bf16 v[{d}:{d+3}], v[{AB[r]}:{AB[r]+3}], v[{bw}:{bw+3}], v[{d}:{d+3}]")
    A(f"ds_write_b128 v{vRw}, v[{DA}:{DA+3}]"); A(f"ds_write_b128 v{vRw}, v[{DBb}:{DBb+3}] offset:1024")
    A("s_waitcnt lgkmcnt(0)"); A("s_barrier")
    def red3(r):
        for k in (0, 2): A(f"v_add_f32_dpp v{r+k}, v{r+k}, v{r+k} row_ror:8 {DPPF}")
        A(f"v_permlane16_swap_b32 v{r}, v{r+2}"); A(f"v_add_f32 v{r}, v{r}, v{r+2}")
        A(f"v_mov_b32 v{r+2}, v{r}"); A(f"v_permlane32_swap_b32 v{r}, v{r+2}"); A(f"v_add_f32 v{r}, v{r}, v{r+2}")
        A(f"v_mov_b32 v{r+2}, v{r}"); A(f"v_permlane16_swap_b32 v{r}, v{r+2}")
    if two:
        A("s_cmp_ge_u32 s3, 4"); A("s_cbranch_scc1 L_lvl1")
        for k in range(8): A(f"ds_read_b64 v[{Y+2*k}:{Y+2*k+1}], v{t0} offset:{2048 * k}")
        A(f"v_cmp_gt_u32 vcc, 224, v{vY}")
        A(f"v_lshrrev_b32 v{t1}, 3, v{vY}"); A(f"v_lshlrev_b32 v{vO}, 10, v{t1}")
        A(f"v_and_b32 v{t1}, 7, v1"); A(f"v_lshl_add_u32 v{vO}, v{t1}, 4, v{vO}")
        A("s_mul_i32 s14, s7, 28672"); A("s_lshl_b32 s15, s6, 7"); A("s_add_u32 s14, s14, s15"); A(f"s_add_u32 s14, s14, {WS_Y}")
        A(f"v_mov_b32 v{U+1}, s12"); A(f"v_mov_b32 v{U+3}, s12")
        A("s_waitcnt lgkmcnt(0)")
        for st in (1, 2):
            for k in range(0, 8, 2 * st):
                for c_ in range(2): A(f"v_add_f32 v{Y+2*k+c_}, v{Y+2*k+c_}, v{Y+2*(k+st)+c_}")
        A(f"v_add_f32 v{U}, v{Y}, v{Y+8}"); A(f"v_add_f32 v{U+2}, v{Y+1}, v{Y+9}")
        A("s_and_b64 exec, exec, vcc")
        xstore([f"buffer_store_dwordx4 v[{U}:{U+3}], v{vO}, {WSR}, s14 offen"])
        A("s_mov_b64 exec, -1")
        stamp(9)
        A("s_branch L_fin_skip")
        lab("L_lvl1")
        A("s_cmp_ge_u32 s9, 56"); A("s_cbranch_scc1 L_fin_skip")
        F = 24
        gather("l1", [(F, vR1, "s11", 0, -1, -1)], 0, [82])
        red3(F)
        A("s_mov_b64 exec, 0xff")
        A(f"buffer_store_dwordx4 v[{F}:{F+3}], v{vR1}, {WSR}, s13 offen sc1")
        A("s_mov_b64 exec, -1")
        stamp(10)
    else:
        pass
    if yb and not two:
        A("s_cmp_ge_u32 s3, 2"); A("s_cbranch_scc1 L_ydone")
        Z = fr[4] if False else None
        ZR = [r for r in fr if all(r + 4 * k in fr for k in range(8))][0]
        A(f"v_lshlrev_b32 v{t0}, 4, v{vY}"); A(f"v_add_u32 v{t0}, {L_RED2}, v{t0}")
        for k in range(8): A(f"ds_read_b128 v[{ZR+4*k}:{ZR+4*k+3}], v{t0} offset:{2048 * k}")
        A(f"v_cmp_gt_u32 vcc, 112, v{vY}")
        A(f"v_lshrrev_b32 v{t1}, 3, v{vY}"); A(f"v_lshlrev_b32 v{vO}, 14, v{t1}")
        A(f"v_and_b32 v{t1}, 7, v1"); A(f"v_lshl_add_u32 v{vO}, v{t1}, 4, v{vO}")
        A(f"s_mul_i32 s14, s4, {14 * 16384}"); A("s_lshl_b32 s15, s10, 7"); A("s_add_u32 s14, s14, s15"); A(f"s_add_u32 s14, s14, {WS_Y}")
        A(f"v_mov_b32 v{U+1}, s12"); A(f"v_mov_b32 v{U+3}, s12")
        A("s_waitcnt lgkmcnt(0)")
        for st in (1, 2, 4):
            for k in range(0, 8, 2 * st):
                for c_ in range(4): A(f"v_add_f32 v{ZR+4*k+c_}, v{ZR+4*k+c_}, v{ZR+4*(k+st)+c_}")
        A(f"v_cvt_pk_bf16_f32 v{U}, v{ZR}, v{ZR+1}"); A(f"v_cvt_pk_bf16_f32 v{U+2}, v{ZR+2}, v{ZR+3}")
        A("s_and_saveexec_b64 s[82:83], vcc")
        A(f"buffer_store_dwordx4 v[{U}:{U+3}], v{vO}, {WSR}, s14 offen sc1")
        A("s_mov_b64 exec, s[82:83]")
        lab("L_ydone")
        stamp(9)
        A("s_cmp_ge_u32 s2, 28"); A("s_cbranch_scc1 L_fin_skip")
        A("s_lshl_b32 s13, s2, 14"); A("s_lshl_b32 s15, s3, 11"); A("s_add_u32 s13, s13, s15"); A(f"s_add_u32 s13, s13, {WS_Y}")
        A(f"v_lshlrev_b32 v{t0}, 4, v1")
        F = 24; G_ = 8
        gather("fin", [(F, t0, "s13", 0, -1, -1), (F + 4, t0, "s13", 1024, -1, -1)], fsleep, [82, 84])
        srd(SO, 34, 1792)
        for k in (0, 2, 4, 6): A(f"v_and_b32 v{F+k+1}, 0xffff0000, v{F+k}"); A(f"v_lshlrev_b32 v{F+k}, 16, v{F+k}")
        for k in range(4): A(f"v_add_f32 v{F+k}, v{F+k}, v{F+4+k}")
        stamp(10)
        for k in range(4): A(f"v_add_f32_dpp v{F+k}, v{F+k}, v{F+k} row_ror:8 {DPPF}")
        A(f"v_permlane16_swap_b32 v{F}, v{F+1}"); A(f"v_permlane16_swap_b32 v{F+2}, v{F+3}")
        A(f"v_add_f32 v{F}, v{F}, v{F+1}"); A(f"v_add_f32 v{F+2}, v{F+2}, v{F+3}")
        A(f"v_permlane32_swap_b32 v{F}, v{F+2}"); A(f"v_add_f32 v{F}, v{F}, v{F+2}")
        A(f"v_and_b32 v{t0}, 7, v1"); A(f"v_lshrrev_b32 v{t1}, 4, v1"); A(f"v_lshl_add_u32 v{t0}, v{t0}, 2, v{t1}")
        A(f"v_lshlrev_b32 v{t0}, 5, v{t0}"); A("s_lshl_b32 s14, s3, 2"); A(f"v_add_u32 v{t0}, s14, v{t0}")
        A("s_mov_b32 exec_lo, 0x00ff00ff"); A("s_mov_b32 exec_hi, 0x00ff00ff")
        A(f"ds_write_b32 v{t0}, v{F} offset:{L_PW}")
        A("s_mov_b64 exec, -1")
        A("s_waitcnt lgkmcnt(0)"); A("s_barrier")
        A("s_cmp_lg_u32 s3, 0"); A("s_cbranch_scc1 L_fin_skip")
        A(f"v_and_b32 v{t0}, 31, v1"); A(f"v_lshlrev_b32 v{t1}, 5, v{t0}")
        A(f"ds_read_b128 v[{F}:{F+3}], v{t1} offset:{L_PW}"); A(f"ds_read_b128 v[{F+4}:{F+7}], v{t1} offset:{L_PW + 16}")
        A(f"v_lshlrev_b32 v{t0}, 1, v{t0}"); A("s_lshl_b32 s14, s2, 6")
        A("s_waitcnt lgkmcnt(0)")
        for st in (1, 2, 4):
            for k in range(0, 8, 2 * st): A(f"v_add_f32 v{F+k}, v{F+k}, v{F+k+st}")
        A(f"v_cvt_pk_bf16_f32 v{F}, v{F}, v{F}")
        A("s_mov_b32 exec_hi, 0")
        A(f"buffer_store_short v{F}, v{t0}, s[{SO}:{SO+3}], s14 offen")
        A("s_cmp_lg_u32 s2, 0"); A("s_cbranch_scc1 L_fin_noep")
        A("s_mov_b64 exec, 1"); A(f"v_mov_b32 v{t0}, 0"); A(f"v_mov_b32 v{t1}, s12")
        A(f"s_mov_b32 s13, {wsb}"); A(f"buffer_store_dword v{t1}, v{t0}, {WSR}, s13 offen")
        if lite:
            A("s_memrealtime s[90:91]"); A("s_waitcnt lgkmcnt(0)"); A("v_mov_b32 v8, s88"); A("v_mov_b32 v9, s90")
            A("s_mov_b32 s92, s36"); A("s_mov_b32 s93, s37"); A("s_mov_b32 s94, 256"); A("s_mov_b32 s95, 0x20000")
            A(f"buffer_store_dwordx2 v[8:9], v{t0}, s[92:95], 0 offen")
        lab("L_fin_noep")
        A("s_mov_b64 exec, -1")
    if not two and not yb:
        A("s_cmp_ge_u32 s3, 4"); A("s_cbranch_scc1 L_ydone")
        for k in range(8): A(f"ds_read_b64 v[{Y+2*k}:{Y+2*k+1}], v{t0} offset:{2048 * k}")
        A(f"v_cmp_gt_u32 vcc, 224, v{vY}")
        A(f"v_lshrrev_b32 v{t1}, 3, v{vY}"); A(f"v_lshlrev_b32 v{vO}, 14, v{t1}")
        if swz:
            A(f"v_mul_u32_u24 v{t1}, {swz}, v{t1}"); A(f"v_add_u32 v{t1}, s10, v{t1}"); A(f"v_and_b32 v{t1}, 127, v{t1}"); A(f"v_lshl_add_u32 v{vO}, v{t1}, 7, v{vO}")
        A(f"v_and_b32 v{t1}, 7, v1"); A(f"v_lshl_add_u32 v{vO}, v{t1}, 4, v{vO}")
        A(f"s_mul_i32 s14, s4, {28 * 16384}")
        if not swz: A("s_lshl_b32 s15, s10, 7"); A("s_add_u32 s14, s14, s15")
        A(f"s_add_u32 s14, s14, {WS_Y}")
        A(f"v_mov_b32 v{U+1}, s12"); A(f"v_mov_b32 v{U+3}, s12")
        A("s_waitcnt lgkmcnt(0)")
        for st in (1, 2):
            for k in range(0, 8, 2 * st):
                for c_ in range(2): A(f"v_add_f32 v{Y+2*k+c_}, v{Y+2*k+c_}, v{Y+2*(k+st)+c_}")
        A(f"v_add_f32 v{U}, v{Y}, v{Y+8}"); A(f"v_add_f32 v{U+2}, v{Y+1}, v{Y+9}")
        A("s_and_saveexec_b64 s[82:83], vcc")
        A(f"buffer_store_dwordx4 v[{U}:{U+3}], v{vO}, {WSR}, s14 offen sc1")
        A("s_mov_b64 exec, s[82:83]")
        lab("L_ydone")
        stamp(9)
        A(f"s_cmp_ge_u32 {FID}, 56"); A("s_cbranch_scc1 L_fin_skip")
        F = 24
        srd(SO, 34, 1792)
        if prefin:
            A("s_waitcnt vmcnt(1)"); A("s_cmp_lt_u32 s3, 4"); A("s_cbranch_scc1 L_pf_w"); A("s_waitcnt vmcnt(0)"); lab("L_pf_w")
            G0 = FS[0]
            gather("fin", [(G0, vR1, "s13", 0, -1, -1), (G0 + 4, vR1, "s13", 1024, -1, -1)], fsleep, [82, 84], pre=True)
        else:
            A(f"s_lshl_b32 s13, {FID}, 14"); A("s_lshl_b32 s15, s3, 11"); A("s_add_u32 s13, s13, s15"); A(f"s_add_u32 s13, s13, {WS_Y}")
            A(f"v_lshlrev_b32 v{t0}, 4, v1")
            G0 = F
            gather("fin", [(F, t0, "s13", 0, -1, -1), (F + 4, t0, "s13", 1024, -1, -1)], fsleep, [82, 84])
        A(f"v_add_f32 v{F}, v{G0}, v{G0+4}"); A(f"v_add_f32 v{F+2}, v{G0+2}, v{G0+6}")
        stamp(10)
        A(f"v_add_f32_dpp v{F}, v{F}, v{F} row_ror:8 {DPPF}"); A(f"v_add_f32_dpp v{F+2}, v{F+2}, v{F+2} row_ror:8 {DPPF}")
        A(f"v_permlane16_swap_b32 v{F}, v{F+2}"); A(f"v_add_f32 v{F}, v{F}, v{F+2}")
        A(f"v_mov_b32 v{F+2}, v{F}"); A(f"v_permlane32_swap_b32 v{F}, v{F+2}"); A(f"v_add_f32 v{F}, v{F}, v{F+2}")
        A(f"v_and_b32 v{t0}, 7, v1"); A(f"v_bfe_u32 v{t1}, v1, 4, 1"); A(f"v_lshl_add_u32 v{t0}, v{t0}, 1, v{t1}")
        A(f"v_lshlrev_b32 v{t0}, 5, v{t0}"); A("s_lshl_b32 s14, s3, 2"); A(f"v_add_u32 v{t0}, s14, v{t0}")
        A("s_mov_b32 exec_lo, 0x00ff00ff"); A("s_mov_b32 exec_hi, 0")
        A(f"ds_write_b32 v{t0}, v{F} offset:{L_FIN}")
        A("s_mov_b64 exec, -1")
        A("s_waitcnt lgkmcnt(0)"); A("s_barrier")
        A("s_cmp_lg_u32 s3, 0"); A("s_cbranch_scc1 L_fin_skip")
        A(f"v_and_b32 v{t0}, 15, v1"); A(f"v_lshlrev_b32 v{t1}, 5, v{t0}")
        A(f"ds_read_b128 v[{F}:{F+3}], v{t1} offset:{L_FIN}"); A(f"ds_read_b128 v[{F+4}:{F+7}], v{t1} offset:{L_FIN + 16}")
        A(f"v_lshlrev_b32 v{t0}, 1, v{t0}"); A(f"s_lshl_b32 s14, {FID}, 5")
        A("s_waitcnt lgkmcnt(0)")
        for st in (1, 2, 4):
            for k in range(0, 8, 2 * st): A(f"v_add_f32 v{F+k}, v{F+k}, v{F+k+st}")
        A(f"v_cvt_pk_bf16_f32 v{F}, v{F}, v{F}")
        A("s_mov_b64 exec, 0xffff")
        A(f"buffer_store_short v{F}, v{t0}, s[{SO}:{SO+3}], s14 offen {ofl}")
        A(f"s_cmp_lg_u32 {FID}, 0"); A("s_cbranch_scc1 L_fin_noep")
        A("s_mov_b64 exec, 1"); A(f"v_mov_b32 v{t0}, 0"); A(f"v_mov_b32 v{t1}, s12")
        A(f"s_mov_b32 s13, {wsb}"); A(f"buffer_store_dword v{t1}, v{t0}, {WSR}, s13 offen {ofl}")
        if lite:
            A("s_memrealtime s[90:91]"); A("s_waitcnt lgkmcnt(0)"); A("v_mov_b32 v8, s88"); A("v_mov_b32 v9, s90")
            A("s_mov_b32 s92, s36"); A("s_mov_b32 s93, s37"); A("s_mov_b32 s94, 256"); A("s_mov_b32 s95, 0x20000")
            A(f"buffer_store_dwordx2 v[8:9], v{t0}, s[92:95], 0 offen")
        lab("L_fin_noep")
        A("s_mov_b64 exec, -1")
    lab("L_fin_skip")
    stamp(11)
    dump_stamps()
    if diag2 is not None:
        role, kk, op = diag2[:3]; xf = diag2[3] if len(diag2) > 3 else None
        A("s_cmp_lg_u32 s2, 0"); A("s_cbranch_scc1 L_diag_end"); A("s_cmp_lg_u32 s3, 0"); A("s_cbranch_scc1 L_diag_end")
        A("s_add_u32 s84, s88, 7000"); lab("L_diag1"); A("s_sleep 8")
        A("s_memrealtime s[90:91]"); A("s_waitcnt lgkmcnt(0)"); A("s_sub_u32 s85, s90, s84"); A("s_cmp_lt_i32 s85, 0"); A("s_cbranch_scc1 L_diag1")
        A("v_mov_b32 v10, 0"); A("v_mov_b32 v11, -1"); A("v_mov_b32 v14, 0")
        nr = 4 if role else 32
        for r in range(nr):
            if role: A(f"v_add_u32 v12, {r * 64}, v1"); A("v_mul_u32_u24 v12, 2304, v12")
            else:
                A(f"v_lshrrev_b32 v12, 3, v1"); A(f"v_add_u32 v12, {r * 8}, v12"); A("v_mul_u32_u24 v12, 9, v12"); A("v_and_b32 v13, 7, v1"); A("v_add_u32 v12, v12, v13")
                A("v_add_u32 v12, 1, v12"); A("v_lshlrev_b32 v12, 8, v12")
            A(f"s_mov_b32 s13, {WS_DBG}")
            A(f"buffer_load_dword v8, v12, {WSR}, s13 offen sc1"); A(f"buffer_load_dword v9, v12, {WSR}, s13 offen offset:{4 * kk} sc1"); A("s_waitcnt vmcnt(0)")
            A("v_subrev_u32 v8, s88, v8"); A("v_add_u32 v8, 0x1000, v8"); A("v_min_u32 v11, v11, v8")
            A("v_cmp_ne_u32 vcc, 0, v9"); A("v_subrev_u32 v9, s88, v9"); A("v_add_u32 v9, 0x1000, v9"); A("v_cndmask_b32 v9, 0, v9, vcc")
            if xf is not None:
                A("v_lshrrev_b32 v13, 3, v1"); A(f"v_cmp_eq_u32 vcc, {xf}, v13"); A("v_cndmask_b32 v9, 0, v9, vcc")
            A("v_max_u32 v10, v10, v9"); A("v_add_u32 v14, v14, v9")
        if op == "mean": A(f"v_lshrrev_b32 v10, {2 if role else 5}, v14")
        for v, o in ((10, "add" if op == "mean" else "max"), (11, "min")):
            for ctl in ("quad_perm:[1,0,3,2]", "quad_perm:[2,3,0,1]", "row_half_mirror", "row_mirror"): A(f"v_{o}_u32_dpp v{v}, v{v}, v{v} {ctl} {DPPF}")
            for sw in ("v_permlane16_swap_b32", "v_permlane32_swap_b32"):
                A(f"v_mov_b32 v12, v{v}"); A(f"{sw} v{v}, v12"); A(f"v_{o}_u32 v{v}, v{v}, v12")
        if op == "mean": A(f"v_lshrrev_b32 v10, {6 if xf is None else 3}, v10")
        A("v_sub_u32 v10, v10, v11"); A("v_readfirstlane_b32 s85, v10"); A("s_lshl_b32 s85, s85, 2")
        if kk < 0: A("s_mov_b32 s85, 0")
        A("s_min_u32 s85, s85, 40000"); A(f"s_add_u32 s84, s88, {dbase}"); A("s_add_u32 s84, s84, s85")
        lab("L_diag2")
        A("s_memrealtime s[90:91]"); A("s_waitcnt lgkmcnt(0)"); A("s_sub_u32 s85, s90, s84"); A("s_cmp_lt_i32 s85, 0"); A("s_cbranch_scc1 L_diag2")
        lab("L_diag_end")
    if diag is not None:
        A("s_cmp_lg_u32 s2, 0"); A("s_cbranch_scc1 L_diag_end"); A("s_cmp_lg_u32 s3, 0"); A("s_cbranch_scc1 L_diag_end")
        A("s_add_u32 s84, s88, 7000")
        lab("L_diag1")
        A("s_memrealtime s[90:91]"); A("s_waitcnt lgkmcnt(0)"); A("s_sub_u32 s85, s90, s84"); A("s_cmp_lt_i32 s85, 0"); A("s_cbranch_scc1 L_diag1")
        A("v_lshlrev_b32 v166, 2, v1"); A("buffer_load_dword v165, v166, s[92:95], 0 offen sc1"); A("s_waitcnt vmcnt(0)")
        A("v_readlane_b32 s84, v165, 0"); A(f"v_readlane_b32 s85, v165, {max(diag, 0)}")
        A("s_not_b32 s84, s84"); A("s_sub_u32 s85, s85, s84"); A("s_lshl_b32 s85, s85, 2")
        if diag <= 0: A("s_mov_b32 s85, 0")
        A("s_min_u32 s85, s85, 40000"); A(f"s_add_u32 s84, s88, {dbase}"); A("s_add_u32 s84, s84, s85")
        lab("L_diag2")
        A("s_memrealtime s[90:91]"); A("s_waitcnt lgkmcnt(0)"); A("s_sub_u32 s85, s90, s84"); A("s_cmp_lt_i32 s85, 0"); A("s_cbranch_scc1 L_diag2")
        lab("L_diag_end")
    A("s_endpgm")

    lab("L_service")
    if kfirst: A("s_load_dwordx16 s[16:31], s[0:1], 0"); A("s_load_dwordx8 s[32:39], s[0:1], 64")
    A("s_setprio 3")
    vL16, vQe, vQo, vFe, vFo, vXq, vXf = 2, 3, 4, 5, 6, 7, 8
    vTr = [9, 10, 11, 12]; a_, b_, c_, d_ = 14, 15, 16, 17; vG, vOG = 20, 21
    A(f"v_mov_b32 v{a_}, 0"); A(f"v_mov_b32 v{b_}, 0"); A(f"v_mov_b32 v{c_}, 0"); A(f"v_mov_b32 v{d_}, 0")
    A(f"ds_write_b128 v{a_}, v[{a_}:{d_}] offset:{L_FLAG}")
    if bal: A(f"v_mov_b32 v{vG}, {bal.get('init', 0)}"); A(f"ds_write_b32 v{a_}, v{vG} offset:{L_G + 20}")
    A(f"v_lshlrev_b32 v{vL16}, 4, v1")
    A("s_and_b32 s8, s6, 3"); A("s_lshr_b32 s9, s6, 2"); A("s_lshl_b32 s14, s4, 1"); A("s_add_u32 s9, s9, s14")
    A("s_lshl_b32 s15, s4, 3"); A("s_add_u32 s15, s15, s6")
    A("s_cmp_ge_u32 s15, 7"); A("s_cselect_b32 s11, 1, 0"); A("s_mul_i32 s14, s11, 7"); A("s_sub_u32 s81, s15, s14")
    A("s_cmp_lt_u32 s15, 14"); A("s_cselect_b32 s79, 1, 0"); A("s_cmp_lt_u32 s5, 14"); A("s_cselect_b32 s79, s79, 0")
    A("s_lshl_b32 s14, s5, 1"); A("s_add_u32 s11, s11, s14")
    A(f"v_bfe_u32 v{a_}, v1, 4, 1"); A(f"v_lshlrev_b32 v{a_}, 1, v{a_}"); A(f"v_and_b32 v{b_}, 7, v1"); A(f"v_xor_b32 v{a_}, v{a_}, v{b_}")
    A(f"v_xor_b32 v{b_}, 4, v{a_}"); A(f"v_lshrrev_b32 v{c_}, 3, v1")
    A(f"s_mul_i32 s14, s9, {112 * 8192}"); A("s_lshl_b32 s15, s5, 9"); A("s_add_u32 s14, s14, s15"); A("s_lshl_b32 s15, s8, 7"); A("s_add_u32 s14, s14, s15")
    A(f"v_lshl_add_u32 v{d_}, v{c_}, 13, s14")
    A(f"v_lshl_add_u32 v{vQe}, v{a_}, 4, v{d_}"); A(f"v_lshl_add_u32 v{vQo}, v{b_}, 4, v{d_}")
    A(f"s_mul_i32 s14, s81, {64 * 3584}"); A("s_lshl_b32 s15, s11, 7"); A("s_add_u32 s14, s14, s15")
    A(f"v_mul_u32_u24 v{d_}, 3584, v{c_}"); A(f"v_add_u32 v{d_}, s14, v{d_}")
    A(f"v_lshl_add_u32 v{vFe}, v{a_}, 4, v{d_}"); A(f"v_lshl_add_u32 v{vFo}, v{b_}, 4, v{d_}")
    A("s_waitcnt lgkmcnt(0)")
    A(f"s_mov_b32 s13, {wsb}"); A("s_load_dword s12, s[38:39], s13")
    srd(SX, 16, 1792); srd(SWQ, 22, 3670016); srd(SG, 32, 896); srd(SW1, 28, 1605632)
    A("s_cmp_eq_u32 s79, 1"); A(f"s_cselect_b32 s{SW1+2}, s{SW1+2}, 0")
    if svc == 0:
        for d in (SX, SWQ, SG, SW1): A(f"s_mov_b32 s{d+2}, 0")
    if svc == 0.5:
        for d in (SW1,): A(f"s_mov_b32 s{d+2}, 0")
    A(f"s_mov_b32 m0, {L_X}")
    for k in range(2): A(f"buffer_load_dwordx4 v{vL16}, s[{SX}:{SX+3}], 0 offen offset:{1024 * k} lds")
    for m in range(16):
        A(f"s_mov_b32 m0, {L_W + 1024 * m}")
        A(f"s_mov_b32 s13, {m * 65536 if m < 14 else 0x7f000000}")
        A(f"buffer_load_dwordx4 v{vQo if m & 1 else vQe}, s[{SWQ}:{SWQ+3}], s13 offen {wflags} lds")
    for m in range(8):
        A(f"s_mov_b32 m0, {L_W1 + 1024 * m}"); A(f"s_mov_b32 s13, {m * 8 * 3584}")
        A(f"buffer_load_dwordx4 v{vFo if m & 1 else vFe}, s[{SW1}:{SW1+3}], s13 offen {wflags} lds")
    GW = 24
    A(f"buffer_load_dwordx4 v[{GW}:{GW+3}], v{vL16}, s[{SG}:{SG+3}], 0 offen")
    A("s_barrier")
    srd(SWS, 38, WS_SIZE)
    A(f"v_and_b32 v{a_}, 1, v1"); A(f"v_mul_u32_u24 v{b_}, 896, v{a_}"); A(f"v_lshrrev_b32 v{a_}, 4, v1"); A(f"v_lshl_add_u32 v{b_}, v{a_}, 4, v{b_}")
    A("s_mul_i32 s14, s9, 224"); A(f"v_add_u32 v{vXq}, s14, v{b_}"); A("s_lshl_b32 s14, s81, 7"); A(f"v_add_u32 v{vXf}, s14, v{b_}")
    A(f"v_lshlrev_b32 v{b_}, 10, v{a_}"); A(f"v_bfe_u32 v{c_}, v1, 2, 2"); A(f"v_lshl_add_u32 v{b_}, v{c_}, 7, v{b_}")
    A(f"v_bfe_u32 v{c_}, v1, 1, 1"); A(f"v_lshl_add_u32 v{b_}, v{c_}, 4, v{b_}"); A(f"v_and_b32 v{c_}, 1, v1"); A(f"v_lshl_add_u32 v{b_}, v{c_}, 3, v{b_}")
    A(f"v_bfe_u32 v{c_}, v1, 3, 2")
    for cg in range(4):
        A(f"v_xor_b32 v{d_}, {cg}, v{c_}"); A(f"v_lshl_add_u32 v{vTr[cg]}, v{d_}, 5, v{b_}")
    A("s_lshl_b32 s8, s8, 9"); A("s_lshl_b32 s9, s9, 11"); A("s_add_u32 s8, s8, s9"); A("s_lshl_b32 s9, s5, 13"); A("s_add_u32 s8, s8, s9")
    A(f"s_add_u32 s8, s8, {WS_Q}"); A(f"s_add_u32 s9, s8, {16 * 8192}")
    A(f"s_mul_i32 s11, s11, {HSTR}"); A("s_lshl_b32 s81, s81, 9"); A("s_add_u32 s11, s11, s81"); A(f"s_add_u32 s11, s11, {WS_H}")
    A("s_mov_b32 s82, 0xffff0000"); A("s_mov_b32 s83, 0"); A("s_mov_b32 s84, 0"); A("s_mov_b32 s85, 0xffff"); A("s_mov_b32 s86, 0"); A("s_mov_b32 s87, 0xffff0000")
    if dbg: A("s_waitcnt lgkmcnt(0)"); A("v_writelane_b32 v167, s88, 0")
    A("s_waitcnt lgkmcnt(0)"); A(f"s_add_u32 s12, s12, {TAGC}")
    XA = 28; TB = 56; D = 120; UQ = 136; UH = 144; AN = 152
    ex = 0
    if loc:
        ex = 1
        A("s_getreg_b32 s78, hwreg(HW_REG_XCC_ID)"); A("s_and_b32 s78, s78, 15")
        A(f"v_mov_b32 v{AN}, s78"); A(f"v_mov_b32 v{AN+1}, s12"); A(f"v_mov_b32 v{AN+2}, s78"); A(f"v_mov_b32 v{AN+3}, s12")
        A("s_lshl_b32 s13, s10, 7"); A("s_lshl_b32 s14, s4, 14"); A("s_add_u32 s13, s13, s14"); A(f"s_add_u32 s13, s13, {WS_A}")
        A("s_mov_b64 exec, 0xff"); A(f"buffer_store_dwordx4 v[{AN}:{AN+3}], v{vL16}, {WSR}, s13 offen"); A("s_mov_b64 exec, -1")
    A(f"s_waitcnt vmcnt({25 + ex})")
    for m in range(4): A(f"ds_read_b128 v[{XA+4*m}:{XA+4*m+3}], v{vXq} offset:{L_X + 64 * m}")
    for m in range(2): A(f"ds_read_b128 v[{XA+16+4*m}:{XA+16+4*m+3}], v{vXf} offset:{L_X + 64 * m}")
    def gemv(img, steps, xa, vm_after, U_):
        for m in range(steps):
            A(f"s_waitcnt vmcnt({vm_after + 4 * (steps - 1 - m)})")
            for cg in range(4):
                r = TB + 16 * m + 4 * cg
                A(f"ds_read_b64_tr_b16 v[{r}:{r+1}], v{vTr[cg]} offset:{img + 4096 * m}")
                A(f"ds_read_b64_tr_b16 v[{r+2}:{r+3}], v{vTr[cg]} offset:{img + 4096 * m + 512}")
            if m: mf(m - 1, xa, 8)
        mf(steps - 1, xa, 0)
        for bb in range(2):
            for cg in range(1, 4): A(f"v_cndmask_b32 v{D+bb}, v{D+bb}, v{D+4*cg+bb}, s[{80+2*cg}:{81+2*cg}]")
        for bb in range(2):
            A(f"v_mov_b32 v{U_+4*bb}, v{D+bb}"); A(f"v_mov_b32_dpp v{U_+4*bb+2}, v{D+bb} quad_perm:[1,1,3,3] {DPPF}")
            A(f"v_mov_b32 v{U_+4*bb+1}, s12"); A(f"v_mov_b32 v{U_+4*bb+3}, s12")
    def mf(m, xa, lg):
        A(f"s_waitcnt lgkmcnt({lg})")
        for cg in range(4):
            r = TB + 16 * m + 4 * cg; d = D + 4 * cg; c = "0" if m == 0 else f"v[{d}:{d+3}]"
            A(f"v_mfma_f32_16x16x32_bf16 v[{d}:{d+3}], v[{xa+4*m}:{xa+4*m+3}], v[{r}:{r+3}], {c}")
    def publish(s0, s1, U_):
        if svc < 2: return
        A("s_mov_b32 exec_lo, 0x55555555"); A("s_mov_b32 exec_hi, 0x55555555")
        xstore([f"buffer_store_dwordx4 v[{U_}:{U_+3}], v{d_}, {WSR}, {s0} offen", f"buffer_store_dwordx4 v[{U_+4}:{U_+7}], v{d_}, {WSR}, {s1} offen"])
        A("s_mov_b64 exec, -1")
    A(f"v_lshlrev_b32 v{d_}, 3, v1")
    gemv(L_W, 4, XA, 9 + ex, UQ)
    if loc:
        A(f"v_lshrrev_b32 v{a_}, 3, v1"); A(f"v_lshlrev_b32 v{a_}, 14, v{a_}"); A(f"v_and_b32 v{b_}, 7, v1"); A(f"v_lshl_add_u32 v{a_}, v{b_}, 7, v{a_}")
        A("s_lshl_b32 s13, s5, 10"); A(f"s_add_u32 s13, s13, {WS_A}")
        if not anlate: A("s_mov_b64 exec, 0xffff"); A(f"buffer_load_dwordx4 v[{AN+4}:{AN+7}], v{a_}, {WSR}, s13 offen sc1"); A("s_mov_b64 exec, -1")
    else: publish("s8", "s9", UQ)
    stamp(1)
    gemv(L_W1, 2, XA + 16, 2 if loc and anlate else 3, UH)
    if loc and anlate:
        A("s_waitcnt vmcnt(0)")
        A("s_mov_b64 exec, 0xffff"); A(f"buffer_load_dwordx4 v[{AN+4}:{AN+7}], v{a_}, {WSR}, s13 offen sc1"); A("s_mov_b64 exec, -1")
    if loc:
        A(f"s_mov_b32 s77, {lretry}"); A("s_mov_b64 exec, 0xffff")
        lab("L_an")
        A("s_waitcnt vmcnt(0)")
        for k, r_ in enumerate(("s78", "s12", "s78", "s12")): A(f"v_cmp_eq_u32 s[{80+2*k}:{81+2*k}], {r_}, v{AN+4+k}")
        A("s_and_b64 s[80:81], s[80:81], s[82:83]"); A("s_and_b64 s[84:85], s[84:85], s[86:87]"); A("s_and_b64 s[80:81], s[80:81], s[84:85]")
        A("s_cmp_eq_u32 s80, 0xffff"); A("s_cbranch_scc1 L_an_done")
        A("s_sub_u32 s77, s77, 1"); A("s_cbranch_scc1 L_an_fail")
        A(f"buffer_load_dwordx4 v[{AN+4}:{AN+7}], v{a_}, {WSR}, s13 offen sc1"); A("s_branch L_an")
        lab("L_an_fail")
        A("s_cmp_eq_u32 s80, 0xffff")
        lab("L_an_done")
        A("s_cselect_b32 s78, 1, 0"); A("s_mov_b64 exec, -1")
        if dbg: A("s_mul_i32 s14, s78, 1000"); A("s_add_u32 s14, s14, s88"); A("v_writelane_b32 v167, s14, 7"); A("s_add_u32 s14, s77, 1"); A("s_mul_i32 s14, s14, 100"); A("s_add_u32 s14, s14, s88"); A("v_writelane_b32 v167, s14, 8")
        if loc == "off": A("s_mov_b32 s78, 0")
        publish("s8", "s9", UQ)
    A("s_cmp_eq_u32 s79, 0"); A("s_cbranch_scc1 L_sv_noh")
    A(f"s_add_u32 s9, s11, {28 * HSTR}")
    publish("s11", "s9", UH)
    lab("L_sv_noh")
    stamp(2)
    QP = 56
    if NG is not None: lds_wait(L_FLAG + 12, NG, "pg1", a_, b_, sleep=4, cmp="ge")
    A("s_lshl_b32 s8, s7, 13"); A(f"s_add_u32 s8, s8, {WS_Q}"); A("s_add_u32 s9, s8, 4096")
    gather("q", [(QP + 4 * k, vL16, "s9" if k >= 4 else "s8", 1024 * (k & 3), -1, -1) for k in range(8)], psleep,
           [40, 42, 44, 46, 48, 50, 82, 84])
    for hf in range(2):
        r = QP + 4 * hf
        for e in (0, 2):
            A(f"v_add_f32 v{r+e}, v{r+e}, v{r+8+e}"); A(f"v_add_f32 v{r+16+e}, v{r+16+e}, v{r+24+e}")
        for e in (0, 2): A(f"v_add_f32 v{r+e}, v{r+e}, v{r+16+e}")
        A(f"v_cvt_pk_bf16_f32 v{r}, v{r}, v{r+2}")
    A(f"v_lshlrev_b32 v{a_}, 2, v1")
    A(f"ds_write_b32 v{a_}, v{QP} offset:{L_Q}"); A(f"ds_write_b32 v{a_}, v{QP+4} offset:{L_Q + 256}")
    A(f"v_mov_b32 v{a_}, 0"); A(f"v_mov_b32 v{b_}, s12"); A(f"v_mov_b32 v{c_}, 1")
    A(f"ds_write_b32 v{a_}, v{b_} offset:{L_G + 16}")
    A(f"ds_write_b32 v{a_}, v{c_} offset:{L_FLAG}")
    stamp(3)
    TW = 100
    if touch:
        A(f"v_mov_b32 v{a_}, 0"); A("s_mov_b64 exec, 1")
        if "v" in touch:
            srd(40, 20, 0x4000000); A("s_lshl_b32 s13, s7, 21"); A("s_lshl_b32 s14, s6, 18"); A("s_add_u32 s13, s13, s14")
            for k in range(4): A(f"buffer_load_dword v{TW+k}, v{a_}, s[40:43], s13 offen nt"); A("s_add_u32 s13, s13, 65536")
        if "w" in touch:
            srd(44, 24, 3670016); A(f"s_mul_i32 s13, s10, {32 * 896}"); A(f"buffer_load_dword v{TW+4}, v{a_}, s[44:47], s13 offen nt")
            srd(48, 30, 1605632); A(f"s_mul_i32 s13, s10, {16 * 896}"); A(f"buffer_load_dword v{TW+5}, v{a_}, s[48:51], s13 offen nt")
        if "o" in touch:
            srd(SO, 34, 1792); A(f"buffer_load_dword v{TW+6}, v{a_}, s[{SO}:{SO+3}], 0 offen")
        A("s_mov_b64 exec, -1")
    if codepf:
        A("s_getpc_b64 s[14:15]"); lab("L_pc")
        A("s_sub_u32 s14, s14, L_pc-L_tail"); A("s_subb_u32 s15, s15, 0")
        A(f"v_mov_b32 v{b_}, s15"); A(f"v_add_co_u32 v{a_}, vcc, s14, v{vL16}"); A(f"v_addc_co_u32 v{b_}, vcc, 0, v{b_}, vcc")
        for k in range(codepf): A(f"global_load_dwordx4 v[{TW+8+4*k}:{TW+11+4*k}], v[{a_}:{b_}], off offset:{1024 * k}")
    XG = 28
    A("s_mul_i32 s14, s4, 896"); A(f"v_add_u32 v{a_}, s14, v{vL16}")
    A(f"ds_read_b128 v[{XG}:{XG+3}], v{a_} offset:{L_X}")
    A("s_waitcnt lgkmcnt(0)")
    A(f"v_mov_b32 v{vG}, 0")
    for k in range(4):
        A(f"v_lshlrev_b32 v{a_}, 16, v{XG+k}"); A(f"v_and_b32 v{b_}, 0xffff0000, v{XG+k}")
        A(f"v_lshlrev_b32 v{c_}, 16, v{GW+k}"); A(f"v_and_b32 v{d_}, 0xffff0000, v{GW+k}")
        A(f"v_mul_f32 v{a_}, v{a_}, v{c_}"); A(f"v_mul_f32 v{b_}, v{b_}, v{d_}")
        A(f"v_cvt_pk_bf16_f32 v{a_}, v{a_}, v{b_}")
        A(f"v_lshlrev_b32 v{b_}, 16, v{a_}"); A(f"v_and_b32 v{a_}, 0xffff0000, v{a_}")
        A(f"v_add_f32 v{vG}, v{vG}, v{b_}"); A(f"v_add_f32 v{vG}, v{vG}, v{a_}")
    A("v_cmp_gt_u32 vcc, 56, v1"); A(f"v_cndmask_b32 v{vG}, 0, v{vG}, vcc")
    wave_reduce(A, "add", vG, a_)
    A(f"v_cvt_pk_bf16_f32 v{vG}, v{vG}, v{vG}"); A(f"v_lshlrev_b32 v{vG}, 16, v{vG}")
    A(f"v_mul_f32 v{vG}, 0xbfb8aa3b, v{vG}"); A(f"v_exp_f32 v{vG}, v{vG}"); A(f"v_add_f32 v{vG}, 1.0, v{vG}"); A(f"v_rcp_f32 v{vG}, v{vG}")
    A(f"v_cvt_pk_bf16_f32 v{vG}, v{vG}, v{vG}"); A(f"v_lshlrev_b32 v{vG}, 16, v{vG}")
    A(f"v_sub_f32 v{vOG}, 1.0, v{vG}"); A(f"v_cvt_pk_bf16_f32 v{vOG}, v{vOG}, v{vOG}"); A(f"v_lshlrev_b32 v{vOG}, 16, v{vOG}")
    def checkpoint(step, region, tag):
        lds_wait(L_FLAG + 12, step, tag, a_, b_, sleep=4, cmp="ge")
        A("s_lshl_b32 s9, s10, 7"); A("s_lshl_b32 s14, s4, 14"); A("s_add_u32 s9, s9, s14"); A(f"s_add_u32 s9, s9, {region}")
        A("s_and_b32 s14, s9, 0xffffc7ff"); A(f"v_lshlrev_b32 v{c_}, 11, v1")
        for k in range(4): A(f"v_mov_b32 v{32+k}, s12")
        A("s_mov_b64 exec, 0xff"); A(f"buffer_load_dwordx4 v[40:43], v{c_}, {WSR}, s14 offen sc1")
        A(f"buffer_store_dwordx4 v[32:35], v{vL16}, {WSR}, s9 offen sc1")
        A("s_waitcnt vmcnt(1)"); A("v_cmp_eq_u32 vcc, s12, v41"); A("s_bcnt1_i32_b64 s14, vcc")
        A(f"v_mov_b32 v{a_}, 0"); A(f"v_mov_b32 v{b_}, s14"); A(f"ds_write_b32 v{a_}, v{b_} offset:{L_G + 20}")
        A("s_mov_b64 exec, -1")
    if CK1: checkpoint(CK1, wsb + 0x1E0000, "ck1")
    lds_wait(L_FLAG + 8, 8, "cnt", a_, b_, sleep=2)
    ST = 32
    def combine(m, l):
        A(f"v_mov_b32 v{a_}, v{m}")
        for ctl in ("quad_perm:[1,0,3,2]", "quad_perm:[2,3,0,1]", "row_half_mirror"): A(f"v_max_f32_dpp v{a_}, v{a_}, v{a_} {ctl} {DPPF}")
        A(f"v_sub_f32 v{b_}, v{m}, v{a_}"); A(f"v_exp_f32 v{b_}, v{b_}"); A(f"v_mul_f32 v{b_}, v{b_}, v{l}")
        for ctl in ("quad_perm:[1,0,3,2]", "quad_perm:[2,3,0,1]", "row_half_mirror"): A(f"v_add_f32_dpp v{b_}, v{b_}, v{b_} {ctl} {DPPF}")
    A(f"v_and_b32 v{c_}, 7, v1"); A(f"v_lshlrev_b32 v{c_}, 3, v{c_}")
    A(f"ds_read_b64 v[{ST+4}:{ST+5}], v{c_} offset:{L_WST}"); A("s_waitcnt lgkmcnt(0)")
    combine(ST + 4, ST + 5)
    A(f"v_mov_b32 v{ST}, v{a_}"); A(f"v_mov_b32 v{ST+1}, s12"); A(f"v_mov_b32 v{ST+2}, v{b_}"); A(f"v_mov_b32 v{ST+3}, s12")
    A("s_lshl_b32 s11, s7, 10"); A(f"s_add_u32 s11, s11, {WS_ST}"); A("s_lshl_b32 s9, s6, 7"); A("s_add_u32 s9, s9, s11")
    if bal:
        A("s_and_b32 s14, s9, 0xffffc7ff"); A(f"v_lshlrev_b32 v{c_}, 11, v1")
        A("s_mov_b64 exec, 0xff"); A(f"buffer_load_dwordx4 v[{ST+8}:{ST+11}], v{c_}, {WSR}, s14 offen sc1")
    A("s_mov_b64 exec, 0xff"); xstore([f"buffer_store_dwordx4 v[{ST}:{ST+3}], v{vL16}, {WSR}, s9 offen"])
    if bal:
        A("s_waitcnt vmcnt(1)"); A(f"v_cmp_eq_u32 vcc, s12, v{ST+9}"); A("s_bcnt1_i32_b64 s14, vcc")
        A(f"v_mov_b32 v{a_}, 0"); A(f"v_mov_b32 v{b_}, s14"); A(f"ds_write_b32 v{a_}, v{b_} offset:{L_G + 20}")
    A("s_mov_b64 exec, -1")
    if NS is not None: lds_wait(L_FLAG + 12, NS, "pg2", a_, b_, sleep=8, cmp="ge")
    HP = 28
    A(f"v_mov_b32 v{HP}, 0"); A(f"v_mov_b32 v{HP+2}, 0")
    A("s_cmp_ge_u32 s10, 112"); A("s_cbranch_scc1 L_sv_hz")
    A(f"v_lshrrev_b32 v{a_}, 3, v1"); A(f"v_lshlrev_b32 v{a_}, 9, v{a_}"); A(f"v_and_b32 v{b_}, 7, v1"); A(f"v_lshl_add_u32 v{a_}, v{b_}, 4, v{a_}")
    A("s_lshr_b32 s8, s10, 2"); A("s_mul_i32 s9, s4, 28"); A("s_add_u32 s8, s8, s9"); A(f"s_mul_i32 s8, s8, {HSTR}")
    A("s_and_b32 s9, s10, 3"); A("s_lshl_b32 s9, s9, 7"); A("s_add_u32 s8, s8, s9"); A(f"s_add_u32 s8, s8, {WS_H}")
    gather("h", [(HP, a_, "s8", 0, -1, "0x00ffffff")], psleep, [82])
    lab("L_sv_hz")
    for k in (0, 2): A(f"v_add_f32_dpp v{HP+k}, v{HP+k}, v{HP+k} row_ror:8 {DPPF}")
    for sw in ("v_permlane16_swap_b32", "v_permlane32_swap_b32"):
        for k in (0, 2): A(f"v_mov_b32 v{HP+k+1}, v{HP+k}")
        for k in (0, 2): A(f"{sw} v{HP+k}, v{HP+k+1}")
        for k in (0, 2): A(f"v_add_f32 v{HP+k}, v{HP+k}, v{HP+k+1}")
    for k in (0, 2): A(f"v_max_f32 v{HP+k}, 0, v{HP+k}")
    A(f"v_cvt_pk_bf16_f32 v{HP}, v{HP}, v{HP}"); A(f"v_cvt_pk_bf16_f32 v{HP+1}, v{HP+2}, v{HP+2}")
    A(f"v_lshlrev_b32 v{a_}, 3, v1")
    A("s_mov_b64 exec, 0xff"); A(f"ds_write_b64 v{a_}, v[{HP}:{HP+1}] offset:{L_H}"); A("s_mov_b64 exec, -1")
    stamp(4)
    A(f"v_lshlrev_b32 v{c_}, 7, v1")
    gather("st", [(ST + 4, c_, "s11", 0, "0xff", 0)], 8, [82])
    combine(ST + 4, ST + 6)
    A(f"v_sub_f32 v{vG+2}, 0, v{a_}"); A(f"v_rcp_f32 v{vG+3}, v{b_}"); A(f"v_mul_f32 v{vG+3}, v{vG+3}, v{vG}")
    if loc: A(f"v_mov_b32 v{vG}, s78")
    A(f"v_mov_b32 v{a_}, 0"); A(f"v_mov_b32 v{b_}, 1")
    A("s_mov_b64 exec, 1")
    A(f"ds_write_b128 v{a_}, v[{vG}:{vG+3}] offset:{L_G}")
    A(f"ds_write_b32 v{a_}, v{b_} offset:{L_FLAG + 4}")
    A("s_mov_b64 exec, -1")
    stamp(5)
    if CK3: checkpoint(CK3, wsb + 0x1E8000, "ck3")
    if direct:
        A("s_waitcnt lgkmcnt(0)"); dump_stamps(True); A("s_endpgm")
    P0, P1 = 40, 44
    A("s_lshl_b32 s9, s7, 14"); A(f"s_add_u32 s9, s9, {WS_O}"); A("s_lshl_b32 s14, s6, 11"); A("s_add_u32 s9, s9, s14")
    A(f"v_and_b32 v{a_}, 15, v1"); A(f"v_bfe_u32 v{b_}, v1, 4, 1"); A(f"v_lshl_add_u32 v{a_}, v{a_}, 1, v{b_}"); A(f"v_lshlrev_b32 v{a_}, 2, v{a_}")
    A("s_waitcnt lgkmcnt(0)"); A("s_barrier")
    if odelay: A(f"s_sleep {odelay}")
    gather("o", [(P0, vL16, "s9", 0, -1, -1), (P1, vL16, "s9", 1024, -1, -1)], osleep, [82, 84])
    A(f"v_add_f32 v{P0}, v{P0}, v{P1}"); A(f"v_add_f32 v{P0+2}, v{P0+2}, v{P1+2}")
    A(f"v_permlane16_swap_b32 v{P0}, v{P0+2}"); A(f"v_add_f32 v{P0}, v{P0}, v{P0+2}")
    A(f"v_mov_b32 v{P0+2}, v{P0}"); A(f"v_permlane32_swap_b32 v{P0}, v{P0+2}"); A(f"v_add_f32 v{P0}, v{P0}, v{P0+2}")
    A(f"v_cvt_pk_bf16_f32 v{P0}, v{P0}, v{P0}")
    A(f"ds_write_b32 v{a_}, v{P0} offset:{L_OL}")
    A("s_waitcnt lgkmcnt(0)"); A("s_barrier")
    stamp(6)
    if two:
        A("s_cmp_ge_u32 s2, 56"); A("s_cbranch_scc1 L_sv_end")
        A("s_cmp_ge_u32 s2, 28"); A("s_cselect_b32 s14, 28, 0"); A(f"s_mov_b32 s9, {WS_Y2[0]}"); A(f"s_cselect_b32 s9, {WS_Y2[1]}, s9")
        A("s_sub_u32 s14, s2, s14"); A("s_lshl_b32 s14, s14, 11"); A("s_add_u32 s9, s9, s14")
        srd(SO, 34, 1792); A("s_lshl_b32 s8, s2, 5"); A(f"v_lshlrev_b32 v{a_}, 2, v1")
        A("s_barrier")
        gather("fin2", [(P0, vL16, "s9", 0, -1, -1), (P1, vL16, "s9", 1024, -1, -1)], fsleep, [82, 84])
        A(f"v_add_f32 v{P0}, v{P0}, v{P1}"); A(f"v_add_f32 v{P0+2}, v{P0+2}, v{P1+2}")
        red3(P0)
        A(f"v_cvt_pk_bf16_f32 v{P0}, v{P0}, v{P0+2}")
        A("s_mov_b64 exec, 0xff"); A(f"buffer_store_dword v{P0}, v{a_}, s[{SO}:{SO+3}], s8 offen")
        A("s_cmp_lg_u32 s2, 0"); A("s_cbranch_scc1 L_sv_noep")
        A("s_mov_b64 exec, 1"); A(f"v_mov_b32 v{b_}, s12"); A(f"s_mov_b32 s13, {wsb}"); A(f"buffer_store_dword v{b_}, v{a_}, {WSR}, s13 offen")
        if lite:
            A("s_memrealtime s[90:91]"); A("s_waitcnt lgkmcnt(0)"); A("v_mov_b32 v8, s88"); A("v_mov_b32 v9, s90")
            A("s_mov_b32 s92, s36"); A("s_mov_b32 s93, s37"); A("s_mov_b32 s94, 256"); A("s_mov_b32 s95, 0x20000")
            A(f"buffer_store_dwordx2 v[8:9], v{a_}, s[92:95], 0 offen")
        lab("L_sv_noep")
        A("s_mov_b64 exec, -1")
        stamp(11)
        lab("L_sv_end")
    dump_stamps(True)
    lab("L_end")
    A("s_endpgm")

    body = pad_hazards(L)
    out = [HEADER.rstrip("\n"),
           "; Single fused launch: 256 workgroups (one per CU) x 9 waves (wave 0 = service, waves 1-8 stream K/V).",
           f"; @launch grid=(256,1,1) block=(576,1,1) lds={lds or LDS_MIN}",
           '.amdgcn_target "amdgcn-amd-amdhsa--gfx950"', ".text", f".globl {NAME}", ".p2align 8", f".type {NAME},@function", f"{NAME}:"]
    out += body
    out += ['.section .rodata,"a"', ".p2align 6", f".amdhsa_kernel {NAME}",
            "  .amdhsa_next_free_vgpr 168", "  .amdhsa_next_free_sgpr 96", "  .amdhsa_accum_offset 168",
            "  .amdhsa_group_segment_fixed_size 0", "  .amdhsa_kernarg_size 96", "  .amdhsa_user_sgpr_count 2",
            "  .amdhsa_user_sgpr_kernarg_segment_ptr 1", "  .amdhsa_system_sgpr_workgroup_id_x 1", ".end_amdhsa_kernel"]
    return "\n".join(out) + "\n"

def masks(A, M, t0, t1):
    A(f"v_and_b32 v{t0}, 1, v1"); A(f"v_lshlrev_b32 v{t0}, 4, v{t0}"); A(f"v_mov_b32 v{t1}, 0xffff"); A(f"v_lshlrev_b32 v{t1}, v{t0}, v{t1}")
    A(f"v_bfe_u32 v{t0}, v1, 1, 2")
    for r in range(4): A(f"v_cmp_eq_u32 s[{80+2*r}:{81+2*r}], {r}, v{t0}")
    for r in range(4): A(f"v_cndmask_b32 v{M[r]}, 0, v{t1}, s[{80+2*r}:{81+2*r}]")

def mask_prime(A, M, t0, t1):
    A(f"v_lshrrev_b32 v{t0}, 1, v1"); A(f"v_xor_b32 v{t0}, v{t0}, v1"); A(f"v_bfe_u32 v{t0}, v{t0}, 3, 1")
    A(f"v_add_u32 v{t0}, -1, v{t0}")
    for r in range(4): A(f"v_and_b32 v{M[r]}, v{M[r]}, v{t0}")

def red2_lane(A, d, t0):
    A(f"v_and_b32 v{t0}, 15, v1"); A(f"v_lshlrev_b32 v{d}, 5, v{t0}")
    A(f"v_lshrrev_b32 v{t0}, 5, v1"); A(f"v_lshl_add_u32 v{d}, v{t0}, 9, v{d}")
    A(f"v_bfe_u32 v{t0}, v1, 4, 1"); A(f"v_lshl_add_u32 v{d}, v{t0}, 4, v{d}")

def wave_reduce(A, op, v, t):
    for ctl in ("quad_perm:[1,0,3,2]", "quad_perm:[2,3,0,1]", "row_half_mirror", "row_mirror"):
        A(f"v_{op}_f32_dpp v{v}, v{v}, v{v} {ctl} {DPPF}")
    for sw in ("v_permlane16_swap_b32", "v_permlane32_swap_b32"):
        A(f"v_mov_b32 v{t}, v{v}"); A(f"{sw} v{v}, v{t}"); A(f"v_{op}_f32 v{v}, v{v}, v{t}")

if __name__ == "__main__":
    kw = eval("dict(%s)" % (sys.argv[2] if len(sys.argv) > 2 else ""))
    open(sys.argv[1], "w").write(gen(**kw))
```

```python
import sys
sys.path.insert(0, "dev")
from asmlib import pad_hazards

NAME = "gated_mix__mha_block_cached__dense_activation_relu__decode_kernel"
HEADER = open("gated_mix__mha_block_cached__dense_activation_relu__decode.s.ref").read().split("; Override launch")[0]

WS_ST = 0x1F0000
WS_H = 0x8000
WS_Q = 0x40000
WS_O = 0x80000
WS_Y = 0x100000
WS_DBG = 0x400000
WS_SIZE = 268435456
L_W = 0x0000
L_W1 = 0x4000
L_RED1 = 0x0000
L_X = 0x6000
L_Q = 0x6800
L_H = 0x6A00
L_G = 0x6A40
L_FLAG = 0x6A80
L_WST = 0x6AC0
L_FIN = 0x6C00
L_OL = 0x6B00
L_PW = 0x7000
L_RED2 = 0x8000
LDS_MIN = L_RED2 + 8 * 2048
TAGC = 0x9E3779B9
SPIN_MAX = 1 << 18
DPPF = "row_mask:0xf bank_mask:0xf"
CEXP = "0x3db8aa3b"

def gen(LIM=2, LIMV=None, NQ=26, CQ=3, CP=3, R=33, NF=62, dbg=False, hdbg=False, diag=None,
        psleep=2, osleep=0, fsleep=0, svc=9, kflags="nt", wflags="nt", lds=None, LE=None, NG=16, NS=46, rot=None, early=False, dbase=10000, pp=1, pgap=8, wsb=0, diag2=None, xmap=0, spread=0, LP=None, kmap=0, ofl='', pat='tp w0 w1 w2 b0 b1 b2 s0 s1 s2', touch='', codepf=False, late_w=False, odelay=0, lite=False, endop=None, lst='sc1', bal=None, CK1=None, CK3=None, loc=True, kfirst=False, lretry=3, anlate=True, two=False, yb=False, prefin=False, swz=0, lightfin=False, direct=True, wat=None):
    if LIMV is None: LIMV = LIM
    WS_ST, WS_H, WS_Q, WS_O, WS_Y, WS_A = (x + wsb for x in (0x1F0000, 0x8000, 0x40000, 0x80000, 0x100000, 0x1F8000))
    HSTR = 4096
    if two: WS_H = wsb + 0x1000; HSTR = 3584
    WS_Y2 = (wsb + 0x32000, wsb + 0x1E0000)
    L = []
    A = lambda s: L.append("  " + s)
    lab = lambda s: L.append(s + ":")
    C = lambda s: L.append("  ; " + s)
    def srd(d, p, nbytes):
        A(f"s_mov_b32 s{d}, s{p}"); A(f"s_mov_b32 s{d+1}, s{p+1}"); A(f"s_mov_b32 s{d+2}, {nbytes}"); A(f"s_mov_b32 s{d+3}, 0x20000")
    SK, SV, SWO, SWS, SWQ, SW1, SW2, SX, SG, SO = 40, 44, 48, 52, 56, 60, 64, 68, 72, 76
    WSR = f"s[{SWS}:{SWS+3}]"
    if diag is not None: hdbg = True
    if diag2 is not None: dbg = True
    if hdbg: dbg = True
    def stamp(idx):
        if dbg:
            A("s_memrealtime s[90:91]"); A("s_waitcnt lgkmcnt(0)"); A(f"v_writelane_b32 v167, s90, {idx}")
    def dump_stamps(service=False):
        if hdbg:
            A("s_mov_b32 s92, s36"); A("s_mov_b32 s93, s37"); A("s_mov_b32 s94, 256"); A("s_mov_b32 s95, 0x20000")
            A("v_not_b32 v165, v167"); A("v_cmp_eq_u32 vcc, 0, v1"); A("v_cndmask_b32 v167, v167, v165, vcc")
            A("v_lshlrev_b32 v166, 2, v1")
            if service: A("v_add_u32 v166, 64, v166"); A("s_mov_b64 exec, 0x3e")
            else: A("s_mov_b64 exec, 0xffff")
            A("buffer_atomic_umax v167, v166, s[92:95], 0 offen"); A("s_mov_b64 exec, -1")
        elif dbg:
            if diag2 is not None and not service:
                tg = "s" if service else "m"
                A("s_add_u32 s84, s88, 4500"); lab(f"L_dd_{tg}"); A("s_sleep 8")
                A("s_memrealtime s[90:91]"); A("s_waitcnt lgkmcnt(0)"); A("s_sub_u32 s85, s90, s84"); A("s_cmp_lt_i32 s85, 0"); A(f"s_cbranch_scc1 L_dd_{tg}")
            A("s_mul_i32 s92, s2, 9"); A("s_add_u32 s92, s92, s93"); A("s_lshl_b32 s92, s92, 8"); A(f"s_add_u32 s92, s92, {WS_DBG}")
            A("v_lshlrev_b32 v166, 2, v1"); A(f"buffer_store_dword v167, v166, {WSR}, s92 offen sc1")
    if dbg: R = min(R, 32)
    def spin_tail(label, sleep):
        if sleep: A(f"s_sleep {sleep}")
        A("s_sub_u32 s80, s80, 1"); A("s_cmp_lg_u32 s80, 0"); A(f"s_cbranch_scc1 {label}")
    def lds_wait(off, val, tag, ta, tb, sleep=1, cmp="eq"):
        A(f"v_mov_b32 v{ta}, 0"); A(f"s_mov_b32 s80, {SPIN_MAX}")
        lab(f"L_wait_{tag}")
        A(f"ds_read_b32 v{tb}, v{ta} offset:{off}"); A("s_waitcnt lgkmcnt(0)"); A(f"v_readfirstlane_b32 s81, v{tb}")
        A(f"s_cmp_{cmp}_u32 s81, {val}"); A(f"s_cbranch_scc1 L_got_{tag}")
        spin_tail(f"L_wait_{tag}", sleep)
        lab(f"L_got_{tag}")
    def gather(tag, items, sleep, pool, pre=False):
        if svc < {"q": 3, "h": 4, "st": 5}.get(tag, 0):
            A("s_waitcnt vmcnt(0)"); return
        assert len(pool) >= len(items)
        for (reg, va, so, imm, lo, hi), ms in zip(items, pool): A(f"s_mov_b32 s{ms}, {lo}"); A(f"s_mov_b32 s{ms+1}, {hi}")
        A(f"s_mov_b32 s80, {SPIN_MAX}")
        if pre: A(f"s_branch L_g_{tag}_chk")
        lab(f"L_g_{tag}")
        for k, ((reg, va, so, imm, lo, hi), ms) in enumerate(zip(items, pool)):
            A(f"s_mov_b64 exec, s[{ms}:{ms+1}]")
            if len(items) > 1: A(f"s_cbranch_execz L_g_{tag}_s{k}")
            A(f"buffer_load_dwordx4 v[{reg}:{reg+3}], v{va}, {WSR}, {so} offen offset:{imm} sc1")
            if len(items) > 1: lab(f"L_g_{tag}_s{k}")
        A("s_waitcnt vmcnt(0)")
        if pre: lab(f"L_g_{tag}_chk")
        for k, ((reg, va, so, imm, lo, hi), ms) in enumerate(zip(items, pool)):
            if len(items) > 1: A(f"s_mov_b64 exec, s[{ms}:{ms+1}]")
            A(f"v_cmp_ne_u32 vcc, s12, v{reg+1}"); A(f"v_cmp_ne_u32 s[{ms}:{ms+1}], s12, v{reg+3}")
            A(f"s_or_b64 s[{ms}:{ms+1}], s[{ms}:{ms+1}], vcc")
            if k == 0: A(f"s_mov_b64 s[14:15], s[{ms}:{ms+1}]")
            else: A(f"s_or_b64 s[14:15], s[14:15], s[{ms}:{ms+1}]")
        A("s_cmp_eq_u64 s[14:15], 0"); A(f"s_cbranch_scc1 L_g_{tag}_ok")
        spin_tail(f"L_g_{tag}", sleep)
        lab(f"L_g_{tag}_ok")
        A("s_mov_b64 exec, -1")

    nst = [0]
    def xstore(stores):
        if not loc:
            for st_ in stores: A(st_ + " " + lst)
            return
        nst[0] += 1
        A("s_cmp_eq_u32 s78, 1"); A(f"s_cbranch_scc1 L_xl{nst[0]}")
        for st_ in stores: A(st_ + " sc1")
        A(f"s_branch L_xd{nst[0]}"); lab(f"L_xl{nst[0]}")
        for st_ in stores: A(st_)
        lab(f"L_xd{nst[0]}")
    def poll_issue(sets, k, items):
        for j, (va, so, imm) in enumerate(items):
            r = sets[k] + 4 * j
            A(f"buffer_load_dwordx4 v[{r}:{r+3}], v{va}, {WSR}, {so} offen offset:{imm} sc1")
    def poll_loop(tag, sets, items, first):
        n = len(sets); ni = len(items)
        for k in range(1, n):
            if pgap: A(f"s_sleep {pgap}")
            poll_issue(sets, k, items)
        A(f"s_mov_b32 s80, {SPIN_MAX}")
        lab(f"L_p_{tag}")
        for k in range(n):
            A(f"s_waitcnt vmcnt({(n - 1) * ni})")
            for j in range(ni):
                r = sets[k] + 4 * j
                A(f"v_cmp_ne_u32 {'vcc' if j == 0 else 's[84:85]'}, s12, v{r+1}"); A(f"v_cmp_ne_u32 s[{82 + 4 * j}:{83 + 4 * j}], s12, v{r+3}")
            if ni == 2: A("s_or_b64 vcc, vcc, s[84:85]"); A("s_or_b64 vcc, vcc, s[86:87]")
            A("s_or_b64 vcc, vcc, s[82:83]")
            A(f"s_cbranch_scc0 L_p_{tag}_ok{k}")
            poll_issue(sets, k, items)
        A("s_sub_u32 s80, s80, 1"); A("s_cmp_lg_u32 s80, 0"); A(f"s_cbranch_scc1 L_p_{tag}")
        A("s_waitcnt vmcnt(0)")
        for k in range(n):
            lab(f"L_p_{tag}_ok{k}")
            first(sets[k])
            if k < n - 1: A(f"s_branch L_p_{tag}_done")
        lab(f"L_p_{tag}_done")
        A("s_nop 1")

    if (dbg and early) or lite: A("s_memrealtime s[88:89]")
    A("s_cmp_ge_u32 s2, 256"); A("s_cbranch_scc1 L_end")
    if kfirst: A(f"s_load_dwordx2 s[{SK}:{SK+1}], s[0:1], 8")
    else:
        A("s_load_dwordx16 s[16:31], s[0:1], 0")
        A("s_load_dwordx8 s[32:39], s[0:1], 64")
    A("v_lshrrev_b32 v2, 6, v0"); A("v_and_b32 v1, 63, v0")
    A("v_readfirstlane_b32 s3, v2")
    C("workgroup id -> s4 batch, s5 head (2*(id&7) + bit), s6 key split, s7 = 16b+h, s10 = 8h+s")
    A("s_and_b32 s14, s2, 7"); A("s_lshr_b32 s15, s2, 3")
    if xmap: A(f"s_xor_b32 s14, s14, {xmap}")
    if spread:
        mk = (1 << spread) - 1
        sh = 3 - spread
        A(f"s_lshr_b32 s4, s14, {sh}"); A(f"s_and_b32 s5, s15, {mk}"); A("s_xor_b32 s6, s4, s5")
        A("s_xor_b32 s15, s15, s6"); A(f"s_lshl_b32 s6, s6, {sh}"); A("s_xor_b32 s14, s14, s6")
    A("s_lshr_b32 s4, s15, 4")
    A("s_bfe_u32 s5, s15, 0x10003"); A("s_lshl_b32 s14, s14, 1"); A("s_add_u32 s5, s5, s14")
    A("s_and_b32 s6, s15, 7")
    A("s_lshl_b32 s7, s4, 4"); A("s_add_u32 s7, s7, s5")
    A("s_lshl_b32 s10, s5, 3"); A("s_add_u32 s10, s10, s6")
    if dbg:
        A("s_mov_b32 s93, s3"); A("v_mov_b32 v167, 0")
        if not early: A("s_memrealtime s[88:89]")
    A("s_cmp_eq_u32 s3, 0"); A("s_cbranch_scc1 L_service")

    C("==== streaming waves (64 keys each): K tiles, QK^T on MFMA, local softmax, V tiles, PV on MFMA ====")
    A("s_sub_u32 s3, s3, 1")
    vK, vV, vWo, vW2, t0, t1 = 2, 3, 4, 5, 6, 7
    M = [8, 9, 10, 11]; Q = [12, 16]; DB = [20, 24]; AB = [20, 24]; SG_ = [28, 29, 30, 31]; ACC = 32
    vMW = 12; vE = [13, 14, 15, 16]; vLW = 17
    RING = 36
    A(f"v_bfe_u32 v{t0}, v1, 2, 2"); A(f"v_lshlrev_b32 v{vK}, 9, v{t0}")
    A(f"v_lshrrev_b32 v{t0}, 4, v1"); A(f"v_lshl_add_u32 v{vK}, v{t0}, 6, v{vK}")
    A(f"v_and_b32 v{t0}, 3, v1"); A(f"v_lshl_add_u32 v{vK}, v{t0}, 4, v{vK}")
    PB = {t: 11 + k for k, t in enumerate(pat.split())}
    A("s_lshl_b32 s8, s7, 21")
    for reg, nm in (("s3", "w"), ("s6", "s")):
        k = 0
        while k < 3:
            e = k
            while e < 2 and PB[f"{nm}{e+1}"] == PB[f"{nm}{e}"] + 1: e += 1
            A(f"s_bfe_u32 s14, {reg}, {hex(((e - k + 1) << 16) + k)}"); A(f"s_lshl_b32 s14, s14, {PB[f'{nm}{k}']}"); A("s_add_u32 s8, s8, s14")
            k = e + 1
    def toff(beta, tp):
        o = (tp << PB["tp"]) | ((beta & 1) << PB["b0"]) | (((beta >> 1) & 1) << PB["b1"]) | ((beta >> 2) << PB["b2"])
        return o & ~0xfff, o & 0xfff
    A(f"v_add_u32 v{vK}, s8, v{vK}")
    if kfirst:
        A(f"s_mov_b32 s{SK+2}, 0x4000000"); A(f"s_mov_b32 s{SK+3}, 0x20000"); A("s_waitcnt lgkmcnt(0)")
    else:
        A("s_waitcnt lgkmcnt(0)")
        srd(SK, 18, 0x4000000)

    loads = [("K", beta, tp, jh) for beta in range(8) for tp in range(2) for jh in range(2)]
    loads += [("V", beta, tp, kp) for beta in range(8) for tp in range(2) for kp in range(2)]
    loads += [("F", cb) for cb in range(2)] + [("W", r, cb) for r in range(2) for cb in range(2)]
    free = list(range(R)); slot = {}
    nissued = [0]; landed = [-1]; cur_soff = [None]
    if rot:
        A(f"s_mul_i32 s11, s2, {rot}"); A("s_lshr_b32 s14, s2, 3"); A("s_add_u32 s11, s11, s14"); A("s_and_b32 s11, s11, 7"); A("s_lshl_b32 s11, s11, 15")
    def soff(val):
        if val == 0 and not rot: return "0"
        if cur_soff[0] != val:
            if rot: A(f"s_add_u32 s13, s11, {val}"); A("s_and_b32 s13, s13, 0x3ffff")
            else: A(f"s_mov_b32 s13, {val}")
            cur_soff[0] = val
        return "s13"
    def wait_landed(n):
        if n <= landed[0]: return
        A(f"s_waitcnt vmcnt({nissued[0] - 1 - n})"); landed[0] = n
    def issue(n):
        ld = loads[n]; sl = free.pop(0); slot[n] = sl; r = RING + 4 * sl
        if ld[0] == "K":
            A(f"buffer_load_dwordx4 v[{r}:{r+3}], v{vK}, s[{SK}:{SK+3}], {soff(toff(ld[1], ld[2])[0])} offen offset:{toff(ld[1], ld[2])[1] + ld[3] * 256} {kflags}")
        elif ld[0] == "V":
            A(f"buffer_load_dwordx4 v[{r}:{r+3}], v{vV}, s[{SV}:{SV+3}], {soff(toff(ld[1], ld[2])[0])} offen offset:{toff(ld[1], ld[2])[1] + ld[3] * 1024} {kflags}")
        elif ld[0] == "W":
            A(f"buffer_load_dwordx4 v[{r}:{r+3}], v{vWo}, s[{SWO}:{SWO+3}], 0 offen offset:{ld[1] * 896 + ld[2] * 512} {wflags}")
        else:
            A(f"buffer_load_dwordx4 v[{r}:{r+3}], v{vW2}, s[{SW2}:{SW2+3}], 0 offen offset:{ld[1] * 512} {wflags}")
        nissued[0] += 1
    sreg = lambda n: RING + 4 * slot[n]
    qk_next = [0]; qk_post = [None]; pv_next = [0]; pslot = {}
    def qk_dpp(tau):
        beta, tp = tau >> 1, tau & 1; G = beta >> 1; t = 2 * (beta & 1) + tp; d = DB[tau & 1]
        A(f"v_mov_b32_dpp v{t0}, v{d} quad_perm:[0,0,0,0] {DPPF}")
        A(f"v_add_f32_dpp v{t0}, v{d+1}, v{t0} quad_perm:[1,1,1,1] {DPPF}")
        A(f"v_add_f32_dpp v{t0}, v{d+2}, v{t0} quad_perm:[2,2,2,2] {DPPF}")
        A(f"v_add_f32_dpp v{SG_[G]}, v{d+3}, v{t0} quad_perm:[3,3,3,3] row_mask:0xf bank_mask:{hex(1 << t)}")
    def qk_tile(tau):
        d = DB[tau & 1]; a0 = sreg(2 * tau); a1 = sreg(2 * tau + 1)
        A(f"v_mfma_f32_16x16x32_bf16 v[{d}:{d+3}], v[{a0}:{a0+3}], v[{Q[0]}:{Q[0]+3}], 0")
        A(f"v_mfma_f32_16x16x32_bf16 v[{d}:{d+3}], v[{a1}:{a1+3}], v[{Q[1]}:{Q[1]+3}], v[{d}:{d+3}]")
        free.extend([slot[2 * tau], slot[2 * tau + 1]])
        if qk_post[0] is not None: qk_dpp(qk_post[0])
        qk_post[0] = tau
    def red_hi(op, v, t):
        for ctl in ("row_ror:4", "row_ror:8"): A(f"v_{op}_f32_dpp v{v}, v{v}, v{v} {ctl} {DPPF}")
        for sw in ("v_permlane16_swap_b32", "v_permlane32_swap_b32"):
            A(f"v_mov_b32 v{t}, v{v}"); A(f"{sw} v{v}, v{t}"); A(f"v_{op}_f32 v{v}, v{v}, v{t}")
    def sm_a():
        C("scores rounded to bf16 like the reference; true max over this wave's keys")
        qk_dpp(qk_post[0]); qk_post[0] = None
        S = SG_
        A(f"v_cvt_pk_bf16_f32 v{t0}, v{S[0]}, v{S[1]}"); A(f"v_cvt_pk_bf16_f32 v{t1}, v{S[2]}, v{S[3]}")
        A(f"v_lshlrev_b32 v{S[0]}, 16, v{t0}"); A(f"v_and_b32 v{S[1]}, 0xffff0000, v{t0}")
        A(f"v_lshlrev_b32 v{S[2]}, 16, v{t1}"); A(f"v_and_b32 v{S[3]}, 0xffff0000, v{t1}")
        A(f"v_max3_f32 v{vMW}, v{S[0]}, v{S[1]}, v{S[2]}"); A(f"v_max_f32 v{vMW}, v{vMW}, v{S[3]}")
        red_hi("max", vMW, t0)
    def sm_b():
        S = SG_
        A(f"s_mov_b32 s81, {CEXP}"); A(f"v_mul_f32 v{vMW}, s81, v{vMW}")
        for k in range(4): A(f"v_fma_f32 v{vE[k]}, v{S[k]}, s81, -v{vMW}")
        for k in range(4): A(f"v_exp_f32 v{vE[k]}, v{vE[k]}")
        A("s_lshl_b32 s14, s3, 8"); A(f"v_lshl_add_u32 v{t1}, v1, 2, s14")
        for k in range(4): A(f"v_cvt_pk_bf16_f32 v{S[k]}, v{vE[k]}, v{vE[k]}")
        A("s_mov_b32 exec_lo, 0x11111111"); A("s_mov_b32 exec_hi, 0x11111111")
        A(f"ds_write_b128 v{t1}, v[{S[0]}:{S[3]}] offset:{L_PW}")
        A("s_mov_b64 exec, -1")
        A(f"v_lshrrev_b32 v{t1}, 5, v1"); A(f"v_lshl_add_u32 v{t1}, v{t1}, 6, s14")
        for t in range(4):
            for kp in range(2):
                sl = free.pop(0); pslot[(t, kp)] = sl; r = RING + 4 * sl
                A(f"ds_read_b128 v[{r}:{r+3}], v{t1} offset:{L_PW + (8 * kp + t) * 16}")
        A(f"v_add_f32 v{vLW}, v{vE[0]}, v{vE[1]}"); A(f"v_add_f32 v{t0}, v{vE[2]}, v{vE[3]}"); A(f"v_add_f32 v{vLW}, v{vLW}, v{t0}")
    def sm_c():
        red_hi("add", vLW, t0)
        A(f"v_mov_b32 v{vMW+1}, v{vLW}")
        A("s_lshl_b32 s14, s3, 3"); A(f"v_mov_b32 v{t0}, s14"); A(f"v_mov_b32 v{t1}, 1"); A(f"v_mov_b32 v{vE[2]}, 0")
        A("s_mov_b64 exec, 1")
        A(f"ds_write_b64 v{t0}, v[{vMW}:{vMW+1}] offset:{L_WST}")
        A(f"ds_add_u32 v{vE[2]}, v{t1} offset:{L_FLAG + 8}")
        A("s_mov_b64 exec, -1")
        A("s_waitcnt lgkmcnt(0)")
        stamp(3)
    def pv_tile(m):
        beta, tp, kp = m >> 2, (m >> 1) & 1, m & 1; G = beta >> 1; t = 2 * (beta & 1) + tp
        a = AB[m & 1]; p = RING + 4 * pslot[(t, kp)] + G; bv = sreg(32 + m)
        for r in range(4): A(f"v_and_b32 v{a+r}, v{p}, v{M[r]}")
        c = "0" if m == 0 else f"v[{ACC}:{ACC+3}]"
        A(f"v_mfma_f32_16x16x32_bf16 v[{ACC}:{ACC+3}], v[{a}:{a+3}], v[{bv}:{bv+3}], {c}")
        free.append(slot[32 + m])
    vFS = 18; vHP = 19
    GG = 14
    def fetch_stats():
        stamp(4); lds_wait(L_FLAG + 4, 1, "st", t0, t1); stamp(5)
        A(f"ds_read_b128 v[14:17], v{t0} offset:{L_G}")
        A(f"v_lshrrev_b32 v{t1}, 5, v1"); A("s_lshl_b32 s14, s3, 3"); A(f"v_lshl_add_u32 v{t1}, v{t1}, 2, s14")
        A(f"ds_read_b32 v{vHP}, v{t1} offset:{L_H}")
        A("s_waitcnt lgkmcnt(0)")
        if loc: A("v_readfirstlane_b32 s78, v14")
        A(f"v_add_f32 v{vFS}, v{vMW}, v16"); A(f"v_exp_f32 v{vFS}, v{vFS}"); A(f"v_mul_f32 v{vFS}, v{vFS}, v17")

    N = len(loads); chunks = [sm_a, sm_b, sm_c]; sm_done = False
    for n in range(64 if (late_w or wat is not None) else N):
        if n < 64:
            lim = LIM if n < 32 else LIMV
            if LP: lim = LP[n % len(LP)]
            if LE and n >= LE[0]: lim = LE[1]
            if bal and n >= bal["at"][0]:
                if n in bal["at"]:
                    A(f"v_mov_b32 v{t0}, 0"); A(f"ds_read_b32 v{t1}, v{t0} offset:{L_G + 20}"); A("s_waitcnt lgkmcnt(0)"); A(f"v_readfirstlane_b32 s9, v{t1}")
                wl = bal["wl"]
                for k_, (w_, th_) in enumerate(zip(wl[:-1], bal["th"])):
                    w_ = w_[n % len(w_)] if isinstance(w_, tuple) else w_
                    A(f"s_cmp_ge_u32 s9, {th_}"); A(f"s_cbranch_scc1 L_bal{n}_{k_}"); A(f"s_waitcnt vmcnt({w_})"); lab(f"L_bal{n}_{k_}")
                wait_landed(n - wl[-1] - 1)
            elif n > max(lim, LIM): wait_landed(n - lim - 1)
        if n in (LIM + 1, 8, 16, 48): stamp({LIM + 1: 12, 8: 13, 16: 14, 48: 15}[n])
        if n == NQ:
            stamp(1)
            lds_wait(L_FLAG, 1, "q", t0, t1)
            A(f"v_lshrrev_b32 v{t0}, 4, v1"); A(f"v_and_b32 v{t1}, 3, v1"); A(f"v_lshl_add_u32 v{t0}, v{t0}, 2, v{t1}"); A(f"v_lshlrev_b32 v{t0}, 4, v{t0}")
            A(f"ds_read_b128 v[{Q[0]}:{Q[0]+3}], v{t0} offset:{L_Q}")
            A(f"ds_read_b128 v[{Q[1]}:{Q[1]+3}], v{t0} offset:{L_Q + 256}")
            A(f"v_mov_b32 v{t0}, 0"); A(f"ds_read_b32 v{t1}, v{t0} offset:{L_G + 16}")
            A("s_waitcnt lgkmcnt(0)"); A(f"v_readfirstlane_b32 s12, v{t1}")
            stamp(2)
        assert free, f"no free slot at load {n}"
        issue(n)
        if n == LIM:
            if kfirst:
                A("s_load_dwordx16 s[16:31], s[0:1], 0"); A("s_load_dwordx8 s[32:39], s[0:1], 64"); A("s_waitcnt lgkmcnt(0)")
            srd(SV, 20, 0x4000000); srd(SWO, 24, 3670016); srd(SW2, 30, 1605632); srd(SWS, 38, WS_SIZE)
            A("s_barrier")
            A(f"v_lshl_add_u32 v{vV}, v1, 4, s8")
            A(f"v_and_b32 v{t0}, 31, v1"); A(f"v_lshlrev_b32 v{t0}, 4, v{t0}"); A(f"v_lshrrev_b32 v{t1}, 5, v1")
            A(f"v_mul_u32_u24 v{vWo}, 1792, v{t1}"); A(f"v_add_u32 v{vWo}, v{vWo}, v{t0}")
            A(f"v_mul_u32_u24 v{vW2}, 896, v{t1}"); A(f"v_add_u32 v{vW2}, v{vW2}, v{t0}")
            A("s_lshl_b32 s14, s10, 5"); A("s_lshl_b32 s15, s3, 2"); A("s_add_u32 s14, s14, s15"); A("s_mul_i32 s14, s14, 896")
            A(f"v_add_u32 v{vWo}, s14, v{vWo}")
            A("s_lshl_b32 s14, s10, 4"); A("s_lshl_b32 s15, s3, 1"); A("s_add_u32 s14, s14, s15"); A("s_mul_i32 s14, s14, 896")
            A(f"v_add_u32 v{vW2}, s14, v{vW2}")
            masks(A, M, t0, t1); mask_prime(A, M, t0, t1)
            if dbg: A("s_waitcnt lgkmcnt(0)"); A("v_writelane_b32 v167, s88, 0")
            if diag2 is not None:
                A("s_getreg_b32 s14, hwreg(HW_REG_XCC_ID)"); A("s_and_b32 s14, s14, 15"); A("s_and_b32 s15, s2, 7"); A("s_cmp_eq_u32 s14, s15")
                A("s_cselect_b32 s14, 1000, 1"); A("s_add_u32 s14, s14, s88"); A("v_writelane_b32 v167, s14, 16")
        if n >= NQ and not sm_done:
            c = 0
            while qk_next[0] < 16 and c < CQ and 2 * qk_next[0] + 1 <= landed[0]:
                qk_tile(qk_next[0]); qk_next[0] += 1; c += 1
            if qk_next[0] == 16:
                chunks.pop(0)()
                sm_done = not chunks
        elif sm_done:
            c = 0
            while pv_next[0] < 32 and c < CP and 32 + pv_next[0] <= landed[0]:
                pv_tile(pv_next[0]); pv_next[0] += 1; c += 1
        if n == NF: fetch_stats()
        if n in (NG, NS, CK1, CK3):
            A(f"v_mov_b32 v{t0}, 0"); A(f"v_mov_b32 v{t1}, {n}")
            A("s_mov_b64 exec, 1"); A(f"ds_max_u32 v{t0}, v{t1} offset:{L_FLAG + 12}"); A("s_mov_b64 exec, -1")
    assert sm_done
    vRw, vO, vY, vR1 = vK, vV, 13, 16
    red2_lane(A, vRw, t0)
    A("s_lshl_b32 s14, s3, 10"); A(f"v_add_u32 v{vR1}, s14, v{vRw}")
    A("s_lshl_b32 s14, s3, 11"); A(f"s_add_u32 s14, s14, {L_RED2}"); A(f"v_add_u32 v{vRw}, s14, v{vRw}")
    A("s_lshl_b32 s14, s3, 6"); A(f"v_add_u32 v{vY}, s14, v1")
    A(f"v_lshrrev_b32 v{t0}, 4, v{vY}"); A(f"v_lshlrev_b32 v{vO}, 11, v{t0}"); A(f"v_and_b32 v{t0}, 15, v1"); A(f"v_lshl_add_u32 v{vO}, v{t0}, 4, v{vO}")
    if swz:
        A(f"v_lshrrev_b32 v{t0}, 4, v{vY}"); A(f"v_add_u32 v{t0}, s6, v{t0}"); A(f"v_and_b32 v{t0}, 7, v{t0}"); A(f"v_lshl_add_u32 v{vO}, v{t0}, 8, v{vO}")
        A("s_lshl_b32 s11, s7, 14"); A(f"s_add_u32 s11, s11, {WS_O}")
    else:
        A("s_lshl_b32 s9, s7, 14"); A(f"s_add_u32 s9, s9, {WS_O}"); A("s_lshl_b32 s14, s6, 8"); A("s_add_u32 s11, s9, s14")
    while pv_next[0] < 32:
        wait_landed(32 + pv_next[0])
        if wat is not None and pv_next[0] == wat:
            for n in range(64, N): issue(n)
        pv_tile(pv_next[0]); pv_next[0] += 1
    C("==== tail: scale by exp(m_wave - M) * g / L, reduce over waves, hand the o partial to the 8 workgroups of this (b, h) ====")
    lab("L_tail")
    if late_w == 3:
        for n in range(64, N): issue(n)
    stamp(6)
    A(f"v_lshlrev_b32 v{t0}, 3, v{vY}")
    for k in range(4): A(f"v_mul_f32 v{ACC+k}, v{vFS}, v{ACC+k}")
    A(f"ds_write_b128 v{vR1}, v[{ACC}:{ACC+3}] offset:{L_RED1}")
    A("s_waitcnt lgkmcnt(0)"); A("s_barrier")
    if late_w in (1, 2):
        free[:] = sorted(free + list(pslot.values())); pslot.clear()
        held = free[-6:]; del free[-6:]
    fr = [RING + 4 * s_ for s_ in sorted(free + list(pslot.values()))]
    run = [r for r in fr if all(r + 4 * k in fr for k in range(4))][0]
    rest = [r for r in fr if not run <= r < run + 16]
    FS = []
    for _ in range(pp):
        r = [r for r in rest if r + 4 in rest][0]; FS.append(r); rest.remove(r); rest.remove(r + 4)
    PS = rest[:pp]; assert len(PS) == pp
    Y = run; U = 20
    if late_w == 2:
        free[:] = held
        for n in range(64, N): issue(n)
    A("s_cmp_ge_u32 s3, 2"); A("s_cbranch_scc1 L_odone")
    for k in range(8): A(f"ds_read_b64 v[{Y+2*k}:{Y+2*k+1}], v{t0} offset:{L_RED1 + 1024 * k}")
    A(f"v_mov_b32 v{U+1}, s12"); A(f"v_mov_b32 v{U+3}, s12")
    A("s_waitcnt lgkmcnt(0)")
    for st in (1, 2):
        for k in range(0, 8, 2 * st):
            for c_ in range(2): A(f"v_add_f32 v{Y+2*k+c_}, v{Y+2*k+c_}, v{Y+2*(k+st)+c_}")
    A(f"v_add_f32 v{U}, v{Y}, v{Y+8}"); A(f"v_add_f32 v{U+2}, v{Y+1}, v{Y+9}")
    xstore([f"buffer_store_dwordx4 v[{U}:{U+3}], v{vO}, {WSR}, s11 offen"])
    lab("L_odone")
    if late_w == 1:
        free[:] = held
        for n in range(64, N): issue(n)
    stamp(7)
    OG = 28; DA, DBb = Y, Y + 4
    C("ffn rows (relu(h) x w2) scaled by 1-g while the o slices arrive; then o slice x wo rows on top")
    for q in range(4): A(f"v_and_b32 v{ACC+q}, v{vHP}, v{M[q]}")
    A(f"v_add_u32 v{t0}, {L_RED2}, v{t0}")
    A(f"v_lshrrev_b32 v{t1}, 5, v1"); A("s_lshl_b32 s14, s3, 4"); A(f"v_lshl_add_u32 v{t1}, v{t1}, 3, s14")
    if two:
        A("s_lshl_b32 s9, s4, 3"); A("s_add_u32 s9, s9, s6"); A("s_lshl_b32 s9, s9, 2"); A("s_add_u32 s9, s9, s3"); A("s_sub_u32 s9, s9, 4")
        A("s_cmp_ge_u32 s9, 28"); A("s_cselect_b32 s14, 28, 0"); A("s_cselect_b32 s15, 16, 0")
        A(f"s_mov_b32 s13, {WS_Y2[0]}"); A(f"s_cselect_b32 s13, {WS_Y2[1]}, s13")
        A("s_sub_u32 s14, s9, s14"); A("s_add_u32 s15, s15, s5"); A("s_mul_i32 s11, s15, 28672"); A("s_lshl_b32 s15, s14, 10")
        A("s_add_u32 s11, s11, s15"); A(f"s_add_u32 s11, s11, {WS_Y}")
        A("s_lshl_b32 s14, s14, 11"); A("s_add_u32 s13, s13, s14"); A("s_lshl_b32 s14, s5, 7"); A("s_add_u32 s13, s13, s14")
        A(f"v_lshlrev_b32 v{vR1}, 4, v1")
    FID = "s2"
    if lightfin:
        FID = "s8"
        A("s_lshl_b32 s14, s4, 3"); A("s_add_u32 s14, s14, s6")
        A("s_lshl_b32 s15, s5, 4"); A("s_add_u32 s15, s15, s14"); A("s_sub_u32 s15, s15, 224")
        A("s_cmp_lt_u32 s15, 28"); A("s_cselect_b32 s8, s15, 99")
        A("s_lshl_b32 s15, s5, 1"); A("s_add_u32 s15, s15, s14"); A("s_add_u32 s15, s15, 14")
        A("s_cmp_ge_u32 s14, 14"); A("s_cselect_b32 s15, s15, 99"); A("s_cmp_lt_u32 s5, 14"); A("s_cselect_b32 s8, s15, s8")
    A("s_waitcnt vmcnt(4)")
    for cb, d in ((0, DA), (1, DBb)):
        bw = sreg(64 + cb); A(f"v_mfma_f32_16x16x32_bf16 v[{d}:{d+3}], v[{ACC}:{ACC+3}], v[{bw}:{bw+3}], 0")
    for k in range(8): A(f"v_mul_f32 v{DA+k}, v15, v{DA+k}")
    if prefin:
        A("s_cmp_ge_u32 s2, 56"); A("s_cbranch_scc1 L_pf_no")
        A("s_lshl_b32 s13, s2, 14"); A("s_lshl_b32 s15, s3, 11"); A("s_add_u32 s13, s13, s15"); A(f"s_add_u32 s13, s13, {WS_Y}")
        A(f"v_lshlrev_b32 v{vR1}, 4, v1")
        for k in range(2): A(f"buffer_load_dwordx4 v[{FS[0]+4*k}:{FS[0]+4*k+3}], v{vR1}, {WSR}, s13 offen offset:{1024 * k} sc1")
        A("s_cmp_lt_u32 s3, 2"); A("s_cbranch_scc1 L_pf_3"); A("s_waitcnt vmcnt(2)"); lab("L_pf_3"); A("s_waitcnt vmcnt(3)"); A("s_branch L_pf_done")
        lab("L_pf_no")
        A("s_cmp_lt_u32 s3, 2"); A("s_cbranch_scc1 L_ow1"); A("s_waitcnt vmcnt(0)"); lab("L_ow1"); A("s_waitcnt vmcnt(1)")
        lab("L_pf_done")
    elif direct: pass
    elif late_w == 1: A("s_waitcnt vmcnt(0) lgkmcnt(0)")
    else: A("s_cmp_lt_u32 s3, 2"); A("s_cbranch_scc1 L_ow1"); A("s_waitcnt vmcnt(0)"); lab("L_ow1"); A("s_waitcnt vmcnt(1) lgkmcnt(0)")
    if direct:
        A(f"v_and_b32 v{t1}, 7, v1"); A(f"v_lshlrev_b32 v{vO}, 8, v{t1}"); A(f"v_lshrrev_b32 v{t1}, 5, v1"); A(f"v_lshl_add_u32 v{vO}, v{t1}, 4, v{vO}")
        A("s_lshl_b32 s9, s7, 14"); A(f"s_add_u32 s9, s9, {WS_O}"); A("s_lshl_b32 s14, s6, 11"); A("s_add_u32 s9, s9, s14"); A("s_lshl_b32 s14, s3, 5"); A("s_add_u32 s9, s9, s14")
        gather("od", [(OG, vO, "s9", 0, -1, -1)], osleep, [82])
        stamp(8)
        for ctl in ("quad_perm:[1,0,3,2]", "quad_perm:[2,3,0,1]", "row_half_mirror"):
            for k in (0, 2): A(f"v_add_f32_dpp v{OG+k}, v{OG+k}, v{OG+k} {ctl} {DPPF}")
        A(f"v_cvt_pk_bf16_f32 v{OG}, v{OG}, v{OG}"); A(f"v_cvt_pk_bf16_f32 v{OG+1}, v{OG+2}, v{OG+2}")
    else:
        A("s_barrier")
        A(f"ds_read_b64 v[{OG}:{OG+1}], v{t1} offset:{L_OL}")
        stamp(8)
        A("s_waitcnt lgkmcnt(0)")
    for r in range(2):
        for q in range(4): A(f"v_and_b32 v{AB[r]+q}, v{OG+r}, v{M[q]}")
    for r in range(2):
        for cb, d in ((0, DA), (1, DBb)):
            bw = sreg(66 + 2 * r + cb)
            A(f"v_mfma_f32_16x16x32_bf16 v[{d}:{d+3}], v[{AB[r]}:{AB[r]+3}], v[{bw}:{bw+3}], v[{d}:{d+3}]")
    A(f"ds_write_b128 v{vRw}, v[{DA}:{DA+3}]"); A(f"ds_write_b128 v{vRw}, v[{DBb}:{DBb+3}] offset:1024")
    A("s_waitcnt lgkmcnt(0)"); A("s_barrier")
    def red3(r):
        for k in (0, 2): A(f"v_add_f32_dpp v{r+k}, v{r+k}, v{r+k} row_ror:8 {DPPF}")
        A(f"v_permlane16_swap_b32 v{r}, v{r+2}"); A(f"v_add_f32 v{r}, v{r}, v{r+2}")
        A(f"v_mov_b32 v{r+2}, v{r}"); A(f"v_permlane32_swap_b32 v{r}, v{r+2}"); A(f"v_add_f32 v{r}, v{r}, v{r+2}")
        A(f"v_mov_b32 v{r+2}, v{r}"); A(f"v_permlane16_swap_b32 v{r}, v{r+2}")
    if two:
        A("s_cmp_ge_u32 s3, 4"); A("s_cbranch_scc1 L_lvl1")
        for k in range(8): A(f"ds_read_b64 v[{Y+2*k}:{Y+2*k+1}], v{t0} offset:{2048 * k}")
        A(f"v_cmp_gt_u32 vcc, 224, v{vY}")
        A(f"v_lshrrev_b32 v{t1}, 3, v{vY}"); A(f"v_lshlrev_b32 v{vO}, 10, v{t1}")
        A(f"v_and_b32 v{t1}, 7, v1"); A(f"v_lshl_add_u32 v{vO}, v{t1}, 4, v{vO}")
        A("s_mul_i32 s14, s7, 28672"); A("s_lshl_b32 s15, s6, 7"); A("s_add_u32 s14, s14, s15"); A(f"s_add_u32 s14, s14, {WS_Y}")
        A(f"v_mov_b32 v{U+1}, s12"); A(f"v_mov_b32 v{U+3}, s12")
        A("s_waitcnt lgkmcnt(0)")
        for st in (1, 2):
            for k in range(0, 8, 2 * st):
                for c_ in range(2): A(f"v_add_f32 v{Y+2*k+c_}, v{Y+2*k+c_}, v{Y+2*(k+st)+c_}")
        A(f"v_add_f32 v{U}, v{Y}, v{Y+8}"); A(f"v_add_f32 v{U+2}, v{Y+1}, v{Y+9}")
        A("s_and_b64 exec, exec, vcc")
        xstore([f"buffer_store_dwordx4 v[{U}:{U+3}], v{vO}, {WSR}, s14 offen"])
        A("s_mov_b64 exec, -1")
        stamp(9)
        A("s_branch L_fin_skip")
        lab("L_lvl1")
        A("s_cmp_ge_u32 s9, 56"); A("s_cbranch_scc1 L_fin_skip")
        F = 24
        gather("l1", [(F, vR1, "s11", 0, -1, -1)], 0, [82])
        red3(F)
        A("s_mov_b64 exec, 0xff")
        A(f"buffer_store_dwordx4 v[{F}:{F+3}], v{vR1}, {WSR}, s13 offen sc1")
        A("s_mov_b64 exec, -1")
        stamp(10)
    else:
        pass
    if yb and not two:
        A("s_cmp_ge_u32 s3, 2"); A("s_cbranch_scc1 L_ydone")
        Z = fr[4] if False else None
        ZR = [r for r in fr if all(r + 4 * k in fr for k in range(8))][0]
        A(f"v_lshlrev_b32 v{t0}, 4, v{vY}"); A(f"v_add_u32 v{t0}, {L_RED2}, v{t0}")
        for k in range(8): A(f"ds_read_b128 v[{ZR+4*k}:{ZR+4*k+3}], v{t0} offset:{2048 * k}")
        A(f"v_cmp_gt_u32 vcc, 112, v{vY}")
        A(f"v_lshrrev_b32 v{t1}, 3, v{vY}"); A(f"v_lshlrev_b32 v{vO}, 14, v{t1}")
        A(f"v_and_b32 v{t1}, 7, v1"); A(f"v_lshl_add_u32 v{vO}, v{t1}, 4, v{vO}")
        A(f"s_mul_i32 s14, s4, {14 * 16384}"); A("s_lshl_b32 s15, s10, 7"); A("s_add_u32 s14, s14, s15"); A(f"s_add_u32 s14, s14, {WS_Y}")
        A(f"v_mov_b32 v{U+1}, s12"); A(f"v_mov_b32 v{U+3}, s12")
        A("s_waitcnt lgkmcnt(0)")
        for st in (1, 2, 4):
            for k in range(0, 8, 2 * st):
                for c_ in range(4): A(f"v_add_f32 v{ZR+4*k+c_}, v{ZR+4*k+c_}, v{ZR+4*(k+st)+c_}")
        A(f"v_cvt_pk_bf16_f32 v{U}, v{ZR}, v{ZR+1}"); A(f"v_cvt_pk_bf16_f32 v{U+2}, v{ZR+2}, v{ZR+3}")
        A("s_and_saveexec_b64 s[82:83], vcc")
        A(f"buffer_store_dwordx4 v[{U}:{U+3}], v{vO}, {WSR}, s14 offen sc1")
        A("s_mov_b64 exec, s[82:83]")
        lab("L_ydone")
        stamp(9)
        A("s_cmp_ge_u32 s2, 28"); A("s_cbranch_scc1 L_fin_skip")
        A("s_lshl_b32 s13, s2, 14"); A("s_lshl_b32 s15, s3, 11"); A("s_add_u32 s13, s13, s15"); A(f"s_add_u32 s13, s13, {WS_Y}")
        A(f"v_lshlrev_b32 v{t0}, 4, v1")
        F = 24; G_ = 8
        gather("fin", [(F, t0, "s13", 0, -1, -1), (F + 4, t0, "s13", 1024, -1, -1)], fsleep, [82, 84])
        srd(SO, 34, 1792)
        for k in (0, 2, 4, 6): A(f"v_and_b32 v{F+k+1}, 0xffff0000, v{F+k}"); A(f"v_lshlrev_b32 v{F+k}, 16, v{F+k}")
        for k in range(4): A(f"v_add_f32 v{F+k}, v{F+k}, v{F+4+k}")
        stamp(10)
        for k in range(4): A(f"v_add_f32_dpp v{F+k}, v{F+k}, v{F+k} row_ror:8 {DPPF}")
        A(f"v_permlane16_swap_b32 v{F}, v{F+1}"); A(f"v_permlane16_swap_b32 v{F+2}, v{F+3}")
        A(f"v_add_f32 v{F}, v{F}, v{F+1}"); A(f"v_add_f32 v{F+2}, v{F+2}, v{F+3}")
        A(f"v_permlane32_swap_b32 v{F}, v{F+2}"); A(f"v_add_f32 v{F}, v{F}, v{F+2}")
        A(f"v_and_b32 v{t0}, 7, v1"); A(f"v_lshrrev_b32 v{t1}, 4, v1"); A(f"v_lshl_add_u32 v{t0}, v{t0}, 2, v{t1}")
        A(f"v_lshlrev_b32 v{t0}, 5, v{t0}"); A("s_lshl_b32 s14, s3, 2"); A(f"v_add_u32 v{t0}, s14, v{t0}")
        A("s_mov_b32 exec_lo, 0x00ff00ff"); A("s_mov_b32 exec_hi, 0x00ff00ff")
        A(f"ds_write_b32 v{t0}, v{F} offset:{L_PW}")
        A("s_mov_b64 exec, -1")
        A("s_waitcnt lgkmcnt(0)"); A("s_barrier")
        A("s_cmp_lg_u32 s3, 0"); A("s_cbranch_scc1 L_fin_skip")
        A(f"v_and_b32 v{t0}, 31, v1"); A(f"v_lshlrev_b32 v{t1}, 5, v{t0}")
        A(f"ds_read_b128 v[{F}:{F+3}], v{t1} offset:{L_PW}"); A(f"ds_read_b128 v[{F+4}:{F+7}], v{t1} offset:{L_PW + 16}")
        A(f"v_lshlrev_b32 v{t0}, 1, v{t0}"); A("s_lshl_b32 s14, s2, 6")
        A("s_waitcnt lgkmcnt(0)")
        for st in (1, 2, 4):
            for k in range(0, 8, 2 * st): A(f"v_add_f32 v{F+k}, v{F+k}, v{F+k+st}")
        A(f"v_cvt_pk_bf16_f32 v{F}, v{F}, v{F}")
        A("s_mov_b32 exec_hi, 0")
        A(f"buffer_store_short v{F}, v{t0}, s[{SO}:{SO+3}], s14 offen")
        A("s_cmp_lg_u32 s2, 0"); A("s_cbranch_scc1 L_fin_noep")
        A("s_mov_b64 exec, 1"); A(f"v_mov_b32 v{t0}, 0"); A(f"v_mov_b32 v{t1}, s12")
        A(f"s_mov_b32 s13, {wsb}"); A(f"buffer_store_dword v{t1}, v{t0}, {WSR}, s13 offen")
        if lite:
            A("s_memrealtime s[90:91]"); A("s_waitcnt lgkmcnt(0)"); A("v_mov_b32 v8, s88"); A("v_mov_b32 v9, s90")
            A("s_mov_b32 s92, s36"); A("s_mov_b32 s93, s37"); A("s_mov_b32 s94, 256"); A("s_mov_b32 s95, 0x20000")
            A(f"buffer_store_dwordx2 v[8:9], v{t0}, s[92:95], 0 offen")
        lab("L_fin_noep")
        A("s_mov_b64 exec, -1")
    if not two and not yb:
        A("s_cmp_ge_u32 s3, 4"); A("s_cbranch_scc1 L_ydone")
        for k in range(8): A(f"ds_read_b64 v[{Y+2*k}:{Y+2*k+1}], v{t0} offset:{2048 * k}")
        A(f"v_cmp_gt_u32 vcc, 224, v{vY}")
        A(f"v_lshrrev_b32 v{t1}, 3, v{vY}"); A(f"v_lshlrev_b32 v{vO}, 14, v{t1}")
        if swz:
            A(f"v_mul_u32_u24 v{t1}, {swz}, v{t1}"); A(f"v_add_u32 v{t1}, s10, v{t1}"); A(f"v_and_b32 v{t1}, 127, v{t1}"); A(f"v_lshl_add_u32 v{vO}, v{t1}, 7, v{vO}")
        A(f"v_and_b32 v{t1}, 7, v1"); A(f"v_lshl_add_u32 v{vO}, v{t1}, 4, v{vO}")
        A(f"s_mul_i32 s14, s4, {28 * 16384}")
        if not swz: A("s_lshl_b32 s15, s10, 7"); A("s_add_u32 s14, s14, s15")
        A(f"s_add_u32 s14, s14, {WS_Y}")
        A(f"v_mov_b32 v{U+1}, s12"); A(f"v_mov_b32 v{U+3}, s12")
        A("s_waitcnt lgkmcnt(0)")
        for st in (1, 2):
            for k in range(0, 8, 2 * st):
                for c_ in range(2): A(f"v_add_f32 v{Y+2*k+c_}, v{Y+2*k+c_}, v{Y+2*(k+st)+c_}")
        A(f"v_add_f32 v{U}, v{Y}, v{Y+8}"); A(f"v_add_f32 v{U+2}, v{Y+1}, v{Y+9}")
        A("s_and_saveexec_b64 s[82:83], vcc")
        A(f"buffer_store_dwordx4 v[{U}:{U+3}], v{vO}, {WSR}, s14 offen sc1")
        A("s_mov_b64 exec, s[82:83]")
        lab("L_ydone")
        stamp(9)
        A(f"s_cmp_ge_u32 {FID}, 56"); A("s_cbranch_scc1 L_fin_skip")
        F = 24
        srd(SO, 34, 1792)
        if prefin:
            A("s_waitcnt vmcnt(1)"); A("s_cmp_lt_u32 s3, 4"); A("s_cbranch_scc1 L_pf_w"); A("s_waitcnt vmcnt(0)"); lab("L_pf_w")
            G0 = FS[0]
            gather("fin", [(G0, vR1, "s13", 0, -1, -1), (G0 + 4, vR1, "s13", 1024, -1, -1)], fsleep, [82, 84], pre=True)
        else:
            A(f"s_lshl_b32 s13, {FID}, 14"); A("s_lshl_b32 s15, s3, 11"); A("s_add_u32 s13, s13, s15"); A(f"s_add_u32 s13, s13, {WS_Y}")
            A(f"v_lshlrev_b32 v{t0}, 4, v1")
            G0 = F
            gather("fin", [(F, t0, "s13", 0, -1, -1), (F + 4, t0, "s13", 1024, -1, -1)], fsleep, [82, 84])
        A(f"v_add_f32 v{F}, v{G0}, v{G0+4}"); A(f"v_add_f32 v{F+2}, v{G0+2}, v{G0+6}")
        stamp(10)
        A(f"v_add_f32_dpp v{F}, v{F}, v{F} row_ror:8 {DPPF}"); A(f"v_add_f32_dpp v{F+2}, v{F+2}, v{F+2} row_ror:8 {DPPF}")
        A(f"v_permlane16_swap_b32 v{F}, v{F+2}"); A(f"v_add_f32 v{F}, v{F}, v{F+2}")
        A(f"v_mov_b32 v{F+2}, v{F}"); A(f"v_permlane32_swap_b32 v{F}, v{F+2}"); A(f"v_add_f32 v{F}, v{F}, v{F+2}")
        A(f"v_and_b32 v{t0}, 7, v1"); A(f"v_bfe_u32 v{t1}, v1, 4, 1"); A(f"v_lshl_add_u32 v{t0}, v{t0}, 1, v{t1}")
        A(f"v_lshlrev_b32 v{t0}, 5, v{t0}"); A("s_lshl_b32 s14, s3, 2"); A(f"v_add_u32 v{t0}, s14, v{t0}")
        A("s_mov_b32 exec_lo, 0x00ff00ff"); A("s_mov_b32 exec_hi, 0")
        A(f"ds_write_b32 v{t0}, v{F} offset:{L_FIN}")
        A("s_mov_b64 exec, -1")
        A("s_waitcnt lgkmcnt(0)"); A("s_barrier")
        A("s_cmp_lg_u32 s3, 0"); A("s_cbranch_scc1 L_fin_skip")
        A(f"v_and_b32 v{t0}, 15, v1"); A(f"v_lshlrev_b32 v{t1}, 5, v{t0}")
        A(f"ds_read_b128 v[{F}:{F+3}], v{t1} offset:{L_FIN}"); A(f"ds_read_b128 v[{F+4}:{F+7}], v{t1} offset:{L_FIN + 16}")
        A(f"v_lshlrev_b32 v{t0}, 1, v{t0}"); A(f"s_lshl_b32 s14, {FID}, 5")
        A("s_waitcnt lgkmcnt(0)")
        for st in (1, 2, 4):
            for k in range(0, 8, 2 * st): A(f"v_add_f32 v{F+k}, v{F+k}, v{F+k+st}")
        A(f"v_cvt_pk_bf16_f32 v{F}, v{F}, v{F}")
        A("s_mov_b64 exec, 0xffff")
        A(f"buffer_store_short v{F}, v{t0}, s[{SO}:{SO+3}], s14 offen {ofl}")
        A(f"s_cmp_lg_u32 {FID}, 0"); A("s_cbranch_scc1 L_fin_noep")
        A("s_mov_b64 exec, 1"); A(f"v_mov_b32 v{t0}, 0"); A(f"v_mov_b32 v{t1}, s12")
        A(f"s_mov_b32 s13, {wsb}"); A(f"buffer_store_dword v{t1}, v{t0}, {WSR}, s13 offen {ofl}")
        if lite:
            A("s_memrealtime s[90:91]"); A("s_waitcnt lgkmcnt(0)"); A("v_mov_b32 v8, s88"); A("v_mov_b32 v9, s90")
            A("s_mov_b32 s92, s36"); A("s_mov_b32 s93, s37"); A("s_mov_b32 s94, 256"); A("s_mov_b32 s95, 0x20000")
            A(f"buffer_store_dwordx2 v[8:9], v{t0}, s[92:95], 0 offen")
        lab("L_fin_noep")
        A("s_mov_b64 exec, -1")
    lab("L_fin_skip")
    stamp(11)
    dump_stamps()
    if diag2 is not None:
        role, kk, op = diag2[:3]; xf = diag2[3] if len(diag2) > 3 else None
        A("s_cmp_lg_u32 s2, 0"); A("s_cbranch_scc1 L_diag_end"); A("s_cmp_lg_u32 s3, 0"); A("s_cbranch_scc1 L_diag_end")
        A("s_add_u32 s84, s88, 7000"); lab("L_diag1"); A("s_sleep 8")
        A("s_memrealtime s[90:91]"); A("s_waitcnt lgkmcnt(0)"); A("s_sub_u32 s85, s90, s84"); A("s_cmp_lt_i32 s85, 0"); A("s_cbranch_scc1 L_diag1")
        A("v_mov_b32 v10, 0"); A("v_mov_b32 v11, -1"); A("v_mov_b32 v14, 0")
        nr = 4 if role else 32
        for r in range(nr):
            if role: A(f"v_add_u32 v12, {r * 64}, v1"); A("v_mul_u32_u24 v12, 2304, v12")
            else:
                A(f"v_lshrrev_b32 v12, 3, v1"); A(f"v_add_u32 v12, {r * 8}, v12"); A("v_mul_u32_u24 v12, 9, v12"); A("v_and_b32 v13, 7, v1"); A("v_add_u32 v12, v12, v13")
                A("v_add_u32 v12, 1, v12"); A("v_lshlrev_b32 v12, 8, v12")
            A(f"s_mov_b32 s13, {WS_DBG}")
            A(f"buffer_load_dword v8, v12, {WSR}, s13 offen sc1"); A(f"buffer_load_dword v9, v12, {WSR}, s13 offen offset:{4 * kk} sc1"); A("s_waitcnt vmcnt(0)")
            A("v_subrev_u32 v8, s88, v8"); A("v_add_u32 v8, 0x1000, v8"); A("v_min_u32 v11, v11, v8")
            A("v_cmp_ne_u32 vcc, 0, v9"); A("v_subrev_u32 v9, s88, v9"); A("v_add_u32 v9, 0x1000, v9"); A("v_cndmask_b32 v9, 0, v9, vcc")
            if xf is not None:
                A("v_lshrrev_b32 v13, 3, v1"); A(f"v_cmp_eq_u32 vcc, {xf}, v13"); A("v_cndmask_b32 v9, 0, v9, vcc")
            A("v_max_u32 v10, v10, v9"); A("v_add_u32 v14, v14, v9")
        if op == "mean": A(f"v_lshrrev_b32 v10, {2 if role else 5}, v14")
        for v, o in ((10, "add" if op == "mean" else "max"), (11, "min")):
            for ctl in ("quad_perm:[1,0,3,2]", "quad_perm:[2,3,0,1]", "row_half_mirror", "row_mirror"): A(f"v_{o}_u32_dpp v{v}, v{v}, v{v} {ctl} {DPPF}")
            for sw in ("v_permlane16_swap_b32", "v_permlane32_swap_b32"):
                A(f"v_mov_b32 v12, v{v}"); A(f"{sw} v{v}, v12"); A(f"v_{o}_u32 v{v}, v{v}, v12")
        if op == "mean": A(f"v_lshrrev_b32 v10, {6 if xf is None else 3}, v10")
        A("v_sub_u32 v10, v10, v11"); A("v_readfirstlane_b32 s85, v10"); A("s_lshl_b32 s85, s85, 2")
        if kk < 0: A("s_mov_b32 s85, 0")
        A("s_min_u32 s85, s85, 40000"); A(f"s_add_u32 s84, s88, {dbase}"); A("s_add_u32 s84, s84, s85")
        lab("L_diag2")
        A("s_memrealtime s[90:91]"); A("s_waitcnt lgkmcnt(0)"); A("s_sub_u32 s85, s90, s84"); A("s_cmp_lt_i32 s85, 0"); A("s_cbranch_scc1 L_diag2")
        lab("L_diag_end")
    if diag is not None:
        A("s_cmp_lg_u32 s2, 0"); A("s_cbranch_scc1 L_diag_end"); A("s_cmp_lg_u32 s3, 0"); A("s_cbranch_scc1 L_diag_end")
        A("s_add_u32 s84, s88, 7000")
        lab("L_diag1")
        A("s_memrealtime s[90:91]"); A("s_waitcnt lgkmcnt(0)"); A("s_sub_u32 s85, s90, s84"); A("s_cmp_lt_i32 s85, 0"); A("s_cbranch_scc1 L_diag1")
        A("v_lshlrev_b32 v166, 2, v1"); A("buffer_load_dword v165, v166, s[92:95], 0 offen sc1"); A("s_waitcnt vmcnt(0)")
        A("v_readlane_b32 s84, v165, 0"); A(f"v_readlane_b32 s85, v165, {max(diag, 0)}")
        A("s_not_b32 s84, s84"); A("s_sub_u32 s85, s85, s84"); A("s_lshl_b32 s85, s85, 2")
        if diag <= 0: A("s_mov_b32 s85, 0")
        A("s_min_u32 s85, s85, 40000"); A(f"s_add_u32 s84, s88, {dbase}"); A("s_add_u32 s84, s84, s85")
        lab("L_diag2")
        A("s_memrealtime s[90:91]"); A("s_waitcnt lgkmcnt(0)"); A("s_sub_u32 s85, s90, s84"); A("s_cmp_lt_i32 s85, 0"); A("s_cbranch_scc1 L_diag2")
        lab("L_diag_end")
    A("s_endpgm")

    lab("L_service")
    if kfirst: A("s_load_dwordx16 s[16:31], s[0:1], 0"); A("s_load_dwordx8 s[32:39], s[0:1], 64")
    C("==== service wave: partial q / ffn-hidden GEMVs, gate, statistics, hand-offs ====")
    A("s_setprio 3")
    vL16, vQe, vQo, vFe, vFo, vXq, vXf = 2, 3, 4, 5, 6, 7, 8
    vTr = [9, 10, 11, 12]; a_, b_, c_, d_ = 14, 15, 16, 17; vG, vOG = 20, 21
    A(f"v_mov_b32 v{a_}, 0"); A(f"v_mov_b32 v{b_}, 0"); A(f"v_mov_b32 v{c_}, 0"); A(f"v_mov_b32 v{d_}, 0")
    A(f"ds_write_b128 v{a_}, v[{a_}:{d_}] offset:{L_FLAG}")
    if bal: A(f"v_mov_b32 v{vG}, {bal.get('init', 0)}"); A(f"ds_write_b32 v{a_}, v{vG} offset:{L_G + 20}")
    A(f"v_lshlrev_b32 v{vL16}, 4, v1")
    A("s_and_b32 s8, s6, 3"); A("s_lshr_b32 s9, s6, 2"); A("s_lshl_b32 s14, s4, 1"); A("s_add_u32 s9, s9, s14")
    A("s_lshl_b32 s15, s4, 3"); A("s_add_u32 s15, s15, s6")
    A("s_cmp_ge_u32 s15, 7"); A("s_cselect_b32 s11, 1, 0"); A("s_mul_i32 s14, s11, 7"); A("s_sub_u32 s81, s15, s14")
    A("s_cmp_lt_u32 s15, 14"); A("s_cselect_b32 s79, 1, 0"); A("s_cmp_lt_u32 s5, 14"); A("s_cselect_b32 s79, s79, 0")
    A("s_lshl_b32 s14, s5, 1"); A("s_add_u32 s11, s11, s14")
    A(f"v_bfe_u32 v{a_}, v1, 4, 1"); A(f"v_lshlrev_b32 v{a_}, 1, v{a_}"); A(f"v_and_b32 v{b_}, 7, v1"); A(f"v_xor_b32 v{a_}, v{a_}, v{b_}")
    A(f"v_xor_b32 v{b_}, 4, v{a_}"); A(f"v_lshrrev_b32 v{c_}, 3, v1")
    A(f"s_mul_i32 s14, s9, {112 * 8192}"); A("s_lshl_b32 s15, s5, 9"); A("s_add_u32 s14, s14, s15"); A("s_lshl_b32 s15, s8, 7"); A("s_add_u32 s14, s14, s15")
    A(f"v_lshl_add_u32 v{d_}, v{c_}, 13, s14")
    A(f"v_lshl_add_u32 v{vQe}, v{a_}, 4, v{d_}"); A(f"v_lshl_add_u32 v{vQo}, v{b_}, 4, v{d_}")
    A(f"s_mul_i32 s14, s81, {64 * 3584}"); A("s_lshl_b32 s15, s11, 7"); A("s_add_u32 s14, s14, s15")
    A(f"v_mul_u32_u24 v{d_}, 3584, v{c_}"); A(f"v_add_u32 v{d_}, s14, v{d_}")
    A(f"v_lshl_add_u32 v{vFe}, v{a_}, 4, v{d_}"); A(f"v_lshl_add_u32 v{vFo}, v{b_}, 4, v{d_}")
    A("s_waitcnt lgkmcnt(0)")
    A(f"s_mov_b32 s13, {wsb}"); A("s_load_dword s12, s[38:39], s13")
    srd(SX, 16, 1792); srd(SWQ, 22, 3670016); srd(SG, 32, 896); srd(SW1, 28, 1605632)
    A("s_cmp_eq_u32 s79, 1"); A(f"s_cselect_b32 s{SW1+2}, s{SW1+2}, 0")
    if svc == 0:
        for d in (SX, SWQ, SG, SW1): A(f"s_mov_b32 s{d+2}, 0")
    if svc == 0.5:
        for d in (SW1,): A(f"s_mov_b32 s{d+2}, 0")
    A(f"s_mov_b32 m0, {L_X}")
    for k in range(2): A(f"buffer_load_dwordx4 v{vL16}, s[{SX}:{SX+3}], 0 offen offset:{1024 * k} lds")
    for m in range(16):
        A(f"s_mov_b32 m0, {L_W + 1024 * m}")
        A(f"s_mov_b32 s13, {m * 65536 if m < 14 else 0x7f000000}")
        A(f"buffer_load_dwordx4 v{vQo if m & 1 else vQe}, s[{SWQ}:{SWQ+3}], s13 offen {wflags} lds")
    for m in range(8):
        A(f"s_mov_b32 m0, {L_W1 + 1024 * m}"); A(f"s_mov_b32 s13, {m * 8 * 3584}")
        A(f"buffer_load_dwordx4 v{vFo if m & 1 else vFe}, s[{SW1}:{SW1+3}], s13 offen {wflags} lds")
    GW = 24
    A(f"buffer_load_dwordx4 v[{GW}:{GW+3}], v{vL16}, s[{SG}:{SG+3}], 0 offen")
    A("s_barrier")
    srd(SWS, 38, WS_SIZE)
    A(f"v_and_b32 v{a_}, 1, v1"); A(f"v_mul_u32_u24 v{b_}, 896, v{a_}"); A(f"v_lshrrev_b32 v{a_}, 4, v1"); A(f"v_lshl_add_u32 v{b_}, v{a_}, 4, v{b_}")
    A("s_mul_i32 s14, s9, 224"); A(f"v_add_u32 v{vXq}, s14, v{b_}"); A("s_lshl_b32 s14, s81, 7"); A(f"v_add_u32 v{vXf}, s14, v{b_}")
    A(f"v_lshlrev_b32 v{b_}, 10, v{a_}"); A(f"v_bfe_u32 v{c_}, v1, 2, 2"); A(f"v_lshl_add_u32 v{b_}, v{c_}, 7, v{b_}")
    A(f"v_bfe_u32 v{c_}, v1, 1, 1"); A(f"v_lshl_add_u32 v{b_}, v{c_}, 4, v{b_}"); A(f"v_and_b32 v{c_}, 1, v1"); A(f"v_lshl_add_u32 v{b_}, v{c_}, 3, v{b_}")
    A(f"v_bfe_u32 v{c_}, v1, 3, 2")
    for cg in range(4):
        A(f"v_xor_b32 v{d_}, {cg}, v{c_}"); A(f"v_lshl_add_u32 v{vTr[cg]}, v{d_}, 5, v{b_}")
    A("s_lshl_b32 s8, s8, 9"); A("s_lshl_b32 s9, s9, 11"); A("s_add_u32 s8, s8, s9"); A("s_lshl_b32 s9, s5, 13"); A("s_add_u32 s8, s8, s9")
    A(f"s_add_u32 s8, s8, {WS_Q}"); A(f"s_add_u32 s9, s8, {16 * 8192}")
    A(f"s_mul_i32 s11, s11, {HSTR}"); A("s_lshl_b32 s81, s81, 9"); A("s_add_u32 s11, s11, s81"); A(f"s_add_u32 s11, s11, {WS_H}")
    A("s_mov_b32 s82, 0xffff0000"); A("s_mov_b32 s83, 0"); A("s_mov_b32 s84, 0"); A("s_mov_b32 s85, 0xffff"); A("s_mov_b32 s86, 0"); A("s_mov_b32 s87, 0xffff0000")
    if dbg: A("s_waitcnt lgkmcnt(0)"); A("v_writelane_b32 v167, s88, 0")
    A("s_waitcnt lgkmcnt(0)"); A(f"s_add_u32 s12, s12, {TAGC}")
    XA = 28; TB = 56; D = 120; UQ = 136; UH = 144; AN = 152
    ex = 0
    if loc:
        ex = 1
        A("s_getreg_b32 s78, hwreg(HW_REG_XCC_ID)"); A("s_and_b32 s78, s78, 15")
        A(f"v_mov_b32 v{AN}, s78"); A(f"v_mov_b32 v{AN+1}, s12"); A(f"v_mov_b32 v{AN+2}, s78"); A(f"v_mov_b32 v{AN+3}, s12")
        A("s_lshl_b32 s13, s10, 7"); A("s_lshl_b32 s14, s4, 14"); A("s_add_u32 s13, s13, s14"); A(f"s_add_u32 s13, s13, {WS_A}")
        A("s_mov_b64 exec, 0xff"); A(f"buffer_store_dwordx4 v[{AN}:{AN+3}], v{vL16}, {WSR}, s13 offen"); A("s_mov_b64 exec, -1")
    A(f"s_waitcnt vmcnt({25 + ex})")
    for m in range(4): A(f"ds_read_b128 v[{XA+4*m}:{XA+4*m+3}], v{vXq} offset:{L_X + 64 * m}")
    for m in range(2): A(f"ds_read_b128 v[{XA+16+4*m}:{XA+16+4*m+3}], v{vXf} offset:{L_X + 64 * m}")
    def gemv(img, steps, xa, vm_after, U_):
        for m in range(steps):
            A(f"s_waitcnt vmcnt({vm_after + 4 * (steps - 1 - m)})")
            for cg in range(4):
                r = TB + 16 * m + 4 * cg
                A(f"ds_read_b64_tr_b16 v[{r}:{r+1}], v{vTr[cg]} offset:{img + 4096 * m}")
                A(f"ds_read_b64_tr_b16 v[{r+2}:{r+3}], v{vTr[cg]} offset:{img + 4096 * m + 512}")
            if m: mf(m - 1, xa, 8)
        mf(steps - 1, xa, 0)
        for bb in range(2):
            for cg in range(1, 4): A(f"v_cndmask_b32 v{D+bb}, v{D+bb}, v{D+4*cg+bb}, s[{80+2*cg}:{81+2*cg}]")
        for bb in range(2):
            A(f"v_mov_b32 v{U_+4*bb}, v{D+bb}"); A(f"v_mov_b32_dpp v{U_+4*bb+2}, v{D+bb} quad_perm:[1,1,3,3] {DPPF}")
            A(f"v_mov_b32 v{U_+4*bb+1}, s12"); A(f"v_mov_b32 v{U_+4*bb+3}, s12")
    def mf(m, xa, lg):
        A(f"s_waitcnt lgkmcnt({lg})")
        for cg in range(4):
            r = TB + 16 * m + 4 * cg; d = D + 4 * cg; c = "0" if m == 0 else f"v[{d}:{d+3}]"
            A(f"v_mfma_f32_16x16x32_bf16 v[{d}:{d+3}], v[{xa+4*m}:{xa+4*m+3}], v[{r}:{r+3}], {c}")
    def publish(s0, s1, U_):
        if svc < 2: return
        A("s_mov_b32 exec_lo, 0x55555555"); A("s_mov_b32 exec_hi, 0x55555555")
        xstore([f"buffer_store_dwordx4 v[{U_}:{U_+3}], v{d_}, {WSR}, {s0} offen", f"buffer_store_dwordx4 v[{U_+4}:{U_+7}], v{d_}, {WSR}, {s1} offen"])
        A("s_mov_b64 exec, -1")
    A(f"v_lshlrev_b32 v{d_}, 3, v1")
    gemv(L_W, 4, XA, 9 + ex, UQ)
    if loc:
        A(f"v_lshrrev_b32 v{a_}, 3, v1"); A(f"v_lshlrev_b32 v{a_}, 14, v{a_}"); A(f"v_and_b32 v{b_}, 7, v1"); A(f"v_lshl_add_u32 v{a_}, v{b_}, 7, v{a_}")
        A("s_lshl_b32 s13, s5, 10"); A(f"s_add_u32 s13, s13, {WS_A}")
        if not anlate: A("s_mov_b64 exec, 0xffff"); A(f"buffer_load_dwordx4 v[{AN+4}:{AN+7}], v{a_}, {WSR}, s13 offen sc1"); A("s_mov_b64 exec, -1")
    else: publish("s8", "s9", UQ)
    stamp(1)
    gemv(L_W1, 2, XA + 16, 2 if loc and anlate else 3, UH)
    if loc and anlate:
        A("s_waitcnt vmcnt(0)")
        A("s_mov_b64 exec, 0xffff"); A(f"buffer_load_dwordx4 v[{AN+4}:{AN+7}], v{a_}, {WSR}, s13 offen sc1"); A("s_mov_b64 exec, -1")
    if loc:
        A(f"s_mov_b32 s77, {lretry}"); A("s_mov_b64 exec, 0xffff")
        lab("L_an")
        A("s_waitcnt vmcnt(0)")
        for k, r_ in enumerate(("s78", "s12", "s78", "s12")): A(f"v_cmp_eq_u32 s[{80+2*k}:{81+2*k}], {r_}, v{AN+4+k}")
        A("s_and_b64 s[80:81], s[80:81], s[82:83]"); A("s_and_b64 s[84:85], s[84:85], s[86:87]"); A("s_and_b64 s[80:81], s[80:81], s[84:85]")
        A("s_cmp_eq_u32 s80, 0xffff"); A("s_cbranch_scc1 L_an_done")
        A("s_sub_u32 s77, s77, 1"); A("s_cbranch_scc1 L_an_fail")
        A(f"buffer_load_dwordx4 v[{AN+4}:{AN+7}], v{a_}, {WSR}, s13 offen sc1"); A("s_branch L_an")
        lab("L_an_fail")
        A("s_cmp_eq_u32 s80, 0xffff")
        lab("L_an_done")
        A("s_cselect_b32 s78, 1, 0"); A("s_mov_b64 exec, -1")
        if dbg: A("s_mul_i32 s14, s78, 1000"); A("s_add_u32 s14, s14, s88"); A("v_writelane_b32 v167, s14, 7"); A("s_add_u32 s14, s77, 1"); A("s_mul_i32 s14, s14, 100"); A("s_add_u32 s14, s14, s88"); A("v_writelane_b32 v167, s14, 8")
        if loc == "off": A("s_mov_b32 s78, 0")
        publish("s8", "s9", UQ)
    A("s_cmp_eq_u32 s79, 0"); A("s_cbranch_scc1 L_sv_noh")
    A(f"s_add_u32 s9, s11, {28 * HSTR}")
    publish("s11", "s9", UH)
    lab("L_sv_noh")
    stamp(2)
    QP = 56
    if NG is not None: lds_wait(L_FLAG + 12, NG, "pg1", a_, b_, sleep=4, cmp="ge")
    A("s_lshl_b32 s8, s7, 13"); A(f"s_add_u32 s8, s8, {WS_Q}"); A("s_add_u32 s9, s8, 4096")
    gather("q", [(QP + 4 * k, vL16, "s9" if k >= 4 else "s8", 1024 * (k & 3), -1, -1) for k in range(8)], psleep,
           [40, 42, 44, 46, 48, 50, 82, 84])
    for hf in range(2):
        r = QP + 4 * hf
        for e in (0, 2):
            A(f"v_add_f32 v{r+e}, v{r+e}, v{r+8+e}"); A(f"v_add_f32 v{r+16+e}, v{r+16+e}, v{r+24+e}")
        for e in (0, 2): A(f"v_add_f32 v{r+e}, v{r+e}, v{r+16+e}")
        A(f"v_cvt_pk_bf16_f32 v{r}, v{r}, v{r+2}")
    A(f"v_lshlrev_b32 v{a_}, 2, v1")
    A(f"ds_write_b32 v{a_}, v{QP} offset:{L_Q}"); A(f"ds_write_b32 v{a_}, v{QP+4} offset:{L_Q + 256}")
    A(f"v_mov_b32 v{a_}, 0"); A(f"v_mov_b32 v{b_}, s12"); A(f"v_mov_b32 v{c_}, 1")
    A(f"ds_write_b32 v{a_}, v{b_} offset:{L_G + 16}")
    A(f"ds_write_b32 v{a_}, v{c_} offset:{L_FLAG}")
    stamp(3)
    TW = 100
    if touch:
        A(f"v_mov_b32 v{a_}, 0"); A("s_mov_b64 exec, 1")
        if "v" in touch:
            srd(40, 20, 0x4000000); A("s_lshl_b32 s13, s7, 21"); A("s_lshl_b32 s14, s6, 18"); A("s_add_u32 s13, s13, s14")
            for k in range(4): A(f"buffer_load_dword v{TW+k}, v{a_}, s[40:43], s13 offen nt"); A("s_add_u32 s13, s13, 65536")
        if "w" in touch:
            srd(44, 24, 3670016); A(f"s_mul_i32 s13, s10, {32 * 896}"); A(f"buffer_load_dword v{TW+4}, v{a_}, s[44:47], s13 offen nt")
            srd(48, 30, 1605632); A(f"s_mul_i32 s13, s10, {16 * 896}"); A(f"buffer_load_dword v{TW+5}, v{a_}, s[48:51], s13 offen nt")
        if "o" in touch:
            srd(SO, 34, 1792); A(f"buffer_load_dword v{TW+6}, v{a_}, s[{SO}:{SO+3}], 0 offen")
        A("s_mov_b64 exec, -1")
    if codepf:
        A("s_getpc_b64 s[14:15]"); lab("L_pc")
        A("s_sub_u32 s14, s14, L_pc-L_tail"); A("s_subb_u32 s15, s15, 0")
        A(f"v_mov_b32 v{b_}, s15"); A(f"v_add_co_u32 v{a_}, vcc, s14, v{vL16}"); A(f"v_addc_co_u32 v{b_}, vcc, 0, v{b_}, vcc")
        for k in range(codepf): A(f"global_load_dwordx4 v[{TW+8+4*k}:{TW+11+4*k}], v[{a_}:{b_}], off offset:{1024 * k}")
    C("gate = sigmoid(sum(x*gate_w)) with the reference's bf16 roundings")
    XG = 28
    A("s_mul_i32 s14, s4, 896"); A(f"v_add_u32 v{a_}, s14, v{vL16}")
    A(f"ds_read_b128 v[{XG}:{XG+3}], v{a_} offset:{L_X}")
    A("s_waitcnt lgkmcnt(0)")
    A(f"v_mov_b32 v{vG}, 0")
    for k in range(4):
        A(f"v_lshlrev_b32 v{a_}, 16, v{XG+k}"); A(f"v_and_b32 v{b_}, 0xffff0000, v{XG+k}")
        A(f"v_lshlrev_b32 v{c_}, 16, v{GW+k}"); A(f"v_and_b32 v{d_}, 0xffff0000, v{GW+k}")
        A(f"v_mul_f32 v{a_}, v{a_}, v{c_}"); A(f"v_mul_f32 v{b_}, v{b_}, v{d_}")
        A(f"v_cvt_pk_bf16_f32 v{a_}, v{a_}, v{b_}")
        A(f"v_lshlrev_b32 v{b_}, 16, v{a_}"); A(f"v_and_b32 v{a_}, 0xffff0000, v{a_}")
        A(f"v_add_f32 v{vG}, v{vG}, v{b_}"); A(f"v_add_f32 v{vG}, v{vG}, v{a_}")
    A("v_cmp_gt_u32 vcc, 56, v1"); A(f"v_cndmask_b32 v{vG}, 0, v{vG}, vcc")
    wave_reduce(A, "add", vG, a_)
    A(f"v_cvt_pk_bf16_f32 v{vG}, v{vG}, v{vG}"); A(f"v_lshlrev_b32 v{vG}, 16, v{vG}")
    A(f"v_mul_f32 v{vG}, 0xbfb8aa3b, v{vG}"); A(f"v_exp_f32 v{vG}, v{vG}"); A(f"v_add_f32 v{vG}, 1.0, v{vG}"); A(f"v_rcp_f32 v{vG}, v{vG}")
    A(f"v_cvt_pk_bf16_f32 v{vG}, v{vG}, v{vG}"); A(f"v_lshlrev_b32 v{vG}, 16, v{vG}")
    A(f"v_sub_f32 v{vOG}, 1.0, v{vG}"); A(f"v_cvt_pk_bf16_f32 v{vOG}, v{vOG}, v{vOG}"); A(f"v_lshlrev_b32 v{vOG}, 16, v{vOG}")
    def checkpoint(step, region, tag):
        lds_wait(L_FLAG + 12, step, tag, a_, b_, sleep=4, cmp="ge")
        A("s_lshl_b32 s9, s10, 7"); A("s_lshl_b32 s14, s4, 14"); A("s_add_u32 s9, s9, s14"); A(f"s_add_u32 s9, s9, {region}")
        A("s_and_b32 s14, s9, 0xffffc7ff"); A(f"v_lshlrev_b32 v{c_}, 11, v1")
        for k in range(4): A(f"v_mov_b32 v{32+k}, s12")
        A("s_mov_b64 exec, 0xff"); A(f"buffer_load_dwordx4 v[40:43], v{c_}, {WSR}, s14 offen sc1")
        A(f"buffer_store_dwordx4 v[32:35], v{vL16}, {WSR}, s9 offen sc1")
        A("s_waitcnt vmcnt(1)"); A("v_cmp_eq_u32 vcc, s12, v41"); A("s_bcnt1_i32_b64 s14, vcc")
        A(f"v_mov_b32 v{a_}, 0"); A(f"v_mov_b32 v{b_}, s14"); A(f"ds_write_b32 v{a_}, v{b_} offset:{L_G + 20}")
        A("s_mov_b64 exec, -1")
    if CK1: checkpoint(CK1, wsb + 0x1E0000, "ck1")
    C("softmax statistics: this workgroup, then the 8 workgroups of this (b, h)")
    lds_wait(L_FLAG + 8, 8, "cnt", a_, b_, sleep=2)
    ST = 32
    def combine(m, l):
        A(f"v_mov_b32 v{a_}, v{m}")
        for ctl in ("quad_perm:[1,0,3,2]", "quad_perm:[2,3,0,1]", "row_half_mirror"): A(f"v_max_f32_dpp v{a_}, v{a_}, v{a_} {ctl} {DPPF}")
        A(f"v_sub_f32 v{b_}, v{m}, v{a_}"); A(f"v_exp_f32 v{b_}, v{b_}"); A(f"v_mul_f32 v{b_}, v{b_}, v{l}")
        for ctl in ("quad_perm:[1,0,3,2]", "quad_perm:[2,3,0,1]", "row_half_mirror"): A(f"v_add_f32_dpp v{b_}, v{b_}, v{b_} {ctl} {DPPF}")
    A(f"v_and_b32 v{c_}, 7, v1"); A(f"v_lshlrev_b32 v{c_}, 3, v{c_}")
    A(f"ds_read_b64 v[{ST+4}:{ST+5}], v{c_} offset:{L_WST}"); A("s_waitcnt lgkmcnt(0)")
    combine(ST + 4, ST + 5)
    A(f"v_mov_b32 v{ST}, v{a_}"); A(f"v_mov_b32 v{ST+1}, s12"); A(f"v_mov_b32 v{ST+2}, v{b_}"); A(f"v_mov_b32 v{ST+3}, s12")
    A("s_lshl_b32 s11, s7, 10"); A(f"s_add_u32 s11, s11, {WS_ST}"); A("s_lshl_b32 s9, s6, 7"); A("s_add_u32 s9, s9, s11")
    if bal:
        A("s_and_b32 s14, s9, 0xffffc7ff"); A(f"v_lshlrev_b32 v{c_}, 11, v1")
        A("s_mov_b64 exec, 0xff"); A(f"buffer_load_dwordx4 v[{ST+8}:{ST+11}], v{c_}, {WSR}, s14 offen sc1")
    A("s_mov_b64 exec, 0xff"); xstore([f"buffer_store_dwordx4 v[{ST}:{ST+3}], v{vL16}, {WSR}, s9 offen"])
    if bal:
        A("s_waitcnt vmcnt(1)"); A(f"v_cmp_eq_u32 vcc, s12, v{ST+9}"); A("s_bcnt1_i32_b64 s14, vcc")
        A(f"v_mov_b32 v{a_}, 0"); A(f"v_mov_b32 v{b_}, s14"); A(f"ds_write_b32 v{a_}, v{b_} offset:{L_G + 20}")
    A("s_mov_b64 exec, -1")
    if NS is not None: lds_wait(L_FLAG + 12, NS, "pg2", a_, b_, sleep=8, cmp="ge")
    HP = 28
    A(f"v_mov_b32 v{HP}, 0"); A(f"v_mov_b32 v{HP+2}, 0")
    A("s_cmp_ge_u32 s10, 112"); A("s_cbranch_scc1 L_sv_hz")
    A(f"v_lshrrev_b32 v{a_}, 3, v1"); A(f"v_lshlrev_b32 v{a_}, 9, v{a_}"); A(f"v_and_b32 v{b_}, 7, v1"); A(f"v_lshl_add_u32 v{a_}, v{b_}, 4, v{a_}")
    A("s_lshr_b32 s8, s10, 2"); A("s_mul_i32 s9, s4, 28"); A("s_add_u32 s8, s8, s9"); A(f"s_mul_i32 s8, s8, {HSTR}")
    A("s_and_b32 s9, s10, 3"); A("s_lshl_b32 s9, s9, 7"); A("s_add_u32 s8, s8, s9"); A(f"s_add_u32 s8, s8, {WS_H}")
    gather("h", [(HP, a_, "s8", 0, -1, "0x00ffffff")], psleep, [82])
    lab("L_sv_hz")
    for k in (0, 2): A(f"v_add_f32_dpp v{HP+k}, v{HP+k}, v{HP+k} row_ror:8 {DPPF}")
    for sw in ("v_permlane16_swap_b32", "v_permlane32_swap_b32"):
        for k in (0, 2): A(f"v_mov_b32 v{HP+k+1}, v{HP+k}")
        for k in (0, 2): A(f"{sw} v{HP+k}, v{HP+k+1}")
        for k in (0, 2): A(f"v_add_f32 v{HP+k}, v{HP+k}, v{HP+k+1}")
    for k in (0, 2): A(f"v_max_f32 v{HP+k}, 0, v{HP+k}")
    A(f"v_cvt_pk_bf16_f32 v{HP}, v{HP}, v{HP}"); A(f"v_cvt_pk_bf16_f32 v{HP+1}, v{HP+2}, v{HP+2}")
    A(f"v_lshlrev_b32 v{a_}, 3, v1")
    A("s_mov_b64 exec, 0xff"); A(f"ds_write_b64 v{a_}, v[{HP}:{HP+1}] offset:{L_H}"); A("s_mov_b64 exec, -1")
    stamp(4)
    A(f"v_lshlrev_b32 v{c_}, 7, v1")
    gather("st", [(ST + 4, c_, "s11", 0, "0xff", 0)], 8, [82])
    combine(ST + 4, ST + 6)
    A(f"v_sub_f32 v{vG+2}, 0, v{a_}"); A(f"v_rcp_f32 v{vG+3}, v{b_}"); A(f"v_mul_f32 v{vG+3}, v{vG+3}, v{vG}")
    if loc: A(f"v_mov_b32 v{vG}, s78")
    A(f"v_mov_b32 v{a_}, 0"); A(f"v_mov_b32 v{b_}, 1")
    A("s_mov_b64 exec, 1")
    A(f"ds_write_b128 v{a_}, v[{vG}:{vG+3}] offset:{L_G}")
    A(f"ds_write_b32 v{a_}, v{b_} offset:{L_FLAG + 4}")
    A("s_mov_b64 exec, -1")
    stamp(5)
    if CK3: checkpoint(CK3, wsb + 0x1E8000, "ck3")
    if direct: A("s_waitcnt lgkmcnt(0)")
    else:
        P0, P1 = 40, 44
        A("s_lshl_b32 s9, s7, 14"); A(f"s_add_u32 s9, s9, {WS_O}"); A("s_lshl_b32 s14, s6, 11"); A("s_add_u32 s9, s9, s14")
        A(f"v_and_b32 v{a_}, 15, v1"); A(f"v_bfe_u32 v{b_}, v1, 4, 1"); A(f"v_lshl_add_u32 v{a_}, v{a_}, 1, v{b_}"); A(f"v_lshlrev_b32 v{a_}, 2, v{a_}")
        A("s_waitcnt lgkmcnt(0)"); A("s_barrier")
        if odelay: A(f"s_sleep {odelay}")
        gather("o", [(P0, vL16, "s9", 0, -1, -1), (P1, vL16, "s9", 1024, -1, -1)], osleep, [82, 84])
        A(f"v_add_f32 v{P0}, v{P0}, v{P1}"); A(f"v_add_f32 v{P0+2}, v{P0+2}, v{P1+2}")
        A(f"v_permlane16_swap_b32 v{P0}, v{P0+2}"); A(f"v_add_f32 v{P0}, v{P0}, v{P0+2}")
        A(f"v_mov_b32 v{P0+2}, v{P0}"); A(f"v_permlane32_swap_b32 v{P0}, v{P0+2}"); A(f"v_add_f32 v{P0}, v{P0}, v{P0+2}")
        A(f"v_cvt_pk_bf16_f32 v{P0}, v{P0}, v{P0}")
        A(f"ds_write_b32 v{a_}, v{P0} offset:{L_OL}")
        A("s_waitcnt lgkmcnt(0)"); A("s_barrier")
        stamp(6)
        if two:
            A("s_cmp_ge_u32 s2, 56"); A("s_cbranch_scc1 L_sv_end")
            A("s_cmp_ge_u32 s2, 28"); A("s_cselect_b32 s14, 28, 0"); A(f"s_mov_b32 s9, {WS_Y2[0]}"); A(f"s_cselect_b32 s9, {WS_Y2[1]}, s9")
            A("s_sub_u32 s14, s2, s14"); A("s_lshl_b32 s14, s14, 11"); A("s_add_u32 s9, s9, s14")
            srd(SO, 34, 1792); A("s_lshl_b32 s8, s2, 5"); A(f"v_lshlrev_b32 v{a_}, 2, v1")
            A("s_barrier")
            gather("fin2", [(P0, vL16, "s9", 0, -1, -1), (P1, vL16, "s9", 1024, -1, -1)], fsleep, [82, 84])
            A(f"v_add_f32 v{P0}, v{P0}, v{P1}"); A(f"v_add_f32 v{P0+2}, v{P0+2}, v{P1+2}")
            red3(P0)
            A(f"v_cvt_pk_bf16_f32 v{P0}, v{P0}, v{P0+2}")
            A("s_mov_b64 exec, 0xff"); A(f"buffer_store_dword v{P0}, v{a_}, s[{SO}:{SO+3}], s8 offen")
            A("s_cmp_lg_u32 s2, 0"); A("s_cbranch_scc1 L_sv_noep")
            A("s_mov_b64 exec, 1"); A(f"v_mov_b32 v{b_}, s12"); A(f"s_mov_b32 s13, {wsb}"); A(f"buffer_store_dword v{b_}, v{a_}, {WSR}, s13 offen")
            if lite:
                A("s_memrealtime s[90:91]"); A("s_waitcnt lgkmcnt(0)"); A("v_mov_b32 v8, s88"); A("v_mov_b32 v9, s90")
                A("s_mov_b32 s92, s36"); A("s_mov_b32 s93, s37"); A("s_mov_b32 s94, 256"); A("s_mov_b32 s95, 0x20000")
                A(f"buffer_store_dwordx2 v[8:9], v{a_}, s[92:95], 0 offen")
            lab("L_sv_noep")
            A("s_mov_b64 exec, -1")
            stamp(11)
            lab("L_sv_end")
    dump_stamps(True)
    lab("L_end")
    A("s_endpgm")

    body = pad_hazards(L)
    out = [HEADER.rstrip("\n"),
           "; One fused launch: 256 workgroups (one per CU) x 9 waves; wave 0 = service wave, waves 1-8 stream K/V (split-K decoding).",
           "; Hand-offs between workgroups go through d_ws as 16-byte {data, tag, data, tag} units; tag = (word 0 of d_ws on entry) + constant.",
           "; They use write-through stores unless a run-time check saw every reader on this XCD (then the shared L2 carries them).",
           f"; @launch grid=(256,1,1) block=(576,1,1) lds={lds or LDS_MIN}",
           '.amdgcn_target "amdgcn-amd-amdhsa--gfx950"', ".text", f".globl {NAME}", ".p2align 8", f".type {NAME},@function", f"{NAME}:"]
    out += body
    out += ['.section .rodata,"a"', ".p2align 6", f".amdhsa_kernel {NAME}",
            "  .amdhsa_next_free_vgpr 168", "  .amdhsa_next_free_sgpr 96", "  .amdhsa_accum_offset 168",
            "  .amdhsa_group_segment_fixed_size 0", "  .amdhsa_kernarg_size 96", "  .amdhsa_user_sgpr_count 2",
            "  .amdhsa_user_sgpr_kernarg_segment_ptr 1", "  .amdhsa_system_sgpr_workgroup_id_x 1", ".end_amdhsa_kernel"]
    return "\n".join(out) + "\n"

def masks(A, M, t0, t1):
    A(f"v_and_b32 v{t0}, 1, v1"); A(f"v_lshlrev_b32 v{t0}, 4, v{t0}"); A(f"v_mov_b32 v{t1}, 0xffff"); A(f"v_lshlrev_b32 v{t1}, v{t0}, v{t1}")
    A(f"v_bfe_u32 v{t0}, v1, 1, 2")
    for r in range(4): A(f"v_cmp_eq_u32 s[{80+2*r}:{81+2*r}], {r}, v{t0}")
    for r in range(4): A(f"v_cndmask_b32 v{M[r]}, 0, v{t1}, s[{80+2*r}:{81+2*r}]")

def mask_prime(A, M, t0, t1):
    A(f"v_lshrrev_b32 v{t0}, 1, v1"); A(f"v_xor_b32 v{t0}, v{t0}, v1"); A(f"v_bfe_u32 v{t0}, v{t0}, 3, 1")
    A(f"v_add_u32 v{t0}, -1, v{t0}")
    for r in range(4): A(f"v_and_b32 v{M[r]}, v{M[r]}, v{t0}")

def red2_lane(A, d, t0):
    A(f"v_and_b32 v{t0}, 15, v1"); A(f"v_lshlrev_b32 v{d}, 5, v{t0}")
    A(f"v_lshrrev_b32 v{t0}, 5, v1"); A(f"v_lshl_add_u32 v{d}, v{t0}, 9, v{d}")
    A(f"v_bfe_u32 v{t0}, v1, 4, 1"); A(f"v_lshl_add_u32 v{d}, v{t0}, 4, v{d}")

def wave_reduce(A, op, v, t):
    for ctl in ("quad_perm:[1,0,3,2]", "quad_perm:[2,3,0,1]", "row_half_mirror", "row_mirror"):
        A(f"v_{op}_f32_dpp v{v}, v{v}, v{v} {ctl} {DPPF}")
    for sw in ("v_permlane16_swap_b32", "v_permlane32_swap_b32"):
        A(f"v_mov_b32 v{t}, v{v}"); A(f"{sw} v{v}, v{t}"); A(f"v_{op}_f32 v{v}, v{v}, v{t}")

if __name__ == "__main__":
    kw = eval("dict(%s)" % (sys.argv[2] if len(sys.argv) > 2 else ""))
    open(sys.argv[1], "w").write(gen(**kw))
```

```python
import sys
sys.path.insert(0, "dev")
from asmlib import pad_hazards

NAME = "gated_mix__mha_block_cached__dense_activation_relu__decode_kernel"
HEADER = open("gated_mix__mha_block_cached__dense_activation_relu__decode.s.ref").read().split("; Override launch")[0]

WS_ST = 0x1F0000
WS_H = 0x8000
WS_Q = 0x40000
WS_O = 0x80000
WS_Y = 0x100000
WS_DBG = 0x400000
WS_SIZE = 268435456
L_W = 0x0000
L_W1 = 0x4000
L_RED1 = 0x0000
L_X = 0x6000
L_Q = 0x6800
L_H = 0x6A00
L_G = 0x6A40
L_FLAG = 0x6A80
L_WST = 0x6AC0
L_FIN = 0x6C00
L_OL = 0x6B00
L_PW = 0x7000
L_RED2 = 0x8000
LDS_MIN = L_RED2 + 8 * 2048
TAGC = 0x9E3779B9
SPIN_MAX = 1 << 19
SPIN_LDS = 1 << 22
DPPF = "row_mask:0xf bank_mask:0xf"
CEXP = "0x3db8aa3b"

def gen(LIM=2, LIMV=None, NQ=26, CQ=3, CP=3, R=33, NF=62, dbg=False, hdbg=False, diag=None,
        psleep=2, osleep=0, fsleep=0, svc=9, kflags="nt", wflags="nt", lds=None, LE=None, NG=16, NS=46, rot=None, early=False, dbase=10000, pp=1, pgap=8, wsb=0, diag2=None, xmap=0, spread=0, LP=None, kmap=0, ofl='', pat='tp w0 w1 w2 b0 b1 b2 s0 s1 s2', touch='', codepf=False, late_w=False, odelay=0, lite=False, endop=None, lst='sc1', bal=None, CK1=None, CK3=None, loc=True, kfirst=False, lretry=3, anlate=True, two=False, yb=False, prefin=False, swz=0, lightfin=False, direct=True, wat=31, svl=False, q2=False):
    if LIMV is None: LIMV = LIM
    WS_ST, WS_H, WS_Q, WS_O, WS_Y, WS_A = (x + wsb for x in (0x1F0000, 0x8000, 0x40000, 0x80000, 0x100000, 0x1F8000))
    HSTR = 4096
    if two: WS_H = wsb + 0x1000; HSTR = 3584
    WS_Y2 = (wsb + 0x32000, wsb + 0x1E0000)
    L = []
    A = lambda s: L.append("  " + s)
    lab = lambda s: L.append(s + ":")
    C = lambda s: L.append("  ; " + s)
    def srd(d, p, nbytes):
        A(f"s_mov_b32 s{d}, s{p}"); A(f"s_mov_b32 s{d+1}, s{p+1}"); A(f"s_mov_b32 s{d+2}, {nbytes}"); A(f"s_mov_b32 s{d+3}, 0x20000")
    SK, SV, SWO, SWS, SWQ, SW1, SW2, SX, SG, SO = 40, 44, 48, 52, 56, 60, 64, 68, 72, 76
    WSR = f"s[{SWS}:{SWS+3}]"
    if diag is not None: hdbg = True
    if diag2 is not None: dbg = True
    if hdbg: dbg = True
    def stamp(idx):
        if dbg:
            A("s_memrealtime s[90:91]"); A("s_waitcnt lgkmcnt(0)"); A(f"v_writelane_b32 v167, s90, {idx}")
    def dump_stamps(service=False):
        if hdbg:
            A("s_mov_b32 s92, s36"); A("s_mov_b32 s93, s37"); A("s_mov_b32 s94, 256"); A("s_mov_b32 s95, 0x20000")
            A("v_not_b32 v165, v167"); A("v_cmp_eq_u32 vcc, 0, v1"); A("v_cndmask_b32 v167, v167, v165, vcc")
            A("v_lshlrev_b32 v166, 2, v1")
            if service: A("v_add_u32 v166, 64, v166"); A("s_mov_b64 exec, 0x3e")
            else: A("s_mov_b64 exec, 0xffff")
            A("buffer_atomic_umax v167, v166, s[92:95], 0 offen"); A("s_mov_b64 exec, -1")
        elif dbg:
            if diag2 is not None and not service:
                tg = "s" if service else "m"
                A("s_add_u32 s84, s88, 4500"); lab(f"L_dd_{tg}"); A("s_sleep 8")
                A("s_memrealtime s[90:91]"); A("s_waitcnt lgkmcnt(0)"); A("s_sub_u32 s85, s90, s84"); A("s_cmp_lt_i32 s85, 0"); A(f"s_cbranch_scc1 L_dd_{tg}")
            A("s_mul_i32 s92, s2, 9"); A("s_add_u32 s92, s92, s93"); A("s_lshl_b32 s92, s92, 8"); A(f"s_add_u32 s92, s92, {WS_DBG}")
            A("v_lshlrev_b32 v166, 2, v1"); A(f"buffer_store_dword v167, v166, {WSR}, s92 offen sc1")
    if dbg: R = min(R, 32)
    def spin_tail(label, sleep):
        if sleep: A(f"s_sleep {sleep}")
        A("s_sub_u32 s80, s80, 1"); A("s_cmp_lg_u32 s80, 0"); A(f"s_cbranch_scc1 {label}")
    def lds_wait(off, val, tag, ta, tb, sleep=1, cmp="eq"):
        A(f"v_mov_b32 v{ta}, 0"); A(f"s_mov_b32 s80, {SPIN_LDS}")
        lab(f"L_wait_{tag}")
        A(f"ds_read_b32 v{tb}, v{ta} offset:{off}"); A("s_waitcnt lgkmcnt(0)"); A(f"v_readfirstlane_b32 s81, v{tb}")
        A(f"s_cmp_{cmp}_u32 s81, {val}"); A(f"s_cbranch_scc1 L_got_{tag}")
        spin_tail(f"L_wait_{tag}", sleep)
        lab(f"L_got_{tag}")
    def gather(tag, items, sleep, pool, pre=False):
        if svc < {"q": 3, "h": 4, "st": 5}.get(tag, 0):
            A("s_waitcnt vmcnt(0)"); return
        assert len(pool) >= len(items)
        for (reg, va, so, imm, lo, hi), ms in zip(items, pool): A(f"s_mov_b32 s{ms}, {lo}"); A(f"s_mov_b32 s{ms+1}, {hi}")
        A(f"s_mov_b32 s80, {SPIN_MAX}")
        if pre: A(f"s_branch L_g_{tag}_chk")
        lab(f"L_g_{tag}")
        for k, ((reg, va, so, imm, lo, hi), ms) in enumerate(zip(items, pool)):
            A(f"s_mov_b64 exec, s[{ms}:{ms+1}]")
            if len(items) > 1: A(f"s_cbranch_execz L_g_{tag}_s{k}")
            A(f"buffer_load_dwordx4 v[{reg}:{reg+3}], v{va}, {WSR}, {so} offen offset:{imm} sc1")
            if len(items) > 1: lab(f"L_g_{tag}_s{k}")
        A("s_waitcnt vmcnt(0)")
        if pre: lab(f"L_g_{tag}_chk")
        for k, ((reg, va, so, imm, lo, hi), ms) in enumerate(zip(items, pool)):
            if len(items) > 1: A(f"s_mov_b64 exec, s[{ms}:{ms+1}]")
            A(f"v_cmp_ne_u32 vcc, s12, v{reg+1}"); A(f"v_cmp_ne_u32 s[{ms}:{ms+1}], s12, v{reg+3}")
            A(f"s_or_b64 s[{ms}:{ms+1}], s[{ms}:{ms+1}], vcc")
            if k == 0: A(f"s_mov_b64 s[14:15], s[{ms}:{ms+1}]")
            else: A(f"s_or_b64 s[14:15], s[14:15], s[{ms}:{ms+1}]")
        A("s_cmp_eq_u64 s[14:15], 0"); A(f"s_cbranch_scc1 L_g_{tag}_ok")
        spin_tail(f"L_g_{tag}", sleep)
        lab(f"L_g_{tag}_ok")
        A("s_mov_b64 exec, -1")

    nst = [0]
    def xstore(stores):
        if not loc:
            for st_ in stores: A(st_ + " " + lst)
            return
        nst[0] += 1
        A("s_cmp_eq_u32 s78, 1"); A(f"s_cbranch_scc1 L_xl{nst[0]}")
        for st_ in stores: A(st_ + " sc1")
        A(f"s_branch L_xd{nst[0]}"); lab(f"L_xl{nst[0]}")
        for st_ in stores: A(st_)
        lab(f"L_xd{nst[0]}")
    def poll_issue(sets, k, items):
        for j, (va, so, imm) in enumerate(items):
            r = sets[k] + 4 * j
            A(f"buffer_load_dwordx4 v[{r}:{r+3}], v{va}, {WSR}, {so} offen offset:{imm} sc1")
    def poll_loop(tag, sets, items, first):
        n = len(sets); ni = len(items)
        for k in range(1, n):
            if pgap: A(f"s_sleep {pgap}")
            poll_issue(sets, k, items)
        A(f"s_mov_b32 s80, {SPIN_MAX}")
        lab(f"L_p_{tag}")
        for k in range(n):
            A(f"s_waitcnt vmcnt({(n - 1) * ni})")
            for j in range(ni):
                r = sets[k] + 4 * j
                A(f"v_cmp_ne_u32 {'vcc' if j == 0 else 's[84:85]'}, s12, v{r+1}"); A(f"v_cmp_ne_u32 s[{82 + 4 * j}:{83 + 4 * j}], s12, v{r+3}")
            if ni == 2: A("s_or_b64 vcc, vcc, s[84:85]"); A("s_or_b64 vcc, vcc, s[86:87]")
            A("s_or_b64 vcc, vcc, s[82:83]")
            A(f"s_cbranch_scc0 L_p_{tag}_ok{k}")
            poll_issue(sets, k, items)
        A("s_sub_u32 s80, s80, 1"); A("s_cmp_lg_u32 s80, 0"); A(f"s_cbranch_scc1 L_p_{tag}")
        A("s_waitcnt vmcnt(0)")
        for k in range(n):
            lab(f"L_p_{tag}_ok{k}")
            first(sets[k])
            if k < n - 1: A(f"s_branch L_p_{tag}_done")
        lab(f"L_p_{tag}_done")
        A("s_nop 1")

    if (dbg and early) or lite: A("s_memrealtime s[88:89]")
    A("s_cmp_ge_u32 s2, 256"); A("s_cbranch_scc1 L_end")
    if kfirst: A(f"s_load_dwordx2 s[{SK}:{SK+1}], s[0:1], 8")
    else:
        A("s_load_dwordx16 s[16:31], s[0:1], 0")
        A("s_load_dwordx8 s[32:39], s[0:1], 64")
    A("v_lshrrev_b32 v2, 6, v0"); A("v_and_b32 v1, 63, v0")
    A("v_readfirstlane_b32 s3, v2")
    C("workgroup id -> s4 batch, s5 head (2*(id&7) + bit), s6 key split, s7 = 16b+h, s10 = 8h+s")
    A("s_and_b32 s14, s2, 7"); A("s_lshr_b32 s15, s2, 3")
    if xmap: A(f"s_xor_b32 s14, s14, {xmap}")
    if spread:
        mk = (1 << spread) - 1
        sh = 3 - spread
        A(f"s_lshr_b32 s4, s14, {sh}"); A(f"s_and_b32 s5, s15, {mk}"); A("s_xor_b32 s6, s4, s5")
        A("s_xor_b32 s15, s15, s6"); A(f"s_lshl_b32 s6, s6, {sh}"); A("s_xor_b32 s14, s14, s6")
    A("s_lshr_b32 s4, s15, 4")
    A("s_bfe_u32 s5, s15, 0x10003"); A("s_lshl_b32 s14, s14, 1"); A("s_add_u32 s5, s5, s14")
    A("s_and_b32 s6, s15, 7")
    A("s_lshl_b32 s7, s4, 4"); A("s_add_u32 s7, s7, s5")
    A("s_lshl_b32 s10, s5, 3"); A("s_add_u32 s10, s10, s6")
    if dbg:
        A("s_mov_b32 s93, s3"); A("v_mov_b32 v167, 0")
        if not early: A("s_memrealtime s[88:89]")
    A(f"s_cmp_eq_u32 s3, {8 if svl else 0}"); A("s_cbranch_scc1 L_service")
    if dbg and svl: A("s_add_u32 s93, s3, 1")

    C("==== streaming waves (64 keys each): K tiles, QK^T on MFMA, local softmax, V tiles, PV on MFMA ====")
    if not svl: A("s_sub_u32 s3, s3, 1")
    vK, vV, vWo, vW2, t0, t1 = 2, 3, 4, 5, 6, 7
    M = [8, 9, 10, 11]; Q = [12, 16]; DB = [20, 24]; AB = [20, 24]; SG_ = [28, 29, 30, 31]; ACC = 32
    vMW = 12; vE = [13, 14, 15, 16]; vLW = 17
    RING = 36
    A(f"v_bfe_u32 v{t0}, v1, 2, 2"); A(f"v_lshlrev_b32 v{vK}, 9, v{t0}")
    A(f"v_lshrrev_b32 v{t0}, 4, v1"); A(f"v_lshl_add_u32 v{vK}, v{t0}, 6, v{vK}")
    A(f"v_and_b32 v{t0}, 3, v1"); A(f"v_lshl_add_u32 v{vK}, v{t0}, 4, v{vK}")
    PB = {t: 11 + k for k, t in enumerate(pat.split())}
    A("s_lshl_b32 s8, s7, 21")
    for reg, nm in (("s3", "w"), ("s6", "s")):
        k = 0
        while k < 3:
            e = k
            while e < 2 and PB[f"{nm}{e+1}"] == PB[f"{nm}{e}"] + 1: e += 1
            A(f"s_bfe_u32 s14, {reg}, {hex(((e - k + 1) << 16) + k)}"); A(f"s_lshl_b32 s14, s14, {PB[f'{nm}{k}']}"); A("s_add_u32 s8, s8, s14")
            k = e + 1
    def toff(beta, tp):
        o = (tp << PB["tp"]) | ((beta & 1) << PB["b0"]) | (((beta >> 1) & 1) << PB["b1"]) | ((beta >> 2) << PB["b2"])
        return o & ~0xfff, o & 0xfff
    A(f"v_add_u32 v{vK}, s8, v{vK}")
    if kfirst:
        A(f"s_mov_b32 s{SK+2}, 0x4000000"); A(f"s_mov_b32 s{SK+3}, 0x20000"); A("s_waitcnt lgkmcnt(0)")
    else:
        A("s_waitcnt lgkmcnt(0)")
        srd(SK, 18, 0x4000000)

    loads = [("K", beta, tp, jh) for beta in range(8) for tp in range(2) for jh in range(2)]
    loads += [("V", beta, tp, kp) for beta in range(8) for tp in range(2) for kp in range(2)]
    loads += [("F", cb) for cb in range(2)] + [("W", r, cb) for r in range(2) for cb in range(2)]
    free = list(range(R)); slot = {}
    nissued = [0]; landed = [-1]; cur_soff = [None]
    if rot:
        A(f"s_mul_i32 s11, s2, {rot}"); A("s_lshr_b32 s14, s2, 3"); A("s_add_u32 s11, s11, s14"); A("s_and_b32 s11, s11, 7"); A("s_lshl_b32 s11, s11, 15")
    def soff(val):
        if val == 0 and not rot: return "0"
        if cur_soff[0] != val:
            if rot: A(f"s_add_u32 s13, s11, {val}"); A("s_and_b32 s13, s13, 0x3ffff")
            else: A(f"s_mov_b32 s13, {val}")
            cur_soff[0] = val
        return "s13"
    def wait_landed(n):
        if n <= landed[0]: return
        A(f"s_waitcnt vmcnt({nissued[0] - 1 - n})"); landed[0] = n
    def issue(n):
        ld = loads[n]; sl = free.pop(0); slot[n] = sl; r = RING + 4 * sl
        if ld[0] == "K":
            A(f"buffer_load_dwordx4 v[{r}:{r+3}], v{vK}, s[{SK}:{SK+3}], {soff(toff(ld[1], ld[2])[0])} offen offset:{toff(ld[1], ld[2])[1] + ld[3] * 256} {kflags}")
        elif ld[0] == "V":
            A(f"buffer_load_dwordx4 v[{r}:{r+3}], v{vV}, s[{SV}:{SV+3}], {soff(toff(ld[1], ld[2])[0])} offen offset:{toff(ld[1], ld[2])[1] + ld[3] * 1024} {kflags}")
        elif ld[0] == "W":
            A(f"buffer_load_dwordx4 v[{r}:{r+3}], v{vWo}, s[{SWO}:{SWO+3}], 0 offen offset:{ld[1] * 896 + ld[2] * 512} {wflags}")
        else:
            A(f"buffer_load_dwordx4 v[{r}:{r+3}], v{vW2}, s[{SW2}:{SW2+3}], 0 offen offset:{ld[1] * 512} {wflags}")
        nissued[0] += 1
    sreg = lambda n: RING + 4 * slot[n]
    qk_next = [0]; qk_post = [None]; pv_next = [0]; pslot = {}
    def qk_dpp(tau):
        beta, tp = tau >> 1, tau & 1; G = beta >> 1; t = 2 * (beta & 1) + tp; d = DB[tau & 1]
        A(f"v_mov_b32_dpp v{t0}, v{d} quad_perm:[0,0,0,0] {DPPF}")
        A(f"v_add_f32_dpp v{t0}, v{d+1}, v{t0} quad_perm:[1,1,1,1] {DPPF}")
        A(f"v_add_f32_dpp v{t0}, v{d+2}, v{t0} quad_perm:[2,2,2,2] {DPPF}")
        A(f"v_add_f32_dpp v{SG_[G]}, v{d+3}, v{t0} quad_perm:[3,3,3,3] row_mask:0xf bank_mask:{hex(1 << t)}")
    def qk_tile(tau):
        d = DB[tau & 1]; a0 = sreg(2 * tau); a1 = sreg(2 * tau + 1)
        A(f"v_mfma_f32_16x16x32_bf16 v[{d}:{d+3}], v[{a0}:{a0+3}], v[{Q[0]}:{Q[0]+3}], 0")
        A(f"v_mfma_f32_16x16x32_bf16 v[{d}:{d+3}], v[{a1}:{a1+3}], v[{Q[1]}:{Q[1]+3}], v[{d}:{d+3}]")
        free.extend([slot[2 * tau], slot[2 * tau + 1]])
        if qk_post[0] is not None: qk_dpp(qk_post[0])
        qk_post[0] = tau
    def red_hi(op, v, t):
        for ctl in ("row_ror:4", "row_ror:8"): A(f"v_{op}_f32_dpp v{v}, v{v}, v{v} {ctl} {DPPF}")
        for sw in ("v_permlane16_swap_b32", "v_permlane32_swap_b32"):
            A(f"v_mov_b32 v{t}, v{v}"); A(f"{sw} v{v}, v{t}"); A(f"v_{op}_f32 v{v}, v{v}, v{t}")
    def sm_a():
        C("scores rounded to bf16 like the reference; true max over this wave's keys")
        qk_dpp(qk_post[0]); qk_post[0] = None
        S = SG_
        A(f"v_cvt_pk_bf16_f32 v{t0}, v{S[0]}, v{S[1]}"); A(f"v_cvt_pk_bf16_f32 v{t1}, v{S[2]}, v{S[3]}")
        A(f"v_lshlrev_b32 v{S[0]}, 16, v{t0}"); A(f"v_and_b32 v{S[1]}, 0xffff0000, v{t0}")
        A(f"v_lshlrev_b32 v{S[2]}, 16, v{t1}"); A(f"v_and_b32 v{S[3]}, 0xffff0000, v{t1}")
        A(f"v_max3_f32 v{vMW}, v{S[0]}, v{S[1]}, v{S[2]}"); A(f"v_max_f32 v{vMW}, v{vMW}, v{S[3]}")
        red_hi("max", vMW, t0)
    def sm_b():
        S = SG_
        A(f"s_mov_b32 s81, {CEXP}"); A(f"v_mul_f32 v{vMW}, s81, v{vMW}")
        for k in range(4): A(f"v_fma_f32 v{vE[k]}, v{S[k]}, s81, -v{vMW}")
        for k in range(4): A(f"v_exp_f32 v{vE[k]}, v{vE[k]}")
        A("s_lshl_b32 s14, s3, 8"); A(f"v_lshl_add_u32 v{t1}, v1, 2, s14")
        for k in range(4): A(f"v_cvt_pk_bf16_f32 v{S[k]}, v{vE[k]}, v{vE[k]}")
        A("s_mov_b32 exec_lo, 0x11111111"); A("s_mov_b32 exec_hi, 0x11111111")
        A(f"ds_write_b128 v{t1}, v[{S[0]}:{S[3]}] offset:{L_PW}")
        A("s_mov_b64 exec, -1")
        A(f"v_lshrrev_b32 v{t1}, 5, v1"); A(f"v_lshl_add_u32 v{t1}, v{t1}, 6, s14")
        for t in range(4):
            for kp in range(2):
                sl = free.pop(0); pslot[(t, kp)] = sl; r = RING + 4 * sl
                A(f"ds_read_b128 v[{r}:{r+3}], v{t1} offset:{L_PW + (8 * kp + t) * 16}")
        A(f"v_add_f32 v{vLW}, v{vE[0]}, v{vE[1]}"); A(f"v_add_f32 v{t0}, v{vE[2]}, v{vE[3]}"); A(f"v_add_f32 v{vLW}, v{vLW}, v{t0}")
    def sm_c():
        red_hi("add", vLW, t0)
        A(f"v_mov_b32 v{vMW+1}, v{vLW}")
        A("s_lshl_b32 s14, s3, 3"); A(f"v_mov_b32 v{t0}, s14"); A(f"v_mov_b32 v{t1}, 1"); A(f"v_mov_b32 v{vE[2]}, 0")
        A("s_mov_b64 exec, 1")
        A(f"ds_write_b64 v{t0}, v[{vMW}:{vMW+1}] offset:{L_WST}")
        A(f"ds_add_u32 v{vE[2]}, v{t1} offset:{L_FLAG + 8}")
        A("s_mov_b64 exec, -1")
        A("s_waitcnt lgkmcnt(0)")
        stamp(3)
    def pv_tile(m):
        beta, tp, kp = m >> 2, (m >> 1) & 1, m & 1; G = beta >> 1; t = 2 * (beta & 1) + tp
        a = AB[m & 1]; p = RING + 4 * pslot[(t, kp)] + G; bv = sreg(32 + m)
        for r in range(4): A(f"v_and_b32 v{a+r}, v{p}, v{M[r]}")
        c = "0" if m == 0 else f"v[{ACC}:{ACC+3}]"
        A(f"v_mfma_f32_16x16x32_bf16 v[{ACC}:{ACC+3}], v[{a}:{a+3}], v[{bv}:{bv+3}], {c}")
        free.append(slot[32 + m])
    vFS = 18; vHP = 19
    GG = 14
    def fetch_stats():
        stamp(4); lds_wait(L_FLAG + 4, 1, "st", t0, t1); stamp(5)
        A(f"ds_read_b128 v[14:17], v{t0} offset:{L_G}")
        A(f"v_lshrrev_b32 v{t1}, 5, v1"); A("s_lshl_b32 s14, s3, 3"); A(f"v_lshl_add_u32 v{t1}, v{t1}, 2, s14")
        A(f"ds_read_b32 v{vHP}, v{t1} offset:{L_H}")
        A("s_waitcnt lgkmcnt(0)")
        if loc: A("v_readfirstlane_b32 s78, v14")
        A(f"v_add_f32 v{vFS}, v{vMW}, v16"); A(f"v_exp_f32 v{vFS}, v{vFS}"); A(f"v_mul_f32 v{vFS}, v{vFS}, v17")

    N = len(loads); chunks = [sm_a, sm_b, sm_c]; sm_done = False
    for n in range(64 if (late_w or wat is not None) else N):
        if n < 64:
            lim = LIM if n < 32 else LIMV
            if LP: lim = LP[n % len(LP)]
            if LE and n >= LE[0]: lim = LE[1]
            if bal and n >= bal["at"][0]:
                if n in bal["at"]:
                    A(f"v_mov_b32 v{t0}, 0"); A(f"ds_read_b32 v{t1}, v{t0} offset:{L_G + 20}"); A("s_waitcnt lgkmcnt(0)"); A(f"v_readfirstlane_b32 s9, v{t1}")
                wl = bal["wl"]
                for k_, (w_, th_) in enumerate(zip(wl[:-1], bal["th"])):
                    w_ = w_[n % len(w_)] if isinstance(w_, tuple) else w_
                    A(f"s_cmp_ge_u32 s9, {th_}"); A(f"s_cbranch_scc1 L_bal{n}_{k_}"); A(f"s_waitcnt vmcnt({w_})"); lab(f"L_bal{n}_{k_}")
                wait_landed(n - wl[-1] - 1)
            elif n > max(lim, LIM): wait_landed(n - lim - 1)
        if n in (LIM + 1, 8, 16, 48): stamp({LIM + 1: 12, 8: 13, 16: 14, 48: 15}[n])
        if n == NQ:
            stamp(1)
            lds_wait(L_FLAG, 1, "q", t0, t1)
            A(f"v_lshrrev_b32 v{t0}, 4, v1"); A(f"v_and_b32 v{t1}, 3, v1"); A(f"v_lshl_add_u32 v{t0}, v{t0}, 2, v{t1}"); A(f"v_lshlrev_b32 v{t0}, 4, v{t0}")
            A(f"ds_read_b128 v[{Q[0]}:{Q[0]+3}], v{t0} offset:{L_Q}")
            A(f"ds_read_b128 v[{Q[1]}:{Q[1]+3}], v{t0} offset:{L_Q + 256}")
            A(f"v_mov_b32 v{t0}, 0"); A(f"ds_read_b32 v{t1}, v{t0} offset:{L_G + 16}")
            A("s_waitcnt lgkmcnt(0)"); A(f"v_readfirstlane_b32 s12, v{t1}")
            stamp(2)
        assert free, f"no free slot at load {n}"
        issue(n)
        if n == LIM:
            if kfirst:
                A("s_load_dwordx16 s[16:31], s[0:1], 0"); A("s_load_dwordx8 s[32:39], s[0:1], 64"); A("s_waitcnt lgkmcnt(0)")
            srd(SV, 20, 0x4000000); srd(SWO, 24, 3670016); srd(SW2, 30, 1605632); srd(SWS, 38, WS_SIZE)
            A("s_barrier")
            A(f"v_lshl_add_u32 v{vV}, v1, 4, s8")
            A(f"v_and_b32 v{t0}, 31, v1"); A(f"v_lshlrev_b32 v{t0}, 4, v{t0}"); A(f"v_lshrrev_b32 v{t1}, 5, v1")
            A(f"v_mul_u32_u24 v{vWo}, 1792, v{t1}"); A(f"v_add_u32 v{vWo}, v{vWo}, v{t0}")
            A(f"v_mul_u32_u24 v{vW2}, 896, v{t1}"); A(f"v_add_u32 v{vW2}, v{vW2}, v{t0}")
            A("s_lshl_b32 s14, s10, 5"); A("s_lshl_b32 s15, s3, 2"); A("s_add_u32 s14, s14, s15"); A("s_mul_i32 s14, s14, 896")
            A(f"v_add_u32 v{vWo}, s14, v{vWo}")
            A("s_lshl_b32 s14, s10, 4"); A("s_lshl_b32 s15, s3, 1"); A("s_add_u32 s14, s14, s15"); A("s_mul_i32 s14, s14, 896")
            A(f"v_add_u32 v{vW2}, s14, v{vW2}")
            masks(A, M, t0, t1); mask_prime(A, M, t0, t1)
            if dbg: A("s_waitcnt lgkmcnt(0)"); A("v_writelane_b32 v167, s88, 0")
            if diag2 is not None:
                A("s_getreg_b32 s14, hwreg(HW_REG_XCC_ID)"); A("s_and_b32 s14, s14, 15"); A("s_and_b32 s15, s2, 7"); A("s_cmp_eq_u32 s14, s15")
                A("s_cselect_b32 s14, 1000, 1"); A("s_add_u32 s14, s14, s88"); A("v_writelane_b32 v167, s14, 16")
        if n >= NQ and not sm_done:
            c = 0
            while qk_next[0] < 16 and c < CQ and 2 * qk_next[0] + 1 <= landed[0]:
                qk_tile(qk_next[0]); qk_next[0] += 1; c += 1
            if qk_next[0] == 16:
                chunks.pop(0)()
                sm_done = not chunks
        elif sm_done:
            c = 0
            while pv_next[0] < 32 and c < CP and 32 + pv_next[0] <= landed[0]:
                pv_tile(pv_next[0]); pv_next[0] += 1; c += 1
        if n == NF: fetch_stats()
        if n in (NG, NS, CK1, CK3):
            A(f"v_mov_b32 v{t0}, 0"); A(f"v_mov_b32 v{t1}, {n}")
            A("s_mov_b64 exec, 1"); A(f"ds_max_u32 v{t0}, v{t1} offset:{L_FLAG + 12}"); A("s_mov_b64 exec, -1")
    assert sm_done
    vRw, vO, vY, vR1 = vK, vV, 13, 16
    red2_lane(A, vRw, t0)
    A("s_lshl_b32 s14, s3, 10"); A(f"v_add_u32 v{vR1}, s14, v{vRw}")
    A("s_lshl_b32 s14, s3, 11"); A(f"s_add_u32 s14, s14, {L_RED2}"); A(f"v_add_u32 v{vRw}, s14, v{vRw}")
    A("s_lshl_b32 s14, s3, 6"); A(f"v_add_u32 v{vY}, s14, v1")
    A(f"v_lshrrev_b32 v{t0}, 4, v{vY}"); A(f"v_lshlrev_b32 v{vO}, 11, v{t0}"); A(f"v_and_b32 v{t0}, 15, v1"); A(f"v_lshl_add_u32 v{vO}, v{t0}, 4, v{vO}")
    if swz:
        A(f"v_lshrrev_b32 v{t0}, 4, v{vY}"); A(f"v_add_u32 v{t0}, s6, v{t0}"); A(f"v_and_b32 v{t0}, 7, v{t0}"); A(f"v_lshl_add_u32 v{vO}, v{t0}, 8, v{vO}")
        A("s_lshl_b32 s11, s7, 14"); A(f"s_add_u32 s11, s11, {WS_O}")
    else:
        A("s_lshl_b32 s9, s7, 14"); A(f"s_add_u32 s9, s9, {WS_O}"); A("s_lshl_b32 s14, s6, 8"); A("s_add_u32 s11, s9, s14")
    while pv_next[0] < 32:
        wait_landed(32 + pv_next[0])
        if wat is not None and pv_next[0] == wat:
            for n in range(64, N): issue(n)
        pv_tile(pv_next[0]); pv_next[0] += 1
    C("==== tail: scale by exp(m_wave - M) * g / L, reduce over waves, hand the o partial to the 8 workgroups of this (b, h) ====")
    lab("L_tail")
    if late_w == 3:
        for n in range(64, N): issue(n)
    stamp(6)
    A(f"v_lshlrev_b32 v{t0}, 3, v{vY}")
    for k in range(4): A(f"v_mul_f32 v{ACC+k}, v{vFS}, v{ACC+k}")
    A(f"ds_write_b128 v{vR1}, v[{ACC}:{ACC+3}] offset:{L_RED1}")
    A("s_waitcnt lgkmcnt(0)"); A("s_barrier")
    if late_w in (1, 2):
        free[:] = sorted(free + list(pslot.values())); pslot.clear()
        held = free[-6:]; del free[-6:]
    fr = [RING + 4 * s_ for s_ in sorted(free + list(pslot.values()))]
    run = [r for r in fr if all(r + 4 * k in fr for k in range(4))][0]
    rest = [r for r in fr if not run <= r < run + 16]
    FS = []
    for _ in range(pp):
        r = [r for r in rest if r + 4 in rest][0]; FS.append(r); rest.remove(r); rest.remove(r + 4)
    PS = rest[:pp]; assert len(PS) == pp
    Y = run; U = 20
    if late_w == 2:
        free[:] = held
        for n in range(64, N): issue(n)
    A("s_cmp_ge_u32 s3, 2"); A("s_cbranch_scc1 L_odone")
    for k in range(8): A(f"ds_read_b64 v[{Y+2*k}:{Y+2*k+1}], v{t0} offset:{L_RED1 + 1024 * k}")
    A(f"v_mov_b32 v{U+1}, s12"); A(f"v_mov_b32 v{U+3}, s12")
    A("s_waitcnt lgkmcnt(0)")
    for st in (1, 2):
        for k in range(0, 8, 2 * st):
            for c_ in range(2): A(f"v_add_f32 v{Y+2*k+c_}, v{Y+2*k+c_}, v{Y+2*(k+st)+c_}")
    A(f"v_add_f32 v{U}, v{Y}, v{Y+8}"); A(f"v_add_f32 v{U+2}, v{Y+1}, v{Y+9}")
    xstore([f"buffer_store_dwordx4 v[{U}:{U+3}], v{vO}, {WSR}, s11 offen"])
    lab("L_odone")
    if late_w == 1:
        free[:] = held
        for n in range(64, N): issue(n)
    stamp(7)
    OG = 28; DA, DBb = Y, Y + 4
    C("ffn rows (relu(h) x w2) scaled by 1-g while the o slices arrive; then o slice x wo rows on top")
    for q in range(4): A(f"v_and_b32 v{ACC+q}, v{vHP}, v{M[q]}")
    A(f"v_add_u32 v{t0}, {L_RED2}, v{t0}")
    A(f"v_lshrrev_b32 v{t1}, 5, v1"); A("s_lshl_b32 s14, s3, 4"); A(f"v_lshl_add_u32 v{t1}, v{t1}, 3, s14")
    if two:
        A("s_lshl_b32 s9, s4, 3"); A("s_add_u32 s9, s9, s6"); A("s_lshl_b32 s9, s9, 2"); A("s_add_u32 s9, s9, s3"); A("s_sub_u32 s9, s9, 4")
        A("s_cmp_ge_u32 s9, 28"); A("s_cselect_b32 s14, 28, 0"); A("s_cselect_b32 s15, 16, 0")
        A(f"s_mov_b32 s13, {WS_Y2[0]}"); A(f"s_cselect_b32 s13, {WS_Y2[1]}, s13")
        A("s_sub_u32 s14, s9, s14"); A("s_add_u32 s15, s15, s5"); A("s_mul_i32 s11, s15, 28672"); A("s_lshl_b32 s15, s14, 10")
        A("s_add_u32 s11, s11, s15"); A(f"s_add_u32 s11, s11, {WS_Y}")
        A("s_lshl_b32 s14, s14, 11"); A("s_add_u32 s13, s13, s14"); A("s_lshl_b32 s14, s5, 7"); A("s_add_u32 s13, s13, s14")
        A(f"v_lshlrev_b32 v{vR1}, 4, v1")
    FID = "s2"
    if lightfin:
        FID = "s8"
        A("s_lshl_b32 s14, s4, 3"); A("s_add_u32 s14, s14, s6")
        A("s_lshl_b32 s15, s5, 4"); A("s_add_u32 s15, s15, s14"); A("s_sub_u32 s15, s15, 224")
        A("s_cmp_lt_u32 s15, 28"); A("s_cselect_b32 s8, s15, 99")
        A("s_lshl_b32 s15, s5, 1"); A("s_add_u32 s15, s15, s14"); A("s_add_u32 s15, s15, 14")
        A("s_cmp_ge_u32 s14, 14"); A("s_cselect_b32 s15, s15, 99"); A("s_cmp_lt_u32 s5, 14"); A("s_cselect_b32 s8, s15, s8")
    A("s_waitcnt vmcnt(4)")
    for cb, d in ((0, DA), (1, DBb)):
        bw = sreg(64 + cb); A(f"v_mfma_f32_16x16x32_bf16 v[{d}:{d+3}], v[{ACC}:{ACC+3}], v[{bw}:{bw+3}], 0")
    for k in range(8): A(f"v_mul_f32 v{DA+k}, v15, v{DA+k}")
    if prefin:
        A("s_cmp_ge_u32 s2, 56"); A("s_cbranch_scc1 L_pf_no")
        A("s_lshl_b32 s13, s2, 14"); A("s_lshl_b32 s15, s3, 11"); A("s_add_u32 s13, s13, s15"); A(f"s_add_u32 s13, s13, {WS_Y}")
        A(f"v_lshlrev_b32 v{vR1}, 4, v1")
        for k in range(2): A(f"buffer_load_dwordx4 v[{FS[0]+4*k}:{FS[0]+4*k+3}], v{vR1}, {WSR}, s13 offen offset:{1024 * k} sc1")
        A("s_cmp_lt_u32 s3, 2"); A("s_cbranch_scc1 L_pf_3"); A("s_waitcnt vmcnt(2)"); lab("L_pf_3"); A("s_waitcnt vmcnt(3)"); A("s_branch L_pf_done")
        lab("L_pf_no")
        A("s_cmp_lt_u32 s3, 2"); A("s_cbranch_scc1 L_ow1"); A("s_waitcnt vmcnt(0)"); lab("L_ow1"); A("s_waitcnt vmcnt(1)")
        lab("L_pf_done")
    elif direct: pass
    elif late_w == 1: A("s_waitcnt vmcnt(0) lgkmcnt(0)")
    else: A("s_cmp_lt_u32 s3, 2"); A("s_cbranch_scc1 L_ow1"); A("s_waitcnt vmcnt(0)"); lab("L_ow1"); A("s_waitcnt vmcnt(1) lgkmcnt(0)")
    if direct:
        A(f"v_and_b32 v{t1}, 7, v1"); A(f"v_lshlrev_b32 v{vO}, 8, v{t1}"); A(f"v_lshrrev_b32 v{t1}, 5, v1"); A(f"v_lshl_add_u32 v{vO}, v{t1}, 4, v{vO}")
        A("s_lshl_b32 s9, s7, 14"); A(f"s_add_u32 s9, s9, {WS_O}"); A("s_lshl_b32 s14, s6, 11"); A("s_add_u32 s9, s9, s14"); A("s_lshl_b32 s14, s3, 5"); A("s_add_u32 s9, s9, s14")
        gather("od", [(OG, vO, "s9", 0, -1, -1)], osleep, [82])
        stamp(8)
        for ctl in ("quad_perm:[1,0,3,2]", "quad_perm:[2,3,0,1]", "row_half_mirror"):
            for k in (0, 2): A(f"v_add_f32_dpp v{OG+k}, v{OG+k}, v{OG+k} {ctl} {DPPF}")
        A(f"v_cvt_pk_bf16_f32 v{OG}, v{OG}, v{OG}"); A(f"v_cvt_pk_bf16_f32 v{OG+1}, v{OG+2}, v{OG+2}")
    else:
        A("s_barrier")
        A(f"ds_read_b64 v[{OG}:{OG+1}], v{t1} offset:{L_OL}")
        stamp(8)
        A("s_waitcnt lgkmcnt(0)")
    for r in range(2):
        for q in range(4): A(f"v_and_b32 v{AB[r]+q}, v{OG+r}, v{M[q]}")
    for r in range(2):
        for cb, d in ((0, DA), (1, DBb)):
            bw = sreg(66 + 2 * r + cb)
            A(f"v_mfma_f32_16x16x32_bf16 v[{d}:{d+3}], v[{AB[r]}:{AB[r]+3}], v[{bw}:{bw+3}], v[{d}:{d+3}]")
    A(f"ds_write_b128 v{vRw}, v[{DA}:{DA+3}]"); A(f"ds_write_b128 v{vRw}, v[{DBb}:{DBb+3}] offset:1024")
    A("s_waitcnt lgkmcnt(0)"); A("s_barrier")
    def red3(r):
        for k in (0, 2): A(f"v_add_f32_dpp v{r+k}, v{r+k}, v{r+k} row_ror:8 {DPPF}")
        A(f"v_permlane16_swap_b32 v{r}, v{r+2}"); A(f"v_add_f32 v{r}, v{r}, v{r+2}")
        A(f"v_mov_b32 v{r+2}, v{r}"); A(f"v_permlane32_swap_b32 v{r}, v{r+2}"); A(f"v_add_f32 v{r}, v{r}, v{r+2}")
        A(f"v_mov_b32 v{r+2}, v{r}"); A(f"v_permlane16_swap_b32 v{r}, v{r+2}")
    if two:
        A("s_cmp_ge_u32 s3, 4"); A("s_cbranch_scc1 L_lvl1")
        for k in range(8): A(f"ds_read_b64 v[{Y+2*k}:{Y+2*k+1}], v{t0} offset:{2048 * k}")
        A(f"v_cmp_gt_u32 vcc, 224, v{vY}")
        A(f"v_lshrrev_b32 v{t1}, 3, v{vY}"); A(f"v_lshlrev_b32 v{vO}, 10, v{t1}")
        A(f"v_and_b32 v{t1}, 7, v1"); A(f"v_lshl_add_u32 v{vO}, v{t1}, 4, v{vO}")
        A("s_mul_i32 s14, s7, 28672"); A("s_lshl_b32 s15, s6, 7"); A("s_add_u32 s14, s14, s15"); A(f"s_add_u32 s14, s14, {WS_Y}")
        A(f"v_mov_b32 v{U+1}, s12"); A(f"v_mov_b32 v{U+3}, s12")
        A("s_waitcnt lgkmcnt(0)")
        for st in (1, 2):
            for k in range(0, 8, 2 * st):
                for c_ in range(2): A(f"v_add_f32 v{Y+2*k+c_}, v{Y+2*k+c_}, v{Y+2*(k+st)+c_}")
        A(f"v_add_f32 v{U}, v{Y}, v{Y+8}"); A(f"v_add_f32 v{U+2}, v{Y+1}, v{Y+9}")
        A("s_and_b64 exec, exec, vcc")
        xstore([f"buffer_store_dwordx4 v[{U}:{U+3}], v{vO}, {WSR}, s14 offen"])
        A("s_mov_b64 exec, -1")
        stamp(9)
        A("s_branch L_fin_skip")
        lab("L_lvl1")
        A("s_cmp_ge_u32 s9, 56"); A("s_cbranch_scc1 L_fin_skip")
        F = 24
        gather("l1", [(F, vR1, "s11", 0, -1, -1)], 0, [82])
        red3(F)
        A("s_mov_b64 exec, 0xff")
        A(f"buffer_store_dwordx4 v[{F}:{F+3}], v{vR1}, {WSR}, s13 offen sc1")
        A("s_mov_b64 exec, -1")
        stamp(10)
    else:
        pass
    if yb and not two:
        A("s_cmp_ge_u32 s3, 2"); A("s_cbranch_scc1 L_ydone")
        Z = fr[4] if False else None
        ZR = [r for r in fr if all(r + 4 * k in fr for k in range(8))][0]
        A(f"v_lshlrev_b32 v{t0}, 4, v{vY}"); A(f"v_add_u32 v{t0}, {L_RED2}, v{t0}")
        for k in range(8): A(f"ds_read_b128 v[{ZR+4*k}:{ZR+4*k+3}], v{t0} offset:{2048 * k}")
        A(f"v_cmp_gt_u32 vcc, 112, v{vY}")
        A(f"v_lshrrev_b32 v{t1}, 3, v{vY}"); A(f"v_lshlrev_b32 v{vO}, 14, v{t1}")
        A(f"v_and_b32 v{t1}, 7, v1"); A(f"v_lshl_add_u32 v{vO}, v{t1}, 4, v{vO}")
        A(f"s_mul_i32 s14, s4, {14 * 16384}"); A("s_lshl_b32 s15, s10, 7"); A("s_add_u32 s14, s14, s15"); A(f"s_add_u32 s14, s14, {WS_Y}")
        A(f"v_mov_b32 v{U+1}, s12"); A(f"v_mov_b32 v{U+3}, s12")
        A("s_waitcnt lgkmcnt(0)")
        for st in (1, 2, 4):
            for k in range(0, 8, 2 * st):
                for c_ in range(4): A(f"v_add_f32 v{ZR+4*k+c_}, v{ZR+4*k+c_}, v{ZR+4*(k+st)+c_}")
        A(f"v_cvt_pk_bf16_f32 v{U}, v{ZR}, v{ZR+1}"); A(f"v_cvt_pk_bf16_f32 v{U+2}, v{ZR+2}, v{ZR+3}")
        A("s_and_saveexec_b64 s[82:83], vcc")
        A(f"buffer_store_dwordx4 v[{U}:{U+3}], v{vO}, {WSR}, s14 offen sc1")
        A("s_mov_b64 exec, s[82:83]")
        lab("L_ydone")
        stamp(9)
        A("s_cmp_ge_u32 s2, 28"); A("s_cbranch_scc1 L_fin_skip")
        A("s_lshl_b32 s13, s2, 14"); A("s_lshl_b32 s15, s3, 11"); A("s_add_u32 s13, s13, s15"); A(f"s_add_u32 s13, s13, {WS_Y}")
        A(f"v_lshlrev_b32 v{t0}, 4, v1")
        F = 24; G_ = 8
        gather("fin", [(F, t0, "s13", 0, -1, -1), (F + 4, t0, "s13", 1024, -1, -1)], fsleep, [82, 84])
        srd(SO, 34, 1792)
        for k in (0, 2, 4, 6): A(f"v_and_b32 v{F+k+1}, 0xffff0000, v{F+k}"); A(f"v_lshlrev_b32 v{F+k}, 16, v{F+k}")
        for k in range(4): A(f"v_add_f32 v{F+k}, v{F+k}, v{F+4+k}")
        stamp(10)
        for k in range(4): A(f"v_add_f32_dpp v{F+k}, v{F+k}, v{F+k} row_ror:8 {DPPF}")
        A(f"v_permlane16_swap_b32 v{F}, v{F+1}"); A(f"v_permlane16_swap_b32 v{F+2}, v{F+3}")
        A(f"v_add_f32 v{F}, v{F}, v{F+1}"); A(f"v_add_f32 v{F+2}, v{F+2}, v{F+3}")
        A(f"v_permlane32_swap_b32 v{F}, v{F+2}"); A(f"v_add_f32 v{F}, v{F}, v{F+2}")
        A(f"v_and_b32 v{t0}, 7, v1"); A(f"v_lshrrev_b32 v{t1}, 4, v1"); A(f"v_lshl_add_u32 v{t0}, v{t0}, 2, v{t1}")
        A(f"v_lshlrev_b32 v{t0}, 5, v{t0}"); A("s_lshl_b32 s14, s3, 2"); A(f"v_add_u32 v{t0}, s14, v{t0}")
        A("s_mov_b32 exec_lo, 0x00ff00ff"); A("s_mov_b32 exec_hi, 0x00ff00ff")
        A(f"ds_write_b32 v{t0}, v{F} offset:{L_PW}")
        A("s_mov_b64 exec, -1")
        A("s_waitcnt lgkmcnt(0)"); A("s_barrier")
        A("s_cmp_lg_u32 s3, 0"); A("s_cbranch_scc1 L_fin_skip")
        A(f"v_and_b32 v{t0}, 31, v1"); A(f"v_lshlrev_b32 v{t1}, 5, v{t0}")
        A(f"ds_read_b128 v[{F}:{F+3}], v{t1} offset:{L_PW}"); A(f"ds_read_b128 v[{F+4}:{F+7}], v{t1} offset:{L_PW + 16}")
        A(f"v_lshlrev_b32 v{t0}, 1, v{t0}"); A("s_lshl_b32 s14, s2, 6")
        A("s_waitcnt lgkmcnt(0)")
        for st in (1, 2, 4):
            for k in range(0, 8, 2 * st): A(f"v_add_f32 v{F+k}, v{F+k}, v{F+k+st}")
        A(f"v_cvt_pk_bf16_f32 v{F}, v{F}, v{F}")
        A("s_mov_b32 exec_hi, 0")
        A(f"buffer_store_short v{F}, v{t0}, s[{SO}:{SO+3}], s14 offen")
        A("s_cmp_lg_u32 s2, 0"); A("s_cbranch_scc1 L_fin_noep")
        A("s_mov_b64 exec, 1"); A(f"v_mov_b32 v{t0}, 0"); A(f"v_mov_b32 v{t1}, s12")
        A(f"s_mov_b32 s13, {wsb}"); A(f"buffer_store_dword v{t1}, v{t0}, {WSR}, s13 offen")
        if lite:
            A("s_memrealtime s[90:91]"); A("s_waitcnt lgkmcnt(0)"); A("v_mov_b32 v8, s88"); A("v_mov_b32 v9, s90")
            A("s_mov_b32 s92, s36"); A("s_mov_b32 s93, s37"); A("s_mov_b32 s94, 256"); A("s_mov_b32 s95, 0x20000")
            A(f"buffer_store_dwordx2 v[8:9], v{t0}, s[92:95], 0 offen")
        lab("L_fin_noep")
        A("s_mov_b64 exec, -1")
    if not two and not yb:
        A("s_cmp_ge_u32 s3, 4"); A("s_cbranch_scc1 L_ydone")
        for k in range(8): A(f"ds_read_b64 v[{Y+2*k}:{Y+2*k+1}], v{t0} offset:{2048 * k}")
        A(f"v_cmp_gt_u32 vcc, 224, v{vY}")
        A(f"v_lshrrev_b32 v{t1}, 3, v{vY}"); A(f"v_lshlrev_b32 v{vO}, 14, v{t1}")
        if swz:
            A(f"v_mul_u32_u24 v{t1}, {swz}, v{t1}"); A(f"v_add_u32 v{t1}, s10, v{t1}"); A(f"v_and_b32 v{t1}, 127, v{t1}"); A(f"v_lshl_add_u32 v{vO}, v{t1}, 7, v{vO}")
        A(f"v_and_b32 v{t1}, 7, v1"); A(f"v_lshl_add_u32 v{vO}, v{t1}, 4, v{vO}")
        A(f"s_mul_i32 s14, s4, {28 * 16384}")
        if not swz: A("s_lshl_b32 s15, s10, 7"); A("s_add_u32 s14, s14, s15")
        A(f"s_add_u32 s14, s14, {WS_Y}")
        A(f"v_mov_b32 v{U+1}, s12"); A(f"v_mov_b32 v{U+3}, s12")
        A("s_waitcnt lgkmcnt(0)")
        for st in (1, 2):
            for k in range(0, 8, 2 * st):
                for c_ in range(2): A(f"v_add_f32 v{Y+2*k+c_}, v{Y+2*k+c_}, v{Y+2*(k+st)+c_}")
        A(f"v_add_f32 v{U}, v{Y}, v{Y+8}"); A(f"v_add_f32 v{U+2}, v{Y+1}, v{Y+9}")
        A("s_and_saveexec_b64 s[82:83], vcc")
        A(f"buffer_store_dwordx4 v[{U}:{U+3}], v{vO}, {WSR}, s14 offen sc1")
        A("s_mov_b64 exec, s[82:83]")
        lab("L_ydone")
        stamp(9)
        A(f"s_cmp_ge_u32 {FID}, 56"); A("s_cbranch_scc1 L_fin_skip")
        F = 24
        srd(SO, 34, 1792)
        if prefin:
            A("s_waitcnt vmcnt(1)"); A("s_cmp_lt_u32 s3, 4"); A("s_cbranch_scc1 L_pf_w"); A("s_waitcnt vmcnt(0)"); lab("L_pf_w")
            G0 = FS[0]
            gather("fin", [(G0, vR1, "s13", 0, -1, -1), (G0 + 4, vR1, "s13", 1024, -1, -1)], fsleep, [82, 84], pre=True)
        else:
            A(f"s_lshl_b32 s13, {FID}, 14"); A("s_lshl_b32 s15, s3, 11"); A("s_add_u32 s13, s13, s15"); A(f"s_add_u32 s13, s13, {WS_Y}")
            A(f"v_lshlrev_b32 v{t0}, 4, v1")
            G0 = F
            gather("fin", [(F, t0, "s13", 0, -1, -1), (F + 4, t0, "s13", 1024, -1, -1)], fsleep, [82, 84])
        A(f"v_add_f32 v{F}, v{G0}, v{G0+4}"); A(f"v_add_f32 v{F+2}, v{G0+2}, v{G0+6}")
        stamp(10)
        A(f"v_add_f32_dpp v{F}, v{F}, v{F} row_ror:8 {DPPF}"); A(f"v_add_f32_dpp v{F+2}, v{F+2}, v{F+2} row_ror:8 {DPPF}")
        A(f"v_permlane16_swap_b32 v{F}, v{F+2}"); A(f"v_add_f32 v{F}, v{F}, v{F+2}")
        A(f"v_mov_b32 v{F+2}, v{F}"); A(f"v_permlane32_swap_b32 v{F}, v{F+2}"); A(f"v_add_f32 v{F}, v{F}, v{F+2}")
        A(f"v_and_b32 v{t0}, 7, v1"); A(f"v_bfe_u32 v{t1}, v1, 4, 1"); A(f"v_lshl_add_u32 v{t0}, v{t0}, 1, v{t1}")
        A(f"v_lshlrev_b32 v{t0}, 5, v{t0}"); A("s_lshl_b32 s14, s3, 2"); A(f"v_add_u32 v{t0}, s14, v{t0}")
        A("s_mov_b32 exec_lo, 0x00ff00ff"); A("s_mov_b32 exec_hi, 0")
        A(f"ds_write_b32 v{t0}, v{F} offset:{L_FIN}")
        A("s_mov_b64 exec, -1")
        A("s_waitcnt lgkmcnt(0)"); A("s_barrier")
        A("s_cmp_lg_u32 s3, 0"); A("s_cbranch_scc1 L_fin_skip")
        A(f"v_and_b32 v{t0}, 15, v1"); A(f"v_lshlrev_b32 v{t1}, 5, v{t0}")
        A(f"ds_read_b128 v[{F}:{F+3}], v{t1} offset:{L_FIN}"); A(f"ds_read_b128 v[{F+4}:{F+7}], v{t1} offset:{L_FIN + 16}")
        A(f"v_lshlrev_b32 v{t0}, 1, v{t0}"); A(f"s_lshl_b32 s14, {FID}, 5")
        A("s_waitcnt lgkmcnt(0)")
        for st in (1, 2, 4):
            for k in range(0, 8, 2 * st): A(f"v_add_f32 v{F+k}, v{F+k}, v{F+k+st}")
        A(f"v_cvt_pk_bf16_f32 v{F}, v{F}, v{F}")
        A("s_mov_b64 exec, 0xffff")
        A(f"buffer_store_short v{F}, v{t0}, s[{SO}:{SO+3}], s14 offen {ofl}")
        A(f"s_cmp_lg_u32 {FID}, 0"); A("s_cbranch_scc1 L_fin_noep")
        A("s_mov_b64 exec, 1"); A(f"v_mov_b32 v{t0}, 0"); A(f"v_mov_b32 v{t1}, s12")
        A(f"s_mov_b32 s13, {wsb}"); A(f"buffer_store_dword v{t1}, v{t0}, {WSR}, s13 offen {ofl}")
        if lite:
            A("s_memrealtime s[90:91]"); A("s_waitcnt lgkmcnt(0)"); A("v_mov_b32 v8, s88"); A("v_mov_b32 v9, s90")
            A("s_mov_b32 s92, s36"); A("s_mov_b32 s93, s37"); A("s_mov_b32 s94, 256"); A("s_mov_b32 s95, 0x20000")
            A(f"buffer_store_dwordx2 v[8:9], v{t0}, s[92:95], 0 offen")
        lab("L_fin_noep")
        A("s_mov_b64 exec, -1")
    lab("L_fin_skip")
    stamp(11)
    dump_stamps()
    if diag2 is not None:
        role, kk, op = diag2[:3]; xf = diag2[3] if len(diag2) > 3 else None
        A("s_cmp_lg_u32 s2, 0"); A("s_cbranch_scc1 L_diag_end"); A("s_cmp_lg_u32 s3, 0"); A("s_cbranch_scc1 L_diag_end")
        A("s_add_u32 s84, s88, 7000"); lab("L_diag1"); A("s_sleep 8")
        A("s_memrealtime s[90:91]"); A("s_waitcnt lgkmcnt(0)"); A("s_sub_u32 s85, s90, s84"); A("s_cmp_lt_i32 s85, 0"); A("s_cbranch_scc1 L_diag1")
        A("v_mov_b32 v10, 0"); A("v_mov_b32 v11, -1"); A("v_mov_b32 v14, 0")
        nr = 4 if role else 32
        for r in range(nr):
            if role: A(f"v_add_u32 v12, {r * 64}, v1"); A("v_mul_u32_u24 v12, 2304, v12")
            else:
                A(f"v_lshrrev_b32 v12, 3, v1"); A(f"v_add_u32 v12, {r * 8}, v12"); A("v_mul_u32_u24 v12, 9, v12"); A("v_and_b32 v13, 7, v1"); A("v_add_u32 v12, v12, v13")
                A("v_add_u32 v12, 1, v12"); A("v_lshlrev_b32 v12, 8, v12")
            A(f"s_mov_b32 s13, {WS_DBG}")
            A(f"buffer_load_dword v8, v12, {WSR}, s13 offen sc1"); A(f"buffer_load_dword v9, v12, {WSR}, s13 offen offset:{4 * kk} sc1"); A("s_waitcnt vmcnt(0)")
            A("v_subrev_u32 v8, s88, v8"); A("v_add_u32 v8, 0x1000, v8"); A("v_min_u32 v11, v11, v8")
            A("v_cmp_ne_u32 vcc, 0, v9"); A("v_subrev_u32 v9, s88, v9"); A("v_add_u32 v9, 0x1000, v9"); A("v_cndmask_b32 v9, 0, v9, vcc")
            if xf is not None:
                A("v_lshrrev_b32 v13, 3, v1"); A(f"v_cmp_eq_u32 vcc, {xf}, v13"); A("v_cndmask_b32 v9, 0, v9, vcc")
            A("v_max_u32 v10, v10, v9"); A("v_add_u32 v14, v14, v9")
        if op == "mean": A(f"v_lshrrev_b32 v10, {2 if role else 5}, v14")
        for v, o in ((10, "add" if op == "mean" else "max"), (11, "min")):
            for ctl in ("quad_perm:[1,0,3,2]", "quad_perm:[2,3,0,1]", "row_half_mirror", "row_mirror"): A(f"v_{o}_u32_dpp v{v}, v{v}, v{v} {ctl} {DPPF}")
            for sw in ("v_permlane16_swap_b32", "v_permlane32_swap_b32"):
                A(f"v_mov_b32 v12, v{v}"); A(f"{sw} v{v}, v12"); A(f"v_{o}_u32 v{v}, v{v}, v12")
        if op == "mean": A(f"v_lshrrev_b32 v10, {6 if xf is None else 3}, v10")
        A("v_sub_u32 v10, v10, v11"); A("v_readfirstlane_b32 s85, v10"); A("s_lshl_b32 s85, s85, 2")
        if kk < 0: A("s_mov_b32 s85, 0")
        A("s_min_u32 s85, s85, 40000"); A(f"s_add_u32 s84, s88, {dbase}"); A("s_add_u32 s84, s84, s85")
        lab("L_diag2")
        A("s_memrealtime s[90:91]"); A("s_waitcnt lgkmcnt(0)"); A("s_sub_u32 s85, s90, s84"); A("s_cmp_lt_i32 s85, 0"); A("s_cbranch_scc1 L_diag2")
        lab("L_diag_end")
    if diag is not None:
        A("s_cmp_lg_u32 s2, 0"); A("s_cbranch_scc1 L_diag_end"); A("s_cmp_lg_u32 s3, 0"); A("s_cbranch_scc1 L_diag_end")
        A("s_add_u32 s84, s88, 7000")
        lab("L_diag1")
        A("s_memrealtime s[90:91]"); A("s_waitcnt lgkmcnt(0)"); A("s_sub_u32 s85, s90, s84"); A("s_cmp_lt_i32 s85, 0"); A("s_cbranch_scc1 L_diag1")
        A("v_lshlrev_b32 v166, 2, v1"); A("buffer_load_dword v165, v166, s[92:95], 0 offen sc1"); A("s_waitcnt vmcnt(0)")
        A("v_readlane_b32 s84, v165, 0"); A(f"v_readlane_b32 s85, v165, {max(diag, 0)}")
        A("s_not_b32 s84, s84"); A("s_sub_u32 s85, s85, s84"); A("s_lshl_b32 s85, s85, 2")
        if diag <= 0: A("s_mov_b32 s85, 0")
        A("s_min_u32 s85, s85, 40000"); A(f"s_add_u32 s84, s88, {dbase}"); A("s_add_u32 s84, s84, s85")
        lab("L_diag2")
        A("s_memrealtime s[90:91]"); A("s_waitcnt lgkmcnt(0)"); A("s_sub_u32 s85, s90, s84"); A("s_cmp_lt_i32 s85, 0"); A("s_cbranch_scc1 L_diag2")
        lab("L_diag_end")
    A("s_endpgm")

    lab("L_service")
    if kfirst: A("s_load_dwordx16 s[16:31], s[0:1], 0"); A("s_load_dwordx8 s[32:39], s[0:1], 64")
    C("==== service wave: partial q / ffn-hidden GEMVs, gate, statistics, hand-offs ====")
    if not svl: A("s_setprio 3")
    if dbg and svl: A("s_mov_b32 s93, 0")
    vL16, vQe, vQo, vFe, vFo, vXq, vXf = 2, 3, 4, 5, 6, 7, 8
    vTr = [9, 10, 11, 12]; a_, b_, c_, d_ = 14, 15, 16, 17; vG, vOG = 20, 21
    A(f"v_mov_b32 v{a_}, 0"); A(f"v_mov_b32 v{b_}, 0"); A(f"v_mov_b32 v{c_}, 0"); A(f"v_mov_b32 v{d_}, 0")
    A(f"ds_write_b128 v{a_}, v[{a_}:{d_}] offset:{L_FLAG}")
    if bal: A(f"v_mov_b32 v{vG}, {bal.get('init', 0)}"); A(f"ds_write_b32 v{a_}, v{vG} offset:{L_G + 20}")
    A(f"v_lshlrev_b32 v{vL16}, 4, v1")
    A("s_and_b32 s8, s6, 3"); A("s_lshr_b32 s9, s6, 2"); A("s_lshl_b32 s14, s4, 1"); A("s_add_u32 s9, s9, s14")
    A("s_lshl_b32 s15, s4, 3"); A("s_add_u32 s15, s15, s6")
    A("s_cmp_ge_u32 s15, 7"); A("s_cselect_b32 s11, 1, 0"); A("s_mul_i32 s14, s11, 7"); A("s_sub_u32 s81, s15, s14")
    A("s_cmp_lt_u32 s15, 14"); A("s_cselect_b32 s79, 1, 0"); A("s_cmp_lt_u32 s5, 14"); A("s_cselect_b32 s79, s79, 0")
    A("s_lshl_b32 s14, s5, 1"); A("s_add_u32 s11, s11, s14")
    A(f"v_bfe_u32 v{a_}, v1, 4, 1"); A(f"v_lshlrev_b32 v{a_}, 1, v{a_}"); A(f"v_and_b32 v{b_}, 7, v1"); A(f"v_xor_b32 v{a_}, v{a_}, v{b_}")
    A(f"v_xor_b32 v{b_}, 4, v{a_}"); A(f"v_lshrrev_b32 v{c_}, 3, v1")
    A(f"s_mul_i32 s14, s9, {112 * 8192}"); A("s_lshl_b32 s15, s5, 9"); A("s_add_u32 s14, s14, s15"); A("s_lshl_b32 s15, s8, 7"); A("s_add_u32 s14, s14, s15")
    A(f"v_lshl_add_u32 v{d_}, v{c_}, 13, s14")
    A(f"v_lshl_add_u32 v{vQe}, v{a_}, 4, v{d_}"); A(f"v_lshl_add_u32 v{vQo}, v{b_}, 4, v{d_}")
    A(f"s_mul_i32 s14, s81, {64 * 3584}"); A("s_lshl_b32 s15, s11, 7"); A("s_add_u32 s14, s14, s15")
    A(f"v_mul_u32_u24 v{d_}, 3584, v{c_}"); A(f"v_add_u32 v{d_}, s14, v{d_}")
    A(f"v_lshl_add_u32 v{vFe}, v{a_}, 4, v{d_}"); A(f"v_lshl_add_u32 v{vFo}, v{b_}, 4, v{d_}")
    A("s_waitcnt lgkmcnt(0)")
    A(f"s_mov_b32 s13, {wsb}"); A("s_load_dword s12, s[38:39], s13")
    srd(SX, 16, 1792); srd(SWQ, 22, 3670016); srd(SG, 32, 896); srd(SW1, 28, 1605632)
    A("s_cmp_eq_u32 s79, 1"); A(f"s_cselect_b32 s{SW1+2}, s{SW1+2}, 0")
    if svc == 0:
        for d in (SX, SWQ, SG, SW1): A(f"s_mov_b32 s{d+2}, 0")
    if svc == 0.5:
        for d in (SW1,): A(f"s_mov_b32 s{d+2}, 0")
    if svl == 2: A("s_barrier")
    A(f"s_mov_b32 m0, {L_X}")
    for k in range(2): A(f"buffer_load_dwordx4 v{vL16}, s[{SX}:{SX+3}], 0 offen offset:{1024 * k} lds")
    for m in range(16):
        A(f"s_mov_b32 m0, {L_W + 1024 * m}")
        A(f"s_mov_b32 s13, {m * 65536 if m < 14 else 0x7f000000}")
        A(f"buffer_load_dwordx4 v{vQo if m & 1 else vQe}, s[{SWQ}:{SWQ+3}], s13 offen {wflags} lds")
    for m in range(8):
        A(f"s_mov_b32 m0, {L_W1 + 1024 * m}"); A(f"s_mov_b32 s13, {m * 8 * 3584}")
        A(f"buffer_load_dwordx4 v{vFo if m & 1 else vFe}, s[{SW1}:{SW1+3}], s13 offen {wflags} lds")
    GW = 24
    A(f"buffer_load_dwordx4 v[{GW}:{GW+3}], v{vL16}, s[{SG}:{SG+3}], 0 offen")
    if svl: A("s_setprio 3")
    if svl != 2: A("s_barrier")
    srd(SWS, 38, WS_SIZE)
    A(f"v_and_b32 v{a_}, 1, v1"); A(f"v_mul_u32_u24 v{b_}, 896, v{a_}"); A(f"v_lshrrev_b32 v{a_}, 4, v1"); A(f"v_lshl_add_u32 v{b_}, v{a_}, 4, v{b_}")
    A("s_mul_i32 s14, s9, 224"); A(f"v_add_u32 v{vXq}, s14, v{b_}"); A("s_lshl_b32 s14, s81, 7"); A(f"v_add_u32 v{vXf}, s14, v{b_}")
    A(f"v_lshlrev_b32 v{b_}, 10, v{a_}"); A(f"v_bfe_u32 v{c_}, v1, 2, 2"); A(f"v_lshl_add_u32 v{b_}, v{c_}, 7, v{b_}")
    A(f"v_bfe_u32 v{c_}, v1, 1, 1"); A(f"v_lshl_add_u32 v{b_}, v{c_}, 4, v{b_}"); A(f"v_and_b32 v{c_}, 1, v1"); A(f"v_lshl_add_u32 v{b_}, v{c_}, 3, v{b_}")
    A(f"v_bfe_u32 v{c_}, v1, 3, 2")
    for cg in range(4):
        A(f"v_xor_b32 v{d_}, {cg}, v{c_}"); A(f"v_lshl_add_u32 v{vTr[cg]}, v{d_}, 5, v{b_}")
    A("s_lshl_b32 s8, s8, 9"); A("s_lshl_b32 s9, s9, 11"); A("s_add_u32 s8, s8, s9"); A("s_lshl_b32 s9, s5, 13"); A("s_add_u32 s8, s8, s9")
    A(f"s_add_u32 s8, s8, {WS_Q}"); A(f"s_add_u32 s9, s8, {16 * 8192}")
    A(f"s_mul_i32 s11, s11, {HSTR}"); A("s_lshl_b32 s81, s81, 9"); A("s_add_u32 s11, s11, s81"); A(f"s_add_u32 s11, s11, {WS_H}")
    A("s_mov_b32 s82, 0xffff0000"); A("s_mov_b32 s83, 0"); A("s_mov_b32 s84, 0"); A("s_mov_b32 s85, 0xffff"); A("s_mov_b32 s86, 0"); A("s_mov_b32 s87, 0xffff0000")
    if dbg: A("s_waitcnt lgkmcnt(0)"); A("v_writelane_b32 v167, s88, 0")
    A("s_waitcnt lgkmcnt(0)"); A(f"s_add_u32 s12, s12, {TAGC}")
    XA = 28; TB = 56; D = 120; UQ = 136; UH = 144; AN = 152
    ex = 0
    if loc:
        ex = 1
        A("s_getreg_b32 s78, hwreg(HW_REG_XCC_ID)"); A("s_and_b32 s78, s78, 15")
        A(f"v_mov_b32 v{AN}, s78"); A(f"v_mov_b32 v{AN+1}, s12"); A(f"v_mov_b32 v{AN+2}, s78"); A(f"v_mov_b32 v{AN+3}, s12")
        A("s_lshl_b32 s13, s10, 7"); A("s_lshl_b32 s14, s4, 14"); A("s_add_u32 s13, s13, s14"); A(f"s_add_u32 s13, s13, {WS_A}")
        A("s_mov_b64 exec, 0xff"); A(f"buffer_store_dwordx4 v[{AN}:{AN+3}], v{vL16}, {WSR}, s13 offen"); A("s_mov_b64 exec, -1")
    A(f"s_waitcnt vmcnt({25 + ex})")
    for m in range(4): A(f"ds_read_b128 v[{XA+4*m}:{XA+4*m+3}], v{vXq} offset:{L_X + 64 * m}")
    for m in range(2): A(f"ds_read_b128 v[{XA+16+4*m}:{XA+16+4*m+3}], v{vXf} offset:{L_X + 64 * m}")
    def gemv(img, steps, xa, vm_after, U_):
        for m in range(steps):
            A(f"s_waitcnt vmcnt({vm_after + 4 * (steps - 1 - m)})")
            for cg in range(4):
                r = TB + 16 * m + 4 * cg
                A(f"ds_read_b64_tr_b16 v[{r}:{r+1}], v{vTr[cg]} offset:{img + 4096 * m}")
                A(f"ds_read_b64_tr_b16 v[{r+2}:{r+3}], v{vTr[cg]} offset:{img + 4096 * m + 512}")
            if m: mf(m - 1, xa, 8)
        mf(steps - 1, xa, 0)
        for bb in range(2):
            for cg in range(1, 4): A(f"v_cndmask_b32 v{D+bb}, v{D+bb}, v{D+4*cg+bb}, s[{80+2*cg}:{81+2*cg}]")
        for bb in range(2):
            A(f"v_mov_b32 v{U_+4*bb}, v{D+bb}"); A(f"v_mov_b32_dpp v{U_+4*bb+2}, v{D+bb} quad_perm:[1,1,3,3] {DPPF}")
            A(f"v_mov_b32 v{U_+4*bb+1}, s12"); A(f"v_mov_b32 v{U_+4*bb+3}, s12")
    def mf(m, xa, lg):
        A(f"s_waitcnt lgkmcnt({lg})")
        for cg in range(4):
            r = TB + 16 * m + 4 * cg; d = D + 4 * cg; c = "0" if m == 0 else f"v[{d}:{d+3}]"
            A(f"v_mfma_f32_16x16x32_bf16 v[{d}:{d+3}], v[{xa+4*m}:{xa+4*m+3}], v[{r}:{r+3}], {c}")
    def publish(s0, s1, U_):
        if svc < 2: return
        A("s_mov_b32 exec_lo, 0x55555555"); A("s_mov_b32 exec_hi, 0x55555555")
        xstore([f"buffer_store_dwordx4 v[{U_}:{U_+3}], v{d_}, {WSR}, {s0} offen", f"buffer_store_dwordx4 v[{U_+4}:{U_+7}], v{d_}, {WSR}, {s1} offen"])
        A("s_mov_b64 exec, -1")
    A(f"v_lshlrev_b32 v{d_}, 3, v1")
    gemv(L_W, 4, XA, 9 + ex, UQ)
    if loc:
        A(f"v_lshrrev_b32 v{a_}, 3, v1"); A(f"v_lshlrev_b32 v{a_}, 14, v{a_}"); A(f"v_and_b32 v{b_}, 7, v1"); A(f"v_lshl_add_u32 v{a_}, v{b_}, 7, v{a_}")
        A("s_lshl_b32 s13, s5, 10"); A(f"s_add_u32 s13, s13, {WS_A}")
        if not anlate: A("s_mov_b64 exec, 0xffff"); A(f"buffer_load_dwordx4 v[{AN+4}:{AN+7}], v{a_}, {WSR}, s13 offen sc1"); A("s_mov_b64 exec, -1")
    else: publish("s8", "s9", UQ)
    stamp(1)
    gemv(L_W1, 2, XA + 16, 2 if loc and anlate else 3, UH)
    if loc and anlate:
        A("s_waitcnt vmcnt(0)")
        A("s_mov_b64 exec, 0xffff"); A(f"buffer_load_dwordx4 v[{AN+4}:{AN+7}], v{a_}, {WSR}, s13 offen sc1"); A("s_mov_b64 exec, -1")
    if loc:
        A(f"s_mov_b32 s77, {lretry}"); A("s_mov_b64 exec, 0xffff")
        lab("L_an")
        A("s_waitcnt vmcnt(0)")
        for k, r_ in enumerate(("s78", "s12", "s78", "s12")): A(f"v_cmp_eq_u32 s[{80+2*k}:{81+2*k}], {r_}, v{AN+4+k}")
        A("s_and_b64 s[80:81], s[80:81], s[82:83]"); A("s_and_b64 s[84:85], s[84:85], s[86:87]"); A("s_and_b64 s[80:81], s[80:81], s[84:85]")
        A("s_cmp_eq_u32 s80, 0xffff"); A("s_cbranch_scc1 L_an_done")
        A("s_sub_u32 s77, s77, 1"); A("s_cbranch_scc1 L_an_fail")
        A(f"buffer_load_dwordx4 v[{AN+4}:{AN+7}], v{a_}, {WSR}, s13 offen sc1"); A("s_branch L_an")
        lab("L_an_fail")
        A("s_cmp_eq_u32 s80, 0xffff")
        lab("L_an_done")
        A("s_cselect_b32 s78, 1, 0"); A("s_mov_b64 exec, -1")
        if dbg: A("s_mul_i32 s14, s78, 1000"); A("s_add_u32 s14, s14, s88"); A("v_writelane_b32 v167, s14, 7"); A("s_add_u32 s14, s77, 1"); A("s_mul_i32 s14, s14, 100"); A("s_add_u32 s14, s14, s88"); A("v_writelane_b32 v167, s14, 8")
        if loc == "off": A("s_mov_b32 s78, 0")
        publish("s8", "s9", UQ)
    A("s_cmp_eq_u32 s79, 0"); A("s_cbranch_scc1 L_sv_noh")
    A(f"s_add_u32 s9, s11, {28 * HSTR}")
    publish("s11", "s9", UH)
    lab("L_sv_noh")
    stamp(2)
    QP = 56
    if NG is not None: lds_wait(L_FLAG + 12, NG, "pg1", a_, b_, sleep=4, cmp="ge")
    if q2:
        C("two steps: each workgroup sums 32 columns over the 4 k quarters, then all read the finished bf16 q")
        A(f"v_lshrrev_b32 v{a_}, 4, v1"); A(f"v_lshlrev_b32 v{a_}, 11, v{a_}"); A(f"v_and_b32 v{b_}, 15, v1"); A(f"v_lshl_add_u32 v{a_}, v{b_}, 4, v{a_}")
        A("s_lshl_b32 s8, s7, 13"); A("s_lshl_b32 s9, s6, 8"); A("s_add_u32 s8, s8, s9"); A(f"s_add_u32 s8, s8, {WS_Q}")
        gather("q", [(QP, a_, "s8", 0, -1, -1)], psleep, [82])
        A(f"v_permlane16_swap_b32 v{QP}, v{QP+2}"); A(f"v_add_f32 v{QP}, v{QP}, v{QP+2}")
        A(f"v_mov_b32 v{QP+2}, v{QP}"); A(f"v_permlane32_swap_b32 v{QP}, v{QP+2}"); A(f"v_add_f32 v{QP}, v{QP}, v{QP+2}")
        A(f"v_mov_b32 v{QP+2}, v{QP}"); A(f"v_permlane16_swap_b32 v{QP}, v{QP+2}")
        A(f"v_cvt_pk_bf16_f32 v{QP}, v{QP}, v{QP+2}")
        A(f"v_mov_b32_dpp v{QP+2}, v{QP} quad_perm:[1,1,3,3] {DPPF}")
        A(f"v_lshlrev_b32 v{a_}, 3, v1")
        A("s_lshl_b32 s8, s7, 10"); A(f"s_add_u32 s8, s8, {wsb + 0x1E0000}"); A("s_lshl_b32 s9, s6, 7"); A("s_add_u32 s9, s9, s8")
        A("s_mov_b64 exec, 0x5555"); xstore([f"buffer_store_dwordx4 v[{QP}:{QP+3}], v{a_}, {WSR}, s9 offen"]); A("s_mov_b64 exec, -1")
        gather("q2", [(QP + 4, vL16, "s8", 0, -1, -1)], psleep, [82])
        A(f"v_mov_b32 v{QP+5}, v{QP+6}")
        A(f"ds_write_b64 v{a_}, v[{QP+4}:{QP+5}] offset:{L_Q}")
    else:
        A("s_lshl_b32 s8, s7, 13"); A(f"s_add_u32 s8, s8, {WS_Q}"); A("s_add_u32 s9, s8, 4096")
        gather("q", [(QP + 4 * k, vL16, "s9" if k >= 4 else "s8", 1024 * (k & 3), -1, -1) for k in range(8)], psleep,
               [40, 42, 44, 46, 48, 50, 82, 84])
        for hf in range(2):
            r = QP + 4 * hf
            for e in (0, 2):
                A(f"v_add_f32 v{r+e}, v{r+e}, v{r+8+e}"); A(f"v_add_f32 v{r+16+e}, v{r+16+e}, v{r+24+e}")
            for e in (0, 2): A(f"v_add_f32 v{r+e}, v{r+e}, v{r+16+e}")
            A(f"v_cvt_pk_bf16_f32 v{r}, v{r}, v{r+2}")
        A(f"v_lshlrev_b32 v{a_}, 2, v1")
        A(f"ds_write_b32 v{a_}, v{QP} offset:{L_Q}"); A(f"ds_write_b32 v{a_}, v{QP+4} offset:{L_Q + 256}")
    A(f"v_mov_b32 v{a_}, 0"); A(f"v_mov_b32 v{b_}, s12"); A(f"v_mov_b32 v{c_}, 1")
    A(f"ds_write_b32 v{a_}, v{b_} offset:{L_G + 16}")
    A(f"ds_write_b32 v{a_}, v{c_} offset:{L_FLAG}")
    stamp(3)
    TW = 100
    if touch:
        A(f"v_mov_b32 v{a_}, 0"); A("s_mov_b64 exec, 1")
        if "v" in touch:
            srd(40, 20, 0x4000000); A("s_lshl_b32 s13, s7, 21"); A("s_lshl_b32 s14, s6, 18"); A("s_add_u32 s13, s13, s14")
            for k in range(4): A(f"buffer_load_dword v{TW+k}, v{a_}, s[40:43], s13 offen nt"); A("s_add_u32 s13, s13, 65536")
        if "w" in touch:
            srd(44, 24, 3670016); A(f"s_mul_i32 s13, s10, {32 * 896}"); A(f"buffer_load_dword v{TW+4}, v{a_}, s[44:47], s13 offen nt")
            srd(48, 30, 1605632); A(f"s_mul_i32 s13, s10, {16 * 896}"); A(f"buffer_load_dword v{TW+5}, v{a_}, s[48:51], s13 offen nt")
        if "o" in touch:
            srd(SX, 34, 1792); A(f"buffer_load_dword v{TW+6}, v{a_}, s[{SX}:{SX+3}], 0 offen")
        A("s_mov_b64 exec, -1")
    if codepf:
        A("s_getpc_b64 s[14:15]"); lab("L_pc")
        A("s_sub_u32 s14, s14, L_pc-L_tail"); A("s_subb_u32 s15, s15, 0")
        A(f"v_mov_b32 v{b_}, s15"); A(f"v_add_co_u32 v{a_}, vcc, s14, v{vL16}"); A(f"v_addc_co_u32 v{b_}, vcc, 0, v{b_}, vcc")
        for k in range(codepf): A(f"global_load_dwordx4 v[{TW+8+4*k}:{TW+11+4*k}], v[{a_}:{b_}], off offset:{1024 * k}")
    C("gate = sigmoid(sum(x*gate_w)) with the reference's bf16 roundings")
    XG = 28
    A("s_mul_i32 s14, s4, 896"); A(f"v_add_u32 v{a_}, s14, v{vL16}")
    A(f"ds_read_b128 v[{XG}:{XG+3}], v{a_} offset:{L_X}")
    A("s_waitcnt lgkmcnt(0)")
    A(f"v_mov_b32 v{vG}, 0")
    for k in range(4):
        A(f"v_lshlrev_b32 v{a_}, 16, v{XG+k}"); A(f"v_and_b32 v{b_}, 0xffff0000, v{XG+k}")
        A(f"v_lshlrev_b32 v{c_}, 16, v{GW+k}"); A(f"v_and_b32 v{d_}, 0xffff0000, v{GW+k}")
        A(f"v_mul_f32 v{a_}, v{a_}, v{c_}"); A(f"v_mul_f32 v{b_}, v{b_}, v{d_}")
        A(f"v_cvt_pk_bf16_f32 v{a_}, v{a_}, v{b_}")
        A(f"v_lshlrev_b32 v{b_}, 16, v{a_}"); A(f"v_and_b32 v{a_}, 0xffff0000, v{a_}")
        A(f"v_add_f32 v{vG}, v{vG}, v{b_}"); A(f"v_add_f32 v{vG}, v{vG}, v{a_}")
    A("v_cmp_gt_u32 vcc, 56, v1"); A(f"v_cndmask_b32 v{vG}, 0, v{vG}, vcc")
    wave_reduce(A, "add", vG, a_)
    A(f"v_cvt_pk_bf16_f32 v{vG}, v{vG}, v{vG}"); A(f"v_lshlrev_b32 v{vG}, 16, v{vG}")
    A(f"v_mul_f32 v{vG}, 0xbfb8aa3b, v{vG}"); A(f"v_exp_f32 v{vG}, v{vG}"); A(f"v_add_f32 v{vG}, 1.0, v{vG}"); A(f"v_rcp_f32 v{vG}, v{vG}")
    A(f"v_cvt_pk_bf16_f32 v{vG}, v{vG}, v{vG}"); A(f"v_lshlrev_b32 v{vG}, 16, v{vG}")
    A(f"v_sub_f32 v{vOG}, 1.0, v{vG}"); A(f"v_cvt_pk_bf16_f32 v{vOG}, v{vOG}, v{vOG}"); A(f"v_lshlrev_b32 v{vOG}, 16, v{vOG}")
    def checkpoint(step, region, tag):
        lds_wait(L_FLAG + 12, step, tag, a_, b_, sleep=4, cmp="ge")
        A("s_lshl_b32 s9, s10, 7"); A("s_lshl_b32 s14, s4, 14"); A("s_add_u32 s9, s9, s14"); A(f"s_add_u32 s9, s9, {region}")
        A("s_and_b32 s14, s9, 0xffffc7ff"); A(f"v_lshlrev_b32 v{c_}, 11, v1")
        for k in range(4): A(f"v_mov_b32 v{32+k}, s12")
        A("s_mov_b64 exec, 0xff"); A(f"buffer_load_dwordx4 v[40:43], v{c_}, {WSR}, s14 offen sc1")
        A(f"buffer_store_dwordx4 v[32:35], v{vL16}, {WSR}, s9 offen sc1")
        A("s_waitcnt vmcnt(1)"); A("v_cmp_eq_u32 vcc, s12, v41"); A("s_bcnt1_i32_b64 s14, vcc")
        A(f"v_mov_b32 v{a_}, 0"); A(f"v_mov_b32 v{b_}, s14"); A(f"ds_write_b32 v{a_}, v{b_} offset:{L_G + 20}")
        A("s_mov_b64 exec, -1")
    if CK1: checkpoint(CK1, wsb + 0x1E0000, "ck1")
    C("softmax statistics: this workgroup, then the 8 workgroups of this (b, h)")
    lds_wait(L_FLAG + 8, 8, "cnt", a_, b_, sleep=2)
    ST = 32
    def combine(m, l):
        A(f"v_mov_b32 v{a_}, v{m}")
        for ctl in ("quad_perm:[1,0,3,2]", "quad_perm:[2,3,0,1]", "row_half_mirror"): A(f"v_max_f32_dpp v{a_}, v{a_}, v{a_} {ctl} {DPPF}")
        A(f"v_sub_f32 v{b_}, v{m}, v{a_}"); A(f"v_exp_f32 v{b_}, v{b_}"); A(f"v_mul_f32 v{b_}, v{b_}, v{l}")
        for ctl in ("quad_perm:[1,0,3,2]", "quad_perm:[2,3,0,1]", "row_half_mirror"): A(f"v_add_f32_dpp v{b_}, v{b_}, v{b_} {ctl} {DPPF}")
    A(f"v_and_b32 v{c_}, 7, v1"); A(f"v_lshlrev_b32 v{c_}, 3, v{c_}")
    A(f"ds_read_b64 v[{ST+4}:{ST+5}], v{c_} offset:{L_WST}"); A("s_waitcnt lgkmcnt(0)")
    combine(ST + 4, ST + 5)
    A(f"v_mov_b32 v{ST}, v{a_}"); A(f"v_mov_b32 v{ST+1}, s12"); A(f"v_mov_b32 v{ST+2}, v{b_}"); A(f"v_mov_b32 v{ST+3}, s12")
    A("s_lshl_b32 s11, s7, 10"); A(f"s_add_u32 s11, s11, {WS_ST}"); A("s_lshl_b32 s9, s6, 7"); A("s_add_u32 s9, s9, s11")
    if bal:
        A("s_and_b32 s14, s9, 0xffffc7ff"); A(f"v_lshlrev_b32 v{c_}, 11, v1")
        A("s_mov_b64 exec, 0xff"); A(f"buffer_load_dwordx4 v[{ST+8}:{ST+11}], v{c_}, {WSR}, s14 offen sc1")
    A("s_mov_b64 exec, 0xff"); xstore([f"buffer_store_dwordx4 v[{ST}:{ST+3}], v{vL16}, {WSR}, s9 offen"])
    if bal:
        A("s_waitcnt vmcnt(1)"); A(f"v_cmp_eq_u32 vcc, s12, v{ST+9}"); A("s_bcnt1_i32_b64 s14, vcc")
        A(f"v_mov_b32 v{a_}, 0"); A(f"v_mov_b32 v{b_}, s14"); A(f"ds_write_b32 v{a_}, v{b_} offset:{L_G + 20}")
    A("s_mov_b64 exec, -1")
    if NS is not None: lds_wait(L_FLAG + 12, NS, "pg2", a_, b_, sleep=8, cmp="ge")
    HP = 28
    A(f"v_mov_b32 v{HP}, 0"); A(f"v_mov_b32 v{HP+2}, 0")
    A("s_cmp_ge_u32 s10, 112"); A("s_cbranch_scc1 L_sv_hz")
    A(f"v_lshrrev_b32 v{a_}, 3, v1"); A(f"v_lshlrev_b32 v{a_}, 9, v{a_}"); A(f"v_and_b32 v{b_}, 7, v1"); A(f"v_lshl_add_u32 v{a_}, v{b_}, 4, v{a_}")
    A("s_lshr_b32 s8, s10, 2"); A("s_mul_i32 s9, s4, 28"); A("s_add_u32 s8, s8, s9"); A(f"s_mul_i32 s8, s8, {HSTR}")
    A("s_and_b32 s9, s10, 3"); A("s_lshl_b32 s9, s9, 7"); A("s_add_u32 s8, s8, s9"); A(f"s_add_u32 s8, s8, {WS_H}")
    gather("h", [(HP, a_, "s8", 0, -1, "0x00ffffff")], psleep, [82])
    lab("L_sv_hz")
    for k in (0, 2): A(f"v_add_f32_dpp v{HP+k}, v{HP+k}, v{HP+k} row_ror:8 {DPPF}")
    for sw in ("v_permlane16_swap_b32", "v_permlane32_swap_b32"):
        for k in (0, 2): A(f"v_mov_b32 v{HP+k+1}, v{HP+k}")
        for k in (0, 2): A(f"{sw} v{HP+k}, v{HP+k+1}")
        for k in (0, 2): A(f"v_add_f32 v{HP+k}, v{HP+k}, v{HP+k+1}")
    for k in (0, 2): A(f"v_max_f32 v{HP+k}, 0, v{HP+k}")
    A(f"v_cvt_pk_bf16_f32 v{HP}, v{HP}, v{HP}"); A(f"v_cvt_pk_bf16_f32 v{HP+1}, v{HP+2}, v{HP+2}")
    A(f"v_lshlrev_b32 v{a_}, 3, v1")
    A("s_mov_b64 exec, 0xff"); A(f"ds_write_b64 v{a_}, v[{HP}:{HP+1}] offset:{L_H}"); A("s_mov_b64 exec, -1")
    stamp(4)
    A(f"v_lshlrev_b32 v{c_}, 7, v1")
    gather("st", [(ST + 4, c_, "s11", 0, "0xff", 0)], 8, [82])
    combine(ST + 4, ST + 6)
    A(f"v_sub_f32 v{vG+2}, 0, v{a_}"); A(f"v_rcp_f32 v{vG+3}, v{b_}"); A(f"v_mul_f32 v{vG+3}, v{vG+3}, v{vG}")
    if loc: A(f"v_mov_b32 v{vG}, s78")
    A(f"v_mov_b32 v{a_}, 0"); A(f"v_mov_b32 v{b_}, 1")
    A("s_mov_b64 exec, 1")
    A(f"ds_write_b128 v{a_}, v[{vG}:{vG+3}] offset:{L_G}")
    A(f"ds_write_b32 v{a_}, v{b_} offset:{L_FLAG + 4}")
    A("s_mov_b64 exec, -1")
    stamp(5)
    if CK3: checkpoint(CK3, wsb + 0x1E8000, "ck3")
    if direct: A("s_waitcnt lgkmcnt(0)")
    else:
        P0, P1 = 40, 44
        A("s_lshl_b32 s9, s7, 14"); A(f"s_add_u32 s9, s9, {WS_O}"); A("s_lshl_b32 s14, s6, 11"); A("s_add_u32 s9, s9, s14")
        A(f"v_and_b32 v{a_}, 15, v1"); A(f"v_bfe_u32 v{b_}, v1, 4, 1"); A(f"v_lshl_add_u32 v{a_}, v{a_}, 1, v{b_}"); A(f"v_lshlrev_b32 v{a_}, 2, v{a_}")
        A("s_waitcnt lgkmcnt(0)"); A("s_barrier")
        if odelay: A(f"s_sleep {odelay}")
        gather("o", [(P0, vL16, "s9", 0, -1, -1), (P1, vL16, "s9", 1024, -1, -1)], osleep, [82, 84])
        A(f"v_add_f32 v{P0}, v{P0}, v{P1}"); A(f"v_add_f32 v{P0+2}, v{P0+2}, v{P1+2}")
        A(f"v_permlane16_swap_b32 v{P0}, v{P0+2}"); A(f"v_add_f32 v{P0}, v{P0}, v{P0+2}")
        A(f"v_mov_b32 v{P0+2}, v{P0}"); A(f"v_permlane32_swap_b32 v{P0}, v{P0+2}"); A(f"v_add_f32 v{P0}, v{P0}, v{P0+2}")
        A(f"v_cvt_pk_bf16_f32 v{P0}, v{P0}, v{P0}")
        A(f"ds_write_b32 v{a_}, v{P0} offset:{L_OL}")
        A("s_waitcnt lgkmcnt(0)"); A("s_barrier")
        stamp(6)
        if two:
            A("s_cmp_ge_u32 s2, 56"); A("s_cbranch_scc1 L_sv_end")
            A("s_cmp_ge_u32 s2, 28"); A("s_cselect_b32 s14, 28, 0"); A(f"s_mov_b32 s9, {WS_Y2[0]}"); A(f"s_cselect_b32 s9, {WS_Y2[1]}, s9")
            A("s_sub_u32 s14, s2, s14"); A("s_lshl_b32 s14, s14, 11"); A("s_add_u32 s9, s9, s14")
            srd(SO, 34, 1792); A("s_lshl_b32 s8, s2, 5"); A(f"v_lshlrev_b32 v{a_}, 2, v1")
            A("s_barrier")
            gather("fin2", [(P0, vL16, "s9", 0, -1, -1), (P1, vL16, "s9", 1024, -1, -1)], fsleep, [82, 84])
            A(f"v_add_f32 v{P0}, v{P0}, v{P1}"); A(f"v_add_f32 v{P0+2}, v{P0+2}, v{P1+2}")
            red3(P0)
            A(f"v_cvt_pk_bf16_f32 v{P0}, v{P0}, v{P0+2}")
            A("s_mov_b64 exec, 0xff"); A(f"buffer_store_dword v{P0}, v{a_}, s[{SO}:{SO+3}], s8 offen")
            A("s_cmp_lg_u32 s2, 0"); A("s_cbranch_scc1 L_sv_noep")
            A("s_mov_b64 exec, 1"); A(f"v_mov_b32 v{b_}, s12"); A(f"s_mov_b32 s13, {wsb}"); A(f"buffer_store_dword v{b_}, v{a_}, {WSR}, s13 offen")
            if lite:
                A("s_memrealtime s[90:91]"); A("s_waitcnt lgkmcnt(0)"); A("v_mov_b32 v8, s88"); A("v_mov_b32 v9, s90")
                A("s_mov_b32 s92, s36"); A("s_mov_b32 s93, s37"); A("s_mov_b32 s94, 256"); A("s_mov_b32 s95, 0x20000")
                A(f"buffer_store_dwordx2 v[8:9], v{a_}, s[92:95], 0 offen")
            lab("L_sv_noep")
            A("s_mov_b64 exec, -1")
            stamp(11)
            lab("L_sv_end")
    dump_stamps(True)
    lab("L_end")
    A("s_endpgm")

    body = pad_hazards(L)
    out = [HEADER.rstrip("\n"),
           "; One fused launch: 256 workgroups (one per CU) x 9 waves; wave 0 = service wave, waves 1-8 stream K/V (split-K decoding).",
           "; Hand-offs between workgroups go through d_ws as 16-byte {data, tag, data, tag} units; tag = (word 0 of d_ws on entry) + constant.",
           "; They use write-through stores unless a run-time check saw every reader on this XCD (then the shared L2 carries them).",
           f"; @launch grid=(256,1,1) block=(576,1,1) lds={lds or LDS_MIN}",
           '.amdgcn_target "amdgcn-amd-amdhsa--gfx950"', ".text", f".globl {NAME}", ".p2align 8", f".type {NAME},@function", f"{NAME}:"]
    out += body
    out += ['.section .rodata,"a"', ".p2align 6", f".amdhsa_kernel {NAME}",
            "  .amdhsa_next_free_vgpr 168", "  .amdhsa_next_free_sgpr 96", "  .amdhsa_accum_offset 168",
            "  .amdhsa_group_segment_fixed_size 0", "  .amdhsa_kernarg_size 96", "  .amdhsa_user_sgpr_count 2",
            "  .amdhsa_user_sgpr_kernarg_segment_ptr 1", "  .amdhsa_system_sgpr_workgroup_id_x 1", ".end_amdhsa_kernel"]
    return "\n".join(out) + "\n"

def masks(A, M, t0, t1):
    A(f"v_and_b32 v{t0}, 1, v1"); A(f"v_lshlrev_b32 v{t0}, 4, v{t0}"); A(f"v_mov_b32 v{t1}, 0xffff"); A(f"v_lshlrev_b32 v{t1}, v{t0}, v{t1}")
    A(f"v_bfe_u32 v{t0}, v1, 1, 2")
    for r in range(4): A(f"v_cmp_eq_u32 s[{80+2*r}:{81+2*r}], {r}, v{t0}")
    for r in range(4): A(f"v_cndmask_b32 v{M[r]}, 0, v{t1}, s[{80+2*r}:{81+2*r}]")

def mask_prime(A, M, t0, t1):
    A(f"v_lshrrev_b32 v{t0}, 1, v1"); A(f"v_xor_b32 v{t0}, v{t0}, v1"); A(f"v_bfe_u32 v{t0}, v{t0}, 3, 1")
    A(f"v_add_u32 v{t0}, -1, v{t0}")
    for r in range(4): A(f"v_and_b32 v{M[r]}, v{M[r]}, v{t0}")

def red2_lane(A, d, t0):
    A(f"v_and_b32 v{t0}, 15, v1"); A(f"v_lshlrev_b32 v{d}, 5, v{t0}")
    A(f"v_lshrrev_b32 v{t0}, 5, v1"); A(f"v_lshl_add_u32 v{d}, v{t0}, 9, v{d}")
    A(f"v_bfe_u32 v{t0}, v1, 4, 1"); A(f"v_lshl_add_u32 v{d}, v{t0}, 4, v{d}")

def wave_reduce(A, op, v, t):
    for ctl in ("quad_perm:[1,0,3,2]", "quad_perm:[2,3,0,1]", "row_half_mirror", "row_mirror"):
        A(f"v_{op}_f32_dpp v{v}, v{v}, v{v} {ctl} {DPPF}")
    for sw in ("v_permlane16_swap_b32", "v_permlane32_swap_b32"):
        A(f"v_mov_b32 v{t}, v{v}"); A(f"{sw} v{v}, v{t}"); A(f"v_{op}_f32 v{v}, v{v}, v{t}")

if __name__ == "__main__":
    kw = eval("dict(%s)" % (sys.argv[2] if len(sys.argv) > 2 else ""))
    open(sys.argv[1], "w").write(gen(**kw))
```

```python
import sys
sys.path.insert(0, "dev")
from asmlib import pad_hazards

NAME = "gated_mix__mha_block_cached__dense_activation_relu__decode_kernel"
HEADER = open("gated_mix__mha_block_cached__dense_activation_relu__decode.s.ref").read().split("; Override launch")[0]

WS_ST = 0x1F0000
WS_H = 0x8000
WS_Q = 0x40000
WS_O = 0x80000
WS_Y = 0x100000
WS_DBG = 0x400000
WS_SIZE = 268435456
L_W = 0x0000
L_W1 = 0x4000
L_RED1 = 0x0000
L_X = 0x6000
L_Q = 0x6800
L_H = 0x6A00
L_G = 0x6A40
L_FLAG = 0x6A80
L_WST = 0x6AC0
L_FIN = 0x6C00
L_OL = 0x6B00
L_PW = 0x7000
L_RED2 = 0x8000
LDS_MIN = L_RED2 + 8 * 2048
TAGC = 0x9E3779B9
SPIN_MAX = 1 << 19
SPIN_LDS = 1 << 22
DPPF = "row_mask:0xf bank_mask:0xf"
CEXP = "0x3db8aa3b"

def gen(LIM=2, LIMV=None, NQ=26, CQ=3, CP=3, R=33, NF=62, dbg=False, hdbg=False, diag=None,
        psleep=2, osleep=0, fsleep=0, svc=9, kflags="nt", wflags="nt", lds=None, LE=None, NG=16, NS=46, rot=None, early=False, dbase=10000, pp=1, pgap=8, wsb=0, diag2=None, xmap=0, spread=0, LP=None, kmap=0, ofl='', pat='tp w0 w1 w2 b0 b1 b2 s0 s1 s2', touch='', codepf=False, late_w=False, odelay=0, lite=False, endop=None, lst='sc1', bal=None, CK1=None, CK3=None, loc=True, kfirst=False, lretry=3, anlate=True, two=False, yb=False, prefin=False, swz=0, lightfin=False, direct=True, wat=31, svl=False, q2=False, tprio=False):
    if LIMV is None: LIMV = LIM
    WS_ST, WS_H, WS_Q, WS_O, WS_Y, WS_A = (x + wsb for x in (0x1F0000, 0x8000, 0x40000, 0x80000, 0x100000, 0x1F8000))
    HSTR = 4096
    if two: WS_H = wsb + 0x1000; HSTR = 3584
    WS_Y2 = (wsb + 0x32000, wsb + 0x1E0000)
    L = []
    A = lambda s: L.append("  " + s)
    lab = lambda s: L.append(s + ":")
    C = lambda s: L.append("  ; " + s)
    def srd(d, p, nbytes):
        A(f"s_mov_b32 s{d}, s{p}"); A(f"s_mov_b32 s{d+1}, s{p+1}"); A(f"s_mov_b32 s{d+2}, {nbytes}"); A(f"s_mov_b32 s{d+3}, 0x20000")
    SK, SV, SWO, SWS, SWQ, SW1, SW2, SX, SG, SO = 40, 44, 48, 52, 56, 60, 64, 68, 72, 76
    WSR = f"s[{SWS}:{SWS+3}]"
    if diag is not None: hdbg = True
    if diag2 is not None: dbg = True
    if hdbg: dbg = True
    def stamp(idx):
        if dbg:
            A("s_memrealtime s[90:91]"); A("s_waitcnt lgkmcnt(0)"); A(f"v_writelane_b32 v167, s90, {idx}")
    def dump_stamps(service=False):
        if hdbg:
            A("s_mov_b32 s92, s36"); A("s_mov_b32 s93, s37"); A("s_mov_b32 s94, 256"); A("s_mov_b32 s95, 0x20000")
            A("v_not_b32 v165, v167"); A("v_cmp_eq_u32 vcc, 0, v1"); A("v_cndmask_b32 v167, v167, v165, vcc")
            A("v_lshlrev_b32 v166, 2, v1")
            if service: A("v_add_u32 v166, 64, v166"); A("s_mov_b64 exec, 0x3e")
            else: A("s_mov_b64 exec, 0xffff")
            A("buffer_atomic_umax v167, v166, s[92:95], 0 offen"); A("s_mov_b64 exec, -1")
        elif dbg:
            if diag2 is not None and not service:
                tg = "s" if service else "m"
                A("s_add_u32 s84, s88, 4500"); lab(f"L_dd_{tg}"); A("s_sleep 8")
                A("s_memrealtime s[90:91]"); A("s_waitcnt lgkmcnt(0)"); A("s_sub_u32 s85, s90, s84"); A("s_cmp_lt_i32 s85, 0"); A(f"s_cbranch_scc1 L_dd_{tg}")
            A("s_mul_i32 s92, s2, 9"); A("s_add_u32 s92, s92, s93"); A("s_lshl_b32 s92, s92, 8"); A(f"s_add_u32 s92, s92, {WS_DBG}")
            A("v_lshlrev_b32 v166, 2, v1"); A(f"buffer_store_dword v167, v166, {WSR}, s92 offen sc1")
    if dbg: R = min(R, 32)
    def spin_tail(label, sleep):
        if sleep: A(f"s_sleep {sleep}")
        A("s_sub_u32 s80, s80, 1"); A("s_cmp_lg_u32 s80, 0"); A(f"s_cbranch_scc1 {label}")
    def lds_wait(off, val, tag, ta, tb, sleep=1, cmp="eq"):
        A(f"v_mov_b32 v{ta}, 0"); A(f"s_mov_b32 s80, {SPIN_LDS}")
        lab(f"L_wait_{tag}")
        A(f"ds_read_b32 v{tb}, v{ta} offset:{off}"); A("s_waitcnt lgkmcnt(0)"); A(f"v_readfirstlane_b32 s81, v{tb}")
        A(f"s_cmp_{cmp}_u32 s81, {val}"); A(f"s_cbranch_scc1 L_got_{tag}")
        spin_tail(f"L_wait_{tag}", sleep)
        lab(f"L_got_{tag}")
    def gather(tag, items, sleep, pool, pre=False):
        if svc < {"q": 3, "h": 4, "st": 5}.get(tag, 0):
            A("s_waitcnt vmcnt(0)"); return
        assert len(pool) >= len(items)
        for (reg, va, so, imm, lo, hi), ms in zip(items, pool): A(f"s_mov_b32 s{ms}, {lo}"); A(f"s_mov_b32 s{ms+1}, {hi}")
        A(f"s_mov_b32 s80, {SPIN_MAX}")
        if pre: A(f"s_branch L_g_{tag}_chk")
        lab(f"L_g_{tag}")
        for k, ((reg, va, so, imm, lo, hi), ms) in enumerate(zip(items, pool)):
            A(f"s_mov_b64 exec, s[{ms}:{ms+1}]")
            if len(items) > 1: A(f"s_cbranch_execz L_g_{tag}_s{k}")
            A(f"buffer_load_dwordx4 v[{reg}:{reg+3}], v{va}, {WSR}, {so} offen offset:{imm} sc1")
            if len(items) > 1: lab(f"L_g_{tag}_s{k}")
        A("s_waitcnt vmcnt(0)")
        if pre: lab(f"L_g_{tag}_chk")
        for k, ((reg, va, so, imm, lo, hi), ms) in enumerate(zip(items, pool)):
            if len(items) > 1: A(f"s_mov_b64 exec, s[{ms}:{ms+1}]")
            A(f"v_cmp_ne_u32 vcc, s12, v{reg+1}"); A(f"v_cmp_ne_u32 s[{ms}:{ms+1}], s12, v{reg+3}")
            A(f"s_or_b64 s[{ms}:{ms+1}], s[{ms}:{ms+1}], vcc")
            if k == 0: A(f"s_mov_b64 s[14:15], s[{ms}:{ms+1}]")
            else: A(f"s_or_b64 s[14:15], s[14:15], s[{ms}:{ms+1}]")
        A("s_cmp_eq_u64 s[14:15], 0"); A(f"s_cbranch_scc1 L_g_{tag}_ok")
        spin_tail(f"L_g_{tag}", sleep)
        lab(f"L_g_{tag}_ok")
        A("s_mov_b64 exec, -1")

    nst = [0]
    def xstore(stores):
        if not loc:
            for st_ in stores: A(st_ + " " + lst)
            return
        nst[0] += 1
        A("s_cmp_eq_u32 s78, 1"); A(f"s_cbranch_scc1 L_xl{nst[0]}")
        for st_ in stores: A(st_ + " sc1")
        A(f"s_branch L_xd{nst[0]}"); lab(f"L_xl{nst[0]}")
        for st_ in stores: A(st_)
        lab(f"L_xd{nst[0]}")
    def poll_issue(sets, k, items):
        for j, (va, so, imm) in enumerate(items):
            r = sets[k] + 4 * j
            A(f"buffer_load_dwordx4 v[{r}:{r+3}], v{va}, {WSR}, {so} offen offset:{imm} sc1")
    def poll_loop(tag, sets, items, first):
        n = len(sets); ni = len(items)
        for k in range(1, n):
            if pgap: A(f"s_sleep {pgap}")
            poll_issue(sets, k, items)
        A(f"s_mov_b32 s80, {SPIN_MAX}")
        lab(f"L_p_{tag}")
        for k in range(n):
            A(f"s_waitcnt vmcnt({(n - 1) * ni})")
            for j in range(ni):
                r = sets[k] + 4 * j
                A(f"v_cmp_ne_u32 {'vcc' if j == 0 else 's[84:85]'}, s12, v{r+1}"); A(f"v_cmp_ne_u32 s[{82 + 4 * j}:{83 + 4 * j}], s12, v{r+3}")
            if ni == 2: A("s_or_b64 vcc, vcc, s[84:85]"); A("s_or_b64 vcc, vcc, s[86:87]")
            A("s_or_b64 vcc, vcc, s[82:83]")
            A(f"s_cbranch_scc0 L_p_{tag}_ok{k}")
            poll_issue(sets, k, items)
        A("s_sub_u32 s80, s80, 1"); A("s_cmp_lg_u32 s80, 0"); A(f"s_cbranch_scc1 L_p_{tag}")
        A("s_waitcnt vmcnt(0)")
        for k in range(n):
            lab(f"L_p_{tag}_ok{k}")
            first(sets[k])
            if k < n - 1: A(f"s_branch L_p_{tag}_done")
        lab(f"L_p_{tag}_done")
        A("s_nop 1")

    if (dbg and early) or lite: A("s_memrealtime s[88:89]")
    A("s_cmp_ge_u32 s2, 256"); A("s_cbranch_scc1 L_end")
    if kfirst: A(f"s_load_dwordx2 s[{SK}:{SK+1}], s[0:1], 8")
    else:
        A("s_load_dwordx16 s[16:31], s[0:1], 0")
        A("s_load_dwordx8 s[32:39], s[0:1], 64")
    A("v_lshrrev_b32 v2, 6, v0"); A("v_and_b32 v1, 63, v0")
    A("v_readfirstlane_b32 s3, v2")
    C("workgroup id -> s4 batch, s5 head (2*(id&7) + bit), s6 key split, s7 = 16b+h, s10 = 8h+s")
    A("s_and_b32 s14, s2, 7"); A("s_lshr_b32 s15, s2, 3")
    if xmap: A(f"s_xor_b32 s14, s14, {xmap}")
    if spread:
        mk = (1 << spread) - 1
        sh = 3 - spread
        A(f"s_lshr_b32 s4, s14, {sh}"); A(f"s_and_b32 s5, s15, {mk}"); A("s_xor_b32 s6, s4, s5")
        A("s_xor_b32 s15, s15, s6"); A(f"s_lshl_b32 s6, s6, {sh}"); A("s_xor_b32 s14, s14, s6")
    A("s_lshr_b32 s4, s15, 4")
    A("s_bfe_u32 s5, s15, 0x10003"); A("s_lshl_b32 s14, s14, 1"); A("s_add_u32 s5, s5, s14")
    A("s_and_b32 s6, s15, 7")
    A("s_lshl_b32 s7, s4, 4"); A("s_add_u32 s7, s7, s5")
    A("s_lshl_b32 s10, s5, 3"); A("s_add_u32 s10, s10, s6")
    if dbg:
        A("s_mov_b32 s93, s3"); A("v_mov_b32 v167, 0")
        if not early: A("s_memrealtime s[88:89]")
    A(f"s_cmp_eq_u32 s3, {8 if svl else 0}"); A("s_cbranch_scc1 L_service")
    if dbg and svl: A("s_add_u32 s93, s3, 1")

    C("==== streaming waves (64 keys each): K tiles, QK^T on MFMA, local softmax, V tiles, PV on MFMA ====")
    if not svl: A("s_sub_u32 s3, s3, 1")
    vK, vV, vWo, vW2, t0, t1 = 2, 3, 4, 5, 6, 7
    M = [8, 9, 10, 11]; Q = [12, 16]; DB = [20, 24]; AB = [20, 24]; SG_ = [28, 29, 30, 31]; ACC = 32
    vMW = 12; vE = [13, 14, 15, 16]; vLW = 17
    RING = 36
    A(f"v_bfe_u32 v{t0}, v1, 2, 2"); A(f"v_lshlrev_b32 v{vK}, 9, v{t0}")
    A(f"v_lshrrev_b32 v{t0}, 4, v1"); A(f"v_lshl_add_u32 v{vK}, v{t0}, 6, v{vK}")
    A(f"v_and_b32 v{t0}, 3, v1"); A(f"v_lshl_add_u32 v{vK}, v{t0}, 4, v{vK}")
    PB = {t: 11 + k for k, t in enumerate(pat.split())}
    A("s_lshl_b32 s8, s7, 21")
    for reg, nm in (("s3", "w"), ("s6", "s")):
        k = 0
        while k < 3:
            e = k
            while e < 2 and PB[f"{nm}{e+1}"] == PB[f"{nm}{e}"] + 1: e += 1
            A(f"s_bfe_u32 s14, {reg}, {hex(((e - k + 1) << 16) + k)}"); A(f"s_lshl_b32 s14, s14, {PB[f'{nm}{k}']}"); A("s_add_u32 s8, s8, s14")
            k = e + 1
    def toff(beta, tp):
        o = (tp << PB["tp"]) | ((beta & 1) << PB["b0"]) | (((beta >> 1) & 1) << PB["b1"]) | ((beta >> 2) << PB["b2"])
        return o & ~0xfff, o & 0xfff
    A(f"v_add_u32 v{vK}, s8, v{vK}")
    if kfirst:
        A(f"s_mov_b32 s{SK+2}, 0x4000000"); A(f"s_mov_b32 s{SK+3}, 0x20000"); A("s_waitcnt lgkmcnt(0)")
    else:
        A("s_waitcnt lgkmcnt(0)")
        srd(SK, 18, 0x4000000)

    loads = [("K", beta, tp, jh) for beta in range(8) for tp in range(2) for jh in range(2)]
    loads += [("V", beta, tp, kp) for beta in range(8) for tp in range(2) for kp in range(2)]
    loads += [("F", cb) for cb in range(2)] + [("W", r, cb) for r in range(2) for cb in range(2)]
    free = list(range(R)); slot = {}
    nissued = [0]; landed = [-1]; cur_soff = [None]
    if rot:
        A(f"s_mul_i32 s11, s2, {rot}"); A("s_lshr_b32 s14, s2, 3"); A("s_add_u32 s11, s11, s14"); A("s_and_b32 s11, s11, 7"); A("s_lshl_b32 s11, s11, 15")
    def soff(val):
        if val == 0 and not rot: return "0"
        if cur_soff[0] != val:
            if rot: A(f"s_add_u32 s13, s11, {val}"); A("s_and_b32 s13, s13, 0x3ffff")
            else: A(f"s_mov_b32 s13, {val}")
            cur_soff[0] = val
        return "s13"
    def wait_landed(n):
        if n <= landed[0]: return
        A(f"s_waitcnt vmcnt({nissued[0] - 1 - n})"); landed[0] = n
    def issue(n):
        ld = loads[n]; sl = free.pop(0); slot[n] = sl; r = RING + 4 * sl
        if ld[0] == "K":
            A(f"buffer_load_dwordx4 v[{r}:{r+3}], v{vK}, s[{SK}:{SK+3}], {soff(toff(ld[1], ld[2])[0])} offen offset:{toff(ld[1], ld[2])[1] + ld[3] * 256} {kflags}")
        elif ld[0] == "V":
            A(f"buffer_load_dwordx4 v[{r}:{r+3}], v{vV}, s[{SV}:{SV+3}], {soff(toff(ld[1], ld[2])[0])} offen offset:{toff(ld[1], ld[2])[1] + ld[3] * 1024} {kflags}")
        elif ld[0] == "W":
            A(f"buffer_load_dwordx4 v[{r}:{r+3}], v{vWo}, s[{SWO}:{SWO+3}], 0 offen offset:{ld[1] * 896 + ld[2] * 512} {wflags}")
        else:
            A(f"buffer_load_dwordx4 v[{r}:{r+3}], v{vW2}, s[{SW2}:{SW2+3}], 0 offen offset:{ld[1] * 512} {wflags}")
        nissued[0] += 1
    sreg = lambda n: RING + 4 * slot[n]
    qk_next = [0]; qk_post = [None]; pv_next = [0]; pslot = {}
    def qk_dpp(tau):
        beta, tp = tau >> 1, tau & 1; G = beta >> 1; t = 2 * (beta & 1) + tp; d = DB[tau & 1]
        A(f"v_mov_b32_dpp v{t0}, v{d} quad_perm:[0,0,0,0] {DPPF}")
        A(f"v_add_f32_dpp v{t0}, v{d+1}, v{t0} quad_perm:[1,1,1,1] {DPPF}")
        A(f"v_add_f32_dpp v{t0}, v{d+2}, v{t0} quad_perm:[2,2,2,2] {DPPF}")
        A(f"v_add_f32_dpp v{SG_[G]}, v{d+3}, v{t0} quad_perm:[3,3,3,3] row_mask:0xf bank_mask:{hex(1 << t)}")
    def qk_tile(tau):
        d = DB[tau & 1]; a0 = sreg(2 * tau); a1 = sreg(2 * tau + 1)
        A(f"v_mfma_f32_16x16x32_bf16 v[{d}:{d+3}], v[{a0}:{a0+3}], v[{Q[0]}:{Q[0]+3}], 0")
        A(f"v_mfma_f32_16x16x32_bf16 v[{d}:{d+3}], v[{a1}:{a1+3}], v[{Q[1]}:{Q[1]+3}], v[{d}:{d+3}]")
        free.extend([slot[2 * tau], slot[2 * tau + 1]])
        if qk_post[0] is not None: qk_dpp(qk_post[0])
        qk_post[0] = tau
    def red_hi(op, v, t):
        for ctl in ("row_ror:4", "row_ror:8"): A(f"v_{op}_f32_dpp v{v}, v{v}, v{v} {ctl} {DPPF}")
        for sw in ("v_permlane16_swap_b32", "v_permlane32_swap_b32"):
            A(f"v_mov_b32 v{t}, v{v}"); A(f"{sw} v{v}, v{t}"); A(f"v_{op}_f32 v{v}, v{v}, v{t}")
    def sm_a():
        C("scores rounded to bf16 like the reference; true max over this wave's keys")
        qk_dpp(qk_post[0]); qk_post[0] = None
        S = SG_
        A(f"v_cvt_pk_bf16_f32 v{t0}, v{S[0]}, v{S[1]}"); A(f"v_cvt_pk_bf16_f32 v{t1}, v{S[2]}, v{S[3]}")
        A(f"v_lshlrev_b32 v{S[0]}, 16, v{t0}"); A(f"v_and_b32 v{S[1]}, 0xffff0000, v{t0}")
        A(f"v_lshlrev_b32 v{S[2]}, 16, v{t1}"); A(f"v_and_b32 v{S[3]}, 0xffff0000, v{t1}")
        A(f"v_max3_f32 v{vMW}, v{S[0]}, v{S[1]}, v{S[2]}"); A(f"v_max_f32 v{vMW}, v{vMW}, v{S[3]}")
        red_hi("max", vMW, t0)
    def sm_b():
        S = SG_
        A(f"s_mov_b32 s81, {CEXP}"); A(f"v_mul_f32 v{vMW}, s81, v{vMW}")
        for k in range(4): A(f"v_fma_f32 v{vE[k]}, v{S[k]}, s81, -v{vMW}")
        for k in range(4): A(f"v_exp_f32 v{vE[k]}, v{vE[k]}")
        A("s_lshl_b32 s14, s3, 8"); A(f"v_lshl_add_u32 v{t1}, v1, 2, s14")
        for k in range(4): A(f"v_cvt_pk_bf16_f32 v{S[k]}, v{vE[k]}, v{vE[k]}")
        A("s_mov_b32 exec_lo, 0x11111111"); A("s_mov_b32 exec_hi, 0x11111111")
        A(f"ds_write_b128 v{t1}, v[{S[0]}:{S[3]}] offset:{L_PW}")
        A("s_mov_b64 exec, -1")
        A(f"v_lshrrev_b32 v{t1}, 5, v1"); A(f"v_lshl_add_u32 v{t1}, v{t1}, 6, s14")
        for t in range(4):
            for kp in range(2):
                sl = free.pop(0); pslot[(t, kp)] = sl; r = RING + 4 * sl
                A(f"ds_read_b128 v[{r}:{r+3}], v{t1} offset:{L_PW + (8 * kp + t) * 16}")
        A(f"v_add_f32 v{vLW}, v{vE[0]}, v{vE[1]}"); A(f"v_add_f32 v{t0}, v{vE[2]}, v{vE[3]}"); A(f"v_add_f32 v{vLW}, v{vLW}, v{t0}")
    def sm_c():
        red_hi("add", vLW, t0)
        A(f"v_mov_b32 v{vMW+1}, v{vLW}")
        A("s_lshl_b32 s14, s3, 3"); A(f"v_mov_b32 v{t0}, s14"); A(f"v_mov_b32 v{t1}, 1"); A(f"v_mov_b32 v{vE[2]}, 0")
        A("s_mov_b64 exec, 1")
        A(f"ds_write_b64 v{t0}, v[{vMW}:{vMW+1}] offset:{L_WST}")
        A(f"ds_add_u32 v{vE[2]}, v{t1} offset:{L_FLAG + 8}")
        A("s_mov_b64 exec, -1")
        A("s_waitcnt lgkmcnt(0)")
        stamp(3)
    def pv_tile(m):
        beta, tp, kp = m >> 2, (m >> 1) & 1, m & 1; G = beta >> 1; t = 2 * (beta & 1) + tp
        a = AB[m & 1]; p = RING + 4 * pslot[(t, kp)] + G; bv = sreg(32 + m)
        for r in range(4): A(f"v_and_b32 v{a+r}, v{p}, v{M[r]}")
        c = "0" if m == 0 else f"v[{ACC}:{ACC+3}]"
        A(f"v_mfma_f32_16x16x32_bf16 v[{ACC}:{ACC+3}], v[{a}:{a+3}], v[{bv}:{bv+3}], {c}")
        free.append(slot[32 + m])
    vFS = 18; vHP = 19
    GG = 14
    def fetch_stats():
        stamp(4); lds_wait(L_FLAG + 4, 1, "st", t0, t1); stamp(5)
        A(f"ds_read_b128 v[14:17], v{t0} offset:{L_G}")
        A(f"v_lshrrev_b32 v{t1}, 5, v1"); A("s_lshl_b32 s14, s3, 3"); A(f"v_lshl_add_u32 v{t1}, v{t1}, 2, s14")
        A(f"ds_read_b32 v{vHP}, v{t1} offset:{L_H}")
        A("s_waitcnt lgkmcnt(0)")
        if loc: A("v_readfirstlane_b32 s78, v14")
        A(f"v_add_f32 v{vFS}, v{vMW}, v16"); A(f"v_exp_f32 v{vFS}, v{vFS}"); A(f"v_mul_f32 v{vFS}, v{vFS}, v17")

    N = len(loads); chunks = [sm_a, sm_b, sm_c]; sm_done = False
    for n in range(64 if (late_w or wat is not None) else N):
        if n < 64:
            lim = LIM if n < 32 else LIMV
            if LP: lim = LP[n % len(LP)]
            if LE and n >= LE[0]: lim = LE[1]
            if bal and n >= bal["at"][0]:
                if n in bal["at"]:
                    A(f"v_mov_b32 v{t0}, 0"); A(f"ds_read_b32 v{t1}, v{t0} offset:{L_G + 20}"); A("s_waitcnt lgkmcnt(0)"); A(f"v_readfirstlane_b32 s9, v{t1}")
                wl = bal["wl"]
                for k_, (w_, th_) in enumerate(zip(wl[:-1], bal["th"])):
                    w_ = w_[n % len(w_)] if isinstance(w_, tuple) else w_
                    A(f"s_cmp_ge_u32 s9, {th_}"); A(f"s_cbranch_scc1 L_bal{n}_{k_}"); A(f"s_waitcnt vmcnt({w_})"); lab(f"L_bal{n}_{k_}")
                wait_landed(n - wl[-1] - 1)
            elif n > max(lim, LIM): wait_landed(n - lim - 1)
        if n in (LIM + 1, 8, 16, 48): stamp({LIM + 1: 12, 8: 13, 16: 14, 48: 15}[n])
        if n == NQ:
            stamp(1)
            lds_wait(L_FLAG, 1, "q", t0, t1)
            A(f"v_lshrrev_b32 v{t0}, 4, v1"); A(f"v_and_b32 v{t1}, 3, v1"); A(f"v_lshl_add_u32 v{t0}, v{t0}, 2, v{t1}"); A(f"v_lshlrev_b32 v{t0}, 4, v{t0}")
            A(f"ds_read_b128 v[{Q[0]}:{Q[0]+3}], v{t0} offset:{L_Q}")
            A(f"ds_read_b128 v[{Q[1]}:{Q[1]+3}], v{t0} offset:{L_Q + 256}")
            A(f"v_mov_b32 v{t0}, 0"); A(f"ds_read_b32 v{t1}, v{t0} offset:{L_G + 16}")
            A("s_waitcnt lgkmcnt(0)"); A(f"v_readfirstlane_b32 s12, v{t1}")
            stamp(2)
        assert free, f"no free slot at load {n}"
        issue(n)
        if n == LIM:
            if kfirst:
                A("s_load_dwordx16 s[16:31], s[0:1], 0"); A("s_load_dwordx8 s[32:39], s[0:1], 64"); A("s_waitcnt lgkmcnt(0)")
            srd(SV, 20, 0x4000000); srd(SWO, 24, 3670016); srd(SW2, 30, 1605632); srd(SWS, 38, WS_SIZE)
            A("s_barrier")
            A(f"v_lshl_add_u32 v{vV}, v1, 4, s8")
            A(f"v_and_b32 v{t0}, 31, v1"); A(f"v_lshlrev_b32 v{t0}, 4, v{t0}"); A(f"v_lshrrev_b32 v{t1}, 5, v1")
            A(f"v_mul_u32_u24 v{vWo}, 1792, v{t1}"); A(f"v_add_u32 v{vWo}, v{vWo}, v{t0}")
            A(f"v_mul_u32_u24 v{vW2}, 896, v{t1}"); A(f"v_add_u32 v{vW2}, v{vW2}, v{t0}")
            A("s_lshl_b32 s14, s10, 5"); A("s_lshl_b32 s15, s3, 2"); A("s_add_u32 s14, s14, s15"); A("s_mul_i32 s14, s14, 896")
            A(f"v_add_u32 v{vWo}, s14, v{vWo}")
            A("s_lshl_b32 s14, s10, 4"); A("s_lshl_b32 s15, s3, 1"); A("s_add_u32 s14, s14, s15"); A("s_mul_i32 s14, s14, 896")
            A(f"v_add_u32 v{vW2}, s14, v{vW2}")
            masks(A, M, t0, t1); mask_prime(A, M, t0, t1)
            if dbg: A("s_waitcnt lgkmcnt(0)"); A("v_writelane_b32 v167, s88, 0")
            if diag2 is not None:
                A("s_getreg_b32 s14, hwreg(HW_REG_XCC_ID)"); A("s_and_b32 s14, s14, 15"); A("s_and_b32 s15, s2, 7"); A("s_cmp_eq_u32 s14, s15")
                A("s_cselect_b32 s14, 1000, 1"); A("s_add_u32 s14, s14, s88"); A("v_writelane_b32 v167, s14, 16")
        if n >= NQ and not sm_done:
            c = 0
            while qk_next[0] < 16 and c < CQ and 2 * qk_next[0] + 1 <= landed[0]:
                qk_tile(qk_next[0]); qk_next[0] += 1; c += 1
            if qk_next[0] == 16:
                chunks.pop(0)()
                sm_done = not chunks
        elif sm_done:
            c = 0
            while pv_next[0] < 32 and c < CP and 32 + pv_next[0] <= landed[0]:
                pv_tile(pv_next[0]); pv_next[0] += 1; c += 1
        if n == NF: fetch_stats()
        if n in (NG, NS, CK1, CK3):
            A(f"v_mov_b32 v{t0}, 0"); A(f"v_mov_b32 v{t1}, {n}")
            A("s_mov_b64 exec, 1"); A(f"ds_max_u32 v{t0}, v{t1} offset:{L_FLAG + 12}"); A("s_mov_b64 exec, -1")
    assert sm_done
    vRw, vO, vY, vR1 = vK, vV, 13, 16
    red2_lane(A, vRw, t0)
    A("s_lshl_b32 s14, s3, 10"); A(f"v_add_u32 v{vR1}, s14, v{vRw}")
    A("s_lshl_b32 s14, s3, 11"); A(f"s_add_u32 s14, s14, {L_RED2}"); A(f"v_add_u32 v{vRw}, s14, v{vRw}")
    A("s_lshl_b32 s14, s3, 6"); A(f"v_add_u32 v{vY}, s14, v1")
    A(f"v_lshrrev_b32 v{t0}, 4, v{vY}"); A(f"v_lshlrev_b32 v{vO}, 11, v{t0}"); A(f"v_and_b32 v{t0}, 15, v1"); A(f"v_lshl_add_u32 v{vO}, v{t0}, 4, v{vO}")
    if swz:
        A(f"v_lshrrev_b32 v{t0}, 4, v{vY}"); A(f"v_add_u32 v{t0}, s6, v{t0}"); A(f"v_and_b32 v{t0}, 7, v{t0}"); A(f"v_lshl_add_u32 v{vO}, v{t0}, 8, v{vO}")
        A("s_lshl_b32 s11, s7, 14"); A(f"s_add_u32 s11, s11, {WS_O}")
    else:
        A("s_lshl_b32 s9, s7, 14"); A(f"s_add_u32 s9, s9, {WS_O}"); A("s_lshl_b32 s14, s6, 8"); A("s_add_u32 s11, s9, s14")
    while pv_next[0] < 32:
        wait_landed(32 + pv_next[0])
        if wat is not None and pv_next[0] == wat:
            for n in range(64, N): issue(n)
        pv_tile(pv_next[0]); pv_next[0] += 1
    C("==== tail: scale by exp(m_wave - M) * g / L, reduce over waves, hand the o partial to the 8 workgroups of this (b, h) ====")
    lab("L_tail")
    if late_w == 3:
        for n in range(64, N): issue(n)
    stamp(6)
    A(f"v_lshlrev_b32 v{t0}, 3, v{vY}")
    for k in range(4): A(f"v_mul_f32 v{ACC+k}, v{vFS}, v{ACC+k}")
    A(f"ds_write_b128 v{vR1}, v[{ACC}:{ACC+3}] offset:{L_RED1}")
    A("s_waitcnt lgkmcnt(0)"); A("s_barrier")
    if late_w in (1, 2):
        free[:] = sorted(free + list(pslot.values())); pslot.clear()
        held = free[-6:]; del free[-6:]
    fr = [RING + 4 * s_ for s_ in sorted(free + list(pslot.values()))]
    run = [r for r in fr if all(r + 4 * k in fr for k in range(4))][0]
    rest = [r for r in fr if not run <= r < run + 16]
    FS = []
    for _ in range(pp):
        r = [r for r in rest if r + 4 in rest][0]; FS.append(r); rest.remove(r); rest.remove(r + 4)
    PS = rest[:pp]; assert len(PS) == pp
    Y = run; U = 20
    if late_w == 2:
        free[:] = held
        for n in range(64, N): issue(n)
    A("s_cmp_ge_u32 s3, 2"); A("s_cbranch_scc1 L_odone")
    if tprio: A("s_setprio 2")
    for k in range(8): A(f"ds_read_b64 v[{Y+2*k}:{Y+2*k+1}], v{t0} offset:{L_RED1 + 1024 * k}")
    A(f"v_mov_b32 v{U+1}, s12"); A(f"v_mov_b32 v{U+3}, s12")
    A("s_waitcnt lgkmcnt(0)")
    for st in (1, 2):
        for k in range(0, 8, 2 * st):
            for c_ in range(2): A(f"v_add_f32 v{Y+2*k+c_}, v{Y+2*k+c_}, v{Y+2*(k+st)+c_}")
    A(f"v_add_f32 v{U}, v{Y}, v{Y+8}"); A(f"v_add_f32 v{U+2}, v{Y+1}, v{Y+9}")
    xstore([f"buffer_store_dwordx4 v[{U}:{U+3}], v{vO}, {WSR}, s11 offen"])
    lab("L_odone")
    if late_w == 1:
        free[:] = held
        for n in range(64, N): issue(n)
    stamp(7)
    OG = 28; DA, DBb = Y, Y + 4
    C("ffn rows (relu(h) x w2) scaled by 1-g while the o slices arrive; then o slice x wo rows on top")
    for q in range(4): A(f"v_and_b32 v{ACC+q}, v{vHP}, v{M[q]}")
    A(f"v_add_u32 v{t0}, {L_RED2}, v{t0}")
    A(f"v_lshrrev_b32 v{t1}, 5, v1"); A("s_lshl_b32 s14, s3, 4"); A(f"v_lshl_add_u32 v{t1}, v{t1}, 3, s14")
    if two:
        A("s_lshl_b32 s9, s4, 3"); A("s_add_u32 s9, s9, s6"); A("s_lshl_b32 s9, s9, 2"); A("s_add_u32 s9, s9, s3"); A("s_sub_u32 s9, s9, 4")
        A("s_cmp_ge_u32 s9, 28"); A("s_cselect_b32 s14, 28, 0"); A("s_cselect_b32 s15, 16, 0")
        A(f"s_mov_b32 s13, {WS_Y2[0]}"); A(f"s_cselect_b32 s13, {WS_Y2[1]}, s13")
        A("s_sub_u32 s14, s9, s14"); A("s_add_u32 s15, s15, s5"); A("s_mul_i32 s11, s15, 28672"); A("s_lshl_b32 s15, s14, 10")
        A("s_add_u32 s11, s11, s15"); A(f"s_add_u32 s11, s11, {WS_Y}")
        A("s_lshl_b32 s14, s14, 11"); A("s_add_u32 s13, s13, s14"); A("s_lshl_b32 s14, s5, 7"); A("s_add_u32 s13, s13, s14")
        A(f"v_lshlrev_b32 v{vR1}, 4, v1")
    FID = "s2"
    if lightfin:
        FID = "s8"
        A("s_lshl_b32 s14, s4, 3"); A("s_add_u32 s14, s14, s6")
        A("s_lshl_b32 s15, s5, 4"); A("s_add_u32 s15, s15, s14"); A("s_sub_u32 s15, s15, 224")
        A("s_cmp_lt_u32 s15, 28"); A("s_cselect_b32 s8, s15, 99")
        A("s_lshl_b32 s15, s5, 1"); A("s_add_u32 s15, s15, s14"); A("s_add_u32 s15, s15, 14")
        A("s_cmp_ge_u32 s14, 14"); A("s_cselect_b32 s15, s15, 99"); A("s_cmp_lt_u32 s5, 14"); A("s_cselect_b32 s8, s15, s8")
    A("s_waitcnt vmcnt(4)")
    for cb, d in ((0, DA), (1, DBb)):
        bw = sreg(64 + cb); A(f"v_mfma_f32_16x16x32_bf16 v[{d}:{d+3}], v[{ACC}:{ACC+3}], v[{bw}:{bw+3}], 0")
    for k in range(8): A(f"v_mul_f32 v{DA+k}, v15, v{DA+k}")
    if prefin:
        A("s_cmp_ge_u32 s2, 56"); A("s_cbranch_scc1 L_pf_no")
        A("s_lshl_b32 s13, s2, 14"); A("s_lshl_b32 s15, s3, 11"); A("s_add_u32 s13, s13, s15"); A(f"s_add_u32 s13, s13, {WS_Y}")
        A(f"v_lshlrev_b32 v{vR1}, 4, v1")
        for k in range(2): A(f"buffer_load_dwordx4 v[{FS[0]+4*k}:{FS[0]+4*k+3}], v{vR1}, {WSR}, s13 offen offset:{1024 * k} sc1")
        A("s_cmp_lt_u32 s3, 2"); A("s_cbranch_scc1 L_pf_3"); A("s_waitcnt vmcnt(2)"); lab("L_pf_3"); A("s_waitcnt vmcnt(3)"); A("s_branch L_pf_done")
        lab("L_pf_no")
        A("s_cmp_lt_u32 s3, 2"); A("s_cbranch_scc1 L_ow1"); A("s_waitcnt vmcnt(0)"); lab("L_ow1"); A("s_waitcnt vmcnt(1)")
        lab("L_pf_done")
    elif direct: pass
    elif late_w == 1: A("s_waitcnt vmcnt(0) lgkmcnt(0)")
    else: A("s_cmp_lt_u32 s3, 2"); A("s_cbranch_scc1 L_ow1"); A("s_waitcnt vmcnt(0)"); lab("L_ow1"); A("s_waitcnt vmcnt(1) lgkmcnt(0)")
    if direct:
        A(f"v_and_b32 v{t1}, 7, v1"); A(f"v_lshlrev_b32 v{vO}, 8, v{t1}"); A(f"v_lshrrev_b32 v{t1}, 5, v1"); A(f"v_lshl_add_u32 v{vO}, v{t1}, 4, v{vO}")
        A("s_lshl_b32 s9, s7, 14"); A(f"s_add_u32 s9, s9, {WS_O}"); A("s_lshl_b32 s14, s6, 11"); A("s_add_u32 s9, s9, s14"); A("s_lshl_b32 s14, s3, 5"); A("s_add_u32 s9, s9, s14")
        gather("od", [(OG, vO, "s9", 0, -1, -1)], osleep, [82])
        stamp(8)
        for ctl in ("quad_perm:[1,0,3,2]", "quad_perm:[2,3,0,1]", "row_half_mirror"):
            for k in (0, 2): A(f"v_add_f32_dpp v{OG+k}, v{OG+k}, v{OG+k} {ctl} {DPPF}")
        A(f"v_cvt_pk_bf16_f32 v{OG}, v{OG}, v{OG}"); A(f"v_cvt_pk_bf16_f32 v{OG+1}, v{OG+2}, v{OG+2}")
    else:
        A("s_barrier")
        A(f"ds_read_b64 v[{OG}:{OG+1}], v{t1} offset:{L_OL}")
        stamp(8)
        A("s_waitcnt lgkmcnt(0)")
    for r in range(2):
        for q in range(4): A(f"v_and_b32 v{AB[r]+q}, v{OG+r}, v{M[q]}")
    for r in range(2):
        for cb, d in ((0, DA), (1, DBb)):
            bw = sreg(66 + 2 * r + cb)
            A(f"v_mfma_f32_16x16x32_bf16 v[{d}:{d+3}], v[{AB[r]}:{AB[r]+3}], v[{bw}:{bw+3}], v[{d}:{d+3}]")
    A(f"ds_write_b128 v{vRw}, v[{DA}:{DA+3}]"); A(f"ds_write_b128 v{vRw}, v[{DBb}:{DBb+3}] offset:1024")
    A("s_waitcnt lgkmcnt(0)"); A("s_barrier")
    def red3(r):
        for k in (0, 2): A(f"v_add_f32_dpp v{r+k}, v{r+k}, v{r+k} row_ror:8 {DPPF}")
        A(f"v_permlane16_swap_b32 v{r}, v{r+2}"); A(f"v_add_f32 v{r}, v{r}, v{r+2}")
        A(f"v_mov_b32 v{r+2}, v{r}"); A(f"v_permlane32_swap_b32 v{r}, v{r+2}"); A(f"v_add_f32 v{r}, v{r}, v{r+2}")
        A(f"v_mov_b32 v{r+2}, v{r}"); A(f"v_permlane16_swap_b32 v{r}, v{r+2}")
    if two:
        A("s_cmp_ge_u32 s3, 4"); A("s_cbranch_scc1 L_lvl1")
        for k in range(8): A(f"ds_read_b64 v[{Y+2*k}:{Y+2*k+1}], v{t0} offset:{2048 * k}")
        A(f"v_cmp_gt_u32 vcc, 224, v{vY}")
        A(f"v_lshrrev_b32 v{t1}, 3, v{vY}"); A(f"v_lshlrev_b32 v{vO}, 10, v{t1}")
        A(f"v_and_b32 v{t1}, 7, v1"); A(f"v_lshl_add_u32 v{vO}, v{t1}, 4, v{vO}")
        A("s_mul_i32 s14, s7, 28672"); A("s_lshl_b32 s15, s6, 7"); A("s_add_u32 s14, s14, s15"); A(f"s_add_u32 s14, s14, {WS_Y}")
        A(f"v_mov_b32 v{U+1}, s12"); A(f"v_mov_b32 v{U+3}, s12")
        A("s_waitcnt lgkmcnt(0)")
        for st in (1, 2):
            for k in range(0, 8, 2 * st):
                for c_ in range(2): A(f"v_add_f32 v{Y+2*k+c_}, v{Y+2*k+c_}, v{Y+2*(k+st)+c_}")
        A(f"v_add_f32 v{U}, v{Y}, v{Y+8}"); A(f"v_add_f32 v{U+2}, v{Y+1}, v{Y+9}")
        A("s_and_b64 exec, exec, vcc")
        xstore([f"buffer_store_dwordx4 v[{U}:{U+3}], v{vO}, {WSR}, s14 offen"])
        A("s_mov_b64 exec, -1")
        stamp(9)
        A("s_branch L_fin_skip")
        lab("L_lvl1")
        A("s_cmp_ge_u32 s9, 56"); A("s_cbranch_scc1 L_fin_skip")
        F = 24
        gather("l1", [(F, vR1, "s11", 0, -1, -1)], 0, [82])
        red3(F)
        A("s_mov_b64 exec, 0xff")
        A(f"buffer_store_dwordx4 v[{F}:{F+3}], v{vR1}, {WSR}, s13 offen sc1")
        A("s_mov_b64 exec, -1")
        stamp(10)
    else:
        pass
    if yb and not two:
        A("s_cmp_ge_u32 s3, 2"); A("s_cbranch_scc1 L_ydone")
        Z = fr[4] if False else None
        ZR = [r for r in fr if all(r + 4 * k in fr for k in range(8))][0]
        A(f"v_lshlrev_b32 v{t0}, 4, v{vY}"); A(f"v_add_u32 v{t0}, {L_RED2}, v{t0}")
        for k in range(8): A(f"ds_read_b128 v[{ZR+4*k}:{ZR+4*k+3}], v{t0} offset:{2048 * k}")
        A(f"v_cmp_gt_u32 vcc, 112, v{vY}")
        A(f"v_lshrrev_b32 v{t1}, 3, v{vY}"); A(f"v_lshlrev_b32 v{vO}, 14, v{t1}")
        A(f"v_and_b32 v{t1}, 7, v1"); A(f"v_lshl_add_u32 v{vO}, v{t1}, 4, v{vO}")
        A(f"s_mul_i32 s14, s4, {14 * 16384}"); A("s_lshl_b32 s15, s10, 7"); A("s_add_u32 s14, s14, s15"); A(f"s_add_u32 s14, s14, {WS_Y}")
        A(f"v_mov_b32 v{U+1}, s12"); A(f"v_mov_b32 v{U+3}, s12")
        A("s_waitcnt lgkmcnt(0)")
        for st in (1, 2, 4):
            for k in range(0, 8, 2 * st):
                for c_ in range(4): A(f"v_add_f32 v{ZR+4*k+c_}, v{ZR+4*k+c_}, v{ZR+4*(k+st)+c_}")
        A(f"v_cvt_pk_bf16_f32 v{U}, v{ZR}, v{ZR+1}"); A(f"v_cvt_pk_bf16_f32 v{U+2}, v{ZR+2}, v{ZR+3}")
        A("s_and_saveexec_b64 s[82:83], vcc")
        A(f"buffer_store_dwordx4 v[{U}:{U+3}], v{vO}, {WSR}, s14 offen sc1")
        A("s_mov_b64 exec, s[82:83]")
        lab("L_ydone")
        stamp(9)
        A("s_cmp_ge_u32 s2, 28"); A("s_cbranch_scc1 L_fin_skip")
        A("s_lshl_b32 s13, s2, 14"); A("s_lshl_b32 s15, s3, 11"); A("s_add_u32 s13, s13, s15"); A(f"s_add_u32 s13, s13, {WS_Y}")
        A(f"v_lshlrev_b32 v{t0}, 4, v1")
        F = 24; G_ = 8
        gather("fin", [(F, t0, "s13", 0, -1, -1), (F + 4, t0, "s13", 1024, -1, -1)], fsleep, [82, 84])
        srd(SO, 34, 1792)
        for k in (0, 2, 4, 6): A(f"v_and_b32 v{F+k+1}, 0xffff0000, v{F+k}"); A(f"v_lshlrev_b32 v{F+k}, 16, v{F+k}")
        for k in range(4): A(f"v_add_f32 v{F+k}, v{F+k}, v{F+4+k}")
        stamp(10)
        for k in range(4): A(f"v_add_f32_dpp v{F+k}, v{F+k}, v{F+k} row_ror:8 {DPPF}")
        A(f"v_permlane16_swap_b32 v{F}, v{F+1}"); A(f"v_permlane16_swap_b32 v{F+2}, v{F+3}")
        A(f"v_add_f32 v{F}, v{F}, v{F+1}"); A(f"v_add_f32 v{F+2}, v{F+2}, v{F+3}")
        A(f"v_permlane32_swap_b32 v{F}, v{F+2}"); A(f"v_add_f32 v{F}, v{F}, v{F+2}")
        A(f"v_and_b32 v{t0}, 7, v1"); A(f"v_lshrrev_b32 v{t1}, 4, v1"); A(f"v_lshl_add_u32 v{t0}, v{t0}, 2, v{t1}")
        A(f"v_lshlrev_b32 v{t0}, 5, v{t0}"); A("s_lshl_b32 s14, s3, 2"); A(f"v_add_u32 v{t0}, s14, v{t0}")
        A("s_mov_b32 exec_lo, 0x00ff00ff"); A("s_mov_b32 exec_hi, 0x00ff00ff")
        A(f"ds_write_b32 v{t0}, v{F} offset:{L_PW}")
        A("s_mov_b64 exec, -1")
        A("s_waitcnt lgkmcnt(0)"); A("s_barrier")
        A("s_cmp_lg_u32 s3, 0"); A("s_cbranch_scc1 L_fin_skip")
        A(f"v_and_b32 v{t0}, 31, v1"); A(f"v_lshlrev_b32 v{t1}, 5, v{t0}")
        A(f"ds_read_b128 v[{F}:{F+3}], v{t1} offset:{L_PW}"); A(f"ds_read_b128 v[{F+4}:{F+7}], v{t1} offset:{L_PW + 16}")
        A(f"v_lshlrev_b32 v{t0}, 1, v{t0}"); A("s_lshl_b32 s14, s2, 6")
        A("s_waitcnt lgkmcnt(0)")
        for st in (1, 2, 4):
            for k in range(0, 8, 2 * st): A(f"v_add_f32 v{F+k}, v{F+k}, v{F+k+st}")
        A(f"v_cvt_pk_bf16_f32 v{F}, v{F}, v{F}")
        A("s_mov_b32 exec_hi, 0")
        A(f"buffer_store_short v{F}, v{t0}, s[{SO}:{SO+3}], s14 offen")
        A("s_cmp_lg_u32 s2, 0"); A("s_cbranch_scc1 L_fin_noep")
        A("s_mov_b64 exec, 1"); A(f"v_mov_b32 v{t0}, 0"); A(f"v_mov_b32 v{t1}, s12")
        A(f"s_mov_b32 s13, {wsb}"); A(f"buffer_store_dword v{t1}, v{t0}, {WSR}, s13 offen")
        if lite:
            A("s_memrealtime s[90:91]"); A("s_waitcnt lgkmcnt(0)"); A("v_mov_b32 v8, s88"); A("v_mov_b32 v9, s90")
            A("s_mov_b32 s92, s36"); A("s_mov_b32 s93, s37"); A("s_mov_b32 s94, 256"); A("s_mov_b32 s95, 0x20000")
            A(f"buffer_store_dwordx2 v[8:9], v{t0}, s[92:95], 0 offen")
        lab("L_fin_noep")
        A("s_mov_b64 exec, -1")
    if not two and not yb:
        A("s_cmp_ge_u32 s3, 4"); A("s_cbranch_scc1 L_ydone")
        if tprio: A("s_setprio 2")
        for k in range(8): A(f"ds_read_b64 v[{Y+2*k}:{Y+2*k+1}], v{t0} offset:{2048 * k}")
        A(f"v_cmp_gt_u32 vcc, 224, v{vY}")
        A(f"v_lshrrev_b32 v{t1}, 3, v{vY}"); A(f"v_lshlrev_b32 v{vO}, 14, v{t1}")
        if swz:
            A(f"v_mul_u32_u24 v{t1}, {swz}, v{t1}"); A(f"v_add_u32 v{t1}, s10, v{t1}"); A(f"v_and_b32 v{t1}, 127, v{t1}"); A(f"v_lshl_add_u32 v{vO}, v{t1}, 7, v{vO}")
        A(f"v_and_b32 v{t1}, 7, v1"); A(f"v_lshl_add_u32 v{vO}, v{t1}, 4, v{vO}")
        A(f"s_mul_i32 s14, s4, {28 * 16384}")
        if not swz: A("s_lshl_b32 s15, s10, 7"); A("s_add_u32 s14, s14, s15")
        A(f"s_add_u32 s14, s14, {WS_Y}")
        A(f"v_mov_b32 v{U+1}, s12"); A(f"v_mov_b32 v{U+3}, s12")
        A("s_waitcnt lgkmcnt(0)")
        for st in (1, 2):
            for k in range(0, 8, 2 * st):
                for c_ in range(2): A(f"v_add_f32 v{Y+2*k+c_}, v{Y+2*k+c_}, v{Y+2*(k+st)+c_}")
        A(f"v_add_f32 v{U}, v{Y}, v{Y+8}"); A(f"v_add_f32 v{U+2}, v{Y+1}, v{Y+9}")
        A("s_and_saveexec_b64 s[82:83], vcc")
        A(f"buffer_store_dwordx4 v[{U}:{U+3}], v{vO}, {WSR}, s14 offen sc1")
        A("s_mov_b64 exec, s[82:83]")
        lab("L_ydone")
        stamp(9)
        A(f"s_cmp_ge_u32 {FID}, 56"); A("s_cbranch_scc1 L_fin_skip")
        F = 24
        srd(SO, 34, 1792)
        if prefin:
            A("s_waitcnt vmcnt(1)"); A("s_cmp_lt_u32 s3, 4"); A("s_cbranch_scc1 L_pf_w"); A("s_waitcnt vmcnt(0)"); lab("L_pf_w")
            G0 = FS[0]
            gather("fin", [(G0, vR1, "s13", 0, -1, -1), (G0 + 4, vR1, "s13", 1024, -1, -1)], fsleep, [82, 84], pre=True)
        else:
            A(f"s_lshl_b32 s13, {FID}, 14"); A("s_lshl_b32 s15, s3, 11"); A("s_add_u32 s13, s13, s15"); A(f"s_add_u32 s13, s13, {WS_Y}")
            A(f"v_lshlrev_b32 v{t0}, 4, v1")
            G0 = F
            gather("fin", [(F, t0, "s13", 0, -1, -1), (F + 4, t0, "s13", 1024, -1, -1)], fsleep, [82, 84])
        A(f"v_add_f32 v{F}, v{G0}, v{G0+4}"); A(f"v_add_f32 v{F+2}, v{G0+2}, v{G0+6}")
        stamp(10)
        A(f"v_add_f32_dpp v{F}, v{F}, v{F} row_ror:8 {DPPF}"); A(f"v_add_f32_dpp v{F+2}, v{F+2}, v{F+2} row_ror:8 {DPPF}")
        A(f"v_permlane16_swap_b32 v{F}, v{F+2}"); A(f"v_add_f32 v{F}, v{F}, v{F+2}")
        A(f"v_mov_b32 v{F+2}, v{F}"); A(f"v_permlane32_swap_b32 v{F}, v{F+2}"); A(f"v_add_f32 v{F}, v{F}, v{F+2}")
        A(f"v_and_b32 v{t0}, 7, v1"); A(f"v_bfe_u32 v{t1}, v1, 4, 1"); A(f"v_lshl_add_u32 v{t0}, v{t0}, 1, v{t1}")
        A(f"v_lshlrev_b32 v{t0}, 5, v{t0}"); A("s_lshl_b32 s14, s3, 2"); A(f"v_add_u32 v{t0}, s14, v{t0}")
        A("s_mov_b32 exec_lo, 0x00ff00ff"); A("s_mov_b32 exec_hi, 0")
        A(f"ds_write_b32 v{t0}, v{F} offset:{L_FIN}")
        A("s_mov_b64 exec, -1")
        A("s_waitcnt lgkmcnt(0)"); A("s_barrier")
        A("s_cmp_lg_u32 s3, 0"); A("s_cbranch_scc1 L_fin_skip")
        A(f"v_and_b32 v{t0}, 15, v1"); A(f"v_lshlrev_b32 v{t1}, 5, v{t0}")
        A(f"ds_read_b128 v[{F}:{F+3}], v{t1} offset:{L_FIN}"); A(f"ds_read_b128 v[{F+4}:{F+7}], v{t1} offset:{L_FIN + 16}")
        A(f"v_lshlrev_b32 v{t0}, 1, v{t0}"); A(f"s_lshl_b32 s14, {FID}, 5")
        A("s_waitcnt lgkmcnt(0)")
        for st in (1, 2, 4):
            for k in range(0, 8, 2 * st): A(f"v_add_f32 v{F+k}, v{F+k}, v{F+k+st}")
        A(f"v_cvt_pk_bf16_f32 v{F}, v{F}, v{F}")
        A("s_mov_b64 exec, 0xffff")
        A(f"buffer_store_short v{F}, v{t0}, s[{SO}:{SO+3}], s14 offen {ofl}")
        A(f"s_cmp_lg_u32 {FID}, 0"); A("s_cbranch_scc1 L_fin_noep")
        A("s_mov_b64 exec, 1"); A(f"v_mov_b32 v{t0}, 0"); A(f"v_mov_b32 v{t1}, s12")
        A(f"s_mov_b32 s13, {wsb}"); A(f"buffer_store_dword v{t1}, v{t0}, {WSR}, s13 offen {ofl}")
        if lite:
            A("s_memrealtime s[90:91]"); A("s_waitcnt lgkmcnt(0)"); A("v_mov_b32 v8, s88"); A("v_mov_b32 v9, s90")
            A("s_mov_b32 s92, s36"); A("s_mov_b32 s93, s37"); A("s_mov_b32 s94, 256"); A("s_mov_b32 s95, 0x20000")
            A(f"buffer_store_dwordx2 v[8:9], v{t0}, s[92:95], 0 offen")
        lab("L_fin_noep")
        A("s_mov_b64 exec, -1")
    lab("L_fin_skip")
    stamp(11)
    dump_stamps()
    if diag2 is not None:
        role, kk, op = diag2[:3]; xf = diag2[3] if len(diag2) > 3 else None
        A("s_cmp_lg_u32 s2, 0"); A("s_cbranch_scc1 L_diag_end"); A("s_cmp_lg_u32 s3, 0"); A("s_cbranch_scc1 L_diag_end")
        A("s_add_u32 s84, s88, 7000"); lab("L_diag1"); A("s_sleep 8")
        A("s_memrealtime s[90:91]"); A("s_waitcnt lgkmcnt(0)"); A("s_sub_u32 s85, s90, s84"); A("s_cmp_lt_i32 s85, 0"); A("s_cbranch_scc1 L_diag1")
        A("v_mov_b32 v10, 0"); A("v_mov_b32 v11, -1"); A("v_mov_b32 v14, 0")
        nr = 4 if role else 32
        for r in range(nr):
            if role: A(f"v_add_u32 v12, {r * 64}, v1"); A("v_mul_u32_u24 v12, 2304, v12")
            else:
                A(f"v_lshrrev_b32 v12, 3, v1"); A(f"v_add_u32 v12, {r * 8}, v12"); A("v_mul_u32_u24 v12, 9, v12"); A("v_and_b32 v13, 7, v1"); A("v_add_u32 v12, v12, v13")
                A("v_add_u32 v12, 1, v12"); A("v_lshlrev_b32 v12, 8, v12")
            A(f"s_mov_b32 s13, {WS_DBG}")
            A(f"buffer_load_dword v8, v12, {WSR}, s13 offen sc1"); A(f"buffer_load_dword v9, v12, {WSR}, s13 offen offset:{4 * kk} sc1"); A("s_waitcnt vmcnt(0)")
            A("v_subrev_u32 v8, s88, v8"); A("v_add_u32 v8, 0x1000, v8"); A("v_min_u32 v11, v11, v8")
            A("v_cmp_ne_u32 vcc, 0, v9"); A("v_subrev_u32 v9, s88, v9"); A("v_add_u32 v9, 0x1000, v9"); A("v_cndmask_b32 v9, 0, v9, vcc")
            if xf is not None:
                A("v_lshrrev_b32 v13, 3, v1"); A(f"v_cmp_eq_u32 vcc, {xf}, v13"); A("v_cndmask_b32 v9, 0, v9, vcc")
            A("v_max_u32 v10, v10, v9"); A("v_add_u32 v14, v14, v9")
        if op == "mean": A(f"v_lshrrev_b32 v10, {2 if role else 5}, v14")
        if op in ("xmax", "xmin"):
            for ctl in ("quad_perm:[1,0,3,2]", "quad_perm:[2,3,0,1]", "row_half_mirror"): A(f"v_add_u32_dpp v14, v14, v14 {ctl} {DPPF}")
            A("v_lshrrev_b32 v10, 8, v14")
        for v, o in ((10, "add" if op == "mean" else "min" if op == "xmin" else "max"), (11, "min")):
            for ctl in ("quad_perm:[1,0,3,2]", "quad_perm:[2,3,0,1]", "row_half_mirror", "row_mirror"): A(f"v_{o}_u32_dpp v{v}, v{v}, v{v} {ctl} {DPPF}")
            for sw in ("v_permlane16_swap_b32", "v_permlane32_swap_b32"):
                A(f"v_mov_b32 v12, v{v}"); A(f"{sw} v{v}, v12"); A(f"v_{o}_u32 v{v}, v{v}, v12")
        if op == "mean": A(f"v_lshrrev_b32 v10, {6 if xf is None else 3}, v10")
        A("v_sub_u32 v10, v10, v11"); A("v_readfirstlane_b32 s85, v10"); A("s_lshl_b32 s85, s85, 2")
        if kk < 0: A("s_mov_b32 s85, 0")
        A("s_min_u32 s85, s85, 40000"); A(f"s_add_u32 s84, s88, {dbase}"); A("s_add_u32 s84, s84, s85")
        lab("L_diag2")
        A("s_memrealtime s[90:91]"); A("s_waitcnt lgkmcnt(0)"); A("s_sub_u32 s85, s90, s84"); A("s_cmp_lt_i32 s85, 0"); A("s_cbranch_scc1 L_diag2")
        lab("L_diag_end")
    if diag is not None:
        A("s_cmp_lg_u32 s2, 0"); A("s_cbranch_scc1 L_diag_end"); A("s_cmp_lg_u32 s3, 0"); A("s_cbranch_scc1 L_diag_end")
        A("s_add_u32 s84, s88, 7000")
        lab("L_diag1")
        A("s_memrealtime s[90:91]"); A("s_waitcnt lgkmcnt(0)"); A("s_sub_u32 s85, s90, s84"); A("s_cmp_lt_i32 s85, 0"); A("s_cbranch_scc1 L_diag1")
        A("v_lshlrev_b32 v166, 2, v1"); A("buffer_load_dword v165, v166, s[92:95], 0 offen sc1"); A("s_waitcnt vmcnt(0)")
        A("v_readlane_b32 s84, v165, 0"); A(f"v_readlane_b32 s85, v165, {max(diag, 0)}")
        A("s_not_b32 s84, s84"); A("s_sub_u32 s85, s85, s84"); A("s_lshl_b32 s85, s85, 2")
        if diag <= 0: A("s_mov_b32 s85, 0")
        A("s_min_u32 s85, s85, 40000"); A(f"s_add_u32 s84, s88, {dbase}"); A("s_add_u32 s84, s84, s85")
        lab("L_diag2")
        A("s_memrealtime s[90:91]"); A("s_waitcnt lgkmcnt(0)"); A("s_sub_u32 s85, s90, s84"); A("s_cmp_lt_i32 s85, 0"); A("s_cbranch_scc1 L_diag2")
        lab("L_diag_end")
    A("s_endpgm")

    lab("L_service")
    if kfirst: A("s_load_dwordx16 s[16:31], s[0:1], 0"); A("s_load_dwordx8 s[32:39], s[0:1], 64")
    C("==== service wave: partial q / ffn-hidden GEMVs, gate, statistics, hand-offs ====")
    if not svl: A("s_setprio 3")
    if dbg and svl: A("s_mov_b32 s93, 0")
    vL16, vQe, vQo, vFe, vFo, vXq, vXf = 2, 3, 4, 5, 6, 7, 8
    vTr = [9, 10, 11, 12]; a_, b_, c_, d_ = 14, 15, 16, 17; vG, vOG = 20, 21
    A(f"v_mov_b32 v{a_}, 0"); A(f"v_mov_b32 v{b_}, 0"); A(f"v_mov_b32 v{c_}, 0"); A(f"v_mov_b32 v{d_}, 0")
    A(f"ds_write_b128 v{a_}, v[{a_}:{d_}] offset:{L_FLAG}")
    if bal: A(f"v_mov_b32 v{vG}, {bal.get('init', 0)}"); A(f"ds_write_b32 v{a_}, v{vG} offset:{L_G + 20}")
    A(f"v_lshlrev_b32 v{vL16}, 4, v1")
    A("s_and_b32 s8, s6, 3"); A("s_lshr_b32 s9, s6, 2"); A("s_lshl_b32 s14, s4, 1"); A("s_add_u32 s9, s9, s14")
    A("s_lshl_b32 s15, s4, 3"); A("s_add_u32 s15, s15, s6")
    A("s_cmp_ge_u32 s15, 7"); A("s_cselect_b32 s11, 1, 0"); A("s_mul_i32 s14, s11, 7"); A("s_sub_u32 s81, s15, s14")
    A("s_cmp_lt_u32 s15, 14"); A("s_cselect_b32 s79, 1, 0"); A("s_cmp_lt_u32 s5, 14"); A("s_cselect_b32 s79, s79, 0")
    A("s_lshl_b32 s14, s5, 1"); A("s_add_u32 s11, s11, s14")
    A(f"v_bfe_u32 v{a_}, v1, 4, 1"); A(f"v_lshlrev_b32 v{a_}, 1, v{a_}"); A(f"v_and_b32 v{b_}, 7, v1"); A(f"v_xor_b32 v{a_}, v{a_}, v{b_}")
    A(f"v_xor_b32 v{b_}, 4, v{a_}"); A(f"v_lshrrev_b32 v{c_}, 3, v1")
    A(f"s_mul_i32 s14, s9, {112 * 8192}"); A("s_lshl_b32 s15, s5, 9"); A("s_add_u32 s14, s14, s15"); A("s_lshl_b32 s15, s8, 7"); A("s_add_u32 s14, s14, s15")
    A(f"v_lshl_add_u32 v{d_}, v{c_}, 13, s14")
    A(f"v_lshl_add_u32 v{vQe}, v{a_}, 4, v{d_}"); A(f"v_lshl_add_u32 v{vQo}, v{b_}, 4, v{d_}")
    A(f"s_mul_i32 s14, s81, {64 * 3584}"); A("s_lshl_b32 s15, s11, 7"); A("s_add_u32 s14, s14, s15")
    A(f"v_mul_u32_u24 v{d_}, 3584, v{c_}"); A(f"v_add_u32 v{d_}, s14, v{d_}")
    A(f"v_lshl_add_u32 v{vFe}, v{a_}, 4, v{d_}"); A(f"v_lshl_add_u32 v{vFo}, v{b_}, 4, v{d_}")
    A("s_waitcnt lgkmcnt(0)")
    A(f"s_mov_b32 s13, {wsb}"); A("s_load_dword s12, s[38:39], s13")
    srd(SX, 16, 1792); srd(SWQ, 22, 3670016); srd(SG, 32, 896); srd(SW1, 28, 1605632)
    A("s_cmp_eq_u32 s79, 1"); A(f"s_cselect_b32 s{SW1+2}, s{SW1+2}, 0")
    if svc == 0:
        for d in (SX, SWQ, SG, SW1): A(f"s_mov_b32 s{d+2}, 0")
    if svc == 0.5:
        for d in (SW1,): A(f"s_mov_b32 s{d+2}, 0")
    if svl == 2: A("s_barrier")
    A(f"s_mov_b32 m0, {L_X}")
    for k in range(2): A(f"buffer_load_dwordx4 v{vL16}, s[{SX}:{SX+3}], 0 offen offset:{1024 * k} lds")
    for m in range(16):
        A(f"s_mov_b32 m0, {L_W + 1024 * m}")
        A(f"s_mov_b32 s13, {m * 65536 if m < 14 else 0x7f000000}")
        A(f"buffer_load_dwordx4 v{vQo if m & 1 else vQe}, s[{SWQ}:{SWQ+3}], s13 offen {wflags} lds")
    for m in range(8):
        A(f"s_mov_b32 m0, {L_W1 + 1024 * m}"); A(f"s_mov_b32 s13, {m * 8 * 3584}")
        A(f"buffer_load_dwordx4 v{vFo if m & 1 else vFe}, s[{SW1}:{SW1+3}], s13 offen {wflags} lds")
    GW = 24
    A(f"buffer_load_dwordx4 v[{GW}:{GW+3}], v{vL16}, s[{SG}:{SG+3}], 0 offen")
    if svl: A("s_setprio 3")
    if svl != 2: A("s_barrier")
    srd(SWS, 38, WS_SIZE)
    A(f"v_and_b32 v{a_}, 1, v1"); A(f"v_mul_u32_u24 v{b_}, 896, v{a_}"); A(f"v_lshrrev_b32 v{a_}, 4, v1"); A(f"v_lshl_add_u32 v{b_}, v{a_}, 4, v{b_}")
    A("s_mul_i32 s14, s9, 224"); A(f"v_add_u32 v{vXq}, s14, v{b_}"); A("s_lshl_b32 s14, s81, 7"); A(f"v_add_u32 v{vXf}, s14, v{b_}")
    A(f"v_lshlrev_b32 v{b_}, 10, v{a_}"); A(f"v_bfe_u32 v{c_}, v1, 2, 2"); A(f"v_lshl_add_u32 v{b_}, v{c_}, 7, v{b_}")
    A(f"v_bfe_u32 v{c_}, v1, 1, 1"); A(f"v_lshl_add_u32 v{b_}, v{c_}, 4, v{b_}"); A(f"v_and_b32 v{c_}, 1, v1"); A(f"v_lshl_add_u32 v{b_}, v{c_}, 3, v{b_}")
    A(f"v_bfe_u32 v{c_}, v1, 3, 2")
    for cg in range(4):
        A(f"v_xor_b32 v{d_}, {cg}, v{c_}"); A(f"v_lshl_add_u32 v{vTr[cg]}, v{d_}, 5, v{b_}")
    A("s_lshl_b32 s8, s8, 9"); A("s_lshl_b32 s9, s9, 11"); A("s_add_u32 s8, s8, s9"); A("s_lshl_b32 s9, s5, 13"); A("s_add_u32 s8, s8, s9")
    A(f"s_add_u32 s8, s8, {WS_Q}"); A(f"s_add_u32 s9, s8, {16 * 8192}")
    A(f"s_mul_i32 s11, s11, {HSTR}"); A("s_lshl_b32 s81, s81, 9"); A("s_add_u32 s11, s11, s81"); A(f"s_add_u32 s11, s11, {WS_H}")
    A("s_mov_b32 s82, 0xffff0000"); A("s_mov_b32 s83, 0"); A("s_mov_b32 s84, 0"); A("s_mov_b32 s85, 0xffff"); A("s_mov_b32 s86, 0"); A("s_mov_b32 s87, 0xffff0000")
    if dbg: A("s_waitcnt lgkmcnt(0)"); A("v_writelane_b32 v167, s88, 0")
    A("s_waitcnt lgkmcnt(0)"); A(f"s_add_u32 s12, s12, {TAGC}")
    XA = 28; TB = 56; D = 120; UQ = 136; UH = 144; AN = 152
    ex = 0
    if loc:
        ex = 1
        A("s_getreg_b32 s78, hwreg(HW_REG_XCC_ID)"); A("s_and_b32 s78, s78, 15")
        A(f"v_mov_b32 v{AN}, s78"); A(f"v_mov_b32 v{AN+1}, s12"); A(f"v_mov_b32 v{AN+2}, s78"); A(f"v_mov_b32 v{AN+3}, s12")
        A("s_lshl_b32 s13, s10, 7"); A("s_lshl_b32 s14, s4, 14"); A("s_add_u32 s13, s13, s14"); A(f"s_add_u32 s13, s13, {WS_A}")
        A("s_mov_b64 exec, 0xff"); A(f"buffer_store_dwordx4 v[{AN}:{AN+3}], v{vL16}, {WSR}, s13 offen"); A("s_mov_b64 exec, -1")
    A(f"s_waitcnt vmcnt({25 + ex})")
    for m in range(4): A(f"ds_read_b128 v[{XA+4*m}:{XA+4*m+3}], v{vXq} offset:{L_X + 64 * m}")
    for m in range(2): A(f"ds_read_b128 v[{XA+16+4*m}:{XA+16+4*m+3}], v{vXf} offset:{L_X + 64 * m}")
    def gemv(img, steps, xa, vm_after, U_):
        for m in range(steps):
            A(f"s_waitcnt vmcnt({vm_after + 4 * (steps - 1 - m)})")
            for cg in range(4):
                r = TB + 16 * m + 4 * cg
                A(f"ds_read_b64_tr_b16 v[{r}:{r+1}], v{vTr[cg]} offset:{img + 4096 * m}")
                A(f"ds_read_b64_tr_b16 v[{r+2}:{r+3}], v{vTr[cg]} offset:{img + 4096 * m + 512}")
            if m: mf(m - 1, xa, 8)
        mf(steps - 1, xa, 0)
        for bb in range(2):
            for cg in range(1, 4): A(f"v_cndmask_b32 v{D+bb}, v{D+bb}, v{D+4*cg+bb}, s[{80+2*cg}:{81+2*cg}]")
        for bb in range(2):
            A(f"v_mov_b32 v{U_+4*bb}, v{D+bb}"); A(f"v_mov_b32_dpp v{U_+4*bb+2}, v{D+bb} quad_perm:[1,1,3,3] {DPPF}")
            A(f"v_mov_b32 v{U_+4*bb+1}, s12"); A(f"v_mov_b32 v{U_+4*bb+3}, s12")
    def mf(m, xa, lg):
        A(f"s_waitcnt lgkmcnt({lg})")
        for cg in range(4):
            r = TB + 16 * m + 4 * cg; d = D + 4 * cg; c = "0" if m == 0 else f"v[{d}:{d+3}]"
            A(f"v_mfma_f32_16x16x32_bf16 v[{d}:{d+3}], v[{xa+4*m}:{xa+4*m+3}], v[{r}:{r+3}], {c}")
    def publish(s0, s1, U_):
        if svc < 2: return
        A("s_mov_b32 exec_lo, 0x55555555"); A("s_mov_b32 exec_hi, 0x55555555")
        xstore([f"buffer_store_dwordx4 v[{U_}:{U_+3}], v{d_}, {WSR}, {s0} offen", f"buffer_store_dwordx4 v[{U_+4}:{U_+7}], v{d_}, {WSR}, {s1} offen"])
        A("s_mov_b64 exec, -1")
    A(f"v_lshlrev_b32 v{d_}, 3, v1")
    gemv(L_W, 4, XA, 9 + ex, UQ)
    if loc:
        A(f"v_lshrrev_b32 v{a_}, 3, v1"); A(f"v_lshlrev_b32 v{a_}, 14, v{a_}"); A(f"v_and_b32 v{b_}, 7, v1"); A(f"v_lshl_add_u32 v{a_}, v{b_}, 7, v{a_}")
        A("s_lshl_b32 s13, s5, 10"); A(f"s_add_u32 s13, s13, {WS_A}")
        if not anlate: A("s_mov_b64 exec, 0xffff"); A(f"buffer_load_dwordx4 v[{AN+4}:{AN+7}], v{a_}, {WSR}, s13 offen sc1"); A("s_mov_b64 exec, -1")
    else: publish("s8", "s9", UQ)
    stamp(1)
    gemv(L_W1, 2, XA + 16, 2 if loc and anlate else 3, UH)
    if loc and anlate:
        A("s_waitcnt vmcnt(0)")
        A("s_mov_b64 exec, 0xffff"); A(f"buffer_load_dwordx4 v[{AN+4}:{AN+7}], v{a_}, {WSR}, s13 offen sc1"); A("s_mov_b64 exec, -1")
    if loc:
        A(f"s_mov_b32 s77, {lretry}"); A("s_mov_b64 exec, 0xffff")
        lab("L_an")
        A("s_waitcnt vmcnt(0)")
        for k, r_ in enumerate(("s78", "s12", "s78", "s12")): A(f"v_cmp_eq_u32 s[{80+2*k}:{81+2*k}], {r_}, v{AN+4+k}")
        A("s_and_b64 s[80:81], s[80:81], s[82:83]"); A("s_and_b64 s[84:85], s[84:85], s[86:87]"); A("s_and_b64 s[80:81], s[80:81], s[84:85]")
        A("s_cmp_eq_u32 s80, 0xffff"); A("s_cbranch_scc1 L_an_done")
        A("s_sub_u32 s77, s77, 1"); A("s_cbranch_scc1 L_an_fail")
        A(f"buffer_load_dwordx4 v[{AN+4}:{AN+7}], v{a_}, {WSR}, s13 offen sc1"); A("s_branch L_an")
        lab("L_an_fail")
        A("s_cmp_eq_u32 s80, 0xffff")
        lab("L_an_done")
        A("s_cselect_b32 s78, 1, 0"); A("s_mov_b64 exec, -1")
        if dbg: A("s_mul_i32 s14, s78, 1000"); A("s_add_u32 s14, s14, s88"); A("v_writelane_b32 v167, s14, 7"); A("s_add_u32 s14, s77, 1"); A("s_mul_i32 s14, s14, 100"); A("s_add_u32 s14, s14, s88"); A("v_writelane_b32 v167, s14, 8")
        if loc == "off": A("s_mov_b32 s78, 0")
        publish("s8", "s9", UQ)
    A("s_cmp_eq_u32 s79, 0"); A("s_cbranch_scc1 L_sv_noh")
    A(f"s_add_u32 s9, s11, {28 * HSTR}")
    publish("s11", "s9", UH)
    lab("L_sv_noh")
    stamp(2)
    QP = 56
    if NG is not None: lds_wait(L_FLAG + 12, NG, "pg1", a_, b_, sleep=4, cmp="ge")
    if q2:
        C("two steps: each workgroup sums 32 columns over the 4 k quarters, then all read the finished bf16 q")
        A(f"v_lshrrev_b32 v{a_}, 4, v1"); A(f"v_lshlrev_b32 v{a_}, 11, v{a_}"); A(f"v_and_b32 v{b_}, 15, v1"); A(f"v_lshl_add_u32 v{a_}, v{b_}, 4, v{a_}")
        A("s_lshl_b32 s8, s7, 13"); A("s_lshl_b32 s9, s6, 8"); A("s_add_u32 s8, s8, s9"); A(f"s_add_u32 s8, s8, {WS_Q}")
        gather("q", [(QP, a_, "s8", 0, -1, -1)], psleep, [82])
        A(f"v_permlane16_swap_b32 v{QP}, v{QP+2}"); A(f"v_add_f32 v{QP}, v{QP}, v{QP+2}")
        A(f"v_mov_b32 v{QP+2}, v{QP}"); A(f"v_permlane32_swap_b32 v{QP}, v{QP+2}"); A(f"v_add_f32 v{QP}, v{QP}, v{QP+2}")
        A(f"v_mov_b32 v{QP+2}, v{QP}"); A(f"v_permlane16_swap_b32 v{QP}, v{QP+2}")
        A(f"v_cvt_pk_bf16_f32 v{QP}, v{QP}, v{QP+2}")
        A(f"v_mov_b32_dpp v{QP+2}, v{QP} quad_perm:[1,1,3,3] {DPPF}")
        A(f"v_lshlrev_b32 v{a_}, 3, v1")
        A("s_lshl_b32 s8, s7, 10"); A(f"s_add_u32 s8, s8, {wsb + 0x1E0000}"); A("s_lshl_b32 s9, s6, 7"); A("s_add_u32 s9, s9, s8")
        A("s_mov_b64 exec, 0x5555"); xstore([f"buffer_store_dwordx4 v[{QP}:{QP+3}], v{a_}, {WSR}, s9 offen"]); A("s_mov_b64 exec, -1")
        gather("q2", [(QP + 4, vL16, "s8", 0, -1, -1)], psleep, [82])
        A(f"v_mov_b32 v{QP+5}, v{QP+6}")
        A(f"ds_write_b64 v{a_}, v[{QP+4}:{QP+5}] offset:{L_Q}")
    else:
        A("s_lshl_b32 s8, s7, 13"); A(f"s_add_u32 s8, s8, {WS_Q}"); A("s_add_u32 s9, s8, 4096")
        gather("q", [(QP + 4 * k, vL16, "s9" if k >= 4 else "s8", 1024 * (k & 3), -1, -1) for k in range(8)], psleep,
               [40, 42, 44, 46, 48, 50, 82, 84])
        for hf in range(2):
            r = QP + 4 * hf
            for e in (0, 2):
                A(f"v_add_f32 v{r+e}, v{r+e}, v{r+8+e}"); A(f"v_add_f32 v{r+16+e}, v{r+16+e}, v{r+24+e}")
            for e in (0, 2): A(f"v_add_f32 v{r+e}, v{r+e}, v{r+16+e}")
            A(f"v_cvt_pk_bf16_f32 v{r}, v{r}, v{r+2}")
        A(f"v_lshlrev_b32 v{a_}, 2, v1")
        A(f"ds_write_b32 v{a_}, v{QP} offset:{L_Q}"); A(f"ds_write_b32 v{a_}, v{QP+4} offset:{L_Q + 256}")
    A(f"v_mov_b32 v{a_}, 0"); A(f"v_mov_b32 v{b_}, s12"); A(f"v_mov_b32 v{c_}, 1")
    A(f"ds_write_b32 v{a_}, v{b_} offset:{L_G + 16}")
    A(f"ds_write_b32 v{a_}, v{c_} offset:{L_FLAG}")
    stamp(3)
    TW = 100
    if touch:
        A(f"v_mov_b32 v{a_}, 0"); A("s_mov_b64 exec, 1")
        if "v" in touch:
            srd(40, 20, 0x4000000); A("s_lshl_b32 s13, s7, 21"); A("s_lshl_b32 s14, s6, 18"); A("s_add_u32 s13, s13, s14")
            for k in range(4): A(f"buffer_load_dword v{TW+k}, v{a_}, s[40:43], s13 offen nt"); A("s_add_u32 s13, s13, 65536")
        if "w" in touch:
            srd(44, 24, 3670016); A(f"s_mul_i32 s13, s10, {32 * 896}"); A(f"buffer_load_dword v{TW+4}, v{a_}, s[44:47], s13 offen nt")
            srd(48, 30, 1605632); A(f"s_mul_i32 s13, s10, {16 * 896}"); A(f"buffer_load_dword v{TW+5}, v{a_}, s[48:51], s13 offen nt")
        if "o" in touch:
            srd(SX, 34, 1792); A(f"buffer_load_dword v{TW+6}, v{a_}, s[{SX}:{SX+3}], 0 offen")
        A("s_mov_b64 exec, -1")
    if codepf:
        A("s_getpc_b64 s[14:15]"); lab("L_pc")
        A("s_sub_u32 s14, s14, L_pc-L_tail"); A("s_subb_u32 s15, s15, 0")
        A(f"v_mov_b32 v{b_}, s15"); A(f"v_add_co_u32 v{a_}, vcc, s14, v{vL16}"); A(f"v_addc_co_u32 v{b_}, vcc, 0, v{b_}, vcc")
        for k in range(codepf): A(f"global_load_dwordx4 v[{TW+8+4*k}:{TW+11+4*k}], v[{a_}:{b_}], off offset:{1024 * k}")
    C("gate = sigmoid(sum(x*gate_w)) with the reference's bf16 roundings")
    XG = 28
    A("s_mul_i32 s14, s4, 896"); A(f"v_add_u32 v{a_}, s14, v{vL16}")
    A(f"ds_read_b128 v[{XG}:{XG+3}], v{a_} offset:{L_X}")
    A("s_waitcnt lgkmcnt(0)")
    A(f"v_mov_b32 v{vG}, 0")
    for k in range(4):
        A(f"v_lshlrev_b32 v{a_}, 16, v{XG+k}"); A(f"v_and_b32 v{b_}, 0xffff0000, v{XG+k}")
        A(f"v_lshlrev_b32 v{c_}, 16, v{GW+k}"); A(f"v_and_b32 v{d_}, 0xffff0000, v{GW+k}")
        A(f"v_mul_f32 v{a_}, v{a_}, v{c_}"); A(f"v_mul_f32 v{b_}, v{b_}, v{d_}")
        A(f"v_cvt_pk_bf16_f32 v{a_}, v{a_}, v{b_}")
        A(f"v_lshlrev_b32 v{b_}, 16, v{a_}"); A(f"v_and_b32 v{a_}, 0xffff0000, v{a_}")
        A(f"v_add_f32 v{vG}, v{vG}, v{b_}"); A(f"v_add_f32 v{vG}, v{vG}, v{a_}")
    A("v_cmp_gt_u32 vcc, 56, v1"); A(f"v_cndmask_b32 v{vG}, 0, v{vG}, vcc")
    wave_reduce(A, "add", vG, a_)
    A(f"v_cvt_pk_bf16_f32 v{vG}, v{vG}, v{vG}"); A(f"v_lshlrev_b32 v{vG}, 16, v{vG}")
    A(f"v_mul_f32 v{vG}, 0xbfb8aa3b, v{vG}"); A(f"v_exp_f32 v{vG}, v{vG}"); A(f"v_add_f32 v{vG}, 1.0, v{vG}"); A(f"v_rcp_f32 v{vG}, v{vG}")
    A(f"v_cvt_pk_bf16_f32 v{vG}, v{vG}, v{vG}"); A(f"v_lshlrev_b32 v{vG}, 16, v{vG}")
    A(f"v_sub_f32 v{vOG}, 1.0, v{vG}"); A(f"v_cvt_pk_bf16_f32 v{vOG}, v{vOG}, v{vOG}"); A(f"v_lshlrev_b32 v{vOG}, 16, v{vOG}")
    def checkpoint(step, region, tag):
        lds_wait(L_FLAG + 12, step, tag, a_, b_, sleep=4, cmp="ge")
        A("s_lshl_b32 s9, s10, 7"); A("s_lshl_b32 s14, s4, 14"); A("s_add_u32 s9, s9, s14"); A(f"s_add_u32 s9, s9, {region}")
        A("s_and_b32 s14, s9, 0xffffc7ff"); A(f"v_lshlrev_b32 v{c_}, 11, v1")
        for k in range(4): A(f"v_mov_b32 v{32+k}, s12")
        A("s_mov_b64 exec, 0xff"); A(f"buffer_load_dwordx4 v[40:43], v{c_}, {WSR}, s14 offen sc1")
        A(f"buffer_store_dwordx4 v[32:35], v{vL16}, {WSR}, s9 offen sc1")
        A("s_waitcnt vmcnt(1)"); A("v_cmp_eq_u32 vcc, s12, v41"); A("s_bcnt1_i32_b64 s14, vcc")
        A(f"v_mov_b32 v{a_}, 0"); A(f"v_mov_b32 v{b_}, s14"); A(f"ds_write_b32 v{a_}, v{b_} offset:{L_G + 20}")
        A("s_mov_b64 exec, -1")
    if CK1: checkpoint(CK1, wsb + 0x1E0000, "ck1")
    C("softmax statistics: this workgroup, then the 8 workgroups of this (b, h)")
    lds_wait(L_FLAG + 8, 8, "cnt", a_, b_, sleep=2)
    ST = 32
    def combine(m, l):
        A(f"v_mov_b32 v{a_}, v{m}")
        for ctl in ("quad_perm:[1,0,3,2]", "quad_perm:[2,3,0,1]", "row_half_mirror"): A(f"v_max_f32_dpp v{a_}, v{a_}, v{a_} {ctl} {DPPF}")
        A(f"v_sub_f32 v{b_}, v{m}, v{a_}"); A(f"v_exp_f32 v{b_}, v{b_}"); A(f"v_mul_f32 v{b_}, v{b_}, v{l}")
        for ctl in ("quad_perm:[1,0,3,2]", "quad_perm:[2,3,0,1]", "row_half_mirror"): A(f"v_add_f32_dpp v{b_}, v{b_}, v{b_} {ctl} {DPPF}")
    A(f"v_and_b32 v{c_}, 7, v1"); A(f"v_lshlrev_b32 v{c_}, 3, v{c_}")
    A(f"ds_read_b64 v[{ST+4}:{ST+5}], v{c_} offset:{L_WST}"); A("s_waitcnt lgkmcnt(0)")
    combine(ST + 4, ST + 5)
    A(f"v_mov_b32 v{ST}, v{a_}"); A(f"v_mov_b32 v{ST+1}, s12"); A(f"v_mov_b32 v{ST+2}, v{b_}"); A(f"v_mov_b32 v{ST+3}, s12")
    A("s_lshl_b32 s11, s7, 10"); A(f"s_add_u32 s11, s11, {WS_ST}"); A("s_lshl_b32 s9, s6, 7"); A("s_add_u32 s9, s9, s11")
    if bal and not loc:
        A("s_and_b32 s14, s9, 0xffffc7ff"); A(f"v_lshlrev_b32 v{c_}, 11, v1")
        A("s_mov_b64 exec, 0xff"); A(f"buffer_load_dwordx4 v[{ST+8}:{ST+11}], v{c_}, {WSR}, s14 offen sc1")
    A("s_mov_b64 exec, 0xff"); xstore([f"buffer_store_dwordx4 v[{ST}:{ST+3}], v{vL16}, {WSR}, s9 offen"])
    if bal and not loc:
        A("s_waitcnt vmcnt(1)"); A(f"v_cmp_eq_u32 vcc, s12, v{ST+9}"); A("s_bcnt1_i32_b64 s14, vcc")
        A(f"v_mov_b32 v{a_}, 0"); A(f"v_mov_b32 v{b_}, s14"); A(f"ds_write_b32 v{a_}, v{b_} offset:{L_G + 20}")
    A("s_mov_b64 exec, -1")
    if NS is not None: lds_wait(L_FLAG + 12, NS, "pg2", a_, b_, sleep=8, cmp="ge")
    HP = 28
    A(f"v_mov_b32 v{HP}, 0"); A(f"v_mov_b32 v{HP+2}, 0")
    A("s_cmp_ge_u32 s10, 112"); A("s_cbranch_scc1 L_sv_hz")
    A(f"v_lshrrev_b32 v{a_}, 3, v1"); A(f"v_lshlrev_b32 v{a_}, 9, v{a_}"); A(f"v_and_b32 v{b_}, 7, v1"); A(f"v_lshl_add_u32 v{a_}, v{b_}, 4, v{a_}")
    A("s_lshr_b32 s8, s10, 2"); A("s_mul_i32 s9, s4, 28"); A("s_add_u32 s8, s8, s9"); A(f"s_mul_i32 s8, s8, {HSTR}")
    A("s_and_b32 s9, s10, 3"); A("s_lshl_b32 s9, s9, 7"); A("s_add_u32 s8, s8, s9"); A(f"s_add_u32 s8, s8, {WS_H}")
    gather("h", [(HP, a_, "s8", 0, -1, "0x00ffffff")], psleep, [82])
    lab("L_sv_hz")
    for k in (0, 2): A(f"v_add_f32_dpp v{HP+k}, v{HP+k}, v{HP+k} row_ror:8 {DPPF}")
    for sw in ("v_permlane16_swap_b32", "v_permlane32_swap_b32"):
        for k in (0, 2): A(f"v_mov_b32 v{HP+k+1}, v{HP+k}")
        for k in (0, 2): A(f"{sw} v{HP+k}, v{HP+k+1}")
        for k in (0, 2): A(f"v_add_f32 v{HP+k}, v{HP+k}, v{HP+k+1}")
    for k in (0, 2): A(f"v_max_f32 v{HP+k}, 0, v{HP+k}")
    A(f"v_cvt_pk_bf16_f32 v{HP}, v{HP}, v{HP}"); A(f"v_cvt_pk_bf16_f32 v{HP+1}, v{HP+2}, v{HP+2}")
    A(f"v_lshlrev_b32 v{a_}, 3, v1")
    A("s_mov_b64 exec, 0xff"); A(f"ds_write_b64 v{a_}, v[{HP}:{HP+1}] offset:{L_H}"); A("s_mov_b64 exec, -1")
    stamp(4)
    A(f"v_lshlrev_b32 v{c_}, 7, v1")
    gather("st", [(ST + 4, c_, "s11", 0, "0xff", 0)], 8, [82])
    combine(ST + 4, ST + 6)
    A(f"v_sub_f32 v{vG+2}, 0, v{a_}"); A(f"v_rcp_f32 v{vG+3}, v{b_}"); A(f"v_mul_f32 v{vG+3}, v{vG+3}, v{vG}")
    if loc: A(f"v_mov_b32 v{vG}, s78")
    A(f"v_mov_b32 v{a_}, 0"); A(f"v_mov_b32 v{b_}, 1")
    A("s_mov_b64 exec, 1")
    A(f"ds_write_b128 v{a_}, v[{vG}:{vG+3}] offset:{L_G}")
    A(f"ds_write_b32 v{a_}, v{b_} offset:{L_FLAG + 4}")
    A("s_mov_b64 exec, -1")
    stamp(5)
    if CK3: checkpoint(CK3, wsb + 0x1E8000, "ck3")
    if direct: A("s_waitcnt lgkmcnt(0)")
    else:
        P0, P1 = 40, 44
        A("s_lshl_b32 s9, s7, 14"); A(f"s_add_u32 s9, s9, {WS_O}"); A("s_lshl_b32 s14, s6, 11"); A("s_add_u32 s9, s9, s14")
        A(f"v_and_b32 v{a_}, 15, v1"); A(f"v_bfe_u32 v{b_}, v1, 4, 1"); A(f"v_lshl_add_u32 v{a_}, v{a_}, 1, v{b_}"); A(f"v_lshlrev_b32 v{a_}, 2, v{a_}")
        A("s_waitcnt lgkmcnt(0)"); A("s_barrier")
        if odelay: A(f"s_sleep {odelay}")
        gather("o", [(P0, vL16, "s9", 0, -1, -1), (P1, vL16, "s9", 1024, -1, -1)], osleep, [82, 84])
        A(f"v_add_f32 v{P0}, v{P0}, v{P1}"); A(f"v_add_f32 v{P0+2}, v{P0+2}, v{P1+2}")
        A(f"v_permlane16_swap_b32 v{P0}, v{P0+2}"); A(f"v_add_f32 v{P0}, v{P0}, v{P0+2}")
        A(f"v_mov_b32 v{P0+2}, v{P0}"); A(f"v_permlane32_swap_b32 v{P0}, v{P0+2}"); A(f"v_add_f32 v{P0}, v{P0}, v{P0+2}")
        A(f"v_cvt_pk_bf16_f32 v{P0}, v{P0}, v{P0}")
        A(f"ds_write_b32 v{a_}, v{P0} offset:{L_OL}")
        A("s_waitcnt lgkmcnt(0)"); A("s_barrier")
        stamp(6)
        if two:
            A("s_cmp_ge_u32 s2, 56"); A("s_cbranch_scc1 L_sv_end")
            A("s_cmp_ge_u32 s2, 28"); A("s_cselect_b32 s14, 28, 0"); A(f"s_mov_b32 s9, {WS_Y2[0]}"); A(f"s_cselect_b32 s9, {WS_Y2[1]}, s9")
            A("s_sub_u32 s14, s2, s14"); A("s_lshl_b32 s14, s14, 11"); A("s_add_u32 s9, s9, s14")
            srd(SO, 34, 1792); A("s_lshl_b32 s8, s2, 5"); A(f"v_lshlrev_b32 v{a_}, 2, v1")
            A("s_barrier")
            gather("fin2", [(P0, vL16, "s9", 0, -1, -1), (P1, vL16, "s9", 1024, -1, -1)], fsleep, [82, 84])
            A(f"v_add_f32 v{P0}, v{P0}, v{P1}"); A(f"v_add_f32 v{P0+2}, v{P0+2}, v{P1+2}")
            red3(P0)
            A(f"v_cvt_pk_bf16_f32 v{P0}, v{P0}, v{P0+2}")
            A("s_mov_b64 exec, 0xff"); A(f"buffer_store_dword v{P0}, v{a_}, s[{SO}:{SO+3}], s8 offen")
            A("s_cmp_lg_u32 s2, 0"); A("s_cbranch_scc1 L_sv_noep")
            A("s_mov_b64 exec, 1"); A(f"v_mov_b32 v{b_}, s12"); A(f"s_mov_b32 s13, {wsb}"); A(f"buffer_store_dword v{b_}, v{a_}, {WSR}, s13 offen")
            if lite:
                A("s_memrealtime s[90:91]"); A("s_waitcnt lgkmcnt(0)"); A("v_mov_b32 v8, s88"); A("v_mov_b32 v9, s90")
                A("s_mov_b32 s92, s36"); A("s_mov_b32 s93, s37"); A("s_mov_b32 s94, 256"); A("s_mov_b32 s95, 0x20000")
                A(f"buffer_store_dwordx2 v[8:9], v{a_}, s[92:95], 0 offen")
            lab("L_sv_noep")
            A("s_mov_b64 exec, -1")
            stamp(11)
            lab("L_sv_end")
    dump_stamps(True)
    lab("L_end")
    A("s_endpgm")

    body = pad_hazards(L)
    out = [HEADER.rstrip("\n"),
           "; One fused launch: 256 workgroups (one per CU) x 9 waves; wave 0 = service wave, waves 1-8 stream K/V (split-K decoding).",
           "; Hand-offs between workgroups go through d_ws as 16-byte {data, tag, data, tag} units; tag = (word 0 of d_ws on entry) + constant.",
           "; They use write-through stores unless a run-time check saw every reader on this XCD (then the shared L2 carries them).",
           f"; @launch grid=(256,1,1) block=(576,1,1) lds={lds or LDS_MIN}",
           '.amdgcn_target "amdgcn-amd-amdhsa--gfx950"', ".text", f".globl {NAME}", ".p2align 8", f".type {NAME},@function", f"{NAME}:"]
    out += body
    out += ['.section .rodata,"a"', ".p2align 6", f".amdhsa_kernel {NAME}",
            "  .amdhsa_next_free_vgpr 168", "  .amdhsa_next_free_sgpr 96", "  .amdhsa_accum_offset 168",
            "  .amdhsa_group_segment_fixed_size 0", "  .amdhsa_kernarg_size 96", "  .amdhsa_user_sgpr_count 2",
            "  .amdhsa_user_sgpr_kernarg_segment_ptr 1", "  .amdhsa_system_sgpr_workgroup_id_x 1", ".end_amdhsa_kernel"]
    return "\n".join(out) + "\n"

def masks(A, M, t0, t1):
    A(f"v_and_b32 v{t0}, 1, v1"); A(f"v_lshlrev_b32 v{t0}, 4, v{t0}"); A(f"v_mov_b32 v{t1}, 0xffff"); A(f"v_lshlrev_b32 v{t1}, v{t0}, v{t1}")
    A(f"v_bfe_u32 v{t0}, v1, 1, 2")
    for r in range(4): A(f"v_cmp_eq_u32 s[{80+2*r}:{81+2*r}], {r}, v{t0}")
    for r in range(4): A(f"v_cndmask_b32 v{M[r]}, 0, v{t1}, s[{80+2*r}:{81+2*r}]")

def mask_prime(A, M, t0, t1):
    A(f"v_lshrrev_b32 v{t0}, 1, v1"); A(f"v_xor_b32 v{t0}, v{t0}, v1"); A(f"v_bfe_u32 v{t0}, v{t0}, 3, 1")
    A(f"v_add_u32 v{t0}, -1, v{t0}")
    for r in range(4): A(f"v_and_b32 v{M[r]}, v{M[r]}, v{t0}")

def red2_lane(A, d, t0):
    A(f"v_and_b32 v{t0}, 15, v1"); A(f"v_lshlrev_b32 v{d}, 5, v{t0}")
    A(f"v_lshrrev_b32 v{t0}, 5, v1"); A(f"v_lshl_add_u32 v{d}, v{t0}, 9, v{d}")
    A(f"v_bfe_u32 v{t0}, v1, 4, 1"); A(f"v_lshl_add_u32 v{d}, v{t0}, 4, v{d}")

def wave_reduce(A, op, v, t):
    for ctl in ("quad_perm:[1,0,3,2]", "quad_perm:[2,3,0,1]", "row_half_mirror", "row_mirror"):
        A(f"v_{op}_f32_dpp v{v}, v{v}, v{v} {ctl} {DPPF}")
    for sw in ("v_permlane16_swap_b32", "v_permlane32_swap_b32"):
        A(f"v_mov_b32 v{t}, v{v}"); A(f"{sw} v{v}, v{t}"); A(f"v_{op}_f32 v{v}, v{v}, v{t}")

if __name__ == "__main__":
    kw = eval("dict(%s)" % (sys.argv[2] if len(sys.argv) > 2 else ""))
    open(sys.argv[1], "w").write(gen(**kw))
```
